```python
import torch

def _softmax(x, axis=-1):
    return torch.softmax(x, dim=axis)

def _gelu(x):
    return torch.nn.functional.gelu(x, approximate='tanh')

def _silu(x):
    return torch.nn.functional.silu(x)

def _sigmoid(x):
    return torch.sigmoid(x)

def _layernorm(x, axis=-1, eps=1e-05):
    m = x.mean(dim=axis, keepdim=True)
    v = x.var(dim=axis, keepdim=True, unbiased=False)
    return (x - m) / torch.sqrt(v + eps)

def _scatter_add(tgt, idx, src, axis=0):
    return tgt.clone().index_add_(axis, idx, src)

def _segment_sum(src, seg, n):
    out = torch.zeros((n,) + src.shape[1:], dtype=src.dtype)
    return out.index_add_(0, seg, src)

def _pad(x, pw):
    flat = tuple((v for pair in reversed(pw) for v in pair))
    return torch.nn.functional.pad(x, flat)
kernel_name = 'adaLN_cond__memory_aug_recurrent_mem_tr__swiglu_ffn__prompt'

def setup_inputs():

    _w = lambda a: (lambda t: t.to(torch.bfloat16) if t.is_floating_point() else t)(torch.as_tensor(a))

    def _A_setup():
        B, S, Dm = (1, 2048, 640)
        H, Dh = (32, 128)
        M, seg = (8, 32)
        seg = min(seg, S)
        S = S // seg * seg
        return {'x': _w((lambda *s: torch.randn(*s, dtype=torch.bfloat16) * 0.05)(B, S, Dm)), 'mem0': _w((lambda *s: torch.randn(*s, dtype=torch.bfloat16) * 0.4)(B, M, Dm)), 'Wq': _w((lambda *s: torch.randn(*s, dtype=torch.bfloat16) * 3.2)(Dm, H, Dh) * Dm ** (-0.5)), 'Wk': _w((lambda *s: torch.randn(*s, dtype=torch.bfloat16) * 3.2)(Dm, H, Dh) * Dm ** (-0.5)), 'Wv': _w((lambda *s: torch.randn(*s, dtype=torch.bfloat16) * 0.4)(Dm, H, Dh) * Dm ** (-0.5)), 'Wo': _w((lambda *s: torch.randn(*s, dtype=torch.bfloat16) * 0.4)(H, Dh, Dm) * (H * Dh) ** (-0.5)), 'seg_len': seg}
    _A_in = _A_setup()

    def _B_setup():
        B, S, D, F = (1, 2048, 640, 1728)
        return {'x': _w((lambda *s: torch.randn(*s, dtype=torch.bfloat16) * 0.05)(B, S, D)), 'w_gate': _w((lambda *s: torch.randn(*s, dtype=torch.bfloat16) * 0.05)(D, F)), 'w_up': _w((lambda *s: torch.randn(*s, dtype=torch.bfloat16) * 0.05)(D, F)), 'w_down': _w((lambda *s: torch.randn(*s, dtype=torch.bfloat16) * 0.05)(F, D))}
    _B_in = _B_setup()
    return {'A_x': _A_in['x'], 'A_mem0': _A_in['mem0'], 'A_Wq': _A_in['Wq'], 'A_Wk': _A_in['Wk'], 'A_Wv': _A_in['Wv'], 'A_Wo': _A_in['Wo'], 'A_seg_len': _A_in['seg_len'], 'B_x': _B_in['x'], 'B_w_gate': _B_in['w_gate'], 'B_w_up': _B_in['w_up'], 'B_w_down': _B_in['w_down'], 'c': _w((lambda *s: torch.randn(*s, dtype=torch.bfloat16) * 0.1)(1, 640) * 8.0), 'w_mod': _w((lambda *s: torch.randn(*s, dtype=torch.bfloat16) * 0.1)(640, 6 * 640) * 640 ** (-0.5) * 8.0)}

def reference(A_x, A_mem0, A_Wq, A_Wk, A_Wv, A_Wo, A_seg_len, B_x, B_w_gate, B_w_up, B_w_down, c, w_mod):

    def _A_ref(x, mem0, Wq, Wk, Wv, Wo, seg_len):
        B, S, Dm = x.shape
        H, Dh = (Wq.shape[1], Wq.shape[2])
        M = mem0.shape[1]
        scale = Dh ** (-0.5)
        n_seg = S // seg_len
        L = M + seg_len
        idx = torch.arange(L)
        mask = (idx[:, None] < M) | (idx[:, None] >= idx[None, :])
        mem = mem0
        outs = []
        for s in range(n_seg):
            xs = x[:, s * seg_len:(s + 1) * seg_len, :].clone()
            h = torch.concatenate([mem, xs], axis=1)
            q = torch.einsum('btd,dhe->bhte', h, Wq)
            k = torch.einsum('btd,dhe->bhte', h, Wk)
            v = torch.einsum('btd,dhe->bhte', h, Wv)
            scores = torch.einsum('bhqe,bhke->bhqk', q, k) * scale
            scores = torch.where(mask[None, None], scores, -1000000000.0)
            p = _softmax(scores, axis=-1)
            o = torch.einsum('bhqk,bhke->bhqe', p, v)
            o = torch.einsum('bhte,hed->btd', o, Wo)
            mem = o[:, :M, :].clone()
            outs.append(o[:, M:, :])
        return torch.concatenate(outs, axis=1)

    def _B_ref(x, w_gate, w_up, w_down):
        g = _silu(x @ w_gate)
        u = x @ w_up
        return g * u @ w_down
    x = A_x
    mod = (_silu(c) @ w_mod).reshape(c.shape[0], 6, 1, -1)
    sa, ca, ga, sb, cb, gb = (mod[:, 0].clone(), mod[:, 1].clone(), mod[:, 2].clone(), mod[:, 3].clone(), mod[:, 4].clone(), mod[:, 5].clone())
    h = _layernorm(x, axis=-1) * (1 + ca) + sa
    x = x + ga * _A_ref(h, A_mem0, A_Wq, A_Wk, A_Wv, A_Wo, A_seg_len)
    h = _layernorm(x, axis=-1) * (1 + cb) + sb
    x = x + gb * _B_ref(h, B_w_gate, B_w_up, B_w_down)
    return x
```

```python
import re

_REG = re.compile(r'^(-|abs\()?([vas])(?:(\d+)|\[(\d+):(\d+)\])\)?$')

TRANS = ('v_exp_f32', 'v_log_f32', 'v_rcp_f32', 'v_rsq_f32', 'v_sqrt_f32', 'v_sin_f32', 'v_cos_f32')


def regs_of(tok):
    tok = tok.strip()
    if tok in ('vcc', 'exec', 'm0', 'scc'):
        return [(tok, 0)]
    if tok in ('vcc_lo', 'vcc_hi'):
        return [('vcc', 0)]
    if tok in ('exec_lo', 'exec_hi'):
        return [('exec', 0)]
    m = _REG.match(tok)
    if not m:
        return []
    k = m.group(2)
    if m.group(3) is not None:
        return [(k, int(m.group(3)))]
    return [(k, i) for i in range(int(m.group(4)), int(m.group(5)) + 1)]


def split_ops(s):
    out, depth, cur = [], 0, ''
    for ch in s:
        if ch in '[(':
            depth += 1
        if ch in '])':
            depth -= 1
        if ch == ',' and depth == 0:
            out.append(cur.strip()); cur = ''
        else:
            cur += ch
    if cur.strip():
        out.append(cur.strip())
    return out


class Ins:
    __slots__ = ('mn', 'kind', 'w', 'r', 'rc', 'rab', 'states', 'passes', 'stdata', 'text', 'dpp')


def vr(a, n=1):
    return f'v{a}' if n == 1 else f'v[{a}:{a + n - 1}]'


def ar(a, n=1):
    return f'a{a}' if n == 1 else f'a[{a}:{a + n - 1}]'


def sr(a, n=1):
    return f's{a}' if n == 1 else f's[{a}:{a + n - 1}]'


def wr(idx, n):
    return vr(idx, n) if idx < 256 else ar(idx - 256, n)


class Asm:
    def __init__(self):
        self.lines = []
        self.hist = []
        self.lg_issued = 0
        self.lg_done = 0
        self.vm_issued = 0
        self.vm_done = 0
        self.nlabel = 0
        self.ninstr = 0

    def raw(self, text):
        self.lines.append(text)

    def comment(self, text):
        self.lines.append('    ; ' + text)

    def newlabel(self, base='L'):
        self.nlabel += 1
        return f'{base}_{self.nlabel}'

    def label(self, name, pad=True):
        self.lines.append(f'{name}:')

    def flush_hazards(self):
        need = 0
        dist = 0
        for p in reversed(self.hist):
            if p.kind == 'mfma':
                need = max(need, {4: 8, 8: 12}[p.passes] - dist)
            elif p.kind == 'valu':
                need = max(need, (5 if any(k in ('s', 'vcc', 'exec') for k, _ in p.w) else 2) - dist)
            elif p.kind == 'vmem' and p.stdata:
                need = max(need, 2 - dist)
            dist += p.states
            if dist > 20:
                break
        self._nop(need)

    def _nop(self, n):
        while n > 0:
            k = min(n, 16)
            self._append_parsed(f's_nop {k - 1}')
            n -= k

    def _parse(self, text):
        t = text.split(';')[0].strip()
        parts = t.split(None, 1)
        mn = parts[0]
        rest = parts[1] if len(parts) > 1 else ''
        ops = split_ops(rest)
        mods = ''
        if ops:
            lp = ops[-1].split()
            if len(lp) > 1:
                ops[-1] = lp[0]
                mods = ' '.join(lp[1:])
        i = Ins()
        i.mn = mn; i.text = text; i.w = []; i.r = []; i.rc = []; i.rab = []; i.states = 1
        i.passes = 0; i.stdata = []; i.dpp = ('_dpp' in mn) or ('row_' in mods) or ('quad_perm' in mods)
        R = [regs_of(o) for o in ops]
        if mn == 's_nop':
            i.kind = 'salu'; i.states = int(ops[0], 0) + 1
        elif mn.startswith('v_mfma') or mn.startswith('v_smfmac'):
            i.kind = 'mfma'
            i.passes = 8 if '32x32' in mn else 4
            i.w = R[0]
            i.rab = R[1] + R[2]
            if mn.startswith('v_smfmac'):
                i.rc = R[0]; i.rab = i.rab + R[3]
            else:
                i.rc = R[3]
            i.r = i.rab + i.rc
        elif mn.startswith('v_'):
            i.kind = 'valu'
            if 'permlane' in mn and 'swap' in mn:
                i.w = R[0] + R[1]; i.r = R[0] + R[1]
            elif mn.startswith('v_cmp'):
                i.w = R[0]; i.r = sum(R[1:], [])
                if mn.startswith('v_cmpx'):
                    i.w = i.w + [('exec', 0)]
            elif '_co_' in mn or mn.startswith('v_div_scale') or mn.startswith('v_mad_u64'):
                i.w = R[0] + R[1]; i.r = sum(R[2:], [])
            else:
                i.w = R[0]; i.r = sum(R[1:], [])
                if mn.startswith('v_fmac') or mn.startswith('v_pk_fmac') or mn.startswith('v_dot2c') or i.dpp \
                        or mn.startswith('v_writelane'):
                    i.r = i.r + R[0]
        elif mn.startswith('ds_'):
            i.kind = 'ds'
            if mn.startswith('ds_read') or 'permute' in mn or 'swizzle' in mn:
                i.w = R[0]; i.r = sum(R[1:], [])
            else:
                i.r = sum(R, [])
        elif mn.startswith('buffer_') or mn.startswith('global_'):
            i.kind = 'vmem'
            lds = ' lds' in (' ' + mods) or '_lds_' in mn
            if 'load' in mn and not lds:
                i.w = R[0]; i.r = sum(R[1:], [])
            elif 'atomic' in mn and 'sc0' in mods and mn.startswith('buffer_'):
                i.w = R[0]; i.r = sum(R, [])
            else:
                i.r = sum(R, [])
                if lds:
                    i.r = i.r + [('m0', 0)]
                if 'store' in mn and ('x4' in mn or 'x3' in mn):
                    i.stdata = R[0] if mn.startswith('buffer_') else R[1]
        else:
            i.kind = 'salu'
            if mn.startswith('s_cmp') or mn.startswith('s_bitcmp') or mn.startswith('s_cbranch') or mn in (
                    's_waitcnt', 's_barrier', 's_branch', 's_endpgm', 's_setprio', 's_sleep'):
                i.r = sum(R, [])
            elif R:
                i.w = R[0]; i.r = sum(R[1:], [])
                if 'saveexec' in mn:
                    i.w = i.w + [('exec', 0)]
        return i

    def _need(self, i):
        need = 0
        dist = 0
        rs, ws_ = set(i.r), set(i.w)
        for p in reversed(self.hist):
            pw = set(p.w)
            req = 0
            if p.kind == 'valu':
                vg = {x for x in pw if x[0] in 'va'}
                sg = {x for x in pw if x[0] in ('s', 'vcc')}
                ex = ('exec', 0) in pw
                if i.kind == 'mfma' and vg & rs:
                    req = max(req, 2)
                if i.kind == 'mfma' and ex:
                    req = max(req, 4)
                if i.kind == 'valu':
                    if ('permlane' in i.mn or i.dpp) and vg & rs:
                        req = max(req, 2)
                    if i.dpp and ex:
                        req = max(req, 5)
                    if ('readfirstlane' in i.mn or 'readlane' in i.mn) and vg & rs:
                        req = max(req, 1)
                    if ('readfirstlane' in i.mn or 'readlane' in i.mn or 'writelane' in i.mn or 'permlane' in i.mn) and ex:
                        req = max(req, 4)
                    if p.mn.replace('_e32', '').replace('_e64', '') in TRANS and vg & (rs | ws_):
                        req = max(req, 1)
                    if sg & rs:
                        req = max(req, 4 if ('readlane' in i.mn or 'writelane' in i.mn or 'div_fmas' in i.mn) else 2)
                    if 'div_fmas' in i.mn and ('vcc', 0) in pw:
                        req = max(req, 4)
                    if i.mn.startswith('v_cndmask') and len(i.text.split(',')) == 3 and ('vcc', 0) in pw:
                        req = max(req, 2)
                if i.kind == 'vmem' and sg & rs:
                    req = max(req, 5)
            elif p.kind == 'mfma':
                big = {4: 8, 8: 12}[p.passes]
                if i.kind == 'mfma':
                    if pw & set(i.rab):
                        req = max(req, big)
                    if pw & set(i.rc):
                        if pw == set(i.rc) and p.passes == i.passes:
                            req = max(req, 0)
                        else:
                            req = max(req, big - 2)
                    elif pw & ws_:
                        req = max(req, big)
                else:
                    if pw & (rs | ws_):
                        req = max(req, big)
                    if i.kind == 'valu' and set(p.rc) & ws_:
                        req = max(req, {4: 3, 8: 7}[p.passes])
            elif p.kind == 'vmem' and p.stdata:
                if set(p.stdata) & ws_:
                    req = max(req, 2)
            elif p.kind == 'salu':
                if ('m0', 0) in pw and ('m0', 0) in rs and i.kind in ('vmem', 'ds'):
                    req = max(req, 1)
            need = max(need, req - dist)
            dist += p.states
            if dist > 24:
                break
        return need

    def _append_parsed(self, text):
        i = self._parse(text)
        self.hist.append(i)
        if len(self.hist) > 40:
            self.hist.pop(0)
        self.lines.append('    ' + text)
        self.ninstr += 1
        return i

    def op(self, text):
        i = self._parse(text)
        n = self._need(i)
        if n > 0:
            self._nop(n)
        self.hist.append(i)
        if len(self.hist) > 40:
            self.hist.pop(0)
        self.lines.append('    ' + text)
        self.ninstr += 1
        if i.kind == 'ds':
            self.lg_issued += 1
            return ('lg', self.lg_issued)
        if i.kind == 'vmem' and not i.mn.startswith('buffer_inv') and not i.mn.startswith('buffer_wb'):
            self.vm_issued += 1
            return ('vm', self.vm_issued)
        return None

    __call__ = op

    def wait(self, *toks):
        lg = max([t[1] for t in toks if t and t[0] == 'lg'], default=0)
        vm = max([t[1] for t in toks if t and t[0] == 'vm'], default=0)
        parts = []
        if vm > self.vm_done:
            n = min(self.vm_issued - vm, 63)
            parts.append(f'vmcnt({n})'); self.vm_done = max(self.vm_done, self.vm_issued - n)
        if lg > self.lg_done:
            n = min(self.lg_issued - lg, 15)
            parts.append(f'lgkmcnt({n})'); self.lg_done = max(self.lg_done, self.lg_issued - n)
        if parts:
            self.op('s_waitcnt ' + ' '.join(parts))

    def wait_lg0(self):
        self.op('s_waitcnt lgkmcnt(0)'); self.lg_done = self.lg_issued

    def wait_vm0(self):
        self.op('s_waitcnt vmcnt(0)'); self.vm_done = self.vm_issued

    def wait_all(self):
        self.op('s_waitcnt vmcnt(0) lgkmcnt(0)'); self.vm_done = self.vm_issued; self.lg_done = self.lg_issued

    def forget(self):
        self.lg_done = 0; self.vm_done = 0
        self.lg_issued += 1000; self.vm_issued += 1000

    def branch(self, text):
        self.flush_hazards()
        self.op(text)

    def srd(self, dst, base_lo, base_hi, nbytes, add=0):
        if add:
            self.op(f's_add_u32 s{dst}, s{base_lo}, {add:#x}')
            self.op(f's_addc_u32 s{dst + 1}, s{base_hi}, 0')
        else:
            self.op(f's_mov_b32 s{dst}, s{base_lo}')
            self.op(f's_mov_b32 s{dst + 1}, s{base_hi}')
        self.op(f's_mov_b32 s{dst + 2}, {nbytes:#x}')
        self.op(f's_mov_b32 s{dst + 3}, 0x20000')

    def text(self):
        return '\n'.join(self.lines) + '\n'


def kernel_header(name):
    return f""".text
.globl {name}
.p2align 8
.type {name},@function
{name}:
"""


def kernel_desc(name, vgpr=512, accum=256, sgpr=102):
    return f""".section .rodata,"a"
.p2align 6
.amdhsa_kernel {name}
  .amdhsa_next_free_vgpr {vgpr}
  .amdhsa_next_free_sgpr {sgpr}
  .amdhsa_accum_offset {accum}
  .amdhsa_group_segment_fixed_size 0
  .amdhsa_kernarg_size 128
  .amdhsa_user_sgpr_count 2
  .amdhsa_user_sgpr_kernarg_segment_ptr 1
  .amdhsa_system_sgpr_workgroup_id_x 1
.end_amdhsa_kernel
"""
```

```python
MB = 1 << 20
WS_BYTES = 256 * MB

WS_MEML = 0x000000 + 0x100000
WS_MEMR = 0x200000
WS_PART = 0x400000
WS_FLAG = 0x500000
WS_MOD = 0x5F0000
WS_H = 0x600000
WS_KM = 0x7400000
WS_VM = 0x900000
WS_KX = 0x1100000
WS_VX = 0x2100000
WS_O = 0x3100000
WS_OPART = 0x4100000
WS_X1 = 0x5500000
WS_H2 = 0x5800000
WS_ACT = 0x5B00000
WS_Q = 0x6300000
WS_STAMP = 0x8000000

KA_X, KA_MEM0, KA_WQ, KA_WK, KA_WV, KA_WO, KA_SEG, KA_BX, KA_WG, KA_WU, KA_WD, KA_C, KA_WMOD, KA_OUT, KA_DBG, KA_WS = \
    [8 * i for i in range(16)]
```

```python
import math
import struct
from asmlib import *
from layout import *
from roles import F_KV, F_M

VREG = 34816
MEMB = 4 * VREG
QKB = MEMB + 10240
OB = QKB + 4096
KXB = OB + 2048
assert KXB + 8192 == 163840

SPIN_LIMIT = 1 << 17


def f32bits(x):
    return struct.unpack('<I', struct.pack('<f', x))[0]


def WQ(sig, tau):
    return ar((sig * 2 + tau) * 8, 8)


def wq_idx(sig, tau):
    return 256 + (sig * 2 + tau) * 8


def wk_idx(sig, tau):
    n = sig * 2 + tau
    return 256 + 160 + 8 * n if n < 12 else 88 + 8 * (n - 12)


def wo_idx(k2, tau):
    return 152 + 8 * (k2 * 5 + tau)


def wv_idx(n):
    return 232 + 8 * (n - 17)


V_LANE, V_IDX, V_A, V_L16, V_KX, V_QKW, V_QKR, V_OW0, V_OW1, V_OR, V_P4, V_P1, V_PST, V_PUB, V_PAR, V_T0, V_T1, V_KMO, V_TCH, V_T2 = range(20)
Q0, Q1, K0, K1, VV0, VV1 = 20, 24, 28, 32, 36, 40
AR = 44
PL = 56
VW = 64
SS = 64
VXR = 80

S_WS, S_W, S_DBG = 4, 8, 12
S_T, S_H, S_WV, S_STEP, S_FAST = 16, 17, 18, 19, 20
S_PLOC, S_PREM, S_PS0, S_PS1, S_PS2, S_PA, S_PUBR, S_PUBL, S_KX, S_VX, S_RED, S_NOT1, S_C = range(21, 34)
S_MLO = 34
S_MPUB = 36
S_KM, S_VM, S_FL = 38, 39, 40
S_TMP = 41
S_PTR = 44
S_SPIN = 46
S_TMP2 = 47
S_ST = 48
S_STO = 80
S_KSEL = 96
S_FKV = 97


def emit_rec(A, abort_label, nsteps=64, stamps=False, force_safe=False, coarse=False, backoff=6, ka=3, adelay=(1, 1, 1), mega=False):
    def stamp(i):
        if stamps:
            A(f's_memtime s[{S_ST + 2 * i}:{S_ST + 2 * i + 1}]')

    if coarse:
        A('s_memrealtime s[84:85]')
        A('s_memtime s[86:87]')
    A(f's_load_dwordx2 s[{S_PTR}:{S_PTR + 1}], s[0:1], {KA_WS}')
    A(f's_load_dwordx2 s[{S_TMP + 1}:{S_TMP + 2}], s[0:1], {KA_DBG}')
    A(f'v_lshrrev_b32 v1, 6, v0')
    A(f'v_readfirstlane_b32 s{S_WV}, v1')
    A(f'v_and_b32 v{V_LANE}, 63, v0')
    A('s_waitcnt lgkmcnt(0)')
    A.srd(S_WS, S_PTR, S_PTR + 1, WS_BYTES)
    A.srd(S_DBG, S_TMP + 1, S_TMP + 2, 256)
    A(f's_mov_b32 s{S_SPIN}, 0')
    L = V_LANE
    T0, T1 = V_T0, V_T1
    G, R_, C_ = 20, 21, 22
    A(f'v_lshrrev_b32 v{G}, 4, v{L}')
    A(f'v_bfe_u32 v{R_}, v{L}, 2, 2')
    A(f'v_and_b32 v{C_}, 3, v{L}')
    A(f'v_and_b32 v{T0}, 8, v{L}')
    A(f'v_cmp_eq_u32 vcc, 0, v{T0}')
    A(f'v_mov_b32 v{T0}, 0xeeee')
    A(f'v_mov_b32 v{T1}, 0x4444')
    A(f'v_cndmask_b32 v{V_IDX}, v{T0}, v{T1}, vcc')
    A(f'v_lshlrev_b32 v{T0}, 3, v{L}')
    A(f'v_add_u32 v{V_A}, {MEMB}, v{T0}')
    A(f's_mul_i32 s{S_TMP}, s{S_WV}, {VREG}')
    A(f'v_lshlrev_b32 v{T0}, 4, v{L}')
    A(f'v_add_u32 v{V_L16}, s{S_TMP}, v{T0}')
    A(f'v_add_u32 v{V_KX}, {KXB}, v{T0}')
    A(f's_mul_i32 s{S_TMP}, s{S_WV}, 1280')
    A(f's_add_u32 s{S_TMP}, s{S_TMP}, {MEMB}')
    A(f'v_add_u32 v{V_P4}, s{S_TMP}, v{T0}')
    A(f's_add_u32 s{S_TMP}, s{S_TMP}, 1024')
    A(f'v_lshlrev_b32 v{T0}, 2, v{L}')
    A(f'v_add_u32 v{V_P1}, s{S_TMP}, v{T0}')
    A(f'v_lshrrev_b32 v{T0}, 5, v{L}')
    A(f'v_lshlrev_b32 v{T0}, 8, v{T0}')
    A(f'v_and_b32 v{T1}, 15, v{L}')
    A(f'v_lshl_add_u32 v{T0}, v{T1}, 4, v{T0}')
    A(f'v_and_b32 v{T1}, 1, v{G}')
    A(f'v_lshl_add_u32 v{T0}, v{T1}, 3, v{T0}')
    A(f's_lshl_b32 s{S_TMP}, s{S_WV}, 9')
    A(f's_add_u32 s{S_TMP}, s{S_TMP}, {QKB}')
    A(f'v_add_u32 v{V_QKW}, s{S_TMP}, v{T0}')
    A(f'v_lshlrev_b32 v{T0}, 6, v{G}')
    A(f'v_lshl_add_u32 v{T0}, v{R_}, 4, v{T0}')
    A(f'v_and_b32 v{T1}, 1, v{C_}')
    A(f'v_lshl_add_u32 v{T0}, v{T1}, 3, v{T0}')
    A(f'v_add_u32 v{V_QKR}, {QKB}, v{T0}')
    I_ = 23
    A(f'v_and_b32 v{I_}, 7, v{L}')
    A(f'v_lshrrev_b32 v{T0}, 1, v{G}')
    A(f's_lshl_b32 s{S_TMP}, s{S_WV}, 2')
    A(f'v_add_u32 v{T0}, s{S_TMP}, v{T0}')
    A(f'v_xor_b32 v{T0}, v{T0}, v{I_}')
    A(f'v_lshlrev_b32 v{T0}, 4, v{T0}')
    A(f'v_lshl_add_u32 v{T0}, v{I_}, 8, v{T0}')
    A(f'v_and_b32 v{T1}, 1, v{G}')
    A(f'v_lshl_add_u32 v{T0}, v{T1}, 3, v{T0}')
    A(f'v_add_u32 v{V_OW0}, {OB}, v{T0}')
    A(f'v_xor_b32 v{V_OW1}, 32, v{V_OW0}')
    A(f'v_bfe_u32 v{T0}, v{L}, 3, 1')
    A(f'v_lshl_add_u32 v{T0}, v{G}, 1, v{T0}')
    A(f'v_xor_b32 v{T0}, v{T0}, v{I_}')
    A(f'v_lshlrev_b32 v{T0}, 4, v{T0}')
    A(f'v_lshl_add_u32 v{T0}, v{I_}, 8, v{T0}')
    A(f'v_add_u32 v{V_OR}, {OB}, v{T0}')
    A(f'v_and_b32 v{T0}, 1, v{G}')
    A(f'v_lshlrev_b32 v{T0}, 1, v{T0}')
    A(f'v_lshrrev_b32 v{T1}, 1, v{G}')
    A(f'v_add_u32 v{T0}, v{T0}, v{T1}')
    A(f'v_lshlrev_b32 v{T0}, 1, v{T0}')
    A(f'v_bfe_u32 v{T1}, v{L}, 3, 1')
    A(f'v_add_u32 v{T0}, v{T0}, v{T1}')
    A(f'v_lshlrev_b32 v{T0}, 12, v{T0}')
    A(f'v_lshl_add_u32 v{V_PST}, v{I_}, 4, v{T0}')
    A(f'v_lshlrev_b32 v{T0}, 4, v{I_}')
    A(f'v_and_b32 v{T1}, 1, v{G}')
    A(f'v_lshl_add_u32 v{T0}, v{T1}, 3, v{T0}')
    A(f'v_lshrrev_b32 v{T1}, 1, v{G}')
    A(f'v_lshl_add_u32 v{V_PUB}, v{T1}, 13, v{T0}')
    A(f'v_lshl_add_u32 v{T0}, v{G}, 3, v{I_}')
    A(f'v_lshlrev_b32 v{V_KMO}, 4, v{T0}')
    A(f'v_mov_b32 v{V_PAR}, 0')
    A(f's_lshl_b32 s{S_KSEL}, s{S_T}, 2')
    A(f's_add_u32 s{S_KSEL}, s{S_KSEL}, s{S_WV}')
    A(f's_mov_b32 s{S_MLO}, -1')
    A(f's_mov_b32 s{S_MLO + 1}, 0')
    A(f's_mov_b32 s{S_MPUB}, 0x00ff00ff')
    A(f's_mov_b32 s{S_MPUB + 1}, 0x00ff00ff')
    A(f's_mov_b32 s{S_NOT1}, 0xfffffffe')
    A(f's_mov_b32 s{S_C}, {f32bits((128 ** -0.5) * math.log2(math.e)):#x}')
    A(f's_mul_i32 s{S_TMP2}, s{S_WV}, {VREG}')
    A(f's_mul_i32 s{S_TMP}, s{S_T}, 5120')
    A(f's_add_u32 s{S_PLOC}, s{S_TMP}, {WS_MEML - MEMB:#x}')
    A(f's_xor_b32 s{S_TMP}, s{S_T}, 1')
    A(f's_lshl_b32 s{S_TMP}, s{S_TMP}, 14')
    A(f's_add_u32 s{S_PREM}, s{S_TMP}, {WS_MEMR - MEMB:#x}')
    A(f's_mul_i32 s{S_TMP}, s{S_T}, 163840')
    A(f's_add_u32 s{S_TMP}, s{S_TMP}, {WS_PART:#x}')
    A(f's_mul_i32 s{S_TMP + 1}, s{S_WV}, {10 * 4096}')
    A(f's_add_u32 s{S_PS0}, s{S_TMP}, s{S_TMP + 1}')
    A(f's_lshl_b32 s{S_TMP + 1}, s{S_H}, 7')
    A(f's_add_u32 s{S_PS0}, s{S_PS0}, s{S_TMP + 1}')
    A(f's_add_u32 s{S_PS1}, s{S_PS0}, 32768')
    A(f's_lshl_b32 s{S_RED}, s{S_WV}, 5')
    A(f's_add_u32 s{S_RED}, s{S_RED}, s{S_H}')
    A(f's_min_u32 s{S_TMP + 2}, s{S_RED}, 39')
    A(f's_lshl_b32 s{S_TMP + 1}, s{S_TMP + 2}, 12')
    A(f's_add_u32 s{S_PA}, s{S_TMP}, s{S_TMP + 1}')
    A(f's_sub_u32 s{S_PA}, s{S_PA}, s{S_TMP2}')
    A(f's_lshl_b32 s{S_TMP + 1}, s{S_TMP + 2}, 7')
    A(f's_lshl_b32 s{S_TMP}, s{S_T}, 14')
    A(f's_add_u32 s{S_PUBR}, s{S_TMP}, s{S_TMP + 1}')
    A(f's_add_u32 s{S_PUBR}, s{S_PUBR}, {WS_MEMR + 32768:#x}')
    A(f's_mul_i32 s{S_TMP}, s{S_T}, 5120')
    A(f's_add_u32 s{S_PUBL}, s{S_TMP}, s{S_TMP + 1}')
    A(f's_add_u32 s{S_PUBL}, s{S_PUBL}, {WS_MEML + 10240:#x}')
    A(f's_lshl_b32 s{S_TMP}, s{S_H}, 13')
    A(f's_lshl_b32 s{S_TMP + 1}, s{S_WV}, 11')
    A(f's_add_u32 s{S_TMP}, s{S_TMP}, s{S_TMP + 1}')
    A(f's_sub_u32 s{S_TMP}, s{S_TMP}, s{S_TMP2}')
    A(f's_add_u32 s{S_KX}, s{S_TMP}, {WS_KX:#x}')
    A(f's_add_u32 s{S_VX}, s{S_TMP}, {WS_VX:#x}')
    A(f's_lshl_b32 s{S_TMP}, s{S_H}, 11')
    A(f's_lshl_b32 s{S_TMP + 1}, s{S_WV}, 9')
    A(f's_add_u32 s{S_TMP}, s{S_TMP}, s{S_TMP + 1}')
    A(f's_add_u32 s{S_KM}, s{S_TMP}, {WS_KM:#x}')
    A(f's_add_u32 s{S_VM}, s{S_TMP}, {WS_VM - MEMB:#x}')

    lskip = A.newlabel('L_ann')
    A(f's_cmp_lg_u32 s{S_WV}, 0')
    A.branch(f's_cbranch_scc1 {lskip}')
    A(f's_getreg_b32 s{S_TMP}, hwreg(HW_REG_XCC_ID)')
    A(f's_and_b32 s{S_TMP}, s{S_TMP}, 15')
    A(f's_lshl_b32 s{S_TMP}, 1, s{S_TMP}')
    A(f'v_mov_b32 v{T0}, s{S_TMP}')
    A(f's_lshl_b32 s{S_TMP + 1}, s{S_T}, 2')
    A(f'v_mov_b32 v{T1}, s{S_TMP + 1}')
    A('s_mov_b64 exec, 1')
    A(f'buffer_atomic_or v{T0}, v{T1}, s[{S_DBG}:{S_DBG + 3}], 0 offen sc1')
    A.wait_vm0()
    A(f'v_mov_b32 v{T0}, 1')
    A(f'v_mov_b32 v{T1}, 8')
    A(f'buffer_atomic_add v{T0}, v{T1}, s[{S_DBG}:{S_DBG + 3}], 0 offen sc1')
    A('s_mov_b64 exec, -1')
    A.flush_hazards()
    A.label(lskip)

    A(f's_lshl_b32 s{S_TMP}, s{S_H}, 3')
    A(f's_lshl_b32 s{S_TMP + 1}, s{S_T}, 2')
    A(f's_add_u32 s{S_TMP}, s{S_TMP}, s{S_TMP + 1}')
    A(f's_add_u32 s{S_TMP}, s{S_TMP}, s{S_WV}')
    A(f's_lshl_b32 s{S_TMP}, s{S_TMP}, 4')
    A(f's_add_u32 s{S_TMP}, s{S_TMP}, {WS_MEMR:#x}')
    A(f'v_mov_b32 v{T0}, s{S_TMP}')
    A(f'v_add_u32 v{T1}, 8192, v{T0}')
    A('s_mov_b64 exec, 1')
    A(f's_mov_b32 s{S_ST + 8}, -1')
    A(f's_mov_b32 s{S_ST + 9}, -1')
    A.wait_vm0()
    for rep in range(4):
        for c in range(2):
            A(f's_memtime s[{S_ST}:{S_ST + 1}]')
            A('s_waitcnt lgkmcnt(0)')
            A(f'buffer_store_dword v{T0}, v{T0 + c}, s[{S_WS}:{S_WS + 3}], 0 offen sc1')
            A.wait_vm0()
            A(f's_memtime s[{S_ST + 2}:{S_ST + 3}]')
            A('s_waitcnt lgkmcnt(0)')
            A(f's_sub_u32 s{S_ST + 4}, s{S_ST + 2}, s{S_ST}')
            A(f's_min_u32 s{S_ST + 8 + c}, s{S_ST + 8 + c}, s{S_ST + 4}')
    A('s_mov_b64 exec, -1')
    A(f's_cmp_lt_u32 s{S_ST + 9}, s{S_ST + 8}')
    A(f's_cselect_b32 s{S_TMP}, 8192, 0')
    A(f's_add_u32 s{S_PREM}, s{S_PREM}, s{S_TMP}')
    if stamps:
        A(f's_mov_b32 s{S_STO + 2}, s{S_ST + 8}')
        A(f's_mov_b32 s{S_STO + 3}, s{S_ST + 9}')

    VSRC, VB, VBO = 24, 25, 26
    VOS = 27
    TB = 32
    A(f'v_lshrrev_b32 v{T0}, 2, v{L}')
    A(f'v_lshlrev_b32 v{T0}, 13, v{T0}')
    A(f'v_lshl_add_u32 v{VSRC}, v{C_}, 4, v{T0}')
    A(f'v_and_b32 v{T0}, 1, v{G}')
    A(f'v_lshlrev_b32 v{T0}, 5, v{T0}')
    A(f'v_lshrrev_b32 v{T1}, 1, v{G}')
    A(f'v_lshl_add_u32 v{T0}, v{T1}, 3, v{T0}')
    A(f'v_and_b32 v{T1}, 1, v{R_}')
    A(f'v_lshl_add_u32 v{T0}, v{T1}, 1, v{T0}')
    A(f'v_lshrrev_b32 v{T1}, 1, v{R_}')
    A(f'v_add_u32 v{T0}, v{T1}, v{T0}')
    A(f'v_lshlrev_b32 v{T0}, 6, v{T0}')
    A(f'v_lshl_add_u32 v{T0}, v{C_}, 3, v{T0}')
    A(f'v_add_u32 v{VB}, s{S_TMP2}, v{T0}')
    A(f'v_lshrrev_b32 v{T0}, 1, v{G}')
    A(f'v_lshlrev_b32 v{T0}, 4, v{T0}')
    A(f'v_and_b32 v{T1}, 1, v{G}')
    A(f'v_lshl_add_u32 v{T0}, v{T1}, 2, v{T0}')
    A(f'v_lshrrev_b32 v{T1}, 1, v{R_}')
    A(f'v_lshl_add_u32 v{T0}, v{T1}, 3, v{T0}')
    A(f'v_and_b32 v{T1}, 1, v{R_}')
    A(f'v_add_u32 v{T0}, v{T1}, v{T0}')
    A(f'v_mul_u32_u24 v{T0}, 160, v{T0}')
    A(f'v_lshl_add_u32 v{T0}, v{C_}, 3, v{T0}')
    A(f'v_add_u32 v{VBO}, s{S_TMP2}, v{T0}')
    for n in range(5):
        A(f'v_add_u32 v{T0}, {64 * n}, v{L}')
        A(f'v_mul_u32_u24 v{T1}, 6554, v{T0}')
        A(f'v_lshrrev_b32 v{T1}, 16, v{T1}')
        A(f'v_mul_u32_u24 v{VOS + n}, 10, v{T1}')
        A(f'v_sub_u32 v{T0}, v{T0}, v{VOS + n}')
        A(f'v_mul_u32_u24 v{T1}, 1280, v{T1}')
        A(f'v_lshl_add_u32 v{VOS + n}, v{T0}, 4, v{T1}')

    S_CB, S_R0 = S_ST + 10, S_ST + 11
    S_SO = S_ST + 12
    S_PQ, S_PK, S_PV, S_PO = S_ST + 14, S_ST + 16, S_ST + 18, S_ST + 20
    A(f's_load_dwordx2 s[{S_PQ}:{S_PQ + 1}], s[0:1], {KA_WQ}')
    A(f's_load_dwordx2 s[{S_PK}:{S_PK + 1}], s[0:1], {KA_WK}')
    A(f's_load_dwordx2 s[{S_PV}:{S_PV + 1}], s[0:1], {KA_WV}')
    A(f's_load_dwordx2 s[{S_PO}:{S_PO + 1}], s[0:1], {KA_WO}')
    A(f's_lshl_b32 s{S_CB}, s{S_H}, 8')
    A(f's_lshl_b32 s{S_TMP}, s{S_WV}, 6')
    A(f's_add_u32 s{S_CB}, s{S_CB}, s{S_TMP}')
    A('s_waitcnt lgkmcnt(0)')
    WBYTES = 640 * 8192
    cur = [None]

    def use(ptr):
        if cur[0] != ptr:
            A.srd(S_W, ptr, ptr + 1, WBYTES)
            cur[0] = ptr

    def dma_slot(ptr, sig, pos):
        use(ptr)
        A(f's_cmp_eq_u32 s{S_T}, 0')
        A(f's_cselect_b32 s{S_SO}, {sig}, {(sig + 5) % 10}')
        A(f's_lshl_b32 s{S_SO}, s{S_SO}, 19')
        A(f's_add_u32 s{S_SO}, s{S_SO}, s{S_CB}')
        tok = None
        for n in range(4):
            A(f's_add_u32 m0, s{S_TMP2}, {pos * 4096 + n * 1024}')
            tok = A(f'buffer_load_dwordx4 v{VSRC}, s[{S_W}:{S_W + 3}], s{S_SO} offen lds')
            if n < 3:
                A(f's_add_u32 s{S_SO}, s{S_SO}, {16 * 8192}')
        return tok

    def read_slot(tok, pos, dests):
        A.wait(tok)
        for tau in range(2):
            for u in range(4):
                off = pos * 4096 + (16 * (u >> 1) + 4 * (u & 1)) * 64 + tau * 32
                A(f'ds_read_b64_tr_b16 {wr(dests[tau] + 2 * u, 2)}, v{VB} offset:{off}')

    def dma_wo():
        use(S_PO)
        A(f's_mul_i32 s{S_SO}, s{S_H}, 163840')
        A(f's_mul_i32 s{S_TMP}, s{S_T}, 640')
        A(f's_add_u32 s{S_SO}, s{S_SO}, s{S_TMP}')
        A(f's_mul_i32 s{S_TMP}, s{S_WV}, 160')
        A(f's_add_u32 s{S_SO}, s{S_SO}, s{S_TMP}')
        tok = None
        for blk in range(4):
            for n in range(5):
                A(f's_add_u32 m0, s{S_TMP2}, {(blk * 5 + n) * 1024}')
                tok = A(f'buffer_load_dwordx4 v{VOS + n}, s[{S_W}:{S_W + 3}], s{S_SO} offen lds')
            if blk < 3:
                A(f's_add_u32 s{S_SO}, s{S_SO}, {32 * 1280}')
        return tok

    def read_wo(tok):
        A.wait(tok)
        for k2 in range(2):
            for tau in range(5):
                for u in range(4):
                    off = (64 * k2 + 32 * (u >> 1) + 2 * (u & 1)) * 160 + tau * 32
                    A(f'ds_read_b64_tr_b16 {wr(wo_idx(k2, tau) + 2 * u, 2)}, v{VBO} offset:{off}')

    def relayout_v(tok, pos):
        read_slot(tok, pos, [TB, TB + 8])
        A.wait_lg0()
        for tau in range(2):
            for hf in range(2):
                A(f'ds_write_b128 v{V_L16}, v[{TB + 8 * tau + 4 * hf}:{TB + 8 * tau + 4 * hf + 3}] '
                  f'offset:{(2 * pos + tau) * 2048 + hf * 1024}')

    tk = {}
    for sig in range(8):
        tk['q', sig] = dma_slot(S_PQ, sig, sig)
    seq_after = [('q', 8, 0), ('q', 9, 1)] + [('k', s, s + 2) for s in range(6)]
    ptrs = {'q': S_PQ, 'k': S_PK, 'v': S_PV}
    posof = {('q', s): s for s in range(8)}
    for sig in range(8):
        read_slot(tk['q', sig], sig, [wq_idx(sig, 0), wq_idx(sig, 1)])
        A.wait_lg0()
        m, s2, pos = seq_after[sig]
        tk[m, s2] = dma_slot(ptrs[m], s2, pos); posof[m, s2] = pos
    order2 = [('q', 8), ('q', 9)] + [('k', s) for s in range(6)]
    next2 = [('k', 6, 0), ('k', 7, 1), ('k', 8, 2), ('k', 9, 3), ('v', 9, 4), ('v', 8, 5), ('v', 6, 6), ('v', 7, 7)]
    idxf = {'q': wq_idx, 'k': wk_idx}
    for (m, sig), (m2, s2, pos) in zip(order2, next2):
        assert posof[m, sig] == pos
        read_slot(tk[m, sig], pos, [idxf[m](sig, 0), idxf[m](sig, 1)])
        A.wait_lg0()
        tk[m2, s2] = dma_slot(ptrs[m2], s2, pos); posof[m2, s2] = pos
    for sig in range(6, 10):
        read_slot(tk['k', sig], sig - 6, [wk_idx(sig, 0), wk_idx(sig, 1)])
    read_slot(tk['v', 9], 4, [wv_idx(18), wv_idx(19)])
    A.wait_lg0()
    tko = dma_wo()
    read_slot(tk['v', 8], 5, [TB, wv_idx(17)])
    A.wait_lg0()
    for hf in range(2):
        A(f'ds_write_b128 v{V_L16}, v[{TB + 4 * hf}:{TB + 4 * hf + 3}] offset:{16 * 2048 + hf * 1024}')
    tk['v', 5] = dma_slot(S_PV, 5, 5)
    A.wait_lg0()
    relayout_v(tk['v', 6], 6)
    A.wait_lg0()
    relayout_v(tk['v', 7], 7)
    read_wo(tko)
    A.wait_lg0()
    for sig in range(5):
        tk['v', sig] = dma_slot(S_PV, sig, sig)
    relayout_v(tk['v', 5], 5)
    for sig in range(5):
        A.wait_lg0()
        relayout_v(tk['v', sig], sig)

    A(f's_load_dwordx2 s[{S_PQ}:{S_PQ + 1}], s[0:1], {KA_MEM0}')
    A('s_waitcnt lgkmcnt(0)')
    A.lg_done = A.lg_issued
    A.srd(S_W, S_PQ, S_PQ + 1, 8 * 1280)
    cur[0] = None
    for j in range(3):
        A(f's_mul_i32 s{S_TMP}, s{S_WV}, 160')
        A(f's_add_u32 s{S_TMP}, s{S_TMP}, {64 * j}')
        A(f'v_add_u32 v{T0}, s{S_TMP}, v{L}')
        A(f's_mul_i32 s{S_TMP + 1}, s{S_T}, 320')
        A(f'v_add_u32 v{T1}, s{S_TMP + 1}, v{T0}')
        A(f'v_subrev_u32 v24, 640, v{T1}')
        A(f'v_min_u32 v{T1}, v{T1}, v24')
        A(f'v_lshlrev_b32 v{T1}, 1, v{T1}')
        A(f'v_lshlrev_b32 v{T0}, 4, v{T0}')
        A(f'v_add_u32 v{T0}, {MEMB}, v{T0}')
        if j == 2:
            A(f's_mov_b64 exec, s[{S_MLO}:{S_MLO + 1}]')
        toks = []
        for i in range(8):
            A(f's_mov_b32 s{S_TMP}, {i * 1280}')
            toks.append(A(f'buffer_load_ushort v{32 + i}, v{T1}, s[{S_W}:{S_W + 3}], s{S_TMP} offen'))
        for i in range(8):
            A.wait(toks[i])
            A(f'ds_write_b16 v{T0}, v{32 + i} offset:{2 * i}')
        if j == 2:
            A('s_mov_b64 exec, -1')
        A.wait_lg0()

    lp = A.newlabel('L_mode')
    ld = A.newlabel('L_mode_done')
    A(f'v_mov_b32 v{T0}, 0')
    A.flush_hazards()
    A.label(lp)
    A(f'buffer_load_dwordx4 v[24:27], v{T0}, s[{S_DBG}:{S_DBG + 3}], 0 offen sc1')
    A.wait_vm0()
    A(f'v_readfirstlane_b32 s{S_TMP}, v26')
    A(f's_cmp_ge_u32 s{S_TMP}, 64')
    A.branch(f's_cbranch_scc1 {ld}')
    A(f's_add_u32 s{S_SPIN}, s{S_SPIN}, 1')
    A(f's_cmp_lt_u32 s{S_SPIN}, {SPIN_LIMIT}')
    A.branch(f's_cbranch_scc1 {lp}')
    A.branch(f's_branch {abort_label}')
    A.label(ld)
    if mega:
        lp2 = A.newlabel('L_init'); ld2 = A.newlabel('L_init_done')
        A.label(lp2)
        A(f'buffer_load_dword v24, v{T0}, s[{S_DBG}:{S_DBG + 3}], 0 offen offset:16 sc1')
        A.wait_vm0()
        A(f'v_readfirstlane_b32 s{S_TMP}, v24')
        A(f's_cmp_ge_u32 s{S_TMP}, 128')
        A.branch(f's_cbranch_scc1 {ld2}')
        A('s_sleep 4')
        A(f's_add_u32 s{S_SPIN}, s{S_SPIN}, 1')
        A(f's_cmp_lt_u32 s{S_SPIN}, {SPIN_LIMIT}')
        A.branch(f's_cbranch_scc1 {lp2}')
        A.branch(f's_branch {abort_label}')
        A.label(ld2)
    A(f'buffer_load_dwordx4 v[24:27], v{T0}, s[{S_DBG}:{S_DBG + 3}], 0 offen sc1')
    A.wait_vm0()
    A(f'v_readfirstlane_b32 s{S_TMP}, v24')
    A(f'v_readfirstlane_b32 s{S_TMP + 1}, v25')
    A(f's_bcnt1_i32_b32 s{S_TMP}, s{S_TMP}')
    A(f's_bcnt1_i32_b32 s{S_TMP + 1}, s{S_TMP + 1}')
    A(f's_add_u32 s{S_TMP}, s{S_TMP}, s{S_TMP + 1}')
    A(f's_cmp_eq_u32 s{S_TMP}, 2')
    A(f's_cselect_b32 s{S_FAST}, {0 if force_safe else 1}, 0')

    WS = f's[{S_WS}:{S_WS + 3}]'

    def issue_kx_vx():
        A(f's_lshl_b32 s{S_TMP}, s{S_WV}, 11')
        A(f's_add_u32 m0, s{S_TMP}, {KXB}')
        for n in range(2):
            A(f'buffer_load_dwordx4 v{V_L16}, {WS}, s{S_KX} offen offset:{n * 1024} sc1 lds')
        A(f's_add_u32 s{S_KX}, s{S_KX}, {32 * 8192}')

    def kv_wait(first):
        if not mega:
            return
        lp = A.newlabel('L_kv'); ld = A.newlabel('L_kvd')
        if not first:
            A(f'v_cmp_ne_u32 vcc, 1, v{V_T2}')
            A(f's_cbranch_vccz {ld}')
        A.label(lp)
        A(f'buffer_load_dword v{V_T2}, off, {WS}, s{S_FKV} sc1')
        A.wait_vm0()
        A(f'v_cmp_ne_u32 vcc, 1, v{V_T2}')
        A(f's_cbranch_vccz {ld}')
        A('s_sleep 2')
        A(f's_add_u32 s{S_SPIN}, s{S_SPIN}, 1')
        A(f's_cmp_lt_u32 s{S_SPIN}, {SPIN_LIMIT}')
        A(f's_cbranch_scc1 {lp}')
        A(f's_branch {abort_label}')
        A.label(ld)
        A(f's_add_u32 s{S_FKV}, s{S_FKV}, 128')

    def m_flag():
        if not mega:
            return
        A(f'v_mov_b32 v{T0}, 1')
        A('s_mov_b64 exec, 1')
        A(f'buffer_store_dword v{T0}, off, {WS}, s{S_FL} sc1')
        A('s_mov_b64 exec, -1')
        A(f's_add_u32 s{S_FL}, s{S_FL}, 1024')

    if mega:
        A(f's_lshl_b32 s{S_TMP}, s{S_H}, 2')
        A(f's_add_u32 s{S_FKV}, s{S_TMP}, {F_KV:#x}')
        A(f's_lshl_b32 s{S_TMP}, s{S_H}, 5')
        A(f's_lshl_b32 s{S_TMP + 1}, s{S_KSEL}, 2')
        A(f's_add_u32 s{S_FL}, s{S_TMP}, s{S_TMP + 1}')
        A(f's_add_u32 s{S_FL}, s{S_FL}, {F_M:#x}')

    vxt = []

    def issue_vx():
        for n in range(2):
            t = A(f'buffer_load_dwordx4 v[{VXR + 4 * n}:{VXR + 4 * n + 3}], v{V_L16}, {WS}, s{S_VX} offen offset:{n * 1024} sc1')
        vxt.append(t)
        A(f's_add_u32 s{S_VX}, s{S_VX}, {32 * 8192}')

    def touch_next():
        A(f'buffer_load_dword v{V_T2}, v{V_TCH}, {WS}, s{S_KX} offen sc1')

    A(f'v_and_b32 v{T0}, 15, v{L}')
    A(f'v_lshlrev_b32 v{T0}, 7, v{T0}')
    A(f'v_bfe_u32 v{T1}, v{L}, 4, 1')
    A(f'v_lshlrev_b32 v{T1}, 24, v{T1}')
    assert WS_VX - WS_KX == 1 << 24
    A(f'v_add3_u32 v{V_TCH}, v{T0}, v{T1}, s{S_TMP2}')

    kv_wait(True)
    issue_kx_vx()
    A(f's_mov_b32 s{S_STEP}, 0')
    A.wait_all()
    if stamps:
        A(f's_lshl_b32 s{S_TMP}, s{S_H}, 3')
        A(f's_lshl_b32 s{S_TMP + 1}, s{S_T}, 2')
        A(f's_add_u32 s{S_TMP}, s{S_TMP}, s{S_TMP + 1}')
        A(f's_add_u32 s{S_TMP}, s{S_TMP}, s{S_WV}')
        A(f's_mul_i32 s{S_STO}, s{S_TMP}, {64 * 64}')
        A(f's_add_u32 s{S_STO}, s{S_STO}, {WS_STAMP:#x}')
    if coarse:
        A('s_memrealtime s[88:89]')
        A('s_memtime s[90:91]')
        A('s_waitcnt lgkmcnt(0)')
    top = A.newlabel('L_step')
    done = A.newlabel('L_rec_done')
    A.flush_hazards()
    A.label(top)
    A.forget()

    def poll_issue(soff, base):
        A(f'buffer_load_dwordx4 v[{base}:{base + 3}], v{V_P4}, {WS}, s{soff} offen sc1')
        A(f'buffer_load_dword v{base + 4}, v{V_P1}, {WS}, s{soff} offen sc1')

    def poll_loop(soff, bases, half, preissued, gap=0):
        k = len(bases)
        lp = A.newlabel('L_poll'); ld = A.newlabel('L_polld')
        if not preissued:
            for j, b in enumerate(bases):
                poll_issue(soff, b)
                if gap and j < k - 1:
                    A(f's_nop {gap}')
        A.label(lp)
        wins = []
        for j, base in enumerate(bases):
            A(f's_waitcnt vmcnt({2 * (k - 1)})')
            A(f'v_max3_u32 v{T0}, v{base}, v{base + 1}, v{base + 2}')
            A(f'v_max3_u32 v{T0}, v{T0}, v{base + 3}, v{base + 4}')
            A(f'v_cmp_eq_u32 vcc, -1, v{T0}')
            lw = A.newlabel('L_pollw'); wins.append(lw)
            A(f's_cbranch_vccz {lw}')
            poll_issue(soff, base)
        A(f's_add_u32 s{S_SPIN}, s{S_SPIN}, 1')
        A(f's_cmp_lt_u32 s{S_SPIN}, {SPIN_LIMIT}')
        A(f's_cbranch_scc1 {lp}')
        A(f's_branch {abort_label}')
        for j, base in enumerate(bases):
            A.label(wins[j])
            A(f'ds_write_b128 v{V_P4}, v[{base}:{base + 3}] offset:{half * 5120}')
            A(f'ds_write_b32 v{V_P1}, v{base + 4} offset:{half * 5120}')
            if j < k - 1:
                A(f's_branch {ld}')
        A.label(ld)

    def a_read(sig, slot):
        t = None
        for rho in range(2):
            t = A(f'ds_read_b64_tr_b16 v[{AR + 4 * slot + 2 * rho}:{AR + 4 * slot + 2 * rho + 1}], v{V_A} offset:{sig * 1024 + rho * 512}')
        return t

    def smf(d, a, b):
        A(f'v_smfmac_f32_16x16x64_bf16 v[{d}:{d + 3}], v[{a}:{a + 3}], {wr(b, 8)}, v{V_IDX}')

    def vw_load(n):
        b = VW + 8 * (n % 2)
        A(f'ds_read_b128 v[{b}:{b + 3}], v{V_L16} offset:{n * 2048}')
        return A(f'ds_read_b128 v[{b + 4}:{b + 7}], v{V_L16} offset:{n * 2048 + 1024}')

    def vw_reg(n):
        return wv_idx(n) if n >= 17 else VW + 8 * (n % 2)

    def zero(base, n):
        for r in range(base, base + n, 2):
            A(f'v_mov_b64 v[{r}:{r + 1}], 0')

    stamp(0)
    zero(Q0, 24)
    wt = {0: vw_load(0), 1: vw_load(1)}
    l_s0a = A.newlabel('L_s0a')
    A(f's_cmp_eq_u32 s{S_STEP}, 0')
    A(f's_cbranch_scc1 {l_s0a}')
    poll_loop(S_PLOC, [PL, VXR], 0, False, gap=15)
    A.label(l_s0a)
    A.wait_lg0()
    A('s_barrier')
    stamp(1)
    at = {}
    for j in range(3):
        at[j] = a_read(j, j)
    for sig in range(5):
        a = AR + 4 * (sig % 3)
        A.wait(at[sig])
        smf(Q0, a, wq_idx(sig, 0))
        smf(Q1, a, wq_idx(sig, 1))
        smf(K0, a, wk_idx(sig, 0))
        smf(K1, a, wk_idx(sig, 1))
        for tau in range(2):
            n = 2 * sig + tau
            A.wait(wt[n])
            smf(VV0 + 4 * tau, a, vw_reg(n))
            wt[n + 2] = vw_load(n + 2)
        if sig + 3 < 5:
            at[sig + 3] = a_read(sig + 3, sig % 3)
        if sig == 1:
            poll_issue(S_PREM, PL)
        if sig == 3:
            poll_issue(S_PREM, VXR)
    stamp(2)
    l_s0b = A.newlabel('L_s0b')
    A(f's_cmp_eq_u32 s{S_STEP}, 0')
    A(f's_cbranch_scc1 {l_s0b}')
    poll_loop(S_PREM, [PL, VXR], 1, True)
    A.label(l_s0b)
    A.wait_lg0()
    A('s_barrier')
    stamp(3)
    for j in range(5):
        if j == 3:
            A.wait_vm0()
        at[5 + j] = a_read(5 + j, j)
    issue_vx()
    A(f's_add_u32 s{S_PLOC}, s{S_PLOC}, 10240')
    A(f's_add_u32 s{S_PREM}, s{S_PREM}, 32768')
    tch = [f'buffer_load_dword v{V_T2}, v{V_TCH}, {WS}, s{S_KX} offen sc1',
           f'buffer_load_dword v{V_T2}, v{V_P4}, {WS}, s{S_PLOC} offen sc1',
           f'buffer_load_dword v{V_T2}, v{V_P1}, {WS}, s{S_PLOC} offen sc1',
           f'buffer_load_dword v{V_T2}, v{V_P4}, {WS}, s{S_PREM} offen sc1',
           f'buffer_load_dword v{V_T2}, v{V_P1}, {WS}, s{S_PREM} offen sc1']
    for j in range(5):
        A.wait(at[5 + j])
        smf(Q0, AR + 4 * j, wq_idx(5 + j, 0))
        smf(Q1, AR + 4 * j, wq_idx(5 + j, 1))
        A(tch[j])
    A(f'buffer_load_dword v{V_T2}, off, {WS}, s{S_FKV if mega else S_PLOC} sc1')

    def halfsum_ops(x, y, off):
        ops = []
        for r in range(4):
            ops.append(f'v_permlane32_swap_b32 v{x + r}, v{y + r}')
        for r in range(0, 4, 2):
            ops.append(f'v_pk_add_f32 v[{x + r}:{x + r + 1}], v[{x + r}:{x + r + 1}], v[{y + r}:{y + r + 1}]')
        ops.append(f'v_cvt_pk_bf16_f32 v{y}, v{x}, v{x + 1}')
        ops.append(f'v_cvt_pk_bf16_f32 v{y + 1}, v{x + 2}, v{x + 3}')
        if off is not None:
            ops.append(f'ds_write_b64 v{V_QKW}, v[{y}:{y + 1}] offset:{off}')
        return ops

    fill = halfsum_ops(Q0, Q1, 0)
    cnt = 0
    for j in range(5):
        for tau in range(2):
            smf(K0 + 4 * tau, AR + 4 * j, wk_idx(5 + j, tau))
            cnt += 1
            if cnt >= 4:
                for _ in range(2):
                    if fill:
                        A(fill.pop(0))
    assert not fill
    stamp(4)
    QF = 20
    Sm, S0, S1 = SS, SS + 4, SS + 8
    kslots = [AR + 4 * j for j in range(5)] + [76]
    kt = {}; kreg = {}

    def kread(kap, which, b):
        if which == 0:
            for rho in range(2):
                t = A(f'ds_read_b64_tr_b16 v[{b + 2 * rho}:{b + 2 * rho + 1}], v{V_QKR} offset:{2048 + kap * 512 + rho * 256}')
        else:
            t = A(f'ds_read_b128 v[{b}:{b + 3}], v{V_KX} offset:{((which - 1) * 4 + kap) * 1024}')
        kt[kap, which] = t; kreg[kap, which] = b

    fill = halfsum_ops(K0, K1, 2048)
    qt = []
    for n in range(10, 20):
        j = (n - 10) // 2; tau = n & 1
        if n < 17:
            A.wait(wt[n])
        smf(VV0 + 4 * tau, AR + 4 * j, vw_reg(n))
        if n + 2 < 17:
            wt[n + 2] = vw_load(n + 2)
        if 12 <= n:
            for _ in range(3):
                if fill:
                    A(fill.pop(0))
        if n == 11:
            kread(0, 1, kslots[0])
        if n == 13:
            kread(0, 2, kslots[1])
        if n == 15:
            assert not fill
            A.wait_lg0()
            A('s_barrier')
            stamp(5)
            for kap in range(4):
                for rho in range(2):
                    t = A(f'ds_read_b64_tr_b16 v[{QF + 4 * kap + 2 * rho}:{QF + 4 * kap + 2 * rho + 1}], v{V_QKR} offset:{kap * 512 + rho * 256}')
                qt.append(t)
                if kap == 0:
                    kread(0, 0, kslots[2])
        if n == 16:
            kread(1, 1, kslots[5])
        if n == 17:
            kread(1, 2, kslots[3])
        if n == 19:
            kread(1, 0, kslots[4])
    stamp(6)
    VM, VMA, VMB = VV1, VV0, VV0 + 2
    fill = halfsum_ops(VV0, VV1, None)
    for r in range(2):
        fill.append(f'v_cndmask_b32 v{VMA + r}, 0, v{VM + r}, s[{S_MLO}:{S_MLO + 1}]')
        fill.append(f'v_cndmask_b32 v{VMB + r}, v{VM + r}, 0, s[{S_MLO}:{S_MLO + 1}]')
    cnt = 0
    for kap in range(4):
        for which, acc in ((1, S0), (2, S1), (0, Sm)):
            b = kreg[kap, which]
            A.wait(qt[kap], kt[kap, which])
            c = '0' if kap == 0 else f'v[{acc}:{acc + 3}]'
            A(f'v_mfma_f32_16x16x32_bf16 v[{acc}:{acc + 3}], v[{b}:{b + 3}], v[{QF + 4 * kap}:{QF + 4 * kap + 3}], {c}')
            if which == 0:
                lnk = A.newlabel('L_nk')
                A(f's_cmp_lg_u32 s{S_KSEL}, {kap}')
                A(f's_cbranch_scc1 {lnk}')
                A(f's_mov_b64 exec, s[{S_MPUB}:{S_MPUB + 1}]')
                A(f'buffer_store_dwordx4 v[{b}:{b + 3}], v{V_KMO}, {WS}, s{S_KM} offen sc1')
                A('s_mov_b64 exec, -1')
                A.label(lnk)
                A.hist = [h_ for h_ in A.hist if h_.kind == 'mfma' or h_.kind == 'valu']
            if kap + 2 < 4:
                kread(kap + 2, which, b)
            cnt += 1
            if cnt >= 4:
                for _ in range(2):
                    if fill:
                        A(fill.pop(0))
    assert not fill
    lnv = A.newlabel('L_nv')
    A(f's_cmp_eq_u32 s{S_T}, 0')
    A(f's_cbranch_scc1 {lnv}')
    A(f'buffer_store_dwordx2 v[{VM}:{VM + 1}], v{V_A}, {WS}, s{S_VM} offen sc1')
    A.label(lnv)
    A.hist = [h_ for h_ in A.hist if h_.kind == 'mfma' or h_.kind == 'valu']
    A(f's_add_u32 s{S_KM}, s{S_KM}, {32 * 2048}')
    A(f's_add_u32 s{S_VM}, s{S_VM}, {32 * 2048}')
    A(f's_cmp_eq_u32 s{S_STEP}, {nsteps - 1}')
    A(f's_cbranch_scc1 {done}')
    stamp(7)
    M_, M2 = T0, T1
    A(f'v_max3_f32 v{M_}, v{SS + 4}, v{SS + 5}, v{SS + 6}')
    A(f'v_max3_f32 v{M2}, v{SS + 7}, v{SS + 8}, v{SS + 9}')
    A(f'v_max3_f32 v{M_}, v{M_}, v{SS + 10}, v{SS + 11}')
    A(f'v_max3_f32 v{M2}, v{M2}, v{SS}, v{SS + 1}')
    A(f'v_max3_f32 v{M_}, v{M_}, v{SS + 2}, v{SS + 3}')
    A(f'v_max_f32 v{M_}, v{M_}, v{M2}')
    for sw in ('v_permlane16_swap_b32', 'v_permlane32_swap_b32'):
        A(f'v_mov_b32 v{M2}, v{M_}')
        A(f'{sw} v{M_}, v{M2}')
        A(f'v_max_f32 v{M_}, v{M_}, v{M2}')
    A(f'v_mul_f32 v{M_}, s{S_C}, v{M_}')
    P01, PM = 28, 32
    O0, O1 = 20, 24
    for r in range(4, 12):
        A(f'v_fma_f32 v{SS + r}, v{SS + r}, s{S_C}, -v{M_}')
    for r in range(4, 12):
        A(f'v_exp_f32 v{SS + r}, v{SS + r}')
    for r in range(4):
        A(f'v_fma_f32 v{SS + r}, v{SS + r}, s{S_C}, -v{M_}')
    for j in range(4):
        A(f'v_cvt_pk_bf16_f32 v{P01 + j}, v{S0 + 2 * j}, v{S0 + 2 * j + 1}')
    A(f'v_exp_f32 v{SS}, v{SS}')
    A(f'v_exp_f32 v{SS + 1}, v{SS + 1}')
    A('s_waitcnt vmcnt(7)')
    A(f'v_mfma_f32_16x16x32_bf16 v[{O0}:{O0 + 3}], v[{VXR}:{VXR + 3}], v[{P01}:{P01 + 3}], 0')
    A(f'v_exp_f32 v{SS + 2}, v{SS + 2}')
    A(f'v_exp_f32 v{SS + 3}, v{SS + 3}')
    A(f'v_mfma_f32_16x16x32_bf16 v[{O1}:{O1 + 3}], v[{VXR + 4}:{VXR + 7}], v[{P01}:{P01 + 3}], 0')
    for j in range(2):
        A(f'v_cvt_pk_bf16_f32 v{PM + j}, v{Sm + 2 * j}, v{Sm + 2 * j + 1}')
    A(f'v_pk_add_f32 v[{S0}:{S0 + 1}], v[{S0}:{S0 + 1}], v[{S0 + 2}:{S0 + 3}]')
    A(f'v_pk_add_f32 v[{S1}:{S1 + 1}], v[{S1}:{S1 + 1}], v[{S1 + 2}:{S1 + 3}]')
    A(f'v_mfma_f32_16x16x16_bf16 v[{O0}:{O0 + 3}], v[{VMA}:{VMA + 1}], v[{PM}:{PM + 1}], v[{O0}:{O0 + 3}]')
    A(f'v_pk_add_f32 v[{Sm}:{Sm + 1}], v[{Sm}:{Sm + 1}], v[{Sm + 2}:{Sm + 3}]')
    A(f'v_pk_add_f32 v[{S0}:{S0 + 1}], v[{S0}:{S0 + 1}], v[{S1}:{S1 + 1}]')
    A(f'v_mfma_f32_16x16x16_bf16 v[{O1}:{O1 + 3}], v[{VMB}:{VMB + 1}], v[{PM}:{PM + 1}], v[{O1}:{O1 + 3}]')
    A(f'v_add_f32 v{M2}, v{Sm}, v{Sm + 1}')
    A(f'v_add_f32 v{M_}, v{S0}, v{S0 + 1}')
    A(f'v_fmac_f32 v{M_}, 0.5, v{M2}')
    for sw in ('v_permlane16_swap_b32', 'v_permlane32_swap_b32'):
        A(f'v_mov_b32 v{M2}, v{M_}')
        A(f'{sw} v{M_}, v{M2}')
        A(f'v_add_f32 v{M_}, v{M_}, v{M2}')
    A(f'v_rcp_f32 v{M_}, v{M_}')
    for tau in range(2):
        o = O0 + 4 * tau
        for r in range(4):
            A(f'v_mul_f32 v{o + r}, v{o + r}, v{M_}')
        A(f'v_cvt_pk_bf16_f32 v{o}, v{o}, v{o + 1}')
        A(f'v_cvt_pk_bf16_f32 v{o + 1}, v{o + 2}, v{o + 3}')
        A(f'ds_write_b64 v{V_OW0 + tau}, v[{o}:{o + 1}]')
    OA = 44
    zero(OA, 20)
    A.wait_lg0()
    A('s_barrier')
    stamp(8)
    OF = 20
    ot = [A(f'ds_read_b128 v[{OF + 4 * k2}:{OF + 4 * k2 + 3}], v{V_OR} offset:{128 * k2}') for k2 in range(2)]
    X4 = 64
    A.wait(ot[0])
    for tau in range(5):
        smf(OA + 4 * tau, OF, wo_idx(0, tau))
    A.wait(ot[1])
    for tau in range(5):
        smf(OA + 4 * tau, OF + 4, wo_idx(1, tau))
    G0, G1 = 68, 72
    for n, (x, y) in enumerate(((OA, OA + 4), (OA + 8, OA + 12))):
        for r in range(4):
            A(f'v_permlane32_swap_b32 v{x + r}, v{y + r}')
        for r in range(0, 4, 2):
            A(f'v_pk_add_f32 v[{x + r}:{x + r + 1}], v[{x + r}:{x + r + 1}], v[{y + r}:{y + r + 1}]')
        A(f'v_cvt_pk_bf16_f32 v{G0 + 2 * n}, v{x}, v{x + 1}')
        A(f'v_cvt_pk_bf16_f32 v{G0 + 2 * n + 1}, v{x + 2}, v{x + 3}')
    x, y = OA + 16, X4
    A(f'v_mov_b64 v[{y}:{y + 1}], v[{x}:{x + 1}]')
    A(f'v_mov_b64 v[{y + 2}:{y + 3}], v[{x + 2}:{x + 3}]')
    A(f'v_permlane16_swap_b32 v{G0}, v{G0 + 2}')
    A(f'v_permlane16_swap_b32 v{G0 + 1}, v{G0 + 3}')
    A(f'v_and_or_b32 v{G0}, v{G0}, s{S_NOT1}, v{V_PAR}')
    lsafe = A.newlabel('L_psafe'); lpe = A.newlabel('L_pend')
    A(f's_cmp_eq_u32 s{S_FAST}, 0')
    A(f's_cbranch_scc1 {lsafe}')
    saved = list(A.hist)
    for variant in (0, 1):
        sc = ' sc1' if variant else ''
        A.hist = list(saved)
        A(f'buffer_store_dwordx4 v[{G0}:{G0 + 3}], v{V_PST}, {WS}, s{S_PS0} offen{sc}')
        for r in range(4):
            A(f'v_permlane32_swap_b32 v{x + r}, v{y + r}')
        for r in range(0, 4, 2):
            A(f'v_pk_add_f32 v[{x + r}:{x + r + 1}], v[{x + r}:{x + r + 1}], v[{y + r}:{y + r + 1}]')
        A(f'v_cvt_pk_bf16_f32 v{G1}, v{x}, v{x + 1}')
        A(f'v_cvt_pk_bf16_f32 v{G1 + 1}, v{x + 2}, v{x + 3}')
        A(f'v_mov_b64 v[{G1 + 2}:{G1 + 3}], v[{G1}:{G1 + 1}]')
        A(f'v_permlane16_swap_b32 v{G1}, v{G1 + 2}')
        A(f'v_permlane16_swap_b32 v{G1 + 1}, v{G1 + 3}')
        A(f'v_and_or_b32 v{G1}, v{G1}, s{S_NOT1}, v{V_PAR}')
        A('s_mov_b64 exec, 0xffff')
        A(f'buffer_store_dwordx4 v[{G1}:{G1 + 3}], v{V_PST}, {WS}, s{S_PS1} offen{sc}')
        A('s_mov_b64 exec, -1')
        if variant == 0:
            A.branch(f's_branch {lpe}')
            A.label(lsafe)
    A.flush_hazards()
    A.label(lpe)
    stamp(9)
    lnr = A.newlabel('L_nored'); lnr2 = A.newlabel('L_nored2')
    A(f's_cmp_ge_u32 s{S_RED}, 40')
    A(f's_cbranch_scc1 {lnr2}')
    RBS = [20, 44, 60][:ka]
    SEL = 36
    DD = 40
    lp = A.newlabel('L_pa'); lw = A.newlabel('L_paw')

    def pa_issue(RB):
        for j in range(4):
            A(f'buffer_load_dwordx4 v[{RB + 4 * j}:{RB + 4 * j + 3}], v{V_L16}, {WS}, s{S_PA} offen offset:{1024 * j} sc1')
    A(f'v_and_b32 v{T0}, 1, v{L}')
    A(f'v_lshlrev_b32 v{T0}, 4, v{T0}')
    A(f'v_mov_b32 v{T1}, 0x3f80')
    A(f'v_lshlrev_b32 v{T0}, v{T0}, v{T1}')
    A(f'v_bfe_u32 v{T1}, v{L}, 1, 2')
    for d in range(4):
        A(f'v_cmp_eq_u32 vcc, {d}, v{T1}')
        A(f'v_cndmask_b32 v{SEL + d}, 0, v{T0}, vcc')
    for j, RB in enumerate(RBS):
        if adelay[j]:
            for _ in range(adelay[j]):
                A('s_nop 15')
        pa_issue(RB)

    def tt(f):
        t = 0
        for a_ in range(2):
            for b_ in range(2):
                for c_ in range(2):
                    if f(a_, b_, c_):
                        t |= 1 << ((a_ << 2) | (b_ << 1) | c_)
        return t
    t1 = tt(lambda a, b, c: (a ^ c) | (b ^ c))
    t2 = tt(lambda a, b, c: (a | b) & c)
    A.flush_hazards()
    A.label(lp)
    for RB in RBS:
        A(f's_waitcnt vmcnt({4 * (ka - 1)})')
        chk = [f'v_bitop3_b32 v{T0}, v{RB}, v{RB + 4}, v{V_PAR} bitop3:{t1:#x}',
               f'v_bitop3_b32 v{T1}, v{RB + 8}, v{RB + 12}, v{V_PAR} bitop3:{t1:#x}',
               f'v_bitop3_b32 v{T0}, v{T0}, v{T1}, 1 bitop3:{t2:#x}',
               f'v_cmp_ne_u32 vcc, 0, v{T0}']
        for j in range(4):
            c = '0' if j == 0 else f'v[{DD}:{DD + 3}]'
            A(f'v_mfma_f32_16x16x32_bf16 v[{DD}:{DD + 3}], v[{SEL}:{SEL + 3}], v[{RB + 4 * j}:{RB + 4 * j + 3}], {c}')
            A(chk[j])
        A(f's_cbranch_vccz {lw}')
        pa_issue(RB)
    A(f's_add_u32 s{S_SPIN}, s{S_SPIN}, 1')
    A(f's_cmp_lt_u32 s{S_SPIN}, {SPIN_LIMIT}')
    A(f's_cbranch_scc1 {lp}')
    A(f's_branch {abort_label}')
    A.label(lw)
    A('s_nop 5')
    stamp(10)
    RB = 76
    for r in range(4):
        A(f'v_add_f32_dpp v{RB + r}, v{DD + r}, v{DD + r} row_ror:8 row_mask:0xf bank_mask:0xf')
    a0 = RB
    A(f'v_cvt_pk_bf16_f32 v{a0}, v{RB}, v{RB + 1}')
    A(f'v_cvt_pk_bf16_f32 v{a0 + 1}, v{RB + 2}, v{RB + 3}')
    A(f'v_min_u32 v{a0}, s{S_NOT1}, v{a0}')
    A(f'v_min_u32 v{a0 + 1}, s{S_NOT1}, v{a0 + 1}')
    A(f's_mov_b64 exec, s[{S_MPUB}:{S_MPUB + 1}]')
    A(f'buffer_store_dwordx2 v[{a0}:{a0 + 1}], v{V_PUB}, {WS}, s{S_PUBR} offen sc1')
    A(f's_mov_b32 exec_hi, 0')
    lps = A.newlabel('L_pubs'); lpd = A.newlabel('L_pubd')
    A(f's_cmp_eq_u32 s{S_FAST}, 0')
    A(f's_cbranch_scc1 {lps}')
    A(f'buffer_store_dwordx2 v[{a0}:{a0 + 1}], v{V_PUB}, {WS}, s{S_PUBL} offen')
    A(f's_branch {lpd}')
    A.label(lps)
    A(f'buffer_store_dwordx2 v[{a0}:{a0 + 1}], v{V_PUB}, {WS}, s{S_PUBL} offen sc1')
    A.label(lpd)
    A('s_mov_b64 exec, -1')
    A('s_waitcnt vmcnt(2)')
    m_flag()
    kv_wait(False)
    issue_kx_vx()
    A.branch(f's_branch {lnr}')
    A.label(lnr2)
    A('s_waitcnt vmcnt(2)')
    m_flag()
    kv_wait(False)
    issue_kx_vx()
    if backoff:
        A(f's_sleep {backoff}')
    A.label(lnr)
    stamp(11)
    if stamps:
        A('s_waitcnt lgkmcnt(0)')
        for i in range(12):
            A(f'v_writelane_b32 v{T0}, s{S_ST + 2 * i}, {i}')
        A(f'v_lshlrev_b32 v{T1}, 2, v{L}')
        A('s_mov_b64 exec, 0xfff')
        A(f'buffer_store_dword v{T0}, v{T1}, {WS}, s{S_STO} offen')
        A('s_mov_b64 exec, -1')
        A(f's_add_u32 s{S_STO}, s{S_STO}, 64')
    A(f's_add_u32 s{S_PUBR}, s{S_PUBR}, 32768')
    A(f's_add_u32 s{S_PUBL}, s{S_PUBL}, 10240')
    A(f'v_xor_b32 v{V_PAR}, 1, v{V_PAR}')
    A(f's_add_u32 s{S_STEP}, s{S_STEP}, 1')
    A.branch(f's_branch {top}')
    A.label(done)
    A.wait_all()
    m_flag()
    if coarse:
        A('s_memrealtime s[92:93]')
        A('s_memtime s[94:95]')
        A('s_waitcnt lgkmcnt(0)')
        A(f's_lshl_b32 s{S_TMP}, s{S_H}, 3')
        A(f's_lshl_b32 s{S_TMP + 1}, s{S_T}, 2')
        A(f's_add_u32 s{S_TMP}, s{S_TMP}, s{S_TMP + 1}')
        A(f's_add_u32 s{S_TMP}, s{S_TMP}, s{S_WV}')
        A(f's_lshl_b32 s{S_TMP}, s{S_TMP}, 6')
        A(f's_add_u32 s{S_TMP}, s{S_TMP}, {WS_STAMP + 0x200000:#x}')
        A('s_mov_b64 exec, 1')
        A(f'v_mov_b32 v{T1}, s{S_TMP}')
        for i in range(6):
            A(f'v_mov_b32 v{T0}, s{84 + 2 * i}')
            A(f'buffer_store_dword v{T0}, v{T1}, {WS}, 0 offen offset:{4 * i}')
        A(f'v_mov_b32 v{T0}, s{S_SPIN}')
        A(f'buffer_store_dword v{T0}, v{T1}, {WS}, 0 offen offset:24')
        A.wait_all()
```

```python
import math
import struct
from asmlib import *
from layout import *

SPIN_LIMIT = 1 << 17

F_H = WS_FLAG + 0x0
F_KV = WS_FLAG + 0x1000
F_M = WS_FLAG + 0x4000
F_O = WS_FLAG + 0x20000
F_OP = WS_FLAG + 0x24000
F_H2 = WS_FLAG + 0x28000
F_ACT = WS_FLAG + 0x2C000
F_END = WS_FLAG + 0x30000

S_WS, S_W, S_DBG = 4, 8, 12
S_P0, S_P1 = 16, 17
S_WV, S_SEG = 18, 19
S_TMP = 41
S_PTR = 44
S_SPIN = 46
S_STG = 47
WS = f's[{S_WS}:{S_WS + 3}]'
WW = f's[{S_W}:{S_W + 3}]'
DBG = f's[{S_DBG}:{S_DBG + 3}]'

V_L, V_G, V_I, V_L16, V_T0, V_T1, V_T2, V_T3 = range(8)


def f32bits(x):
    return struct.unpack('<I', struct.pack('<f', x))[0]


def common_setup(A):
    A(f's_load_dwordx2 s[{S_PTR}:{S_PTR + 1}], s[0:1], {KA_WS}')
    A(f's_load_dwordx2 s[{S_TMP + 1}:{S_TMP + 2}], s[0:1], {KA_DBG}')
    A('v_lshrrev_b32 v1, 6, v0')
    A(f'v_readfirstlane_b32 s{S_WV}, v1')
    A(f'v_and_b32 v{V_L}, 63, v0')
    A('s_waitcnt lgkmcnt(0)')
    A.srd(S_WS, S_PTR, S_PTR + 1, WS_BYTES)
    A.srd(S_DBG, S_TMP + 1, S_TMP + 2, 256)
    A(f's_mov_b32 s{S_SPIN}, 0')
    A(f'v_lshrrev_b32 v{V_G}, 4, v{V_L}')
    A(f'v_and_b32 v{V_I}, 15, v{V_L}')
    A(f'v_lshlrev_b32 v{V_L16}, 4, v{V_L}')
    A(f's_mul_i32 s{S_STG}, s{S_WV}, 40960')


def load_ptr_srd(A, ka, nbytes):
    A(f's_load_dwordx2 s[{S_PTR}:{S_PTR + 1}], s[0:1], {ka}')
    A('s_waitcnt lgkmcnt(0)')
    A.lg_done = A.lg_issued
    A.srd(S_W, S_PTR, S_PTR + 1, nbytes)


def wait_flags(A, abort, soff, n, srd=WS, value=1, sleep=2, ge=False):
    lp = A.newlabel('L_wf'); ld = A.newlabel('L_wfd')
    A(f'v_min_u32 v{V_T0}, {n - 1}, v{V_L}')
    A(f'v_lshlrev_b32 v{V_T0}, 2, v{V_T0}')
    A.label(lp)
    A(f'buffer_load_dword v{V_T1}, v{V_T0}, {srd}, s{soff} offen sc1')
    A.wait_vm0()
    if ge:
        A(f'v_cmp_gt_u32 vcc, {value}, v{V_T1}')
    else:
        A(f'v_cmp_ne_u32 vcc, {value}, v{V_T1}')
    A(f's_cbranch_vccz {ld}')
    if sleep:
        A(f's_sleep {sleep}')
    A(f's_add_u32 s{S_SPIN}, s{S_SPIN}, 1')
    A(f's_cmp_lt_u32 s{S_SPIN}, {SPIN_LIMIT}')
    A(f's_cbranch_scc1 {lp}')
    A(f's_branch {abort}')
    A.label(ld)


def signal(A, soff):
    A.wait_all()
    A('s_barrier')
    ls = A.newlabel('L_sig')
    A(f's_cmp_lg_u32 s{S_WV}, 0')
    A(f's_cbranch_scc1 {ls}')
    A(f'v_mov_b32 v{V_T0}, 0')
    A(f'v_mov_b32 v{V_T1}, 1')
    A('s_mov_b64 exec, 1')
    A(f'buffer_store_dword v{V_T1}, v{V_T0}, {WS}, s{soff} offen sc1')
    A('s_mov_b64 exec, -1')
    A.label(ls)


def round_bf16(A, dst, src, tmp=None):
    A(f'v_cvt_pk_bf16_f32 v{dst}, v{src}, v{src}')
    A(f'v_and_b32 v{dst}, 0xffff0000, v{dst}')


def round2(A, a, b, t):
    A(f'v_cvt_pk_bf16_f32 v{t}, v{a}, v{b}')
    A(f'v_lshlrev_b32 v{a}, 16, v{t}')
    A(f'v_and_b32 v{b}, 0xffff0000, v{t}')


def unpack2(A, lo, hi, src):
    A(f'v_lshlrev_b32 v{lo}, 16, v{src}')
    A(f'v_and_b32 v{hi}, 0xffff0000, v{src}')


def xlane_allreduce_g(A, op, x, t):
    for sw in ('v_permlane16_swap_b32', 'v_permlane32_swap_b32'):
        A(f'v_mov_b32 v{t}, v{x}')
        A(f'{sw} v{x}, v{t}')
        A(f'{op} v{x}, v{x}, v{t}')


def emit_init(A, abort):
    A.comment('---- init: sentinels / flags ----')
    T0, T1 = V_T0, V_T1
    A(f's_lshl_b32 s{S_TMP}, s{S_WV}, 6')
    A(f'v_add_u32 v19, s{S_TMP}, v{V_L}')
    A(f'v_lshlrev_b32 v{V_T2}, 4, v19')
    A('v_mov_b32 v20, -1'); A('v_mov_b32 v21, -1'); A('v_mov_b32 v22, -1'); A('v_mov_b32 v23, -1')
    A('v_mov_b32 v24, 0'); A('v_mov_b32 v25, 0'); A('v_mov_b32 v26, 0'); A('v_mov_b32 v27, 0')
    def fill(base, units, reg):
        n = (units + 127) // 128
        for i in range(n):
            A(f's_add_u32 s{S_TMP}, s{S_P0}, {128 * i}')
            l = A.newlabel('L_fill')
            A(f's_cmp_ge_u32 s{S_TMP}, {units}')
            A(f's_cbranch_scc1 {l}')
            A(f's_lshl_b32 s{S_TMP}, s{S_TMP}, 12')
            A(f's_add_u32 s{S_TMP}, s{S_TMP}, {base:#x}')
            A(f'buffer_store_dwordx4 v[{reg}:{reg + 3}], v{V_T2}, {WS}, s{S_TMP} offen sc1')
            A.label(l)
    fill(WS_MEML, 160, 20)
    fill(WS_MEMR + 32768, 504, 20)
    fill(WS_PART, 80, 20)
    fill(WS_FLAG, 48, 24)

    lskip = A.newlabel('L_nomod')
    A(f's_cmp_ge_u32 s{S_P0}, 120')
    A(f's_cbranch_scc1 {lskip}')
    load_ptr_srd(A, KA_C, 1280)
    A(f'v_lshrrev_b32 v{T0}, 2, v19')
    A(f'v_lshlrev_b32 v{T1}, 1, v{T0}')
    ct = []
    for i in range(10):
        ct.append(A(f'buffer_load_ushort v{30 + i}, v{T1}, {WW}, 0 offen offset:{128 * i}'))
    load_ptr_srd(A, KA_WMOD, 640 * 7680)
    A(f'v_mul_u32_u24 v{T1}, 7680, v{T0}')
    A(f'v_and_b32 v{T0}, 3, v19')
    A(f'v_lshl_add_u32 v{T1}, v{T0}, 4, v{T1}')
    A(f's_lshl_b32 s{S_TMP}, s{S_P0}, 6')
    wt = []
    for i in range(10):
        wt.append(A(f'buffer_load_dwordx4 v[{40 + 4 * i}:{43 + 4 * i}], v{T1}, {WW}, s{S_TMP} offen'))
        A(f's_add_u32 s{S_TMP}, s{S_TMP}, {64 * 7680}')
    A(f's_mov_b32 s{S_TMP}, {f32bits(-math.log2(math.e)):#x}')
    for i in range(10):
        A.wait(ct[i])
        c = 30 + i
        A(f'v_lshlrev_b32 v{c}, 16, v{c}')
        A(f'v_mul_f32 v{T0}, s{S_TMP}, v{c}')
        A(f'v_exp_f32 v{T0}, v{T0}')
        A(f'v_add_f32 v{T0}, 1.0, v{T0}')
        A(f'v_rcp_f32 v{T0}, v{T0}')
        A(f'v_mul_f32 v{c}, v{c}, v{T0}')
        round_bf16(A, c, c)
    for j in range(8):
        A(f'v_mov_b32 v{20 + j}, 0')
    for i in range(10):
        A.wait(wt[i])
        for d in range(4):
            unpack2(A, T0, T1, 40 + 4 * i + d)
            A(f'v_fmac_f32 v{20 + 2 * d}, v{30 + i}, v{T0}')
            A(f'v_fmac_f32 v{21 + 2 * d}, v{30 + i}, v{T1}')
    A(f'v_lshlrev_b32 v{T0}, 5, v19')
    A(f'ds_write_b128 v{T0}, v[20:23]')
    A(f'ds_write_b128 v{T0}, v[24:27] offset:16')
    A.wait_lg0()
    A('s_barrier')
    A(f'v_and_b32 v{T0}, 31, v19')
    A(f'v_lshlrev_b32 v{T0}, 2, v{T0}')
    A(f'v_lshrrev_b32 v{T1}, 5, v19')
    A(f'v_lshl_add_u32 v{T0}, v{T1}, 10, v{T0}')
    tk = [A(f'ds_read_b32 v{20 + j}, v{T0} offset:{128 * j}') for j in range(8)]
    A.wait(tk[-1])
    for j in range(1, 8):
        A(f'v_add_f32 v20, v20, v{20 + j}')
    A(f'v_lshlrev_b32 v{T0}, 2, v19')
    A(f'ds_write_b32 v{T0}, v20 offset:8192')
    A.wait_lg0()
    A('s_barrier')
    A(f'v_and_b32 v{T0}, 31, v19')
    A(f'v_lshlrev_b32 v{T0}, 2, v{T0}')
    tk = [A(f'ds_read_b32 v{20 + j}, v{T0} offset:{8192 + 128 * j}') for j in range(8)]
    A.wait(tk[-1])
    for j in range(1, 8):
        A(f'v_add_f32 v20, v20, v{20 + j}')
    round_bf16(A, 20, 20)
    A(f's_lshl_b32 s{S_TMP}, s{S_P0}, 7')
    A(f's_add_u32 s{S_TMP}, s{S_TMP}, {WS_MOD:#x}')
    A(f'buffer_store_dword v20, v{T0}, {WS}, s{S_TMP} offen sc1')
    A.flush_hazards()
    A.label(lskip)
    A.wait_all()
    A('s_barrier')
    ls = A.newlabel('L_arr')
    A(f's_cmp_lg_u32 s{S_WV}, 0')
    A(f's_cbranch_scc1 {ls}')
    A(f'v_mov_b32 v{T0}, 16')
    A(f'v_mov_b32 v{T1}, 1')
    A('s_mov_b64 exec, 1')
    A(f'buffer_atomic_add v{T1}, v{T0}, {DBG}, 0 offen sc1')
    A('s_mov_b64 exec, -1')
    A.label(ls)


def wait_init(A, abort):
    A(f's_mov_b32 s{S_TMP}, 16')
    wait_flags(A, abort, S_TMP, 1, srd=DBG, value=128, sleep=4, ge=True)


def emit_ln(A, which, s_tile):
    T0, T1, T2, T3 = V_T0, V_T1, V_T2, V_T3
    X = 20
    XR = 60
    MB = 80
    PB = 120
    load_ptr_srd(A, KA_X, 2048 * 1280)
    A(f'v_mul_u32_u24 v{T2}, 1280, v{V_I}')
    A(f'v_lshl_add_u32 v{T2}, v{V_G}, 3, v{T2}')
    A(f's_mul_i32 s{S_TMP}, s{s_tile}, {16 * 1280}')
    A(f's_mul_i32 s{S_TMP + 1}, s{S_WV}, 320')
    A(f's_add_u32 s{S_TMP}, s{S_TMP}, s{S_TMP + 1}')
    xt = []
    for k in range(5):
        for hf in range(2):
            b = XR + 4 * k + 2 * hf
            xt.append(A(f'buffer_load_dwordx2 v[{b}:{b + 1}], v{T2}, {WW}, s{S_TMP} offen offset:{64 * k + 32 * hf}'))
    A(f'v_lshlrev_b32 v{T3}, 4, v{V_G}')
    A(f's_mul_i32 s{S_TMP + 1}, s{S_WV}, 640')

    def load_mod(idx, base):
        A(f's_add_u32 s{S_TMP + 2}, s{S_TMP + 1}, {WS_MOD + idx * 2560:#x}')
        t = None
        for t_ in range(10):
            t = A(f'buffer_load_dwordx4 v[{base + 4 * t_}:{base + 4 * t_ + 3}], v{T3}, {WS}, s{S_TMP + 2} offen offset:{64 * t_} sc1')
        return t

    if which == 2:
        gt = load_mod(2, MB)
        A(f's_lshr_b32 s{S_TMP}, s{s_tile}, 1')
        A(f's_mul_i32 s{S_TMP}, s{S_TMP}, {4 * 81920}')
        A(f's_and_b32 s{S_TMP + 2}, s{s_tile}, 1')
        A(f's_lshl_b32 s{S_TMP + 2}, s{S_TMP + 2}, 10')
        A(f's_add_u32 s{S_TMP}, s{S_TMP}, s{S_TMP + 2}')
        A(f's_mul_i32 s{S_TMP + 2}, s{S_WV}, {10 * 2048}')
        A(f's_add_u32 s{S_TMP}, s{S_TMP}, s{S_TMP + 2}')
        A(f's_add_u32 s{S_TMP}, s{S_TMP}, {WS_OPART:#x}')
        pt = {}
        for kg in range(4):
            for t_ in range(10):
                dst = X + 4 * t_ if kg == 0 else PB + 40 * (kg - 1) + 4 * t_
                A(f's_add_u32 s{S_TMP + 2}, s{S_TMP}, {kg * 81920 + t_ * 2048}')
                pt[kg, t_] = A(f'buffer_load_dwordx4 v[{dst}:{dst + 3}], v{V_L16}, {WS}, s{S_TMP + 2} offen sc1')
        for t_ in range(10):
            A.wait(pt[3, t_], gt, xt[-1])
            for r in range(0, 4, 2):
                x = X + 4 * t_ + r
                for kg in range(1, 4):
                    p = PB + 40 * (kg - 1) + 4 * t_ + r
                    A(f'v_pk_add_f32 v[{x}:{x + 1}], v[{x}:{x + 1}], v[{p}:{p + 1}]')
                round2(A, x, x + 1, T0)
                A(f'v_pk_mul_f32 v[{x}:{x + 1}], v[{x}:{x + 1}], v[{MB + 4 * t_ + r}:{MB + 4 * t_ + r + 1}]')
                round2(A, x, x + 1, T0)
                unpack2(A, T0, T1, XR + 2 * t_ + r // 2)
                A(f'v_pk_add_f32 v[{x}:{x + 1}], v[{x}:{x + 1}], v[{T0}:{T1}]')
                A(f'v_cvt_pk_bf16_f32 v{XR + 2 * t_ + r // 2}, v{x}, v{x + 1}')
                unpack2(A, x, x + 1, XR + 2 * t_ + r // 2)
        frag_base(A, s_tile, WS_X1, S_TMP)
        for k in range(5):
            A(f's_add_u32 s{S_TMP + 2}, s{S_TMP}, {k * 2048}')
            A(f'buffer_store_dwordx4 v[{XR + 4 * k}:{XR + 4 * k + 3}], v{V_L16}, {WS}, s{S_TMP + 2} offen sc1')
        A(f's_mul_i32 s{S_TMP + 1}, s{S_WV}, 640')
    else:
        A.wait(xt[-1])
        for j in range(20):
            unpack2(A, X + 2 * j, X + 2 * j + 1, XR + j)
    ct = load_mod(1 if which == 1 else 4, MB)
    st = load_mod(0 if which == 1 else 3, PB)
    A(f'v_mov_b32 v{T0}, 0')
    A(f'v_mov_b32 v{T1}, 0')
    for j in range(0, 40, 2):
        A(f'v_pk_add_f32 v[{T0}:{T1}], v[{T0}:{T1}], v[{X + j}:{X + j + 1}]')
    A(f'v_add_f32 v{T0}, v{T0}, v{T1}')
    xlane_allreduce_g(A, 'v_add_f32', T0, T1)
    A(f's_lshl_b32 s{S_TMP}, s{S_WV}, 6')
    A(f'v_lshlrev_b32 v{T2}, 2, v{V_I}')
    A(f'v_add_u32 v{T3}, s{S_TMP}, v{T2}')
    A('s_barrier')
    A(f'ds_write_b32 v{T3}, v{T0}')
    A.wait_lg0()
    A('s_barrier')
    tk = [A(f'ds_read_b32 v{8 + j}, v{T2} offset:{64 * j}') for j in range(4)]
    A.wait(tk[-1])
    A('v_add_f32 v8, v8, v9'); A('v_add_f32 v10, v10, v11'); A('v_add_f32 v8, v8, v10')
    A(f'v_mul_f32 v8, {f32bits(1.0 / 640):#x}, v8')
    A(f'v_mov_b32 v{T0}, 0')
    for j in range(40):
        A(f'v_sub_f32 v{T1}, v{X + j}, v8')
        A(f'v_fmac_f32 v{T0}, v{T1}, v{T1}')
    xlane_allreduce_g(A, 'v_add_f32', T0, T1)
    A(f'ds_write_b32 v{T3}, v{T0} offset:256')
    A.wait_lg0()
    A('s_barrier')
    tk = [A(f'ds_read_b32 v{9 + j}, v{T2} offset:{256 + 64 * j}') for j in range(4)]
    A.wait(tk[-1])
    A('v_add_f32 v9, v9, v10'); A('v_add_f32 v11, v11, v12'); A('v_add_f32 v9, v9, v11')
    A(f'v_mul_f32 v9, {f32bits(1.0 / 640):#x}, v9')
    round2(A, 8, 9, T0)
    A(f'v_add_f32 v9, {f32bits(1e-5):#x}, v9')
    round_bf16(A, 9, 9)
    A('v_sqrt_f32 v9, v9')
    round_bf16(A, 9, 9)
    A('v_rcp_f32 v10, v9')
    A.wait(ct, st)
    for j in range(0, 40, 2):
        x = X + j
        A(f'v_sub_f32 v{x}, v{x}, v8')
        A(f'v_sub_f32 v{x + 1}, v{x + 1}, v8')
        round2(A, x, x + 1, T0)
        for y in (x, x + 1):
            A(f'v_mul_f32 v{T1}, v{y}, v10')
            A(f'v_fma_f32 v{y}, -v{T1}, v9, v{y}')
            A(f'v_fma_f32 v{y}, v{y}, v10, v{T1}')
        round2(A, x, x + 1, T0)
        A(f'v_add_f32 v{MB + j}, 1.0, v{MB + j}')
        A(f'v_add_f32 v{MB + j + 1}, 1.0, v{MB + j + 1}')
        round2(A, MB + j, MB + j + 1, T0)
        A(f'v_pk_mul_f32 v[{x}:{x + 1}], v[{x}:{x + 1}], v[{MB + j}:{MB + j + 1}]')
        round2(A, x, x + 1, T0)
        A(f'v_pk_add_f32 v[{x}:{x + 1}], v[{x}:{x + 1}], v[{PB + j}:{PB + j + 1}]')
        A(f'v_cvt_pk_bf16_f32 v{160 + j // 2}, v{x}, v{x + 1}')
    frag_base(A, s_tile, WS_H if which == 1 else WS_H2, S_TMP)
    for k in range(5):
        A(f's_add_u32 s{S_TMP + 2}, s{S_TMP}, {k * 2048}')
        A(f'buffer_store_dwordx4 v[{160 + 4 * k}:{160 + 4 * k + 3}], v{V_L16}, {WS}, s{S_TMP + 2} offen sc1')


def frag_base(A, s_tile, region, dst):
    A(f's_lshr_b32 s{dst}, s{s_tile}, 1')
    A(f's_mul_i32 s{dst}, s{dst}, 40960')
    A(f's_and_b32 s{dst + 2}, s{s_tile}, 1')
    A(f's_lshl_b32 s{dst + 2}, s{dst + 2}, 10')
    A(f's_add_u32 s{dst}, s{dst}, s{dst + 2}')
    A(f's_mul_i32 s{dst + 2}, s{S_WV}, {5 * 2048}')
    A(f's_add_u32 s{dst}, s{dst}, s{dst + 2}')
    A(f's_add_u32 s{dst}, s{dst}, {region:#x}')


V_WSRC2, V_WSRC1, V_WRD2, V_WRD1 = 8, 9, 10, 11


def weight_addr_setup(A, pitch):
    T0, T1 = V_T0, V_T1
    A(f's_mov_b32 s{S_TMP}, {pitch}')
    A(f'v_lshrrev_b32 v{T0}, 2, v{V_L}')
    A(f'v_mul_lo_u32 v{T0}, v{T0}, s{S_TMP}')
    A(f'v_and_b32 v{T1}, 3, v{V_L}')
    A(f'v_lshl_add_u32 v{V_WSRC2}, v{T1}, 4, v{T0}')
    A(f'v_lshrrev_b32 v{T0}, 1, v{V_L}')
    A(f'v_mul_lo_u32 v{T0}, v{T0}, s{S_TMP}')
    A(f'v_and_b32 v{T1}, 1, v{V_L}')
    A(f'v_lshl_add_u32 v{V_WSRC1}, v{T1}, 4, v{T0}')
    A(f'v_lshrrev_b32 v{T0}, 2, v{V_L}')
    A(f'v_and_b32 v{T1}, 3, v{V_L}')
    A(f'v_lshlrev_b32 v{T1}, 3, v{T1}')
    A(f'v_lshl_add_u32 v{V_WRD2}, v{T0}, 6, v{T1}')
    A(f'v_add_u32 v{V_WRD2}, s{S_STG}, v{V_WRD2}')
    A(f'v_lshl_add_u32 v{V_WRD1}, v{T0}, 5, v{T1}')
    A(f'v_add_u32 v{V_WRD1}, s{S_STG}, v{V_WRD1}')


def load_weights(A, s_off, pitch, nk, width, dest):
    kb = 32 * 32 * width
    per = 40960 // kb
    src = V_WSRC2 if width == 2 else V_WSRC1
    rd = V_WRD2 if width == 2 else V_WRD1
    rows_per_instr = 16 if width == 2 else 32
    for k0 in range(0, nk, per):
        ks = list(range(k0, min(nk, k0 + per)))
        tok = {}
        A.wait_lg0()
        for k in ks:
            for n in range(32 // rows_per_instr):
                A(f's_add_u32 m0, s{S_STG}, {(k - k0) * kb + n * 1024}')
                tok[k] = A(f'buffer_load_dwordx4 v{src}, {WW}, s{s_off} offen lds')
                A(f's_add_u32 s{s_off}, s{s_off}, {rows_per_instr * pitch}')
        for k in ks:
            A.wait(tok[k])
            for t in range(width):
                for rho in range(2):
                    off = (k - k0) * kb + 16 * rho * 32 * width + t * 32
                    A(f'ds_read_b64_tr_b16 {wr(dest(k, t) + 2 * rho, 2)}, v{rd} offset:{off}')
    A.wait_lg0()


S_SRC, S_FIN, S_FOUT, S_DST, S_PRE, S_BUF, S_DST2 = 20, 21, 22, 23, 24, 25, 26
S_LAST = 27


def gemm_loop(A, abort, nk, ntt, tiles, src_stride, fin_n, fin_stride, fout_stride, seg_step, epilogue,
              acc0=12, frag0=None, pre_compute=None, tt_stride=1024, k_stride=2048):
    T = len(tiles)
    nfr = nk * ntt
    bufsz = nfr * 1024
    dbl = 2 * bufsz <= 163840 - 4096
    FR = frag0 if frag0 is not None else acc0 + 4 * T * ntt
    NR = 3
    V_RD = 8

    def issue_dma():
        A(f's_lshl_b32 s{S_TMP}, s{S_WV}, 10')
        A(f's_add_u32 s{S_TMP}, s{S_TMP}, s{S_BUF}')
        if ntt == 2:
            assert tt_stride == 1024 and k_stride == 2048
            A(f's_lshl_b32 s{S_TMP + 1}, s{S_WV}, 10')
            step = 4096
        else:
            A(f's_mul_i32 s{S_TMP + 1}, s{S_WV}, {k_stride}')
            step = 4 * k_stride
        A(f's_add_u32 s{S_TMP + 1}, s{S_TMP + 1}, s{S_SRC}')
        n_it = (nfr + 3) // 4
        for i in range(n_it):
            l = None
            if 4 * i + 3 >= nfr:
                l = A.newlabel('L_dm')
                A(f's_cmp_ge_u32 s{S_WV}, {nfr - 4 * i}')
                A(f's_cbranch_scc1 {l}')
            A(f's_add_u32 m0, s{S_TMP}, {4096 * i}')
            A(f'buffer_load_dwordx4 v{V_L16}, {WS}, s{S_TMP + 1} offen sc1 lds')
            if l:
                A.label(l)
            if i < n_it - 1:
                A(f's_add_u32 s{S_TMP + 1}, s{S_TMP + 1}, {step}')
        A(f's_add_u32 s{S_SRC}, s{S_SRC}, {src_stride}')
        A(f's_add_u32 s{S_FIN}, s{S_FIN}, {fin_stride}')

    A(f's_mov_b32 s{S_BUF}, 0')
    wait_flags(A, abort, S_FIN, fin_n)
    issue_dma()
    top = A.newlabel('L_gtop'); end = A.newlabel('L_gend')
    A.flush_hazards()
    A.label(top)
    A.forget()
    A.wait_all()
    A('s_barrier')
    A(f'v_add_u32 v{V_RD}, s{S_BUF}, v{V_L16}')
    A(f's_add_u32 s{S_LAST}, s{S_SEG}, {seg_step}')
    A(f's_mov_b32 s{S_PRE}, 0')
    if dbl:
        A(f's_xor_b32 s{S_BUF}, s{S_BUF}, {bufsz}') if (bufsz & (bufsz - 1)) == 0 else (
            A(f's_sub_u32 s{S_BUF}, {bufsz}, s{S_BUF}'))
        lnp = A.newlabel('L_nopre')
        A(f's_cmp_ge_u32 s{S_LAST}, 64')
        A(f's_cbranch_scc1 {lnp}')
        A(f'v_min_u32 v{V_T0}, {fin_n - 1}, v{V_L}')
        A(f'v_lshlrev_b32 v{V_T0}, 2, v{V_T0}')
        A(f'buffer_load_dword v{V_T1}, v{V_T0}, {WS}, s{S_FIN} offen sc1')
        A.wait_vm0()
        A(f'v_cmp_ne_u32 vcc, 1, v{V_T1}')
        A(f's_cbranch_vccnz {lnp}')
        issue_dma()
        A(f's_mov_b32 s{S_PRE}, 1')
        A.label(lnp)
    if pre_compute:
        pre_compute(A)
    V_RD2 = 9
    if bufsz > 65536 - 1024:
        A(f'v_add_u32 v{V_RD2}, 0x10000, v{V_RD}')
    ft = {}

    def rd(k):
        for tt in range(ntt):
            f = k * ntt + tt
            b = FR + 4 * ((k % NR) * ntt + tt)
            off = f * 1024
            base = V_RD
            if off >= 65536:
                off -= 65536; base = V_RD2
            ft[k] = A(f'ds_read_b128 v[{b}:{b + 3}], v{base} offset:{off}')

    for k in range(min(NR, nk)):
        rd(k)
    for k in range(nk):
        A.wait(ft[k])
        for t, (wreg, tr) in enumerate(tiles):
            for tt in range(ntt):
                acc = acc0 + 4 * (t * ntt + tt)
                fr = f'v[{FR + 4 * ((k % NR) * ntt + tt)}:{FR + 4 * ((k % NR) * ntt + tt) + 3}]'
                w = wr(wreg(k), 4)
                c = '0' if k == 0 else f'v[{acc}:{acc + 3}]'
                a_, b_ = (w, fr) if tr else (fr, w)
                A(f'v_mfma_f32_16x16x32_bf16 v[{acc}:{acc + 3}], {a_}, {b_}, {c}')
        if k + NR < nk:
            rd(k + NR)
    epilogue(A)
    signal(A, S_FOUT)
    A(f's_add_u32 s{S_FOUT}, s{S_FOUT}, {fout_stride}')
    A(f's_mov_b32 s{S_SEG}, s{S_LAST}')
    A(f's_cmp_ge_u32 s{S_SEG}, 64')
    A.branch(f's_cbranch_scc1 {end}')
    A(f's_cmp_eq_u32 s{S_PRE}, 1')
    A.branch(f's_cbranch_scc1 {top}')
    wait_flags(A, abort, S_FIN, fin_n)
    issue_dma()
    A.branch(f's_branch {top}')
    A.label(end)


def wlin(i, vb=96):
    return 256 + 4 * i if i < 64 else vb + 4 * (i - 64)


def pack4(A, dst, src):
    A(f'v_cvt_pk_bf16_f32 v{dst}, v{src}, v{src + 1}')
    A(f'v_cvt_pk_bf16_f32 v{dst + 1}, v{src + 2}, v{src + 3}')


def emit_kv(A, abort):
    A.comment('==== role KV ====')
    weight_addr_setup(A, 8192)
    for m, ka in enumerate((KA_WK, KA_WV)):
        load_ptr_srd(A, ka, 640 * 8192)
        A(f's_lshl_b32 s{S_SRC}, s{S_P0}, 8')
        A(f's_lshl_b32 s{S_TMP}, s{S_WV}, 6')
        A(f's_add_u32 s{S_SRC}, s{S_SRC}, s{S_TMP}')
        load_weights(A, S_SRC, 8192, 20, 2, lambda k, t, m=m: wlin(m * 40 + 2 * k + t))
    wait_init(A, abort)
    A(f's_mov_b32 s{S_SEG}, s{S_P1}')
    A(f's_mul_i32 s{S_SRC}, s{S_P1}, 40960')
    A(f's_add_u32 s{S_SRC}, s{S_SRC}, {WS_H:#x}')
    A(f's_lshl_b32 s{S_FIN}, s{S_P1}, 3')
    A(f's_add_u32 s{S_FIN}, s{S_FIN}, {F_H:#x}')
    A(f's_lshl_b32 s{S_TMP}, s{S_P1}, 5')
    A(f's_add_u32 s{S_TMP}, s{S_TMP}, s{S_P0}')
    A(f's_lshl_b32 s{S_FOUT}, s{S_TMP}, 2')
    A(f's_add_u32 s{S_FOUT}, s{S_FOUT}, {F_KV:#x}')
    A(f's_lshl_b32 s{S_DST}, s{S_TMP}, 13')
    A(f's_lshl_b32 s{S_TMP}, s{S_WV}, 10')
    A(f's_add_u32 s{S_DST2}, s{S_DST}, s{S_TMP}')
    A(f's_add_u32 s{S_DST}, s{S_DST2}, {WS_KX:#x}')
    A(f's_add_u32 s{S_DST2}, s{S_DST2}, s{S_TMP}')
    A(f's_add_u32 s{S_DST2}, s{S_DST2}, {WS_VX:#x}')
    acc = lambda t, tt: 12 + 4 * (t * 2 + tt)
    O = 68

    def epi(A):
        for tt in range(2):
            pack4(A, O + 4 * tt, acc(0, tt)); pack4(A, O + 4 * tt + 2, acc(1, tt))
            A(f's_add_u32 s{S_TMP}, s{S_DST}, {tt * 4096}')
            A(f'buffer_store_dwordx4 v[{O + 4 * tt}:{O + 4 * tt + 3}], v{V_L16}, {WS}, s{S_TMP} offen sc1')
        for t in range(2):
            o = O + 8 + 4 * t
            pack4(A, o, acc(2 + t, 0)); pack4(A, o + 2, acc(2 + t, 1))
            A(f'buffer_store_dwordx4 v[{o}:{o + 3}], v{V_L16}, {WS}, s{S_DST2} offen offset:{t * 1024} sc1')
        A(f's_add_u32 s{S_DST}, s{S_DST}, {2 * 32 * 8192}')
        A(f's_add_u32 s{S_DST2}, s{S_DST2}, {2 * 32 * 8192}')

    tiles = [(lambda k: wlin(2 * k), True), (lambda k: wlin(2 * k + 1), True),
             (lambda k: wlin(40 + 2 * k), False), (lambda k: wlin(41 + 2 * k), False)]
    gemm_loop(A, abort, 20, 2, tiles, 2 * 40960, 2, 16, 2 * 128, 2, epi)


def emit_op(A, abort):
    A.comment('==== role OP ====')
    weight_addr_setup(A, 1280)
    load_ptr_srd(A, KA_WO, 4096 * 1280)
    A(f's_mul_i32 s{S_SRC}, s{S_P0}, {1024 * 1280}')
    A(f's_lshl_b32 s{S_TMP}, s{S_P1}, 8')
    A(f's_add_u32 s{S_SRC}, s{S_SRC}, s{S_TMP}')
    A(f's_lshl_b32 s{S_TMP}, s{S_WV}, 6')
    A(f's_add_u32 s{S_SRC}, s{S_SRC}, s{S_TMP}')
    load_weights(A, S_SRC, 1280, 32, 2, lambda k, t: wlin(2 * k + t))
    A(f's_mov_b32 s{S_SEG}, 0')
    A(f's_lshl_b32 s{S_SRC}, s{S_P0}, 16')
    A(f's_add_u32 s{S_SRC}, s{S_SRC}, {WS_O:#x}')
    A(f's_lshl_b32 s{S_FIN}, s{S_P0}, 5')
    A(f's_add_u32 s{S_FIN}, s{S_FIN}, {F_O:#x}')
    A(f's_mul_i32 s{S_FOUT}, s{S_P0}, 5')
    A(f's_add_u32 s{S_FOUT}, s{S_FOUT}, s{S_P1}')
    A(f's_lshl_b32 s{S_FOUT}, s{S_FOUT}, 2')
    A(f's_add_u32 s{S_FOUT}, s{S_FOUT}, {F_OP:#x}')
    A(f's_mul_i32 s{S_DST}, s{S_P0}, 81920')
    A(f's_lshl_b32 s{S_TMP}, s{S_P1}, 14')
    A(f's_add_u32 s{S_DST}, s{S_DST}, s{S_TMP}')
    A(f's_lshl_b32 s{S_TMP}, s{S_WV}, 12')
    A(f's_add_u32 s{S_DST}, s{S_DST}, s{S_TMP}')
    A(f's_add_u32 s{S_DST}, s{S_DST}, {WS_OPART:#x}')

    def epi(A):
        for j in range(4):
            A(f'buffer_store_dwordx4 v[{12 + 4 * j}:{15 + 4 * j}], v{V_L16}, {WS}, s{S_DST} offen offset:{j * 1024} sc1')
        A(f's_add_u32 s{S_DST}, s{S_DST}, {4 * 81920}')

    tiles = [(lambda k: wlin(2 * k), True), (lambda k: wlin(2 * k + 1), True)]
    gemm_loop(A, abort, 32, 2, tiles, 262144, 8, 128, 128, 1, epi)


def emit_ff1(A, abort):
    A.comment('==== role FF1 ====')
    weight_addr_setup(A, 3456)
    for m, ka in enumerate((KA_WG, KA_WU)):
        load_ptr_srd(A, ka, 640 * 3456)
        A(f's_lshl_b32 s{S_SRC}, s{S_P0}, 7')
        A(f's_lshl_b32 s{S_TMP}, s{S_WV}, 5')
        A(f's_add_u32 s{S_SRC}, s{S_SRC}, s{S_TMP}')
        load_weights(A, S_SRC, 3456, 20, 1, lambda k, t, m=m: wlin(m * 20 + k))
    A(f's_mov_b32 s{S_SEG}, 0')
    A(f's_mov_b32 s{S_SRC}, {WS_H2:#x}')
    A(f's_mov_b32 s{S_FIN}, {F_H2:#x}')
    A(f's_lshl_b32 s{S_FOUT}, s{S_P0}, 2')
    A(f's_add_u32 s{S_FOUT}, s{S_FOUT}, {F_ACT:#x}')
    A(f's_lshl_b32 s{S_DST}, s{S_P0}, 12')
    A(f's_lshr_b32 s{S_TMP}, s{S_WV}, 1')
    A(f's_lshl_b32 s{S_TMP}, s{S_TMP}, 11')
    A(f's_add_u32 s{S_DST}, s{S_DST}, s{S_TMP}')
    A(f's_and_b32 s{S_TMP}, s{S_WV}, 1')
    A(f's_lshl_b32 s{S_TMP}, s{S_TMP}, 3')
    A(f's_add_u32 s{S_DST}, s{S_DST}, s{S_TMP}')
    A(f's_add_u32 s{S_DST}, s{S_DST}, {WS_ACT:#x}')
    A(f's_mov_b32 s{S_DST2}, {f32bits(-math.log2(math.e)):#x}')
    T0, T1 = V_T0, V_T1

    def epi(A):
        for tt in range(2):
            g = 12 + 4 * tt; u = 20 + 4 * tt
            for r in (0, 2):
                round2(A, g + r, g + r + 1, T0)
                round2(A, u + r, u + r + 1, T0)
                for y in (g + r, g + r + 1):
                    A(f'v_mul_f32 v{T1}, s{S_DST2}, v{y}')
                    A(f'v_exp_f32 v{T1}, v{T1}')
                    A(f'v_add_f32 v{T1}, 1.0, v{T1}')
                    A(f'v_rcp_f32 v{T1}, v{T1}')
                    A(f'v_mul_f32 v{y}, v{y}, v{T1}')
                round2(A, g + r, g + r + 1, T0)
                A(f'v_pk_mul_f32 v[{g + r}:{g + r + 1}], v[{g + r}:{g + r + 1}], v[{u + r}:{u + r + 1}]')
            pack4(A, u, g)
            A(f'buffer_store_dwordx2 v[{u}:{u + 1}], v{V_L16}, {WS}, s{S_DST} offen offset:{tt * 1024} sc1')
        A(f's_add_u32 s{S_DST}, s{S_DST}, {54 * 2048}')

    tiles = [(lambda k: wlin(k), True), (lambda k: wlin(20 + k), True)]
    gemm_loop(A, abort, 20, 2, tiles, 40960, 2, 128, 128, 1, epi)


def emit_ff2(A, abort):
    A.comment('==== role FF2 ====')
    weight_addr_setup(A, 1280)
    load_ptr_srd(A, KA_WD, 1728 * 1280)
    A(f's_lshl_b32 s{S_SRC}, s{S_P1}, 7')
    A(f's_lshl_b32 s{S_TMP}, s{S_WV}, 5')
    A(f's_add_u32 s{S_SRC}, s{S_SRC}, s{S_TMP}')
    load_weights(A, S_SRC, 1280, 54, 1, lambda k, t: wlin(k))
    A(f's_mov_b32 s{S_SEG}, 0')
    A(f's_lshl_b32 s{S_SRC}, s{S_P0}, 10')
    A(f's_add_u32 s{S_SRC}, s{S_SRC}, {WS_ACT:#x}')
    A(f's_mov_b32 s{S_FIN}, {F_ACT:#x}')
    A(f's_mov_b32 s{S_FOUT}, {F_END:#x}')
    S_TILE = 28
    A(f's_lshl_b32 s{S_TILE}, s{S_P1}, 2')
    A(f's_add_u32 s{S_TILE}, s{S_TILE}, s{S_WV}')
    GB, XX, VO = 40, 44, 46
    A(f'v_lshlrev_b32 v{V_T0}, 4, v{V_G}')
    A(f's_lshl_b32 s{S_TMP}, s{S_TILE}, 6')
    A(f's_add_u32 s{S_TMP}, s{S_TMP}, {WS_MOD + 5 * 2560:#x}')
    A(f'buffer_load_dwordx4 v[{GB}:{GB + 3}], v{V_T0}, {WS}, s{S_TMP} offen sc1')
    A(f's_lshr_b32 s{S_DST2}, s{S_TILE}, 1')
    A(f's_lshl_b32 s{S_DST2}, s{S_DST2}, 11')
    A(f's_lshl_b32 s{S_TMP}, s{S_P0}, 10')
    A(f's_add_u32 s{S_DST2}, s{S_DST2}, s{S_TMP}')
    A(f's_and_b32 s{S_TMP}, s{S_TILE}, 1')
    A(f's_lshl_b32 s{S_TMP}, s{S_TMP}, 3')
    A(f's_add_u32 s{S_DST2}, s{S_DST2}, s{S_TMP}')
    A(f's_add_u32 s{S_DST2}, s{S_DST2}, {WS_X1:#x}')
    A(f'v_mul_u32_u24 v{VO}, 1280, v{V_I}')
    A(f'v_lshl_add_u32 v{VO}, v{V_G}, 3, v{VO}')
    A(f's_mul_i32 s{S_DST}, s{S_P0}, {16 * 1280}')
    A(f's_lshl_b32 s{S_TMP}, s{S_TILE}, 5')
    A(f's_add_u32 s{S_DST}, s{S_DST}, s{S_TMP}')
    load_ptr_srd(A, KA_OUT, 2048 * 1280)
    T0, T1 = V_T0, V_T1

    def pre(A):
        A(f'buffer_load_dwordx2 v[{XX}:{XX + 1}], v{V_L16}, {WS}, s{S_DST2} offen sc1')
        A(f's_add_u32 s{S_DST2}, s{S_DST2}, 40960')

    def epi(A):
        A.wait_vm0()
        for r in (0, 2):
            f = 12 + r
            round2(A, f, f + 1, T0)
            A(f'v_pk_mul_f32 v[{f}:{f + 1}], v[{f}:{f + 1}], v[{GB + r}:{GB + r + 1}]')
            round2(A, f, f + 1, T0)
            unpack2(A, T0, T1, XX + r // 2)
            A(f'v_pk_add_f32 v[{f}:{f + 1}], v[{f}:{f + 1}], v[{T0}:{T1}]')
        pack4(A, XX, 12)
        A(f'buffer_store_dwordx2 v[{XX}:{XX + 1}], v{VO}, {WW}, s{S_DST} offen')
        A(f's_add_u32 s{S_DST}, s{S_DST}, {32 * 1280}')

    gemm_loop(A, abort, 54, 1, [(lambda k: wlin(k), True)], 54 * 2048, 27, 128, 0, 1, epi, pre_compute=pre)


def emit_ln2(A, abort, n):
    A.comment('==== role LN2 ====')
    S_TILE = 28
    A(f's_mov_b32 s{S_TILE}, s{S_P0}')
    top = A.newlabel('L_ln2')
    A.flush_hazards()
    A.label(top)
    A.forget()
    A(f's_lshr_b32 s{S_FIN}, s{S_TILE}, 1')
    A(f's_lshl_b32 s{S_FIN}, s{S_FIN}, 7')
    A(f's_and_b32 s{S_FOUT}, s{S_TILE}, 1')
    A(f's_lshl_b32 s{S_FOUT}, s{S_FOUT}, 2')
    A(f's_add_u32 s{S_FOUT}, s{S_FOUT}, s{S_FIN}')
    A(f's_add_u32 s{S_FOUT}, s{S_FOUT}, {F_H2:#x}')
    A(f's_add_u32 s{S_FIN}, s{S_FIN}, {F_OP:#x}')
    wait_flags(A, abort, S_FIN, 20)
    emit_ln(A, 2, S_TILE)
    signal(A, S_FOUT)
    A(f's_add_u32 s{S_TILE}, s{S_TILE}, {n}')
    A(f's_cmp_lt_u32 s{S_TILE}, 128')
    A.branch(f's_cbranch_scc1 {top}')


def emit_qa(A, abort):
    A.comment('==== role QA ====')
    weight_addr_setup(A, 8192)
    load_ptr_srd(A, KA_WQ, 640 * 8192)
    A(f's_lshl_b32 s{S_SRC}, s{S_P0}, 8')
    A(f's_lshl_b32 s{S_TMP}, s{S_WV}, 6')
    A(f's_add_u32 s{S_SRC}, s{S_SRC}, s{S_TMP}')
    load_weights(A, S_SRC, 8192, 20, 2, lambda k, t: wlin(2 * k + t))
    A(f's_mov_b32 s{S_SEG}, 0')
    A(f's_mov_b32 s{S_SRC}, {WS_H:#x}')
    A(f's_lshl_b32 s{S_TMP}, s{S_P0}, 2')
    A(f's_add_u32 s{S_FIN}, s{S_TMP}, {F_KV:#x}')
    A(f's_add_u32 s{S_FOUT}, s{S_TMP}, {F_O:#x}')
    S_KX, S_VX, S_KM, S_VM, S_FM, S_TT, S_EH, S_SC, S_L2E = range(28, 37)
    A(f's_and_b32 s{S_TT}, s{S_WV}, 1')
    A(f's_lshr_b32 s{S_EH}, s{S_WV}, 1')
    A(f's_lshl_b32 s{S_TMP}, s{S_P0}, 13')
    A(f's_add_u32 s{S_KX}, s{S_TMP}, {WS_KX:#x}')
    A(f's_lshl_b32 s{S_TMP + 1}, s{S_EH}, 12')
    A(f's_add_u32 s{S_VX}, s{S_TMP}, s{S_TMP + 1}')
    A(f's_add_u32 s{S_VX}, s{S_VX}, {WS_VX:#x}')
    A(f's_add_u32 s{S_DST}, s{S_TMP}, s{S_TMP + 1}')
    A(f's_lshl_b32 s{S_TMP + 1}, s{S_TT}, 10')
    A(f's_add_u32 s{S_DST}, s{S_DST}, s{S_TMP + 1}')
    A(f's_add_u32 s{S_DST}, s{S_DST}, {WS_O:#x}')
    A(f's_lshl_b32 s{S_TMP}, s{S_P0}, 11')
    A(f's_add_u32 s{S_KM}, s{S_TMP}, {WS_KM:#x}')
    A(f's_lshl_b32 s{S_TMP + 1}, s{S_EH}, 10')
    A(f's_add_u32 s{S_VM}, s{S_TMP}, s{S_TMP + 1}')
    A(f's_add_u32 s{S_VM}, s{S_VM}, {WS_VM:#x}')
    A(f's_lshl_b32 s{S_FM}, s{S_P0}, 5')
    A(f's_add_u32 s{S_FM}, s{S_FM}, {F_M:#x}')
    A(f's_mov_b32 s{S_SC}, {f32bits(128 ** -0.5):#x}')
    A(f's_mov_b32 s{S_L2E}, {f32bits(math.log2(math.e)):#x}')
    KX, VX, KM, VM, QF, SS, OO = 52, 84, 100, 116, 124, 140, 152
    V_KMA, V_VMA, V_QW, V_QR, V_DIFF = 168, 169, 170, 171, 172
    PP = 174
    T0, T1, T2 = V_T0, V_T1, V_T2
    QIMG = 81920
    A(f'v_and_b32 v{T0}, 7, v{V_I}')
    A(f'v_lshl_add_u32 v{T0}, v{V_G}, 3, v{T0}')
    A(f'v_lshlrev_b32 v{V_KMA}, 4, v{T0}')
    A(f'v_and_b32 v{T0}, 31, v{V_L}')
    A(f'v_lshlrev_b32 v{V_VMA}, 3, v{T0}')
    A(f's_lshl_b32 s{S_TMP}, s{S_WV}, 10')
    A(f's_add_u32 s{S_TMP}, s{S_TMP}, {QIMG}')
    A(f'v_add_u32 v{V_QW}, s{S_TMP}, v{V_L16}')
    A(f's_lshl_b32 s{S_TMP}, s{S_TT}, 12')
    A(f's_add_u32 s{S_TMP}, s{S_TMP}, {QIMG}')
    A(f'v_add_u32 v{V_QR}, s{S_TMP}, v{V_L16}')
    A(f's_lshl_b32 s{S_TMP}, s{S_TT}, 4')
    A(f'v_add_u32 v{V_DIFF}, s{S_TMP}, v{V_I}')
    A(f'v_lshlrev_b32 v{T0}, 2, v{V_G}')
    A(f'v_sub_u32 v{V_DIFF}, v{V_DIFF}, v{T0}')

    def pre(A):
        for f in range(8):
            A(f's_add_u32 s{S_TMP}, s{S_KX}, {(f >> 2) * 4096}')
            A(f'buffer_load_dwordx4 v[{KX + 4 * f}:{KX + 4 * f + 3}], v{V_L16}, {WS}, s{S_TMP} offen offset:{(f & 3) * 1024} sc1')
        for f in range(4):
            A(f'buffer_load_dwordx4 v[{VX + 4 * f}:{VX + 4 * f + 3}], v{V_L16}, {WS}, s{S_VX} offen offset:{f * 1024} sc1')
        A(f's_add_u32 s{S_KX}, s{S_KX}, {32 * 8192}')
        A(f's_add_u32 s{S_VX}, s{S_VX}, {32 * 8192}')

    acc = lambda t, tt: 12 + 4 * (t * 2 + tt)

    def epi(A):
        for tt in range(2):
            pack4(A, QF + 4 * tt, acc(0, tt)); pack4(A, QF + 4 * tt + 2, acc(1, tt))
            A(f'ds_write_b128 v{V_QW}, v[{QF + 4 * tt}:{QF + 4 * tt + 3}] offset:{tt * 4096}')
        A.wait_lg0()
        A('s_barrier')
        qt = [A(f'ds_read_b128 v[{QF + 4 * k}:{QF + 4 * k + 3}], v{V_QR} offset:{k * 1024}') for k in range(4)]
        A.wait_vm0()
        Sm, S0, S1 = SS, SS + 4, SS + 8
        for k in range(4):
            A.wait(qt[k])
            for kt, s_ in ((0, S0), (1, S1)):
                c = '0' if k == 0 else f'v[{s_}:{s_ + 3}]'
                b = KX + 4 * (kt * 4 + k)
                A(f'v_mfma_f32_16x16x32_bf16 v[{s_}:{s_ + 3}], v[{b}:{b + 3}], v[{QF + 4 * k}:{QF + 4 * k + 3}], {c}')
        wait_flags(A, abort, S_FM, 8, sleep=1)
        kt_ = [A(f'buffer_load_dwordx4 v[{KM + 4 * k}:{KM + 4 * k + 3}], v{V_KMA}, {WS}, s{S_KM} offen offset:{k * 512} sc1') for k in range(4)]
        vt_ = [A(f'buffer_load_dwordx2 v[{VM + 2 * j}:{VM + 2 * j + 1}], v{V_VMA}, {WS}, s{S_VM} offen offset:{j * 256} sc1') for j in range(4)]
        A(f's_add_u32 s{S_KM}, s{S_KM}, {32 * 2048}')
        A(f's_add_u32 s{S_VM}, s{S_VM}, {32 * 2048}')
        A(f's_add_u32 s{S_FM}, s{S_FM}, {32 * 32}')

        def fix(base):
            for r in (0, 2):
                round2(A, base + r, base + r + 1, T0)
                A(f'v_mul_f32 v{base + r}, s{S_SC}, v{base + r}')
                A(f'v_mul_f32 v{base + r + 1}, s{S_SC}, v{base + r + 1}')
                round2(A, base + r, base + r + 1, T0)
        A(f'v_mov_b32 v{T2}, 0xce6e6b28')
        for kt, s_ in ((0, S0), (1, S1)):
            fix(s_)
            for r in range(4):
                A(f'v_cmp_le_i32 vcc, {16 * kt + r}, v{V_DIFF}')
                A(f'v_cndmask_b32 v{s_ + r}, v{T2}, v{s_ + r}, vcc')
        for k in range(4):
            A.wait(kt_[k])
            c = '0' if k == 0 else f'v[{Sm}:{Sm + 3}]'
            A(f'v_mfma_f32_16x16x32_bf16 v[{Sm}:{Sm + 3}], v[{KM + 4 * k}:{KM + 4 * k + 3}], v[{QF + 4 * k}:{QF + 4 * k + 3}], {c}')
        A(f'v_cmp_gt_u32 vcc, 2, v{V_G}')
        fix(Sm)
        for r in range(4):
            A(f'v_cndmask_b32 v{Sm + r}, v{T2}, v{Sm + r}, vcc')
        A(f'v_max3_f32 v{T0}, v{SS}, v{SS + 1}, v{SS + 2}')
        for j in range(3, 11, 2):
            A(f'v_max3_f32 v{T0}, v{T0}, v{SS + j}, v{SS + j + 1}')
        A(f'v_max_f32 v{T0}, v{T0}, v{SS + 11}')
        xlane_allreduce_g(A, 'v_max_f32', T0, T1)
        for j in range(12):
            A(f'v_sub_f32 v{SS + j}, v{SS + j}, v{T0}')
            A(f'v_mul_f32 v{SS + j}, s{S_L2E}, v{SS + j}')
            A(f'v_exp_f32 v{SS + j}, v{SS + j}')
        A(f'v_add_f32 v{T0}, v{SS}, v{SS + 1}')
        for j in range(2, 12):
            A(f'v_add_f32 v{T0}, v{T0}, v{SS + j}')
        xlane_allreduce_g(A, 'v_add_f32', T0, T1)
        A(f'v_rcp_f32 v{T0}, v{T0}')
        for j in range(12):
            A(f'v_mul_f32 v{SS + j}, v{SS + j}, v{T0}')
        pack4(A, PP, S0); pack4(A, PP + 2, S1); pack4(A, PP + 4, Sm)
        A.wait(vt_[-1])
        for j in range(4):
            o = OO + 4 * j
            A(f'v_mfma_f32_16x16x32_bf16 v[{o}:{o + 3}], v[{VX + 4 * j}:{VX + 4 * j + 3}], v[{PP}:{PP + 3}], 0')
        for j in range(4):
            o = OO + 4 * j
            A(f'v_mfma_f32_16x16x16_bf16 v[{o}:{o + 3}], v[{VM + 2 * j}:{VM + 2 * j + 1}], v[{PP + 4}:{PP + 5}], v[{o}:{o + 3}]')
        for j in range(2):
            d = QF + 4 * j
            pack4(A, d, OO + 8 * j); pack4(A, d + 2, OO + 8 * j + 4)
            A(f'buffer_store_dwordx4 v[{d}:{d + 3}], v{V_L16}, {WS}, s{S_DST} offen offset:{j * 2048} sc1')
        A(f's_add_u32 s{S_DST}, s{S_DST}, {32 * 8192}')

    tiles = [(lambda k: wlin(2 * k), True), (lambda k: wlin(2 * k + 1), True)]
    gemm_loop(A, abort, 20, 2, tiles, 40960, 1, 128, 128, 1, epi, pre_compute=pre)
```

```python
import sys
from asmlib import *
from layout import *
import rec, roles
from roles import *

KNAME = "adaLN_cond__memory_aug_recurrent_mem_tr__swiglu_ffn__prompt_kernel"
HEADER = open('adaLN_cond__memory_aug_recurrent_mem_tr__swiglu_ffn__prompt.s.ref').read().split('; Override launch')[0]

def gen(path, coarse=False, stamps=False):
    A = Asm()
    A.raw(HEADER.rstrip('\n'))
    A.raw('; @launch grid=(256,1,1) block=(256,1,1) lds=163840')
    A.raw('.amdgcn_target "amdgcn-amd-amdhsa--gfx950"')
    A.raw(kernel_header(KNAME))
    END = 'L_end'
    A('s_cmp_ge_u32 s2, 256')
    A(f's_cbranch_scc1 {END}')
    S_X, S_IDX = 98, 99
    A(f's_and_b32 s{S_X}, s2, 7')
    A(f's_lshr_b32 s{S_IDX}, s2, 3')
    A(f's_cmp_lt_u32 s{S_X}, 2')
    A('s_cbranch_scc1 L_rec')
    common_setup(A)
    A(f's_cmp_lt_u32 s{S_X}, 4')
    A('s_cbranch_scc1 L_kv')
    A(f's_sub_u32 s{S_P0}, s{S_X}, 4')
    A(f's_lshl_b32 s{S_P0}, s{S_P0}, 5')
    A(f's_add_u32 s{S_P0}, s{S_P0}, s{S_IDX}')
    emit_init(A, END)
    wait_init(A, END)
    emit_ln(A, 1, S_P0)
    A(f's_lshl_b32 s{S_FOUT}, s{S_P0}, 2')
    A(f's_add_u32 s{S_FOUT}, s{S_FOUT}, {F_H:#x}')
    signal(A, S_FOUT)
    A('s_barrier')
    A(f's_cmp_eq_u32 s{S_X}, 4')
    A.branch('s_cbranch_scc1 L_qa')
    A(f's_cmp_eq_u32 s{S_X}, 5')
    A.branch('s_cbranch_scc1 L_x5')
    A(f's_cmp_eq_u32 s{S_X}, 6')
    A.branch('s_cbranch_scc1 L_x6')
    A(f's_cmp_ge_u32 s{S_IDX}, 20')
    A(f's_cbranch_scc1 {END}')
    A(f's_and_b32 s{S_P0}, s{S_IDX}, 1')
    A(f's_lshr_b32 s{S_P1}, s{S_IDX}, 1')
    emit_ff2(A, END)
    A.branch(f's_branch {END}')
    A.label('L_x6'); A.forget()
    A(f's_cmp_ge_u32 s{S_IDX}, 27')
    A(f's_cbranch_scc1 {END}')
    A(f's_mov_b32 s{S_P0}, s{S_IDX}')
    emit_ff1(A, END)
    A.branch(f's_branch {END}')
    A.label('L_x5'); A.forget()
    A(f's_cmp_ge_u32 s{S_IDX}, 28')
    A(f's_cbranch_scc1 {END}')
    A(f's_cmp_ge_u32 s{S_IDX}, 20')
    A('s_cbranch_scc1 L_ln2r')
    A(f's_mul_i32 s{S_P0}, s{S_IDX}, 52')
    A(f's_lshr_b32 s{S_P0}, s{S_P0}, 8')
    A(f's_mul_i32 s{S_P1}, s{S_P0}, 5')
    A(f's_sub_u32 s{S_P1}, s{S_IDX}, s{S_P1}')
    emit_op(A, END)
    A.branch(f's_branch {END}')
    A.label('L_ln2r'); A.forget()
    A(f's_sub_u32 s{S_P0}, s{S_IDX}, 20')
    emit_ln2(A, END, 8)
    A.branch(f's_branch {END}')
    A.label('L_qa'); A.forget()
    A(f's_mov_b32 s{S_P0}, s{S_IDX}')
    emit_qa(A, END)
    A.branch(f's_branch {END}')
    A.label('L_kv'); A.forget()
    A(f's_mov_b32 s{S_P0}, s{S_IDX}')
    A(f's_sub_u32 s{S_P1}, s{S_X}, 2')
    emit_kv(A, END)
    A.branch(f's_branch {END}')
    A.label('L_rec'); A.forget()
    A(f's_mov_b32 s{rec.S_T}, s{S_X}')
    A(f's_mov_b32 s{rec.S_H}, s{S_IDX}')
    rec.emit_rec(A, END, mega=True, coarse=coarse, stamps=stamps)
    A.label(END)
    A('s_endpgm')
    A.raw(kernel_desc(KNAME))
    open(path, 'w').write(A.text())
    print('instructions:', A.ninstr, 'bytes of text:', len(A.text()))

if __name__ == '__main__':
    out = 'mega.s'
    gen(out, coarse='--coarse' in sys.argv, stamps='--stamps' in sys.argv)
    if '--install' in sys.argv:
        import shutil
        shutil.copy(out, 'adaLN_cond__memory_aug_recurrent_mem_tr__swiglu_ffn__prompt.s')
```

```python
import math
import struct
from asmlib import *
from layout import *
from roles import F_KV, F_M

VREG = 34816
MEMB = 4 * VREG
QKB = MEMB + 10240
OB = QKB + 4096
KXB = OB + 2048
assert KXB + 8192 == 163840

SPIN_LIMIT = 1 << 17


def f32bits(x):
    return struct.unpack('<I', struct.pack('<f', x))[0]


LDS_BLOCKS = [('v', s_, t_) for s_ in range(5) for t_ in range(2)] + [('k', s_, 1) for s_ in range(4)] + \
             [('q', s_, 1) for s_ in range(3)]
assert len(LDS_BLOCKS) == 17
_all = [(m, s_, t_) for m in 'qkv' for s_ in range(10) for t_ in range(2)] + [('o', k_, t_) for k_ in range(2) for t_ in range(5)]
_regb = [b for b in _all if b not in LDS_BLOCKS]
assert len(_regb) == 53
REG_OF = {b: (256 + 8 * i if i < 32 else 88 + 8 * (i - 32)) for i, b in enumerate(_regb)}
BLK_OF = {b: i for i, b in enumerate(LDS_BLOCKS)}


V_LANE, V_IDX, V_L16, V_KX, V_QKW, V_QKR, V_OW0, V_OR, V_PST, V_T2, V_T1, V_T0 = range(12)
VX0, VX1 = 12, 16
V_P4, V_P1, V_PUB = 12, 13, 14
Q0, Q1, K0, K1, VV0, VV1 = 20, 24, 28, 32, 36, 40
AR = 44
PL = 56
VW = 64
SS = 64
VXR = 80

S_WS, S_W, S_DBG = 4, 8, 12
S_T, S_H, S_WV, S_STEP, S_FAST = 16, 17, 18, 19, 20
S_PLOC, S_PREM, S_PS0, S_PS1, S_PS2, S_PA, S_PUBR, S_PUBL, S_KX, S_VX, S_RED, S_NOT1, S_C = range(21, 34)
S_MLO = 34
S_MPUB = 36
S_KM, S_VM, S_FL = 38, 39, 40
S_TMP = 41
S_PTR = 44
S_SPIN = 46
S_TMP2 = 47
S_ST = 48
S_STO = 80
S_KSEL = 96
S_FKV = 97
S_TMASK = 94
S_PAR, S_W1280, S_P1B, S_W512 = 72, 73, 74, 75
S_ONE = 76
S_HALF = 78
S_RDY = 25


def emit_rec(A, abort_label, nsteps=64, stamps=False, force_safe=False, coarse=False, backoff=6, ka=3, adelay=(0, 1, 1), mega=False, rp=(1, 2), cut=None, dbg='', kb=3, bgap=9, spec=True):
    def stamp(i):
        if stamps:
            A(f's_memtime s[{S_ST + 2 * i}:{S_ST + 2 * i + 1}]')
        if cut == i:
            A.branch('s_branch L_cut')

    if coarse:
        A('s_memrealtime s[84:85]')
        A('s_memtime s[86:87]')
    A(f's_load_dwordx2 s[{S_PTR}:{S_PTR + 1}], s[0:1], {KA_WS}')
    A(f's_load_dwordx2 s[{S_TMP + 1}:{S_TMP + 2}], s[0:1], {KA_DBG}')
    A(f'v_lshrrev_b32 v1, 6, v0')
    A(f'v_readfirstlane_b32 s{S_WV}, v1')
    A(f'v_and_b32 v{V_LANE}, 63, v0')
    A('s_waitcnt lgkmcnt(0)')
    A.srd(S_WS, S_PTR, S_PTR + 1, WS_BYTES)
    A.srd(S_DBG, S_TMP + 1, S_TMP + 2, 256)
    A(f's_mov_b32 s{S_SPIN}, 0')
    L = V_LANE
    T0, T1 = V_T0, V_T1
    G, R_, C_ = 20, 21, 22
    A(f'v_lshrrev_b32 v{G}, 4, v{L}')
    A(f'v_bfe_u32 v{R_}, v{L}, 2, 2')
    A(f'v_and_b32 v{C_}, 3, v{L}')
    A(f'v_and_b32 v{T0}, 8, v{L}')
    A(f'v_cmp_eq_u32 vcc, 0, v{T0}')
    A(f'v_mov_b32 v{T0}, 0xeeee')
    A(f'v_mov_b32 v{T1}, 0x4444')
    A(f'v_cndmask_b32 v{V_IDX}, v{T0}, v{T1}, vcc')
    A(f's_mul_i32 s{S_TMP}, s{S_WV}, {VREG}')
    A(f'v_lshlrev_b32 v{T0}, 4, v{L}')
    A(f'v_add_u32 v{V_L16}, s{S_TMP}, v{T0}')
    A(f'v_add_u32 v{V_KX}, {MEMB}, v{T0}')
    A(f'v_lshrrev_b32 v{T0}, 5, v{L}')
    A(f'v_lshlrev_b32 v{T0}, 8, v{T0}')
    A(f'v_and_b32 v{T1}, 15, v{L}')
    A(f'v_lshl_add_u32 v{T0}, v{T1}, 4, v{T0}')
    A(f'v_and_b32 v{T1}, 1, v{G}')
    A(f'v_lshl_add_u32 v{T0}, v{T1}, 3, v{T0}')
    A(f's_lshl_b32 s{S_TMP}, s{S_WV}, 9')
    A(f's_add_u32 s{S_TMP}, s{S_TMP}, {QKB}')
    A(f'v_add_u32 v{V_QKW}, s{S_TMP}, v{T0}')
    A(f'v_lshlrev_b32 v{T0}, 6, v{G}')
    A(f'v_lshl_add_u32 v{T0}, v{R_}, 4, v{T0}')
    A(f'v_and_b32 v{T1}, 1, v{C_}')
    A(f'v_lshl_add_u32 v{T0}, v{T1}, 3, v{T0}')
    A(f'v_add_u32 v{V_QKR}, {QKB}, v{T0}')
    I_ = 23
    A(f'v_and_b32 v{I_}, 7, v{L}')
    A(f'v_lshrrev_b32 v{T0}, 1, v{G}')
    A(f's_lshl_b32 s{S_TMP}, s{S_WV}, 2')
    A(f'v_add_u32 v{T0}, s{S_TMP}, v{T0}')
    A(f'v_xor_b32 v{T0}, v{T0}, v{I_}')
    A(f'v_lshlrev_b32 v{T0}, 4, v{T0}')
    A(f'v_lshl_add_u32 v{T0}, v{I_}, 8, v{T0}')
    A(f'v_and_b32 v{T1}, 1, v{G}')
    A(f'v_lshl_add_u32 v{T0}, v{T1}, 3, v{T0}')
    A(f'v_add_u32 v{V_OW0}, {OB}, v{T0}')
    A(f'v_bfe_u32 v{T0}, v{L}, 3, 1')
    A(f'v_lshl_add_u32 v{T0}, v{G}, 1, v{T0}')
    A(f'v_xor_b32 v{T0}, v{T0}, v{I_}')
    A(f'v_lshlrev_b32 v{T0}, 4, v{T0}')
    A(f'v_lshl_add_u32 v{T0}, v{I_}, 8, v{T0}')
    A(f'v_add_u32 v{V_OR}, {OB}, v{T0}')
    A(f'v_and_b32 v{T0}, 1, v{G}')
    A(f'v_lshlrev_b32 v{T0}, 1, v{T0}')
    A(f'v_lshrrev_b32 v{T1}, 1, v{G}')
    A(f'v_add_u32 v{T0}, v{T0}, v{T1}')
    A(f'v_lshlrev_b32 v{T0}, 1, v{T0}')
    A(f'v_bfe_u32 v{T1}, v{L}, 3, 1')
    A(f'v_add_u32 v{T0}, v{T0}, v{T1}')
    A(f'v_lshlrev_b32 v{T0}, 12, v{T0}')
    A(f'v_lshl_add_u32 v{V_PST}, v{I_}, 4, v{T0}')
    A(f's_lshl_b32 s{S_KSEL}, s{S_T}, 2')
    A(f's_add_u32 s{S_KSEL}, s{S_KSEL}, s{S_WV}')
    A(f's_mov_b32 s{S_ONE}, 0x3f803f80')
    A(f's_mov_b32 s{S_ONE + 1}, 0x3f803f80')
    A(f's_mov_b32 s{S_HALF}, 0x3f003f00')
    A(f's_mov_b32 s{S_HALF + 1}, 0x3f003f00')
    A(f's_mov_b32 s{S_PAR}, 0')
    A(f's_mul_i32 s{S_W1280}, s{S_WV}, 1280')
    A(f's_add_u32 s{S_P1B}, s{S_W1280}, {MEMB + 1024}')
    A(f's_lshl_b32 s{S_W512}, s{S_WV}, 9')

    def rebuild():
        A(f'v_add_u32 v{V_P4}, s{S_W1280}, v{V_KX}')
        A(f'v_lshl_add_u32 v{V_P1}, v{L}, 2, s{S_P1B}')

    def rebuild_pub():
        A(f'v_and_b32 v{T0}, 7, v{L}')
        A(f'v_bfe_u32 v{T1}, v{L}, 4, 1')
        A(f'v_lshlrev_b32 v{T1}, 3, v{T1}')
        A(f'v_lshl_add_u32 v{T0}, v{T0}, 4, v{T1}')
        A(f'v_lshrrev_b32 v{T1}, 5, v{L}')
        A(f'v_lshl_add_u32 v{V_PUB}, v{T1}, 13, v{T0}')

    rebuild()
    A(f's_mov_b32 s{S_MLO}, -1')
    A(f's_mov_b32 s{S_MLO + 1}, 0')
    A(f's_mov_b32 s{S_MPUB}, 0x00ff00ff')
    A(f's_mov_b32 s{S_MPUB + 1}, 0x00ff00ff')
    A(f's_mov_b32 s{S_NOT1}, 0xfffffffe')
    A(f's_mov_b32 s{S_C}, {f32bits((128 ** -0.5) * math.log2(math.e)):#x}')
    A(f's_mul_i32 s{S_TMP2}, s{S_WV}, {VREG}')
    A(f's_mul_i32 s{S_TMP}, s{S_T}, 5120')
    A(f's_add_u32 s{S_PLOC}, s{S_TMP}, {WS_MEML - MEMB:#x}')
    A(f's_xor_b32 s{S_TMP}, s{S_T}, 1')
    A(f's_lshl_b32 s{S_TMP}, s{S_TMP}, 14')
    A(f's_add_u32 s{S_PREM}, s{S_TMP}, {WS_MEMR - MEMB:#x}')
    A(f's_mul_i32 s{S_TMP}, s{S_T}, 163840')
    A(f's_add_u32 s{S_TMP}, s{S_TMP}, {WS_PART:#x}')
    A(f's_mul_i32 s{S_TMP + 1}, s{S_WV}, {10 * 4096}')
    A(f's_add_u32 s{S_PS0}, s{S_TMP}, s{S_TMP + 1}')
    A(f's_lshl_b32 s{S_TMP + 1}, s{S_H}, 7')
    A(f's_add_u32 s{S_PS0}, s{S_PS0}, s{S_TMP + 1}')
    A(f's_add_u32 s{S_PS1}, s{S_PS0}, 32768')
    A(f's_lshl_b32 s{S_RED}, s{S_WV}, 5')
    A(f's_add_u32 s{S_RED}, s{S_RED}, s{S_H}')
    A(f's_min_u32 s{S_TMP + 2}, s{S_RED}, 39')
    A(f's_lshl_b32 s{S_TMP + 1}, s{S_TMP + 2}, 12')
    A(f's_add_u32 s{S_PA}, s{S_TMP}, s{S_TMP + 1}')
    A(f's_sub_u32 s{S_PA}, s{S_PA}, s{S_TMP2}')
    A(f's_lshl_b32 s{S_TMP + 1}, s{S_TMP + 2}, 7')
    A(f's_lshl_b32 s{S_TMP}, s{S_T}, 14')
    A(f's_add_u32 s{S_PUBR}, s{S_TMP}, s{S_TMP + 1}')
    A(f's_add_u32 s{S_PUBR}, s{S_PUBR}, {WS_MEMR + 32768:#x}')
    A(f's_mul_i32 s{S_TMP}, s{S_T}, 5120')
    A(f's_add_u32 s{S_PUBL}, s{S_TMP}, s{S_TMP + 1}')
    A(f's_add_u32 s{S_PUBL}, s{S_PUBL}, {WS_MEML + 10240:#x}')
    A(f's_lshl_b32 s{S_TMP}, s{S_H}, 13')
    A(f's_lshl_b32 s{S_TMP + 1}, s{S_WV}, 11')
    A(f's_add_u32 s{S_TMP}, s{S_TMP}, s{S_TMP + 1}')
    A(f's_sub_u32 s{S_TMP}, s{S_TMP}, s{S_TMP2}')
    A(f's_add_u32 s{S_KX}, s{S_TMP}, {WS_KX:#x}')
    A(f's_add_u32 s{S_VX}, s{S_TMP}, {WS_VX:#x}')
    A(f's_lshl_b32 s{S_TMP}, s{S_H}, 12')
    A(f's_lshl_b32 s{S_TMP + 1}, s{S_WV}, 10')
    A(f's_add_u32 s{S_TMP}, s{S_TMP}, s{S_TMP + 1}')
    A(f's_sub_u32 s{S_TMP}, s{S_TMP}, s{S_TMP2}')
    A(f's_add_u32 s{S_KM}, s{S_TMP}, {WS_KM:#x}')
    A(f's_mul_i32 s{S_TMP}, s{S_T}, {WS_KM - WS_VM:#x}')
    A(f's_sub_u32 s{S_KM}, s{S_KM}, s{S_TMP}')
    A(f's_sub_u32 s{S_TMASK}, 0, s{S_T}')
    A(f's_mov_b32 s{S_TMASK + 1}, s{S_TMASK}')

    lskip = A.newlabel('L_ann')
    A(f's_cmp_lg_u32 s{S_WV}, 0')
    A.branch(f's_cbranch_scc1 {lskip}')
    A(f's_getreg_b32 s{S_TMP}, hwreg(HW_REG_XCC_ID)')
    A(f's_and_b32 s{S_TMP}, s{S_TMP}, 15')
    A(f's_lshl_b32 s{S_TMP}, 1, s{S_TMP}')
    A(f'v_mov_b32 v{T0}, s{S_TMP}')
    A(f's_lshl_b32 s{S_TMP + 1}, s{S_T}, 2')
    A(f'v_mov_b32 v{T1}, s{S_TMP + 1}')
    A('s_mov_b64 exec, 1')
    A(f'buffer_atomic_or v{T0}, v{T1}, s[{S_DBG}:{S_DBG + 3}], 0 offen sc1')
    A.wait_vm0()
    A(f'v_mov_b32 v{T0}, 1')
    A(f'v_mov_b32 v{T1}, 8')
    A(f'buffer_atomic_add v{T0}, v{T1}, s[{S_DBG}:{S_DBG + 3}], 0 offen sc1')
    A('s_mov_b64 exec, -1')
    A.flush_hazards()
    A.label(lskip)

    A(f's_lshl_b32 s{S_TMP}, s{S_H}, 3')
    A(f's_lshl_b32 s{S_TMP + 1}, s{S_T}, 2')
    A(f's_add_u32 s{S_TMP}, s{S_TMP}, s{S_TMP + 1}')
    A(f's_add_u32 s{S_TMP}, s{S_TMP}, s{S_WV}')
    A(f's_lshl_b32 s{S_TMP}, s{S_TMP}, 4')
    A(f's_add_u32 s{S_TMP}, s{S_TMP}, {WS_MEMR:#x}')
    A(f'v_mov_b32 v{T0}, s{S_TMP}')
    A(f'v_add_u32 v{T1}, 8192, v{T0}')
    A('s_mov_b64 exec, 1')
    A(f's_mov_b32 s{S_ST + 8}, -1')
    A(f's_mov_b32 s{S_ST + 9}, -1')
    A.wait_vm0()
    for rep in range(3):
        for c in range(2):
            A(f's_memtime s[{S_ST}:{S_ST + 1}]')
            A('s_waitcnt lgkmcnt(0)')
            A(f'buffer_store_dword v{T0}, v{(T0, T1)[c]}, s[{S_WS}:{S_WS + 3}], 0 offen sc1')
            A.wait_vm0()
            A(f's_memtime s[{S_ST + 2}:{S_ST + 3}]')
            A('s_waitcnt lgkmcnt(0)')
            A(f's_sub_u32 s{S_ST + 4}, s{S_ST + 2}, s{S_ST}')
            A(f's_min_u32 s{S_ST + 8 + c}, s{S_ST + 8 + c}, s{S_ST + 4}')
    A('s_mov_b64 exec, -1')
    A(f's_cmp_lt_u32 s{S_ST + 9}, s{S_ST + 8}')
    A(f's_cselect_b32 s{S_TMP}, 8192, 0')
    A(f's_add_u32 s{S_PREM}, s{S_PREM}, s{S_TMP}')
    if stamps or coarse:
        A(f's_mov_b32 s{S_STO + 2}, s{S_ST + 8}')
        A(f's_mov_b32 s{S_STO + 3}, s{S_ST + 9}')

    VSRC, VB, VBO = 24, 25, 26
    VOS = 27
    TB = 32
    A(f'v_lshrrev_b32 v{T0}, 2, v{L}')
    A(f'v_lshlrev_b32 v{T0}, 13, v{T0}')
    A(f'v_lshl_add_u32 v{VSRC}, v{C_}, 4, v{T0}')
    A(f'v_lshrrev_b32 v{T0}, 1, v{G}')
    A(f'v_lshlrev_b32 v{T0}, 4, v{T0}')
    A(f'v_and_b32 v{T1}, 1, v{G}')
    A(f'v_lshl_add_u32 v{T0}, v{T1}, 2, v{T0}')
    A(f'v_lshrrev_b32 v{T1}, 1, v{R_}')
    A(f'v_lshl_add_u32 v{T0}, v{T1}, 3, v{T0}')
    A(f'v_and_b32 v{T1}, 1, v{R_}')
    A(f'v_add_u32 v{T0}, v{T1}, v{T0}')
    A(f'v_lshlrev_b32 v{T1}, 6, v{T0}')
    A(f'v_lshl_add_u32 v{T1}, v{C_}, 3, v{T1}')
    A(f'v_add_u32 v{VB}, s{S_TMP2}, v{T1}')
    A(f'v_mul_u32_u24 v{T0}, 160, v{T0}')
    A(f'v_lshl_add_u32 v{T0}, v{C_}, 3, v{T0}')
    A(f'v_add_u32 v{VBO}, s{S_TMP2}, v{T0}')
    for n in range(5):
        A(f'v_add_u32 v{T0}, {64 * n}, v{L}')
        A(f'v_mul_u32_u24 v{T1}, 6554, v{T0}')
        A(f'v_lshrrev_b32 v{T1}, 16, v{T1}')
        A(f'v_mul_u32_u24 v{VOS + n}, 10, v{T1}')
        A(f'v_sub_u32 v{T0}, v{T0}, v{VOS + n}')
        A(f'v_mul_u32_u24 v{T1}, 1280, v{T1}')
        A(f'v_lshl_add_u32 v{VOS + n}, v{T0}, 4, v{T1}')

    S_CB, S_R0 = S_ST + 10, S_ST + 11
    S_SO = S_ST + 12
    S_PQ, S_PK, S_PV, S_PO = S_ST + 14, S_ST + 16, S_ST + 18, S_ST + 20
    A(f's_load_dwordx2 s[{S_PQ}:{S_PQ + 1}], s[0:1], {KA_WQ}')
    A(f's_load_dwordx2 s[{S_PK}:{S_PK + 1}], s[0:1], {KA_WK}')
    A(f's_load_dwordx2 s[{S_PV}:{S_PV + 1}], s[0:1], {KA_WV}')
    A(f's_load_dwordx2 s[{S_PO}:{S_PO + 1}], s[0:1], {KA_WO}')
    A(f's_lshl_b32 s{S_CB}, s{S_H}, 8')
    A(f's_lshl_b32 s{S_TMP}, s{S_WV}, 6')
    A(f's_add_u32 s{S_CB}, s{S_CB}, s{S_TMP}')
    A('s_waitcnt lgkmcnt(0)')
    WBYTES = 640 * 8192
    cur = [None]

    def use(ptr):
        if cur[0] != ptr:
            A.srd(S_W, ptr, ptr + 1, WBYTES)
            cur[0] = ptr

    def dma_slot(ptr, sig, pos):
        use(ptr)
        A(f's_cmp_eq_u32 s{S_T}, 0')
        A(f's_cselect_b32 s{S_SO}, {sig}, {(sig + 5) % 10}')
        A(f's_lshl_b32 s{S_SO}, s{S_SO}, 19')
        A(f's_add_u32 s{S_SO}, s{S_SO}, s{S_CB}')
        tok = None
        for n in range(4):
            A(f's_add_u32 m0, s{S_TMP2}, {pos * 4096 + n * 1024}')
            tok = A(f'buffer_load_dwordx4 v{VSRC}, s[{S_W}:{S_W + 3}], s{S_SO} offen lds')
            if n < 3:
                A(f's_add_u32 s{S_SO}, s{S_SO}, {16 * 8192}')
        return tok

    def read_slot(tok, pos, dests):
        A.wait(tok)
        for tau in range(2):
            for u in range(4):
                off = pos * 4096 + (32 * (u >> 1) + 2 * (u & 1)) * 64 + tau * 32
                A(f'ds_read_b64_tr_b16 {wr(dests[tau] + 2 * u, 2)}, v{VB} offset:{off}')

    WOS = 0

    def dma_wo():
        use(S_PO)
        A(f's_mul_i32 s{S_SO}, s{S_H}, 163840')
        A(f's_mul_i32 s{S_TMP}, s{S_T}, 640')
        A(f's_add_u32 s{S_SO}, s{S_SO}, s{S_TMP}')
        A(f's_mul_i32 s{S_TMP}, s{S_WV}, 160')
        A(f's_add_u32 s{S_SO}, s{S_SO}, s{S_TMP}')
        tok = []
        for blk in range(4):
            for n in range(5):
                A(f's_add_u32 m0, s{S_TMP2}, {WOS + (blk * 5 + n) * 1024}')
                t = A(f'buffer_load_dwordx4 v{VOS + n}, s[{S_W}:{S_W + 3}], s{S_SO} offen lds')
            tok.append(t)
            if blk < 3:
                A(f's_add_u32 s{S_SO}, s{S_SO}, {32 * 1280}')
        return tok

    def put_block(reg, blk):
        for hf in range(2):
            A(f'ds_write_b128 v{V_L16}, v[{reg + 4 * hf}:{reg + 4 * hf + 3}] offset:{blk * 2048 + hf * 1024}')

    park = {b: TB + 8 * (BLK_OF[b] - 10) for b in LDS_BLOCKS[10:]}

    def dest_of(b):
        return REG_OF[b] if b in REG_OF else park[b]

    ptrs = {'q': S_PQ, 'k': S_PK, 'v': S_PV}
    stream = [('q', x) for x in range(10)] + [('k', x) for x in range(10)] + [('v', x) for x in range(5, 10)]
    tk = {}
    for i in range(8):
        tk[i] = dma_slot(ptrs[stream[i][0]], stream[i][1], i % 8)
    pos_of = {i: i % 8 for i in range(24)}
    pos_of[24] = 5
    tko = None
    for i in range(25):
        m, sig = stream[i]
        read_slot(tk[i], pos_of[i], [dest_of((m, sig, 0)), dest_of((m, sig, 1))])
        A.wait_lg0()
        if i + 8 < 24:
            tk[i + 8] = dma_slot(ptrs[stream[i + 8][0]], stream[i + 8][1], i % 8)
        if i == 20:
            tko = dma_wo()
        if i == 21:
            tk[24] = dma_slot(S_PV, stream[24][1], 5)
    for k2 in range(2):
        A.wait(tko[2 * k2 + 1])
        for tau in range(5):
            d = dest_of(('o', k2, tau))
            for u in range(4):
                off = WOS + (64 * k2 + 32 * (u >> 1) + 2 * (u & 1)) * 160 + tau * 32
                A(f'ds_read_b64_tr_b16 {wr(d + 2 * u, 2)}, v{VBO} offset:{off}')
    A.wait_lg0()
    tv = {sig: dma_slot(S_PV, sig, sig) for sig in range(5)}
    for b in LDS_BLOCKS[10:]:
        put_block(park[b], BLK_OF[b])
    A.wait_lg0()
    for sig in range(5):
        read_slot(tv[sig], sig, [TB, TB + 8])
        A.wait_lg0()
        put_block(TB, 2 * sig); put_block(TB + 8, 2 * sig + 1)
        A.wait_lg0()

    A(f's_load_dwordx2 s[{S_PQ}:{S_PQ + 1}], s[0:1], {KA_MEM0}')
    A('s_waitcnt lgkmcnt(0)')
    A.lg_done = A.lg_issued
    A.srd(S_W, S_PQ, S_PQ + 1, 8 * 1280)
    cur[0] = None
    for j in range(3):
        A(f's_mul_i32 s{S_TMP}, s{S_WV}, 160')
        A(f's_add_u32 s{S_TMP}, s{S_TMP}, {64 * j}')
        A(f'v_add_u32 v{T0}, s{S_TMP}, v{L}')
        A(f'v_lshrrev_b32 v{T1}, 3, v{T0}')
        A(f's_mul_i32 s{S_TMP + 1}, s{S_T}, 40')
        A(f'v_add_u32 v{T1}, s{S_TMP + 1}, v{T1}')
        A(f'v_subrev_u32 v24, 80, v{T1}')
        A(f'v_min_u32 v{T1}, v{T1}, v24')
        A(f'v_lshlrev_b32 v{T1}, 4, v{T1}')
        A(f'v_and_b32 v24, 7, v{T0}')
        A(f'v_mul_u32_u24 v24, 1280, v24')
        A(f'v_add_u32 v{T1}, v{T1}, v24')
        A(f'v_lshlrev_b32 v{T0}, 4, v{T0}')
        A(f'v_add_u32 v{T0}, {MEMB}, v{T0}')
        if j == 2:
            A(f's_mov_b64 exec, s[{S_MLO}:{S_MLO + 1}]')
        t = A(f'buffer_load_dwordx4 v[32:35], v{T1}, s[{S_W}:{S_W + 3}], 0 offen')
        A.wait(t)
        A(f'ds_write_b128 v{T0}, v[32:35]')
        if j == 2:
            A('s_mov_b64 exec, -1')
        A.wait_lg0()

    if coarse:
        A('s_memrealtime s[82:83]')
        A('s_waitcnt lgkmcnt(0)')
        A('s_mov_b32 s81, s82')
    lp = A.newlabel('L_mode')
    ld = A.newlabel('L_mode_done')
    A(f'v_mov_b32 v{T0}, 0')
    A.flush_hazards()
    A.label(lp)
    A(f'buffer_load_dwordx4 v[24:27], v{T0}, s[{S_DBG}:{S_DBG + 3}], 0 offen sc1')
    A.wait_vm0()
    A(f'v_readfirstlane_b32 s{S_TMP}, v26')
    A(f's_cmp_ge_u32 s{S_TMP}, 64')
    A.branch(f's_cbranch_scc1 {ld}')
    A(f's_add_u32 s{S_SPIN}, s{S_SPIN}, 1')
    A(f's_cmp_lt_u32 s{S_SPIN}, {SPIN_LIMIT}')
    A.branch(f's_cbranch_scc1 {lp}')
    A.branch(f's_branch {abort_label}')
    A.label(ld)
    if mega:
        lp2 = A.newlabel('L_init'); ld2 = A.newlabel('L_init_done')
        A.label(lp2)
        A(f'buffer_load_dword v24, v{T0}, s[{S_DBG}:{S_DBG + 3}], 0 offen offset:16 sc1')
        A.wait_vm0()
        A(f'v_readfirstlane_b32 s{S_TMP}, v24')
        A(f's_cmp_ge_u32 s{S_TMP}, 128')
        A.branch(f's_cbranch_scc1 {ld2}')
        A('s_sleep 4')
        A(f's_add_u32 s{S_SPIN}, s{S_SPIN}, 1')
        A(f's_cmp_lt_u32 s{S_SPIN}, {SPIN_LIMIT}')
        A.branch(f's_cbranch_scc1 {lp2}')
        A.branch(f's_branch {abort_label}')
        A.label(ld2)
    A(f'buffer_load_dwordx4 v[24:27], v{T0}, s[{S_DBG}:{S_DBG + 3}], 0 offen sc1')
    A.wait_vm0()
    A(f'v_readfirstlane_b32 s{S_TMP}, v24')
    A(f'v_readfirstlane_b32 s{S_TMP + 1}, v25')
    A(f's_bcnt1_i32_b32 s{S_TMP}, s{S_TMP}')
    A(f's_bcnt1_i32_b32 s{S_TMP + 1}, s{S_TMP + 1}')
    A(f's_add_u32 s{S_TMP}, s{S_TMP}, s{S_TMP + 1}')
    A(f's_cmp_eq_u32 s{S_TMP}, 2')
    A(f's_cselect_b32 s{S_FAST}, {0 if force_safe else 1}, 0')

    WS = f's[{S_WS}:{S_WS + 3}]'

    def issue_kx_vx():
        A(f's_lshl_b32 s{S_TMP}, s{S_WV}, 11')
        A(f's_add_u32 m0, s{S_TMP}, {KXB}')
        for n in range(2):
            A(f'buffer_load_dwordx4 v{V_L16}, {WS}, s{S_KX} offen offset:{n * 1024} sc1 lds')
        if 'nokvt' not in dbg:
            A(f's_add_u32 s{S_KX}, s{S_KX}, {32 * 8192}')

    deferred = []

    def kv_wait(need_plus):
        if not mega:
            return
        lp = A.newlabel('L_kv'); ls = A.newlabel('L_kvs')
        A.label(lp)
        A(f's_add_u32 s{S_TMP}, s{S_STEP}, {need_plus}')
        A(f's_cmp_ge_u32 s{S_TMP}, s{S_RDY}')
        A(f's_cbranch_scc1 {ls}')

        def slow():
            A.label(ls)
            A(f'v_lshlrev_b32 v{T0}, 7, v{L}')
            A(f'buffer_load_dword v{T1}, v{T0}, {WS}, s{S_FKV} offen sc1')
            A('s_waitcnt vmcnt(0)')
            A(f'v_cmp_eq_u32 vcc, 1, v{T1}')
            A(f's_ff0_i32_b64 s{S_RDY}, vcc')
            A(f's_min_u32 s{S_RDY}, s{S_RDY}, 65')
            A(f's_add_u32 s{S_SPIN}, s{S_SPIN}, 1')
            A(f's_cmp_lt_u32 s{S_SPIN}, {SPIN_LIMIT}')
            A(f's_cbranch_scc1 {lp}')
            A(f's_branch {abort_label}')
        deferred.append(slow)

    def m_flag():
        if not mega:
            return
        le = A.newlabel('L_mf')
        A(f's_cmp_lg_u32 s{S_WV}, 3')
        A(f's_cbranch_scc1 {le}')
        A(f'v_mov_b32 v{T0}, 1')
        A('s_mov_b64 exec, 1')
        A(f'buffer_store_dword v{T0}, off, {WS}, s{S_FL} sc1')
        A('s_mov_b64 exec, -1')
        A.label(le)
        A(f's_add_u32 s{S_FL}, s{S_FL}, 1024')

    if mega:
        A(f's_lshl_b32 s{S_TMP}, s{S_H}, 2')
        A(f's_add_u32 s{S_FKV}, s{S_TMP}, {F_KV:#x}')
        A(f's_mov_b32 s{S_RDY}, 0')
        A(f's_lshl_b32 s{S_TMP}, s{S_H}, 5')
        A(f's_lshl_b32 s{S_TMP + 1}, s{S_T}, 2')
        A(f's_add_u32 s{S_FL}, s{S_TMP}, s{S_TMP + 1}')
        A(f's_add_u32 s{S_FL}, s{S_FL}, {F_M - 1024:#x}')
    A(f's_mov_b32 s{S_STEP}, 0')

    def touches():
        l3 = A.newlabel('L_t3'); le = A.newlabel('L_te')
        A(f's_cmp_lt_u32 s{S_WV}, 2')
        A(f's_cbranch_scc1 {le}')
        A(f'v_lshlrev_b32 v{T0}, 7, v{L}')
        A(f's_cmp_eq_u32 s{S_WV}, 3')
        A(f's_cbranch_scc1 {l3}')
        A(f'v_min_u32 v{T1}, {39 * 128}, v{T0}')
        A(f's_add_u32 s{S_TMP}, s{S_PLOC}, {MEMB}')
        A(f'buffer_load_dword v{V_T2}, v{T1}, {WS}, s{S_TMP} offen sc1')
        A(f's_add_u32 s{S_TMP}, s{S_PREM}, {MEMB}')
        A(f'buffer_load_dword v{V_T2}, v{T1}, {WS}, s{S_TMP} offen sc1')
        A(f'v_and_b32 v{T1}, {31 * 128}, v{T0}')
        A(f's_add_u32 s{S_TMP}, s{S_KM}, {2 * VREG - 2048}')
        A(f'buffer_load_dword v{V_T2}, v{T1}, {WS}, s{S_TMP} offen sc1')
        A(f's_branch {le}')
        A.label(l3)
        A(f's_add_u32 s{S_TMP}, s{S_KX}, {3 * VREG - 3 * 2048}')
        A(f'buffer_load_dword v{V_T2}, v{T0}, {WS}, s{S_TMP} offen sc1')
        A(f's_add_u32 s{S_TMP}, s{S_TMP}, {WS_VX - WS_KX:#x}')
        A(f'buffer_load_dword v{V_T2}, v{T0}, {WS}, s{S_TMP} offen sc1')
        if mega:
            A(f'v_mov_b32 v{T0}, 1')
            A('s_mov_b64 exec, 1')
            A(f'buffer_store_dword v{T0}, off, {WS}, s{S_FL} sc1')
            A('s_mov_b64 exec, -1')
        else:
            A(f'buffer_load_dword v{V_T2}, off, {WS}, s{S_PA} sc1')
        A.label(le)
        A(f's_add_u32 s{S_FL}, s{S_FL}, 1024')

    kv_wait(0)
    issue_kx_vx()
    A(f's_mov_b32 s{S_STEP}, 0')
    A.wait_all()
    if stamps:
        A(f's_lshl_b32 s{S_TMP}, s{S_H}, 3')
        A(f's_lshl_b32 s{S_TMP + 1}, s{S_T}, 2')
        A(f's_add_u32 s{S_TMP}, s{S_TMP}, s{S_TMP + 1}')
        A(f's_add_u32 s{S_TMP}, s{S_TMP}, s{S_WV}')
        A(f's_mul_i32 s{S_STO}, s{S_TMP}, {64 * 64}')
        A(f's_add_u32 s{S_STO}, s{S_STO}, {WS_STAMP:#x}')
    if coarse:
        A('s_memrealtime s[88:89]')
        A('s_memtime s[90:91]')
        A('s_waitcnt lgkmcnt(0)')
    top = A.newlabel('L_step')
    done = A.newlabel('L_rec_done')
    A.flush_hazards()
    A.label(top)
    A.forget()

    def fifth(base):
        return 15 if base == 16 else base + 4

    def poll_issue(soff, base):
        A(f'buffer_load_dwordx4 v[{base}:{base + 3}], v{V_P4}, {WS}, s{soff} offen sc1')
        A(f'buffer_load_dword v{fifth(base)}, v{V_P1}, {WS}, s{soff} offen sc1')

    def poll_loop(soff, bases, half, preissued, gap=0):
        k = len(bases)
        lp = A.newlabel('L_poll'); ld = A.newlabel('L_polld')
        if not preissued:
            for j, b in enumerate(bases):
                poll_issue(soff, b)
                if gap and j < k - 1:
                    A(f's_nop {gap}')
        A.label(lp)
        wins = []
        for j, base in enumerate(bases):
            A(f's_waitcnt vmcnt({2 * (k - 1)})')
            A(f'v_max3_u32 v{T0}, v{base}, v{base + 1}, v{base + 2}')
            A(f'v_max3_u32 v{T0}, v{T0}, v{base + 3}, v{fifth(base)}')
            A(f'v_cmp_eq_u32 vcc, -1, v{T0}')
            lw = A.newlabel('L_pollw'); wins.append(lw)
            A(f's_cbranch_vccz {lw}')
            poll_issue(soff, base)
        A(f's_add_u32 s{S_SPIN}, s{S_SPIN}, 1')
        A(f's_cmp_lt_u32 s{S_SPIN}, {SPIN_LIMIT}')
        A(f's_cbranch_scc1 {lp}')
        A(f's_branch {abort_label}')
        for j, base in enumerate(bases):
            A.label(wins[j])
            A(f'ds_write_b128 v{V_P4}, v[{base}:{base + 3}] offset:{half * 5120}')
            A(f'ds_write_b32 v{V_P1}, v{fifth(base)} offset:{half * 5120}')
            if j < k - 1:
                A(f's_branch {ld}')
        A.label(ld)

    def a_read(sig, slot):
        return A(f'ds_read_b128 v[{AR + 4 * slot}:{AR + 4 * slot + 3}], v{V_KX} offset:{sig * 1024}')

    def smf(d, a, b):
        A(f'v_smfmac_f32_16x16x64_bf16 v[{d}:{d + 3}], v[{a}:{a + 3}], {wr(b, 8)}, v{V_IDX}')

    def SL(i):
        return 20 + 4 * i

    def blk_load(blk, b):
        A(f'ds_read_b128 v[{b}:{b + 3}], v{V_L16} offset:{blk * 2048}')
        return A(f'ds_read_b128 v[{b + 4}:{b + 7}], v{V_L16} offset:{blk * 2048 + 1024}')

    def zero(base, n):
        for r in range(base, base + n, 2):
            A(f'v_mov_b64 v[{r}:{r + 1}], 0')

    def poll_check(base, lwin):
        A(f'v_max3_u32 v{T0}, v{base}, v{base + 1}, v{base + 2}')
        A(f'v_max3_u32 v{T0}, v{T0}, v{base + 3}, v{fifth(base)}')
        A(f'v_cmp_eq_u32 vcc, -1, v{T0}')
        A(f's_cbranch_vccz {lwin}')

    def poll_put(base, half):
        A(f'ds_write_b128 v{V_P4}, v[{base}:{base + 3}] offset:{half * 5120}')
        A(f'ds_write_b32 v{V_P1}, v{fifth(base)} offset:{half * 5120}')

    stamp(0)
    zero(Q0, 24)
    lseq = [(m, sig, tau) for sig in range(5) for (m, tau) in (('v', 0), ('q', 0), ('k', 1), ('q', 1), ('v', 1), ('k', 0))]
    lfed = [b for b in lseq if b in BLK_OF]
    LR = [64, 72, 56]
    wt = {}; wreg_ = {}
    nl = [0]

    def lnext(reg):
        if nl[0] < len(lfed):
            b = lfed[nl[0]]; nl[0] += 1
            wt[b] = blk_load(BLK_OF[b], reg); wreg_[b] = reg

    lnext(LR[0]); lnext(LR[1])
    l_s0a = A.newlabel('L_s0a')
    A(f's_cmp_eq_u32 s{S_STEP}, 0' if cut is None else 's_cmp_eq_u32 0, 0')
    A(f's_cbranch_scc1 {l_s0a}')
    poll_loop(S_PLOC, [PL, VXR, 16][:kb], 0, False, gap=bgap)
    A.label(l_s0a)
    A.wait_lg0()
    A('s_barrier')
    stamp(1)
    at = {}

    ACC = {'q': Q0, 'k': K0, 'v': VV0}

    def local_slot(sig):
        a = AR + 4 * (sig % 3)
        A.wait(at[sig])
        for b in lseq[6 * sig:6 * sig + 6]:
            m, _, tau = b
            if b in BLK_OF:
                A.wait(wt[b])
                smf(ACC[m] + 4 * tau, a, wreg_[b])
                lnext(wreg_[b])
            else:
                smf(ACC[m] + 4 * tau, a, REG_OF[b])
        if sig + 3 < 5:
            at[sig + 3] = a_read(sig + 3, sig % 3)

    RS = [80, 56, 16][:kb]
    for j in range(3):
        at[j] = a_read(j, j)
    for sig in range(4):
        if sig == rp[0]:
            poll_issue(S_PREM, RS[0])
        if sig == rp[1]:
            poll_issue(S_PREM, RS[1])
        local_slot(sig)
    stamp(2)
    rslot = [0, 2, 3, 4, 1]
    l_s0 = A.newlabel('L_rs0')
    A(f's_cmp_eq_u32 s{S_STEP}, 0' if cut is None else 's_cmp_eq_u32 0, 0')
    A(f's_cbranch_scc1 {l_s0}')
    hs_ = [h_ for h_ in A.hist if h_.kind in ('mfma', 'valu')]
    for b_ in RS[2:]:
        poll_issue(S_PREM, b_)
    poll_loop(S_PREM, RS, 1, True)
    A.label(l_s0)
    A.hist = hs_
    A.wait_lg0()
    A('s_barrier')
    for j in range(2):
        at[5 + j] = a_read(5 + j, rslot[j])
    local_slot(4)
    at[9] = a_read(9, rslot[4])
    A.wait_vm0()
    for j in range(2, 4):
        at[5 + j] = a_read(5 + j, rslot[j])
    stamp(3)
    A(f's_add_u32 s{S_PLOC}, s{S_PLOC}, 10240')
    A(f's_add_u32 s{S_PREM}, s{S_PREM}, 32768')
    RA = [AR + 4 * rslot[j] for j in range(5)]

    def halfsum_ops(x, y, off):
        ops = []
        for r in range(4):
            ops.append(f'v_permlane32_swap_b32 v{x + r}, v{y + r}')
        for r in range(0, 4, 2):
            ops.append(f'v_pk_add_f32 v[{x + r}:{x + r + 1}], v[{x + r}:{x + r + 1}], v[{y + r}:{y + r + 1}]')
        ops.append(f'v_cvt_pk_bf16_f32 v{y}, v{x}, v{x + 1}')
        ops.append(f'v_cvt_pk_bf16_f32 v{y + 1}, v{x + 2}, v{x + 3}')
        if off is not None:
            ops.append(f'ds_write_b64 v{V_QKW}, v[{y}:{y + 1}] offset:{off}')
        return ops

    VM, VMA, VMB = VV1, VV0, VV0 + 2
    def pub_read(tmp):
        t = None
        A(f'v_add_u32 v{tmp + 3}, s{S_W512}, v{V_QKR}')
        for rho in range(2):
            t = A(f'ds_read_b64_tr_b16 v[{tmp + 2 * rho}:{tmp + 2 * rho + 1}], v{tmp + 3} offset:{2048 + rho * 256}')
        return t

    def pub_sel(tmp):
        return [f'v_cndmask_b32 v{tmp + r}, v{tmp + r}, v{VM + r}, s[{S_TMASK}:{S_TMASK + 1}]' for r in range(2)]

    def pub_store(tmp):
        if 'nopub' not in dbg:
            A(f'buffer_store_dwordx4 v[{tmp}:{tmp + 3}], v{V_L16}, {WS}, s{S_KM} offen sc1')
            A(f's_add_u32 s{S_KM}, s{S_KM}, {32 * 4096}')

    QFR = [SL(0), SL(1), SL(11), SL(12)]
    S0, S1 = SL(15), SL(16)
    qt = {}; xt = {}; xreg = {}; last = [None]

    def xread(i, b):
        kap, kt_ = i >> 1, i & 1
        xt[i] = A(f'ds_read_b128 v[{b}:{b + 3}], v{V_KX} offset:{KXB - MEMB + (kt_ * 4 + kap) * 1024}')
        xreg[i] = b

    def trread(b, off):
        t = None
        for rho in range(2):
            t = A(f'ds_read_b64_tr_b16 v[{b + 2 * rho}:{b + 2 * rho + 1}], v{V_QKR} offset:{off + rho * 256}')
        return t

    def take(fl, n):
        for _ in range(n):
            if fl:
                t = A(fl.pop(0))
                if t:
                    last[0] = t

    def ksm(i):
        smf(K0 + 4 * (i & 1), RA[i >> 1], REG_OF['k', 5 + (i >> 1), i & 1])

    def vsm(n):
        smf(VV0 + 4 * (n & 1), RA[(n - 10) // 2], REG_OF['v', n >> 1, n & 1])

    def xsm(i):
        kap, kt_ = i >> 1, i & 1
        acc = (S0, S1)[kt_]
        A.wait(qt[kap], xt[i])
        c = '0' if kap == 0 else f'v[{acc}:{acc + 3}]'
        A(f'v_mfma_f32_16x16x32_bf16 v[{acc}:{acc + 3}], v[{xreg[i]}:{xreg[i] + 3}], v[{QFR[kap]}:{QFR[kap] + 3}], {c}')

    for n_, j in enumerate((0, 1, 4, 2, 3)):
        A.wait(at[5 + j])
        smf(Q0, RA[j], REG_OF['q', 5 + j, 0])
        if n_ == 1:
            xread(0, SL(13))
        if n_ == 0:
            A(f'buffer_load_dwordx4 v[{VX0}:{VX0 + 3}], v{V_L16}, {WS}, s{S_VX} offen sc1')
        if n_ == 2:
            hs_ = [h_ for h_ in A.hist if h_.kind in ('mfma', 'valu')]
            touches()
            A.hist = hs_
        smf(Q1, RA[j], REG_OF['q', 5 + j, 1])
        if n_ == 0:
            A(f'buffer_load_dwordx4 v[{VX1}:{VX1 + 3}], v{V_L16}, {WS}, s{S_VX} offen offset:1024 sc1')
        if n_ == 1:
            xread(1, SL(14))
    fill = halfsum_ops(Q0, Q1, 0)
    ksm(0); ksm(1); ksm(2); ksm(3)
    for i in range(4, 8):
        take(fill, 1); ksm(i)
    take(fill, 3); ksm(8); take(fill, 2); assert not fill
    qw = last[0]
    ksm(9)
    stamp(4)
    vsm(10); vsm(11)
    xread(2, RA[0])
    vsm(12)
    A.wait(qw)
    A('s_barrier')
    qt[0] = trread(QFR[0], 0)
    fill = halfsum_ops(K0, K1, 2048)
    vsm(13); take(fill, 2)
    xread(3, RA[1])
    vsm(14); take(fill, 2)
    vsm(15); take(fill, 3)
    xsm(0); take(fill, 2); assert not fill
    kw = last[0]
    qt[1] = trread(QFR[1], 512)
    xsm(1); xread(4, xreg[0])
    vsm(16); xread(5, xreg[1])
    qt[2] = trread(QFR[2], 1024)
    vsm(17)
    qt[3] = trread(QFR[3], 1536)
    xsm(2); xread(6, xreg[2])
    xsm(3); xread(7, xreg[3])
    xsm(4)
    A.wait_lg0()
    A('s_barrier')
    stamp(5)
    KF = [SL(2), SL(3), RA[2], RA[3]]
    kt = {}
    kt[0] = trread(KF[0], 2048)
    kt[1] = trread(KF[1], 2048 + 512)
    xsm(5)
    kt[2] = trread(KF[2], 2048 + 1024)
    xsm(6)
    kt[3] = trread(KF[3], 2048 + 1536)
    xsm(7)
    PUBT = xreg[4]
    pbt = pub_read(PUBT)
    vsm(18)
    hs_ = [h_ for h_ in A.hist if h_.kind in ('mfma', 'valu')]
    kv_wait(1)
    A.hist = hs_
    issue_kx_vx()
    vsm(19)
    Sm = xreg[6]
    stamp(6)
    VM, VMA, VMB = VV1, VV0, VV0 + 2
    M_, M2 = T1, T0

    def msm(kap):
        b = KF[kap]
        A.wait(qt[kap], kt[kap])
        c = '0' if kap == 0 else f'v[{Sm}:{Sm + 3}]'
        A(f'v_mfma_f32_16x16x32_bf16 v[{Sm}:{Sm + 3}], v[{b}:{b + 3}], v[{QFR[kap]}:{QFR[kap] + 3}], {c}')

    fx = [f'v_max3_f32 v{M_}, v{S0}, v{S0 + 1}, v{S0 + 2}',
          f'v_max3_f32 v{M2}, v{S0 + 3}, v{S1}, v{S1 + 1}',
          f'v_max3_f32 v{M_}, v{M_}, v{S1 + 2}, v{S1 + 3}',
          f'v_max_f32 v{M_}, v{M_}, v{M2}',
          f'v_mov_b32 v{M2}, v{M_}']
    fv = halfsum_ops(VV0, VV1, None)
    for r in range(2):
        fv.append(f'v_cndmask_b32 v{VMA + r}, 0, v{VM + r}, s[{S_MLO}:{S_MLO + 1}]')
        fv.append(f'v_cndmask_b32 v{VMB + r}, v{VM + r}, 0, s[{S_MLO}:{S_MLO + 1}]')
    msm(0); take(fx, 2)
    A('s_waitcnt vmcnt(5)')
    A(f's_cmp_ge_u32 s{S_WV}, 2')
    msm(1)
    lvx = A.newlabel('L_vx')
    A(f's_cbranch_scc1 {lvx}')
    A('s_waitcnt vmcnt(2)')
    A.label(lvx)
    take(fx, 3); msm(2); take(fv, 1)
    if 'nokvt' not in dbg:
        A(f's_add_u32 s{S_VX}, s{S_VX}, {32 * 8192}')
    msm(3)
    A(f'v_permlane32_swap_b32 v{M_}, v{M2}')
    A(f'v_max_f32 v{M_}, v{M_}, v{M2}')
    A.wait(pbt)
    take(fv, 7)
    take(pub_sel(PUBT), 2)
    if cut is None:
        A(f's_cmp_eq_u32 s{S_STEP}, {nsteps - 1}')
        A(f's_cbranch_scc1 {done}')
    stamp(7)

    used = {Sm, S0, S1, VV0, VV1}
    free = [SL(i) for i in range(17) if SL(i) not in used]
    P01, PM, O0, O1 = SL(2), SL(3), SL(0), SL(1)
    for x in (P01, PM, O0, O1):
        free.remove(x)
    free.remove(PUBT)
    ONES, LS = free[0], free[1]
    OAS = free[2:7]
    zf = [f'v_mov_b64 v[{r}:{r + 1}], 0' for x in OAS for r in (x, x + 2)]
    A(f'v_max3_f32 v{M_}, v{M_}, v{Sm}, v{Sm + 1}')
    A(f'v_max3_f32 v{M_}, v{M_}, v{Sm + 2}, v{Sm + 3}')
    A(f'v_mov_b32 v{M2}, v{M_}')
    take(fv, 2)
    A(f'v_permlane16_swap_b32 v{M_}, v{M2}')
    A(f'v_max_f32 v{M_}, v{M_}, v{M2}')
    A(f'v_mul_f32 v{M_}, s{S_C}, v{M_}')

    def pkf(x):
        A(f'v_pk_fma_f32 v[{x}:{x + 1}], v[{x}:{x + 1}], s[{S_C - 1}:{S_C}], v[{M_}:{M_ + 1}] op_sel:[0,1,0] op_sel_hi:[1,1,0] neg_lo:[0,0,1] neg_hi:[0,0,1]')
    assert S_C % 2 == 1 and M_ % 2 == 0
    xs = [S0 + r for r in range(4)] + [S1 + r for r in range(4)]
    for j in range(4):
        pkf(xs[2 * j])
    for x in xs:
        A(f'v_exp_f32 v{x}, v{x}')
    pkf(Sm); pkf(Sm + 2)
    for j in range(4):
        A(f'v_cvt_pk_bf16_f32 v{P01 + j}, v{xs[2 * j]}, v{xs[2 * j + 1]}')
    A(f'v_exp_f32 v{Sm}, v{Sm}')
    A(f'v_exp_f32 v{Sm + 1}, v{Sm + 1}')
    A(f'v_mfma_f32_16x16x32_bf16 v[{O0}:{O0 + 3}], v[{VX0}:{VX0 + 3}], v[{P01}:{P01 + 3}], 0')
    pub_store(PUBT)
    A(f'v_exp_f32 v{Sm + 2}, v{Sm + 2}')
    A(f'v_mov_b64 v[{ONES}:{ONES + 1}], s[{S_ONE}:{S_ONE + 1}]')
    A(f'v_mfma_f32_16x16x32_bf16 v[{O1}:{O1 + 3}], v[{VX1}:{VX1 + 3}], v[{P01}:{P01 + 3}], 0')
    A(f'v_exp_f32 v{Sm + 3}, v{Sm + 3}')
    A(f'v_mov_b64 v[{ONES + 2}:{ONES + 3}], s[{S_ONE}:{S_ONE + 1}]')
    A(f'v_cvt_pk_bf16_f32 v{PM}, v{Sm}, v{Sm + 1}')
    A(f'v_cvt_pk_bf16_f32 v{PM + 1}, v{Sm + 2}, v{Sm + 3}')
    A(f'v_mfma_f32_16x16x32_bf16 v[{LS}:{LS + 3}], v[{ONES}:{ONES + 3}], v[{P01}:{P01 + 3}], 0')
    take(fv, 9)
    A(f'v_mov_b64 v[{PM + 2}:{PM + 3}], s[{S_HALF}:{S_HALF + 1}]')
    A(f'v_xor_b32 v{M2}, 32, v{V_OW0}')
    A(f'v_mfma_f32_16x16x16_bf16 v[{LS}:{LS + 3}], v[{PM + 2}:{PM + 3}], v[{PM}:{PM + 1}], v[{LS}:{LS + 3}]')
    take(zf, 2)
    A(f'v_mfma_f32_16x16x16_bf16 v[{O0}:{O0 + 3}], v[{VMA}:{VMA + 1}], v[{PM}:{PM + 1}], v[{O0}:{O0 + 3}]')
    take(zf, 2)
    A(f'v_mfma_f32_16x16x16_bf16 v[{O1}:{O1 + 3}], v[{VMB}:{VMB + 1}], v[{PM}:{PM + 1}], v[{O1}:{O1 + 3}]')
    take(zf, 2)
    A(f'v_rcp_f32 v{M_}, v{LS}')
    take(zf, 9)
    for tau in range(2):
        o = O0 + 4 * tau
        for r in (0, 2):
            A(f'v_pk_mul_f32 v[{o + r}:{o + r + 1}], v[{o + r}:{o + r + 1}], v[{M_}:{M_ + 1}] op_sel_hi:[1,0]')
        A(f'v_cvt_pk_bf16_f32 v{o}, v{o}, v{o + 1}')
        A(f'v_cvt_pk_bf16_f32 v{o + 1}, v{o + 2}, v{o + 3}')
        owt = A(f'ds_write_b64 v{V_OW0 if tau == 0 else M2}, v[{o}:{o + 1}]')
    A.wait(owt)
    A('s_barrier')
    stamp(8)
    OF = [O0, O1]
    G0, G1, X4 = P01, PM, ONES

    def post(n):
        x, y = OAS[2 * n], OAS[2 * n + 1]
        ops = [f'v_permlane32_swap_b32 v{x + r}, v{y + r}' for r in range(4)]
        ops += [f'v_pk_add_f32 v[{x + r}:{x + r + 1}], v[{x + r}:{x + r + 1}], v[{y + r}:{y + r + 1}]' for r in (0, 2)]
        ops += [f'v_cvt_pk_bf16_f32 v{G0 + 2 * n}, v{x}, v{x + 1}', f'v_cvt_pk_bf16_f32 v{G0 + 2 * n + 1}, v{x + 2}, v{x + 3}']
        return ops

    lsafe = A.newlabel('L_psafe'); lpe = A.newlabel('L_pend')

    def outproj(sc):
        x, y = OAS[4], X4
        p4 = [f'v_mov_b64 v[{y}:{y + 1}], v[{x}:{x + 1}]', f'v_mov_b64 v[{y + 2}:{y + 3}], v[{x + 2}:{x + 3}]']
        p4 += [f'v_permlane32_swap_b32 v{x + r}, v{y + r}' for r in range(4)]
        p4 += [f'v_pk_add_f32 v[{x + r}:{x + r + 1}], v[{x + r}:{x + r + 1}], v[{y + r}:{y + r + 1}]' for r in (0, 2)]
        p4 += [f'v_cvt_pk_bf16_f32 v{G1}, v{x}, v{x + 1}', f'v_cvt_pk_bf16_f32 v{G1 + 1}, v{x + 2}, v{x + 3}',
               f'v_mov_b64 v[{G1 + 2}:{G1 + 3}], v[{G1}:{G1 + 1}]']
        worder = [(0, 4), (1, 4), (0, 0), (0, 1), (1, 0), (1, 1), (0, 2), (0, 3), (1, 2), (1, 3)]
        nfill = [0, 0, 0, 0, 0, 0, 2, 1, 1, 2]
        pre = [f'v_and_b32 v{T0}, 0x1fff, v{V_PST}',
               f'v_add_u32 v{V_P4}, s{S_W1280}, v{V_KX}', f'v_lshl_add_u32 v{V_P1}, v{L}, 2, s{S_P1B}']
        for i, (k2, tau) in enumerate(worder):
            if i < 2:
                A(f's_waitcnt lgkmcnt({1 - i})')
            smf(OAS[tau], OF[k2], REG_OF['o', k2, tau])
            if i >= 2:
                take(pre, 1)
            take(p4, nfill[i])
        take(p4, 20)
        take(post(0), 9)
        A(f'v_permlane16_swap_b32 v{G1}, v{G1 + 2}')
        A(f'v_permlane16_swap_b32 v{G1 + 1}, v{G1 + 3}')
        A(f'v_and_or_b32 v{G1}, v{G1}, -2, s{S_PAR}')
        pp = post(1)
        take(pp, 1)
        A(f'buffer_store_dwordx4 v[{G1}:{G1 + 3}], v{T0}, {WS}, s{S_PS1} offen{sc}')
        take(pp, 9)
        A(f'v_permlane16_swap_b32 v{G0}, v{G0 + 2}')
        A(f'v_permlane16_swap_b32 v{G0 + 1}, v{G0 + 3}')
        A(f'v_and_or_b32 v{G0}, v{G0}, -2, s{S_PAR}')
        A(f'buffer_store_dwordx4 v[{G0}:{G0 + 3}], v{V_PST}, {WS}, s{S_PS0} offen{sc}')

    for k2 in range(2):
        A(f'ds_read_b128 v[{OF[k2]}:{OF[k2] + 3}], v{V_OR} offset:{128 * k2}')
    A(f's_cmp_eq_u32 s{S_FAST}, 0')
    A(f's_cbranch_scc1 {lsafe}')
    saved = list(A.hist)

    def safe_variant():
        A.label(lsafe)
        A.hist = list(saved)
        outproj(' sc1')
        A.branch(f's_branch {lpe}')
    deferred.append(safe_variant)
    outproj('')
    A.lg_done = A.lg_issued
    A.flush_hazards()
    A.label(lpe)
    stamp(9)
    lnr = A.newlabel('L_nored'); lnr2 = A.newlabel('L_nored2')
    A(f's_cmp_ge_u32 s{S_RED}, 40')
    A(f's_cbranch_scc1 {lnr2}')
    RBS = [20, 44, 60][:ka]
    SEL = 36
    DD = 80
    lp = A.newlabel('L_pa'); lw = A.newlabel('L_paw')

    def pa_issue(RB):
        for j in range(4):
            A(f'buffer_load_dwordx4 v[{RB + 4 * j}:{RB + 4 * j + 3}], v{V_L16}, {WS}, s{S_PA} offen offset:{1024 * j} sc1')
    rebuild_pub()
    A(f'v_and_b32 v{T0}, 1, v{L}')
    A(f'v_lshlrev_b32 v{T0}, 4, v{T0}')
    A(f'v_mov_b32 v{T1}, 0x3f80')
    A(f'v_lshlrev_b32 v{T0}, v{T0}, v{T1}')
    A(f'v_bfe_u32 v{T1}, v{L}, 1, 2')
    for d in range(4):
        A(f'v_cmp_eq_u32 vcc, {d}, v{T1}')
        A(f'v_cndmask_b32 v{SEL + d}, 0, v{T0}, vcc')
    for j, RB in enumerate(RBS):
        if adelay[j]:
            for _ in range(adelay[j]):
                A('s_nop 15')
        pa_issue(RB)

    def tt(f):
        t = 0
        for a_ in range(2):
            for b_ in range(2):
                for c_ in range(2):
                    if f(a_, b_, c_):
                        t |= 1 << ((a_ << 2) | (b_ << 1) | c_)
        return t
    t1 = tt(lambda a, b, c: (a ^ c) | (b ^ c))
    t2 = tt(lambda a, b, c: (a | b) & c)
    A.flush_hazards()
    A.label(lp)
    for RB in RBS:
        A(f's_waitcnt vmcnt({4 * (ka - 1)})')
        chk = [f'v_bitop3_b32 v{T0}, v{RB}, v{RB + 4}, s{S_PAR} bitop3:{t1:#x}',
               f'v_bitop3_b32 v{T1}, v{RB + 8}, v{RB + 12}, s{S_PAR} bitop3:{t1:#x}',
               f'v_bitop3_b32 v{T0}, v{T0}, v{T1}, 1 bitop3:{t2:#x}',
               f'v_cmp_ne_u32 vcc, 0, v{T0}']
        if spec:
            for j in range(4):
                c = '0' if j == 0 else f'v[{DD}:{DD + 3}]'
                A(f'v_mfma_f32_16x16x32_bf16 v[{DD}:{DD + 3}], v[{RB + 4 * j}:{RB + 4 * j + 3}], v[{SEL}:{SEL + 3}], {c}')
                A(chk[j])
            A(f's_cbranch_vccz {lw}')
        else:
            for j in range(4):
                A(chk[j])
            A(f's_cbranch_vccz {lw}_{RB}')
        pa_issue(RB)
    A(f's_add_u32 s{S_SPIN}, s{S_SPIN}, 1')
    A(f's_cmp_lt_u32 s{S_SPIN}, {SPIN_LIMIT}')
    A(f's_cbranch_scc1 {lp}')
    A(f's_branch {abort_label}')
    if not spec:
        for RB in RBS:
            A.label(f'{lw}_{RB}')
            for j in range(4):
                c = '0' if j == 0 else f'v[{DD}:{DD + 3}]'
                A(f'v_mfma_f32_16x16x32_bf16 v[{DD}:{DD + 3}], v[{RB + 4 * j}:{RB + 4 * j + 3}], v[{SEL}:{SEL + 3}], {c}')
            A(f's_branch {lw}')
    A.label(lw)
    A('s_nop 6')
    stamp(10)
    RB = 76
    A(f'v_mov_b64 v[{RB}:{RB + 1}], v[{DD}:{DD + 1}]')
    A(f'v_mov_b64 v[{RB + 2}:{RB + 3}], v[{DD + 2}:{DD + 3}]')
    for r in range(4):
        A(f'v_permlane32_swap_b32 v{RB + r}, v{DD + r}')
    for r in (0, 2):
        A(f'v_pk_add_f32 v[{RB + r}:{RB + r + 1}], v[{RB + r}:{RB + r + 1}], v[{DD + r}:{DD + r + 1}]')
    a0 = RB
    A(f'v_cvt_pk_bf16_f32 v{a0}, v{RB}, v{RB + 1}')
    A(f'v_cvt_pk_bf16_f32 v{a0 + 1}, v{RB + 2}, v{RB + 3}')
    A(f'v_min_u32 v{a0}, -2, v{a0}')
    A(f'v_min_u32 v{a0 + 1}, -2, v{a0 + 1}')
    A(f's_mov_b64 exec, s[{S_MPUB}:{S_MPUB + 1}]')
    A(f'buffer_store_dwordx2 v[{a0}:{a0 + 1}], v{V_PUB}, {WS}, s{S_PUBR} offen sc1')
    A(f's_mov_b32 exec_hi, 0')
    lps = A.newlabel('L_pubs'); lpd = A.newlabel('L_pubd')
    A(f's_cmp_eq_u32 s{S_FAST}, 0')
    A(f's_cbranch_scc1 {lps}')
    A(f'buffer_store_dwordx2 v[{a0}:{a0 + 1}], v{V_PUB}, {WS}, s{S_PUBL} offen')
    A(f's_branch {lpd}')
    A.label(lps)
    A(f'buffer_store_dwordx2 v[{a0}:{a0 + 1}], v{V_PUB}, {WS}, s{S_PUBL} offen sc1')
    A.label(lpd)
    A('s_mov_b64 exec, -1')
    A('s_waitcnt vmcnt(2)')
    A.branch(f's_branch {lnr}')
    A.label(lnr2)
    if backoff:
        A(f's_sleep {backoff}')
    A.label(lnr)
    stamp(11)
    if stamps:
        A('s_waitcnt lgkmcnt(0)')
        for i in range(12):
            A(f'v_writelane_b32 v{T0}, s{S_ST + 2 * i}, {i}')
        A(f'v_lshlrev_b32 v{T1}, 2, v{L}')
        A('s_mov_b64 exec, 0xfff')
        A(f'buffer_store_dword v{T0}, v{T1}, {WS}, s{S_STO} offen')
        A('s_mov_b64 exec, -1')
        A(f's_add_u32 s{S_STO}, s{S_STO}, 64')
    if cut is not None:
        A.label('L_cut')
        A.wait_all()
        rebuild()
        A.wait_all()
        A('s_sleep 8')
        A(f's_cmp_eq_u32 s{S_STEP}, {nsteps - 1}')
        A(f's_cbranch_scc1 {done}')
    A(f's_add_u32 s{S_PUBR}, s{S_PUBR}, 32768')
    A(f's_add_u32 s{S_PUBL}, s{S_PUBL}, 10240')
    A(f's_xor_b32 s{S_PAR}, s{S_PAR}, 1')
    A(f's_add_u32 s{S_STEP}, s{S_STEP}, 1')
    A.branch(f's_branch {top}')
    for f_ in deferred:
        f_()
    A.label(done)
    pub_store(PUBT)
    A.wait_all()
    A('s_barrier')
    m_flag()
    if coarse:
        A('s_memrealtime s[92:93]')
        A('s_memtime s[94:95]')
        A('s_waitcnt lgkmcnt(0)')
        A(f's_lshl_b32 s{S_TMP}, s{S_H}, 3')
        A(f's_lshl_b32 s{S_TMP + 1}, s{S_T}, 2')
        A(f's_add_u32 s{S_TMP}, s{S_TMP}, s{S_TMP + 1}')
        A(f's_add_u32 s{S_TMP}, s{S_TMP}, s{S_WV}')
        A(f's_lshl_b32 s{S_TMP}, s{S_TMP}, 6')
        A(f's_add_u32 s{S_TMP}, s{S_TMP}, {WS_STAMP + 0x200000:#x}')
        A('s_mov_b64 exec, 1')
        A(f'v_mov_b32 v{T1}, s{S_TMP}')
        for i in range(6):
            A(f'v_mov_b32 v{T0}, s{84 + 2 * i}')
            A(f'buffer_store_dword v{T0}, v{T1}, {WS}, 0 offen offset:{4 * i}')
        A(f'v_mov_b32 v{T0}, s{S_SPIN}')
        A(f'buffer_store_dword v{T0}, v{T1}, {WS}, 0 offen offset:24')
        A(f'v_mov_b32 v{T0}, s81')
        A(f'buffer_store_dword v{T0}, v{T1}, {WS}, 0 offen offset:28')
        A.wait_all()
```

```python
import math
import struct
from asmlib import *
from layout import *

SPIN_LIMIT = 1 << 17

F_H = WS_FLAG + 0x0
F_KV = WS_FLAG + 0x1000
F_M = WS_FLAG + 0x4000
F_O = WS_FLAG + 0x20000
F_Q = WS_FLAG + 0x18000
F_OP = WS_FLAG + 0x24000
F_H2 = WS_FLAG + 0x28000
F_ACT = WS_FLAG + 0x2C000
F_END = WS_FLAG + 0x30000

S_WS, S_W, S_DBG = 4, 8, 12
S_P0, S_P1 = 16, 17
S_WV, S_SEG = 18, 19
S_TMP = 41
S_PTR = 44
S_SPIN = 46
S_STG = 47
WS = f's[{S_WS}:{S_WS + 3}]'
WW = f's[{S_W}:{S_W + 3}]'
DBG = f's[{S_DBG}:{S_DBG + 3}]'

V_L, V_G, V_I, V_L16, V_T0, V_T1, V_T2, V_T3 = range(8)


def f32bits(x):
    return struct.unpack('<I', struct.pack('<f', x))[0]


def common_setup(A):
    A(f's_load_dwordx2 s[{S_PTR}:{S_PTR + 1}], s[0:1], {KA_WS}')
    A(f's_load_dwordx2 s[{S_TMP + 1}:{S_TMP + 2}], s[0:1], {KA_DBG}')
    A('v_lshrrev_b32 v1, 6, v0')
    A(f'v_readfirstlane_b32 s{S_WV}, v1')
    A(f'v_and_b32 v{V_L}, 63, v0')
    A('s_waitcnt lgkmcnt(0)')
    A.srd(S_WS, S_PTR, S_PTR + 1, WS_BYTES)
    A.srd(S_DBG, S_TMP + 1, S_TMP + 2, 256)
    A(f's_mov_b32 s{S_SPIN}, 0')
    A(f'v_lshrrev_b32 v{V_G}, 4, v{V_L}')
    A(f'v_and_b32 v{V_I}, 15, v{V_L}')
    A(f'v_lshlrev_b32 v{V_L16}, 4, v{V_L}')
    A(f's_mul_i32 s{S_STG}, s{S_WV}, 40960')


def load_ptr_srd(A, ka, nbytes):
    A(f's_load_dwordx2 s[{S_PTR}:{S_PTR + 1}], s[0:1], {ka}')
    A('s_waitcnt lgkmcnt(0)')
    A.lg_done = A.lg_issued
    A.srd(S_W, S_PTR, S_PTR + 1, nbytes)


def wait_flags(A, abort, soff, n, srd=WS, value=1, sleep=2, ge=False):
    lp = A.newlabel('L_wf'); ld = A.newlabel('L_wfd')
    A(f'v_min_u32 v{V_T0}, {n - 1}, v{V_L}')
    A(f'v_lshlrev_b32 v{V_T0}, 2, v{V_T0}')
    A.label(lp)
    A(f'buffer_load_dword v{V_T1}, v{V_T0}, {srd}, s{soff} offen sc1')
    A.wait_vm0()
    if ge:
        A(f'v_cmp_gt_u32 vcc, {value}, v{V_T1}')
    else:
        A(f'v_cmp_ne_u32 vcc, {value}, v{V_T1}')
    A(f's_cbranch_vccz {ld}')
    if sleep:
        A(f's_sleep {sleep}')
    A(f's_add_u32 s{S_SPIN}, s{S_SPIN}, 1')
    A(f's_cmp_lt_u32 s{S_SPIN}, {SPIN_LIMIT}')
    A(f's_cbranch_scc1 {lp}')
    A(f's_branch {abort}')
    A.label(ld)


def signal(A, soff):
    A.wait_all()
    A('s_barrier')
    ls = A.newlabel('L_sig')
    A(f's_cmp_lg_u32 s{S_WV}, 0')
    A(f's_cbranch_scc1 {ls}')
    A(f'v_mov_b32 v{V_T0}, 0')
    A(f'v_mov_b32 v{V_T1}, 1')
    A('s_mov_b64 exec, 1')
    A(f'buffer_store_dword v{V_T1}, v{V_T0}, {WS}, s{soff} offen sc1')
    A('s_mov_b64 exec, -1')
    A.label(ls)


def round_bf16(A, dst, src, tmp=None):
    A(f'v_cvt_pk_bf16_f32 v{dst}, v{src}, v{src}')
    A(f'v_and_b32 v{dst}, 0xffff0000, v{dst}')


def round2(A, a, b, t):
    A(f'v_cvt_pk_bf16_f32 v{t}, v{a}, v{b}')
    A(f'v_lshlrev_b32 v{a}, 16, v{t}')
    A(f'v_and_b32 v{b}, 0xffff0000, v{t}')


def unpack2(A, lo, hi, src):
    A(f'v_lshlrev_b32 v{lo}, 16, v{src}')
    A(f'v_and_b32 v{hi}, 0xffff0000, v{src}')


def xlane_allreduce_g(A, op, x, t):
    for sw in ('v_permlane16_swap_b32', 'v_permlane32_swap_b32'):
        A(f'v_mov_b32 v{t}, v{x}')
        A(f'{sw} v{x}, v{t}')
        A(f'{op} v{x}, v{x}, v{t}')


def emit_init(A, abort):
    A.comment('---- init: sentinels / flags ----')
    T0, T1 = V_T0, V_T1
    A(f's_lshl_b32 s{S_TMP}, s{S_WV}, 6')
    A(f'v_add_u32 v19, s{S_TMP}, v{V_L}')
    A(f'v_lshlrev_b32 v{V_T2}, 4, v19')
    A('v_mov_b32 v20, -1'); A('v_mov_b32 v21, -1'); A('v_mov_b32 v22, -1'); A('v_mov_b32 v23, -1')
    A('v_mov_b32 v24, 0'); A('v_mov_b32 v25, 0'); A('v_mov_b32 v26, 0'); A('v_mov_b32 v27, 0')
    def fill(base, units, reg):
        n = (units + 127) // 128
        for i in range(n):
            A(f's_add_u32 s{S_TMP}, s{S_P0}, {128 * i}')
            l = A.newlabel('L_fill')
            A(f's_cmp_ge_u32 s{S_TMP}, {units}')
            A(f's_cbranch_scc1 {l}')
            A(f's_lshl_b32 s{S_TMP}, s{S_TMP}, 12')
            A(f's_add_u32 s{S_TMP}, s{S_TMP}, {base:#x}')
            A(f'buffer_store_dwordx4 v[{reg}:{reg + 3}], v{V_T2}, {WS}, s{S_TMP} offen sc1')
            A.label(l)
    fill(WS_MEML, 160, 20)
    fill(WS_MEMR + 32768, 504, 20)
    fill(WS_PART, 80, 20)
    fill(WS_FLAG, 48, 24)

    lskip = A.newlabel('L_nomod')
    A(f's_cmp_ge_u32 s{S_P0}, 120')
    A(f's_cbranch_scc1 {lskip}')
    load_ptr_srd(A, KA_C, 1280)
    A(f'v_lshrrev_b32 v{T0}, 2, v19')
    A(f'v_lshlrev_b32 v{T1}, 1, v{T0}')
    ct = []
    for i in range(10):
        ct.append(A(f'buffer_load_ushort v{30 + i}, v{T1}, {WW}, 0 offen offset:{128 * i}'))
    load_ptr_srd(A, KA_WMOD, 640 * 7680)
    A(f'v_mul_u32_u24 v{T1}, 7680, v{T0}')
    A(f'v_and_b32 v{T0}, 3, v19')
    A(f'v_lshl_add_u32 v{T1}, v{T0}, 4, v{T1}')
    A(f's_lshl_b32 s{S_TMP}, s{S_P0}, 6')
    wt = []
    for i in range(10):
        wt.append(A(f'buffer_load_dwordx4 v[{40 + 4 * i}:{43 + 4 * i}], v{T1}, {WW}, s{S_TMP} offen'))
        A(f's_add_u32 s{S_TMP}, s{S_TMP}, {64 * 7680}')
    A(f's_mov_b32 s{S_TMP}, {f32bits(-math.log2(math.e)):#x}')
    for i in range(10):
        A.wait(ct[i])
        c = 30 + i
        A(f'v_lshlrev_b32 v{c}, 16, v{c}')
        A(f'v_mul_f32 v{T0}, s{S_TMP}, v{c}')
        A(f'v_exp_f32 v{T0}, v{T0}')
        A(f'v_add_f32 v{T0}, 1.0, v{T0}')
        A(f'v_rcp_f32 v{T0}, v{T0}')
        A(f'v_mul_f32 v{c}, v{c}, v{T0}')
        round_bf16(A, c, c)
    for j in range(8):
        A(f'v_mov_b32 v{20 + j}, 0')
    for i in range(10):
        A.wait(wt[i])
        for d in range(4):
            unpack2(A, T0, T1, 40 + 4 * i + d)
            A(f'v_fmac_f32 v{20 + 2 * d}, v{30 + i}, v{T0}')
            A(f'v_fmac_f32 v{21 + 2 * d}, v{30 + i}, v{T1}')
    A(f'v_lshlrev_b32 v{T0}, 5, v19')
    A(f'ds_write_b128 v{T0}, v[20:23]')
    A(f'ds_write_b128 v{T0}, v[24:27] offset:16')
    A.wait_lg0()
    A('s_barrier')
    A(f'v_and_b32 v{T0}, 31, v19')
    A(f'v_lshlrev_b32 v{T0}, 2, v{T0}')
    A(f'v_lshrrev_b32 v{T1}, 5, v19')
    A(f'v_lshl_add_u32 v{T0}, v{T1}, 10, v{T0}')
    tk = [A(f'ds_read_b32 v{20 + j}, v{T0} offset:{128 * j}') for j in range(8)]
    A.wait(tk[-1])
    for j in range(1, 8):
        A(f'v_add_f32 v20, v20, v{20 + j}')
    A(f'v_lshlrev_b32 v{T0}, 2, v19')
    A(f'ds_write_b32 v{T0}, v20 offset:8192')
    A.wait_lg0()
    A('s_barrier')
    A(f'v_and_b32 v{T0}, 31, v19')
    A(f'v_lshlrev_b32 v{T0}, 2, v{T0}')
    tk = [A(f'ds_read_b32 v{20 + j}, v{T0} offset:{8192 + 128 * j}') for j in range(8)]
    A.wait(tk[-1])
    for j in range(1, 8):
        A(f'v_add_f32 v20, v20, v{20 + j}')
    round_bf16(A, 20, 20)
    A(f's_lshl_b32 s{S_TMP}, s{S_P0}, 7')
    A(f's_add_u32 s{S_TMP}, s{S_TMP}, {WS_MOD:#x}')
    A(f'buffer_store_dword v20, v{T0}, {WS}, s{S_TMP} offen sc1')
    A.flush_hazards()
    A.label(lskip)
    A.wait_all()
    A('s_barrier')
    ls = A.newlabel('L_arr')
    A(f's_cmp_lg_u32 s{S_WV}, 0')
    A(f's_cbranch_scc1 {ls}')
    A(f'v_mov_b32 v{T0}, 16')
    A(f'v_mov_b32 v{T1}, 1')
    A('s_mov_b64 exec, 1')
    A(f'buffer_atomic_add v{T1}, v{T0}, {DBG}, 0 offen sc1')
    A('s_mov_b64 exec, -1')
    A.label(ls)


def wait_init(A, abort):
    A(f's_mov_b32 s{S_TMP}, 16')
    wait_flags(A, abort, S_TMP, 1, srd=DBG, value=128, sleep=4, ge=True)


def emit_ln(A, which, s_tile):
    T0, T1, T2, T3 = V_T0, V_T1, V_T2, V_T3
    X = 20
    XR = 60
    MB = 80
    PB = 120
    load_ptr_srd(A, KA_X, 2048 * 1280)
    A(f'v_mul_u32_u24 v{T2}, 1280, v{V_I}')
    A(f'v_lshl_add_u32 v{T2}, v{V_G}, 3, v{T2}')
    A(f's_mul_i32 s{S_TMP}, s{s_tile}, {16 * 1280}')
    A(f's_mul_i32 s{S_TMP + 1}, s{S_WV}, 320')
    A(f's_add_u32 s{S_TMP}, s{S_TMP}, s{S_TMP + 1}')
    xt = []
    for k in range(5):
        for hf in range(2):
            b = XR + 4 * k + 2 * hf
            xt.append(A(f'buffer_load_dwordx2 v[{b}:{b + 1}], v{T2}, {WW}, s{S_TMP} offen offset:{64 * k + 32 * hf}'))
    A(f'v_lshlrev_b32 v{T3}, 4, v{V_G}')
    A(f's_mul_i32 s{S_TMP + 1}, s{S_WV}, 640')

    def load_mod(idx, base):
        A(f's_add_u32 s{S_TMP + 2}, s{S_TMP + 1}, {WS_MOD + idx * 2560:#x}')
        t = None
        for t_ in range(10):
            t = A(f'buffer_load_dwordx4 v[{base + 4 * t_}:{base + 4 * t_ + 3}], v{T3}, {WS}, s{S_TMP + 2} offen offset:{64 * t_} sc1')
        return t

    if which == 2:
        gt = load_mod(2, MB)
        A(f's_lshr_b32 s{S_TMP}, s{s_tile}, 1')
        A(f's_mul_i32 s{S_TMP}, s{S_TMP}, {4 * 81920}')
        A(f's_and_b32 s{S_TMP + 2}, s{s_tile}, 1')
        A(f's_lshl_b32 s{S_TMP + 2}, s{S_TMP + 2}, 10')
        A(f's_add_u32 s{S_TMP}, s{S_TMP}, s{S_TMP + 2}')
        A(f's_mul_i32 s{S_TMP + 2}, s{S_WV}, {10 * 2048}')
        A(f's_add_u32 s{S_TMP}, s{S_TMP}, s{S_TMP + 2}')
        A(f's_add_u32 s{S_TMP}, s{S_TMP}, {WS_OPART:#x}')
        pt = {}
        for kg in range(4):
            for t_ in range(10):
                dst = X + 4 * t_ if kg == 0 else PB + 40 * (kg - 1) + 4 * t_
                A(f's_add_u32 s{S_TMP + 2}, s{S_TMP}, {kg * 81920 + t_ * 2048}')
                pt[kg, t_] = A(f'buffer_load_dwordx4 v[{dst}:{dst + 3}], v{V_L16}, {WS}, s{S_TMP + 2} offen sc1')
        for t_ in range(10):
            A.wait(pt[3, t_], gt, xt[-1])
            for r in range(0, 4, 2):
                x = X + 4 * t_ + r
                for kg in range(1, 4):
                    p = PB + 40 * (kg - 1) + 4 * t_ + r
                    A(f'v_pk_add_f32 v[{x}:{x + 1}], v[{x}:{x + 1}], v[{p}:{p + 1}]')
                round2(A, x, x + 1, T0)
                A(f'v_pk_mul_f32 v[{x}:{x + 1}], v[{x}:{x + 1}], v[{MB + 4 * t_ + r}:{MB + 4 * t_ + r + 1}]')
                round2(A, x, x + 1, T0)
                unpack2(A, T0, T1, XR + 2 * t_ + r // 2)
                A(f'v_pk_add_f32 v[{x}:{x + 1}], v[{x}:{x + 1}], v[{T0}:{T1}]')
                A(f'v_cvt_pk_bf16_f32 v{XR + 2 * t_ + r // 2}, v{x}, v{x + 1}')
                unpack2(A, x, x + 1, XR + 2 * t_ + r // 2)
        frag_base(A, s_tile, WS_X1, S_TMP)
        for k in range(5):
            A(f's_add_u32 s{S_TMP + 2}, s{S_TMP}, {k * 2048}')
            A(f'buffer_store_dwordx4 v[{XR + 4 * k}:{XR + 4 * k + 3}], v{V_L16}, {WS}, s{S_TMP + 2} offen sc1')
        A(f's_mul_i32 s{S_TMP + 1}, s{S_WV}, 640')
    else:
        A.wait(xt[-1])
        for j in range(20):
            unpack2(A, X + 2 * j, X + 2 * j + 1, XR + j)
    ct = load_mod(1 if which == 1 else 4, MB)
    st = load_mod(0 if which == 1 else 3, PB)
    A(f'v_mov_b32 v{T0}, 0')
    A(f'v_mov_b32 v{T1}, 0')
    for j in range(0, 40, 2):
        A(f'v_pk_add_f32 v[{T0}:{T1}], v[{T0}:{T1}], v[{X + j}:{X + j + 1}]')
    A(f'v_add_f32 v{T0}, v{T0}, v{T1}')
    xlane_allreduce_g(A, 'v_add_f32', T0, T1)
    A(f's_lshl_b32 s{S_TMP}, s{S_WV}, 6')
    A(f'v_lshlrev_b32 v{T2}, 2, v{V_I}')
    A(f'v_add_u32 v{T3}, s{S_TMP}, v{T2}')
    A('s_barrier')
    A(f'ds_write_b32 v{T3}, v{T0}')
    A.wait_lg0()
    A('s_barrier')
    tk = [A(f'ds_read_b32 v{8 + j}, v{T2} offset:{64 * j}') for j in range(4)]
    A.wait(tk[-1])
    A('v_add_f32 v8, v8, v9'); A('v_add_f32 v10, v10, v11'); A('v_add_f32 v8, v8, v10')
    A(f'v_mul_f32 v8, {f32bits(1.0 / 640):#x}, v8')
    A(f'v_mov_b32 v{T0}, 0')
    for j in range(40):
        A(f'v_sub_f32 v{T1}, v{X + j}, v8')
        A(f'v_fmac_f32 v{T0}, v{T1}, v{T1}')
    xlane_allreduce_g(A, 'v_add_f32', T0, T1)
    A(f'ds_write_b32 v{T3}, v{T0} offset:256')
    A.wait_lg0()
    A('s_barrier')
    tk = [A(f'ds_read_b32 v{9 + j}, v{T2} offset:{256 + 64 * j}') for j in range(4)]
    A.wait(tk[-1])
    A('v_add_f32 v9, v9, v10'); A('v_add_f32 v11, v11, v12'); A('v_add_f32 v9, v9, v11')
    A(f'v_mul_f32 v9, {f32bits(1.0 / 640):#x}, v9')
    round2(A, 8, 9, T0)
    A(f'v_add_f32 v9, {f32bits(1e-5):#x}, v9')
    round_bf16(A, 9, 9)
    A('v_sqrt_f32 v9, v9')
    round_bf16(A, 9, 9)
    A('v_rcp_f32 v10, v9')
    A.wait(ct, st)
    for j in range(0, 40, 2):
        x = X + j
        A(f'v_sub_f32 v{x}, v{x}, v8')
        A(f'v_sub_f32 v{x + 1}, v{x + 1}, v8')
        round2(A, x, x + 1, T0)
        for y in (x, x + 1):
            A(f'v_mul_f32 v{T1}, v{y}, v10')
            A(f'v_fma_f32 v{y}, -v{T1}, v9, v{y}')
            A(f'v_fma_f32 v{y}, v{y}, v10, v{T1}')
        round2(A, x, x + 1, T0)
        A(f'v_add_f32 v{MB + j}, 1.0, v{MB + j}')
        A(f'v_add_f32 v{MB + j + 1}, 1.0, v{MB + j + 1}')
        round2(A, MB + j, MB + j + 1, T0)
        A(f'v_pk_mul_f32 v[{x}:{x + 1}], v[{x}:{x + 1}], v[{MB + j}:{MB + j + 1}]')
        round2(A, x, x + 1, T0)
        A(f'v_pk_add_f32 v[{x}:{x + 1}], v[{x}:{x + 1}], v[{PB + j}:{PB + j + 1}]')
        A(f'v_cvt_pk_bf16_f32 v{160 + j // 2}, v{x}, v{x + 1}')
    frag_base(A, s_tile, WS_H if which == 1 else WS_H2, S_TMP)
    for k in range(5):
        A(f's_add_u32 s{S_TMP + 2}, s{S_TMP}, {k * 2048}')
        A(f'buffer_store_dwordx4 v[{160 + 4 * k}:{160 + 4 * k + 3}], v{V_L16}, {WS}, s{S_TMP + 2} offen sc1')


def frag_base(A, s_tile, region, dst):
    A(f's_lshr_b32 s{dst}, s{s_tile}, 1')
    A(f's_mul_i32 s{dst}, s{dst}, 40960')
    A(f's_and_b32 s{dst + 2}, s{s_tile}, 1')
    A(f's_lshl_b32 s{dst + 2}, s{dst + 2}, 10')
    A(f's_add_u32 s{dst}, s{dst}, s{dst + 2}')
    A(f's_mul_i32 s{dst + 2}, s{S_WV}, {5 * 2048}')
    A(f's_add_u32 s{dst}, s{dst}, s{dst + 2}')
    A(f's_add_u32 s{dst}, s{dst}, {region:#x}')


V_WSRC2, V_WSRC1, V_WRD2, V_WRD1 = 8, 9, 10, 11


def weight_addr_setup(A, pitch):
    T0, T1 = V_T0, V_T1
    A(f's_mov_b32 s{S_TMP}, {pitch}')
    A(f'v_lshrrev_b32 v{T0}, 2, v{V_L}')
    A(f'v_mul_lo_u32 v{T0}, v{T0}, s{S_TMP}')
    A(f'v_and_b32 v{T1}, 3, v{V_L}')
    A(f'v_lshl_add_u32 v{V_WSRC2}, v{T1}, 4, v{T0}')
    A(f'v_lshrrev_b32 v{T0}, 1, v{V_L}')
    A(f'v_mul_lo_u32 v{T0}, v{T0}, s{S_TMP}')
    A(f'v_and_b32 v{T1}, 1, v{V_L}')
    A(f'v_lshl_add_u32 v{V_WSRC1}, v{T1}, 4, v{T0}')
    A(f'v_lshrrev_b32 v{T0}, 2, v{V_L}')
    A(f'v_and_b32 v{T1}, 3, v{V_L}')
    A(f'v_lshlrev_b32 v{T1}, 3, v{T1}')
    A(f'v_lshl_add_u32 v{V_WRD2}, v{T0}, 6, v{T1}')
    A(f'v_add_u32 v{V_WRD2}, s{S_STG}, v{V_WRD2}')
    A(f'v_lshl_add_u32 v{V_WRD1}, v{T0}, 5, v{T1}')
    A(f'v_add_u32 v{V_WRD1}, s{S_STG}, v{V_WRD1}')


def load_weights(A, s_off, pitch, nk, width, dest):
    kb = 32 * 32 * width
    per = 40960 // kb
    src = V_WSRC2 if width == 2 else V_WSRC1
    rd = V_WRD2 if width == 2 else V_WRD1
    rows_per_instr = 16 if width == 2 else 32
    for k0 in range(0, nk, per):
        ks = list(range(k0, min(nk, k0 + per)))
        tok = {}
        A.wait_lg0()
        for k in ks:
            for n in range(32 // rows_per_instr):
                A(f's_add_u32 m0, s{S_STG}, {(k - k0) * kb + n * 1024}')
                tok[k] = A(f'buffer_load_dwordx4 v{src}, {WW}, s{s_off} offen lds')
                A(f's_add_u32 s{s_off}, s{s_off}, {rows_per_instr * pitch}')
        for k in ks:
            A.wait(tok[k])
            for t in range(width):
                for rho in range(2):
                    off = (k - k0) * kb + 16 * rho * 32 * width + t * 32
                    A(f'ds_read_b64_tr_b16 {wr(dest(k, t) + 2 * rho, 2)}, v{rd} offset:{off}')
    A.wait_lg0()


S_SRC, S_FIN, S_FOUT, S_DST, S_PRE, S_BUF, S_DST2 = 20, 21, 22, 23, 24, 25, 26
S_LAST = 27


def gemm_loop(A, abort, nk, ntt, tiles, src_stride, fin_n, fin_stride, fout_stride, seg_step, epilogue,
              acc0=12, frag0=None, pre_compute=None, tt_stride=1024, k_stride=2048):
    T = len(tiles)
    nfr = nk * ntt
    bufsz = nfr * 1024
    dbl = 2 * bufsz <= 163840 - 4096
    FR = frag0 if frag0 is not None else acc0 + 4 * T * ntt
    NR = 3
    V_RD = 8

    def issue_dma():
        A(f's_lshl_b32 s{S_TMP}, s{S_WV}, 10')
        A(f's_add_u32 s{S_TMP}, s{S_TMP}, s{S_BUF}')
        if ntt == 2:
            assert tt_stride == 1024 and k_stride == 2048
            A(f's_lshl_b32 s{S_TMP + 1}, s{S_WV}, 10')
            step = 4096
        else:
            A(f's_mul_i32 s{S_TMP + 1}, s{S_WV}, {k_stride}')
            step = 4 * k_stride
        A(f's_add_u32 s{S_TMP + 1}, s{S_TMP + 1}, s{S_SRC}')
        n_it = (nfr + 3) // 4
        for i in range(n_it):
            l = None
            if 4 * i + 3 >= nfr:
                l = A.newlabel('L_dm')
                A(f's_cmp_ge_u32 s{S_WV}, {nfr - 4 * i}')
                A(f's_cbranch_scc1 {l}')
            A(f's_add_u32 m0, s{S_TMP}, {4096 * i}')
            A(f'buffer_load_dwordx4 v{V_L16}, {WS}, s{S_TMP + 1} offen sc1 lds')
            if l:
                A.label(l)
            if i < n_it - 1:
                A(f's_add_u32 s{S_TMP + 1}, s{S_TMP + 1}, {step}')
        A(f's_add_u32 s{S_SRC}, s{S_SRC}, {src_stride}')
        A(f's_add_u32 s{S_FIN}, s{S_FIN}, {fin_stride}')

    V_FA, V_FS = 10, 11

    def sample():
        A(f'buffer_load_dword v{V_FS}, v{V_FA}, {WS}, s{S_FIN} offen sc1')

    A(f'v_min_u32 v{V_FA}, {fin_n - 1}, v{V_L}')
    A(f'v_lshlrev_b32 v{V_FA}, 2, v{V_FA}')
    A(f's_mov_b32 s{S_BUF}, 0')
    wait_flags(A, abort, S_FIN, fin_n)
    issue_dma()
    sample()
    top = A.newlabel('L_gtop'); end = A.newlabel('L_gend')
    A.flush_hazards()
    A.label(top)
    A.forget()
    A.wait_all()
    A('s_barrier')
    A(f'v_add_u32 v{V_RD}, s{S_BUF}, v{V_L16}')
    A(f's_add_u32 s{S_LAST}, s{S_SEG}, {seg_step}')
    A(f's_mov_b32 s{S_PRE}, 0')
    if dbl:
        A(f's_xor_b32 s{S_BUF}, s{S_BUF}, {bufsz}') if (bufsz & (bufsz - 1)) == 0 else (
            A(f's_sub_u32 s{S_BUF}, {bufsz}, s{S_BUF}'))
        lnp = A.newlabel('L_nopre')
        A(f's_cmp_ge_u32 s{S_LAST}, 64')
        A(f's_cbranch_scc1 {lnp}')
        A(f'v_cmp_ne_u32 vcc, 1, v{V_FS}')
        A(f's_cbranch_vccnz {lnp}')
        issue_dma()
        A(f's_mov_b32 s{S_PRE}, 1')
        A.label(lnp)
    if pre_compute:
        pre_compute(A)
    V_RD2 = 9
    if bufsz > 65536 - 1024:
        A(f'v_add_u32 v{V_RD2}, 0x10000, v{V_RD}')
    ft = {}

    def rd(k):
        for tt in range(ntt):
            f = k * ntt + tt
            b = FR + 4 * ((k % NR) * ntt + tt)
            off = f * 1024
            base = V_RD
            if off >= 65536:
                off -= 65536; base = V_RD2
            ft[k] = A(f'ds_read_b128 v[{b}:{b + 3}], v{base} offset:{off}')

    for k in range(min(NR, nk)):
        rd(k)
    for k in range(nk):
        A.wait(ft[k])
        for t, (wreg, tr) in enumerate(tiles):
            for tt in range(ntt):
                acc = acc0 + 4 * (t * ntt + tt)
                fr = f'v[{FR + 4 * ((k % NR) * ntt + tt)}:{FR + 4 * ((k % NR) * ntt + tt) + 3}]'
                w = wr(wreg(k), 4)
                c = '0' if k == 0 else f'v[{acc}:{acc + 3}]'
                a_, b_ = (w, fr) if tr else (fr, w)
                A(f'v_mfma_f32_16x16x32_bf16 v[{acc}:{acc + 3}], {a_}, {b_}, {c}')
        if k + NR < nk:
            rd(k + NR)
    epilogue(A)
    sample()
    signal(A, S_FOUT)
    A(f's_add_u32 s{S_FOUT}, s{S_FOUT}, {fout_stride}')
    A(f's_mov_b32 s{S_SEG}, s{S_LAST}')
    A(f's_cmp_ge_u32 s{S_SEG}, 64')
    A.branch(f's_cbranch_scc1 {end}')
    A(f's_cmp_eq_u32 s{S_PRE}, 1')
    A.branch(f's_cbranch_scc1 {top}')
    wait_flags(A, abort, S_FIN, fin_n)
    issue_dma()
    sample()
    A.branch(f's_branch {top}')
    A.label(end)


def wlin(i, vb=96):
    return 256 + 4 * i if i < 64 else vb + 4 * (i - 64)


def pack4(A, dst, src):
    A(f'v_cvt_pk_bf16_f32 v{dst}, v{src}, v{src + 1}')
    A(f'v_cvt_pk_bf16_f32 v{dst + 1}, v{src + 2}, v{src + 3}')


def emit_kv(A, abort):
    A.comment('==== role KV ====')
    weight_addr_setup(A, 8192)
    for m, ka in enumerate((KA_WK, KA_WV)):
        load_ptr_srd(A, ka, 640 * 8192)
        A(f's_lshl_b32 s{S_SRC}, s{S_P0}, 8')
        A(f's_lshl_b32 s{S_TMP}, s{S_WV}, 6')
        A(f's_add_u32 s{S_SRC}, s{S_SRC}, s{S_TMP}')
        load_weights(A, S_SRC, 8192, 20, 2, lambda k, t, m=m: wlin(m * 40 + 2 * k + t))
    wait_init(A, abort)
    A(f's_mov_b32 s{S_SEG}, s{S_P1}')
    A(f's_mul_i32 s{S_SRC}, s{S_P1}, 40960')
    A(f's_add_u32 s{S_SRC}, s{S_SRC}, {WS_H:#x}')
    A(f's_lshl_b32 s{S_FIN}, s{S_P1}, 3')
    A(f's_add_u32 s{S_FIN}, s{S_FIN}, {F_H:#x}')
    A(f's_lshl_b32 s{S_TMP}, s{S_P1}, 5')
    A(f's_add_u32 s{S_TMP}, s{S_TMP}, s{S_P0}')
    A(f's_lshl_b32 s{S_FOUT}, s{S_TMP}, 2')
    A(f's_add_u32 s{S_FOUT}, s{S_FOUT}, {F_KV:#x}')
    A(f's_lshl_b32 s{S_DST}, s{S_TMP}, 13')
    A(f's_lshl_b32 s{S_TMP}, s{S_WV}, 10')
    A(f's_add_u32 s{S_DST2}, s{S_DST}, s{S_TMP}')
    A(f's_add_u32 s{S_DST}, s{S_DST2}, {WS_KX:#x}')
    A(f's_add_u32 s{S_DST2}, s{S_DST2}, s{S_TMP}')
    A(f's_add_u32 s{S_DST2}, s{S_DST2}, {WS_VX:#x}')
    acc = lambda t, tt: 12 + 4 * (t * 2 + tt)
    O = 68

    def epi(A):
        for tt in range(2):
            pack4(A, O + 4 * tt, acc(0, tt)); pack4(A, O + 4 * tt + 2, acc(1, tt))
            A(f's_add_u32 s{S_TMP}, s{S_DST}, {tt * 4096}')
            A(f'buffer_store_dwordx4 v[{O + 4 * tt}:{O + 4 * tt + 3}], v{V_L16}, {WS}, s{S_TMP} offen sc1')
        for t in range(2):
            o = O + 8 + 4 * t
            pack4(A, o, acc(2 + t, 0)); pack4(A, o + 2, acc(2 + t, 1))
            A(f'buffer_store_dwordx4 v[{o}:{o + 3}], v{V_L16}, {WS}, s{S_DST2} offen offset:{t * 1024} sc1')
        A(f's_add_u32 s{S_DST}, s{S_DST}, {2 * 32 * 8192}')
        A(f's_add_u32 s{S_DST2}, s{S_DST2}, {2 * 32 * 8192}')

    tiles = [(lambda k: wlin(2 * k), True), (lambda k: wlin(2 * k + 1), True),
             (lambda k: wlin(40 + 2 * k), False), (lambda k: wlin(41 + 2 * k), False)]
    gemm_loop(A, abort, 20, 2, tiles, 2 * 40960, 2, 16, 2 * 128, 2, epi)


def emit_op(A, abort):
    A.comment('==== role OP ====')
    weight_addr_setup(A, 1280)
    load_ptr_srd(A, KA_WO, 4096 * 1280)
    A(f's_mul_i32 s{S_SRC}, s{S_P0}, {1024 * 1280}')
    A(f's_lshl_b32 s{S_TMP}, s{S_P1}, 8')
    A(f's_add_u32 s{S_SRC}, s{S_SRC}, s{S_TMP}')
    A(f's_lshl_b32 s{S_TMP}, s{S_WV}, 6')
    A(f's_add_u32 s{S_SRC}, s{S_SRC}, s{S_TMP}')
    load_weights(A, S_SRC, 1280, 32, 2, lambda k, t: wlin(2 * k + t))
    A(f's_mov_b32 s{S_SEG}, 0')
    A(f's_lshl_b32 s{S_SRC}, s{S_P0}, 16')
    A(f's_add_u32 s{S_SRC}, s{S_SRC}, {WS_O:#x}')
    A(f's_lshl_b32 s{S_FIN}, s{S_P0}, 6')
    A(f's_add_u32 s{S_FIN}, s{S_FIN}, {F_O:#x}')
    A(f's_mul_i32 s{S_FOUT}, s{S_P0}, 5')
    A(f's_add_u32 s{S_FOUT}, s{S_FOUT}, s{S_P1}')
    A(f's_lshl_b32 s{S_FOUT}, s{S_FOUT}, 2')
    A(f's_add_u32 s{S_FOUT}, s{S_FOUT}, {F_OP:#x}')
    A(f's_mul_i32 s{S_DST}, s{S_P0}, 81920')
    A(f's_lshl_b32 s{S_TMP}, s{S_P1}, 14')
    A(f's_add_u32 s{S_DST}, s{S_DST}, s{S_TMP}')
    A(f's_lshl_b32 s{S_TMP}, s{S_WV}, 12')
    A(f's_add_u32 s{S_DST}, s{S_DST}, s{S_TMP}')
    A(f's_add_u32 s{S_DST}, s{S_DST}, {WS_OPART:#x}')

    def epi(A):
        for j in range(4):
            A(f'buffer_store_dwordx4 v[{12 + 4 * j}:{15 + 4 * j}], v{V_L16}, {WS}, s{S_DST} offen offset:{j * 1024} sc1')
        A(f's_add_u32 s{S_DST}, s{S_DST}, {4 * 81920}')

    tiles = [(lambda k: wlin(2 * k), True), (lambda k: wlin(2 * k + 1), True)]
    gemm_loop(A, abort, 32, 2, tiles, 262144, 16, 256, 128, 1, epi)


def emit_ff1(A, abort):
    A.comment('==== role FF1 ====')
    weight_addr_setup(A, 3456)
    for m, ka in enumerate((KA_WG, KA_WU)):
        load_ptr_srd(A, ka, 640 * 3456)
        A(f's_lshl_b32 s{S_SRC}, s{S_P0}, 7')
        A(f's_lshl_b32 s{S_TMP}, s{S_WV}, 5')
        A(f's_add_u32 s{S_SRC}, s{S_SRC}, s{S_TMP}')
        load_weights(A, S_SRC, 3456, 20, 1, lambda k, t, m=m: wlin(m * 20 + k))
    A(f's_mov_b32 s{S_SEG}, 0')
    A(f's_mov_b32 s{S_SRC}, {WS_H2:#x}')
    A(f's_mov_b32 s{S_FIN}, {F_H2:#x}')
    A(f's_lshl_b32 s{S_FOUT}, s{S_P0}, 2')
    A(f's_add_u32 s{S_FOUT}, s{S_FOUT}, {F_ACT:#x}')
    A(f's_lshl_b32 s{S_DST}, s{S_P0}, 12')
    A(f's_lshr_b32 s{S_TMP}, s{S_WV}, 1')
    A(f's_lshl_b32 s{S_TMP}, s{S_TMP}, 11')
    A(f's_add_u32 s{S_DST}, s{S_DST}, s{S_TMP}')
    A(f's_and_b32 s{S_TMP}, s{S_WV}, 1')
    A(f's_lshl_b32 s{S_TMP}, s{S_TMP}, 3')
    A(f's_add_u32 s{S_DST}, s{S_DST}, s{S_TMP}')
    A(f's_add_u32 s{S_DST}, s{S_DST}, {WS_ACT:#x}')
    A(f's_mov_b32 s{S_DST2}, {f32bits(-math.log2(math.e)):#x}')
    T0, T1 = V_T0, V_T1

    def epi(A):
        for tt in range(2):
            g = 12 + 4 * tt; u = 20 + 4 * tt
            for r in (0, 2):
                round2(A, g + r, g + r + 1, T0)
                round2(A, u + r, u + r + 1, T0)
                for y in (g + r, g + r + 1):
                    A(f'v_mul_f32 v{T1}, s{S_DST2}, v{y}')
                    A(f'v_exp_f32 v{T1}, v{T1}')
                    A(f'v_add_f32 v{T1}, 1.0, v{T1}')
                    A(f'v_rcp_f32 v{T1}, v{T1}')
                    A(f'v_mul_f32 v{y}, v{y}, v{T1}')
                round2(A, g + r, g + r + 1, T0)
                A(f'v_pk_mul_f32 v[{g + r}:{g + r + 1}], v[{g + r}:{g + r + 1}], v[{u + r}:{u + r + 1}]')
            pack4(A, u, g)
            A(f'buffer_store_dwordx2 v[{u}:{u + 1}], v{V_L16}, {WS}, s{S_DST} offen offset:{tt * 1024} sc1')
        A(f's_add_u32 s{S_DST}, s{S_DST}, {54 * 2048}')

    tiles = [(lambda k: wlin(k), True), (lambda k: wlin(20 + k), True)]
    gemm_loop(A, abort, 20, 2, tiles, 40960, 4, 128, 128, 1, epi)


def emit_ff2(A, abort):
    A.comment('==== role FF2 ====')
    weight_addr_setup(A, 1280)
    load_ptr_srd(A, KA_WD, 1728 * 1280)
    A(f's_lshl_b32 s{S_SRC}, s{S_P1}, 7')
    A(f's_lshl_b32 s{S_TMP}, s{S_WV}, 5')
    A(f's_add_u32 s{S_SRC}, s{S_SRC}, s{S_TMP}')
    load_weights(A, S_SRC, 1280, 54, 1, lambda k, t: wlin(k))
    A(f's_mov_b32 s{S_SEG}, 0')
    A(f's_lshl_b32 s{S_SRC}, s{S_P0}, 10')
    A(f's_add_u32 s{S_SRC}, s{S_SRC}, {WS_ACT:#x}')
    A(f's_mov_b32 s{S_FIN}, {F_ACT:#x}')
    A(f's_mov_b32 s{S_FOUT}, {F_END:#x}')
    S_TILE = 28
    A(f's_lshl_b32 s{S_TILE}, s{S_P1}, 2')
    A(f's_add_u32 s{S_TILE}, s{S_TILE}, s{S_WV}')
    GB, XX, VO = 40, 44, 46
    A(f'v_lshlrev_b32 v{V_T0}, 4, v{V_G}')
    A(f's_lshl_b32 s{S_TMP}, s{S_TILE}, 6')
    A(f's_add_u32 s{S_TMP}, s{S_TMP}, {WS_MOD + 5 * 2560:#x}')
    A(f'buffer_load_dwordx4 v[{GB}:{GB + 3}], v{V_T0}, {WS}, s{S_TMP} offen sc1')
    A(f's_lshr_b32 s{S_DST2}, s{S_TILE}, 1')
    A(f's_lshl_b32 s{S_DST2}, s{S_DST2}, 11')
    A(f's_lshl_b32 s{S_TMP}, s{S_P0}, 10')
    A(f's_add_u32 s{S_DST2}, s{S_DST2}, s{S_TMP}')
    A(f's_and_b32 s{S_TMP}, s{S_TILE}, 1')
    A(f's_lshl_b32 s{S_TMP}, s{S_TMP}, 3')
    A(f's_add_u32 s{S_DST2}, s{S_DST2}, s{S_TMP}')
    A(f's_add_u32 s{S_DST2}, s{S_DST2}, {WS_X1:#x}')
    A(f'v_mul_u32_u24 v{VO}, 1280, v{V_I}')
    A(f'v_lshl_add_u32 v{VO}, v{V_G}, 3, v{VO}')
    A(f's_mul_i32 s{S_DST}, s{S_P0}, {16 * 1280}')
    A(f's_lshl_b32 s{S_TMP}, s{S_TILE}, 5')
    A(f's_add_u32 s{S_DST}, s{S_DST}, s{S_TMP}')
    load_ptr_srd(A, KA_OUT, 2048 * 1280)
    T0, T1 = V_T0, V_T1

    def pre(A):
        A(f'buffer_load_dwordx2 v[{XX}:{XX + 1}], v{V_L16}, {WS}, s{S_DST2} offen sc1')
        A(f's_add_u32 s{S_DST2}, s{S_DST2}, 40960')

    def epi(A):
        A.wait_vm0()
        for r in (0, 2):
            f = 12 + r
            round2(A, f, f + 1, T0)
            A(f'v_pk_mul_f32 v[{f}:{f + 1}], v[{f}:{f + 1}], v[{GB + r}:{GB + r + 1}]')
            round2(A, f, f + 1, T0)
            unpack2(A, T0, T1, XX + r // 2)
            A(f'v_pk_add_f32 v[{f}:{f + 1}], v[{f}:{f + 1}], v[{T0}:{T1}]')
        pack4(A, XX, 12)
        A(f'buffer_store_dwordx2 v[{XX}:{XX + 1}], v{VO}, {WW}, s{S_DST} offen')
        A(f's_add_u32 s{S_DST}, s{S_DST}, {32 * 1280}')

    gemm_loop(A, abort, 54, 1, [(lambda k: wlin(k), True)], 54 * 2048, 27, 128, 0, 1, epi, pre_compute=pre)


def emit_ln2(A, abort, n):
    A.comment('==== role LN2 ====')
    T0, T1, T2, T3 = V_T0, V_T1, V_T2, V_T3
    S_TASK, S_A, S_B, S_C = 28, 29, 30, 31
    GA, SC, SH = 20, 40, 60
    X, P1, XR, HO = 80, 100, 160, 170
    V_OP, V_X, V_O, V_LW, V_LR = 180, 181, 182, 187, 188
    MEAN, RD = 190, 192
    HB, TK = 8, 9
    A(f'v_bfe_u32 v{HB}, v{V_L}, 3, 1')
    A(f'v_and_b32 v{TK}, 7, v{V_L}')
    A(f'v_lshl_add_u32 v{T2}, v{V_G}, 4, v{TK}')
    A(f'v_lshlrev_b32 v{T2}, 4, v{T2}')
    A(f'v_mul_u32_u24 v{T0}, {5 * 2048}, v{HB}')
    A(f'v_add_u32 v{V_OP}, v{T0}, v{T2}')
    A(f'v_mul_u32_u24 v{T0}, 1280, v{TK}')
    A(f'v_mul_u32_u24 v{T1}, 160, v{HB}')
    A(f'v_add_u32 v{T0}, v{T0}, v{T1}')
    A(f'v_lshl_add_u32 v{V_X}, v{V_G}, 3, v{T0}')
    for j in range(5):
        A(f'v_mul_u32_u24 v{T0}, 5, v{HB}')
        A(f'v_add_u32 v{T0}, {j}, v{T0}')
        A(f'v_lshrrev_b32 v{T1}, 1, v{T0}')
        A(f'v_lshlrev_b32 v{T1}, 11, v{T1}')
        A(f'v_and_b32 v{T0}, 1, v{T0}')
        A(f'v_lshl_add_u32 v{T0}, v{T0}, 3, v{T1}')
        A(f'v_add_u32 v{V_O + j}, v{T0}, v{T2}')
    A(f's_lshl_b32 s{S_TMP}, s{S_WV}, 5')
    A(f'v_lshlrev_b32 v{V_LR}, 2, v{TK}')
    A(f'v_add_u32 v{V_LW}, s{S_TMP}, v{V_LR}')
    A(f'v_mul_u32_u24 v{T0}, 320, v{HB}')
    A(f'v_lshl_add_u32 v{T0}, v{V_G}, 4, v{T0}')
    A(f's_mul_i32 s{S_TMP}, s{S_WV}, 640')
    for idx, base in ((2, GA), (4, SC), (3, SH)):
        A(f's_add_u32 s{S_TMP + 1}, s{S_TMP}, {WS_MOD + idx * 2560:#x}')
        for j in range(5):
            A(f'buffer_load_dwordx4 v[{base + 4 * j}:{base + 4 * j + 3}], v{T0}, {WS}, s{S_TMP + 1} offen offset:{64 * j} sc1')
    A.wait_vm0()
    for j in range(0, 20, 2):
        A(f'v_add_f32 v{SC + j}, 1.0, v{SC + j}')
        A(f'v_add_f32 v{SC + j + 1}, 1.0, v{SC + j + 1}')
        round2(A, SC + j, SC + j + 1, T0)
    load_ptr_srd(A, KA_X, 2048 * 1280)
    A(f's_mov_b32 s{S_TASK}, s{S_P0}')
    top = A.newlabel('L_ln2')
    A.flush_hazards()
    A.label(top)
    A.forget()
    A(f's_lshr_b32 s{S_A}, s{S_TASK}, 2')
    A(f's_lshl_b32 s{S_FIN}, s{S_A}, 7')
    A(f's_and_b32 s{S_FOUT}, s{S_TASK}, 3')
    A(f's_lshl_b32 s{S_FOUT}, s{S_FOUT}, 2')
    A(f's_add_u32 s{S_FOUT}, s{S_FOUT}, s{S_FIN}')
    A(f's_add_u32 s{S_FOUT}, s{S_FOUT}, {F_H2:#x}')
    A(f's_add_u32 s{S_FIN}, s{S_FIN}, {F_OP:#x}')
    A(f's_mul_i32 s{S_B}, s{S_TASK}, {8 * 1280}')
    A(f's_mul_i32 s{S_TMP}, s{S_WV}, 320')
    A(f's_add_u32 s{S_B}, s{S_B}, s{S_TMP}')
    for j in range(5):
        A(f'buffer_load_dwordx2 v[{XR + 2 * j}:{XR + 2 * j + 1}], v{V_X}, {WW}, s{S_B} offen offset:{32 * j}')
    A(f's_bfe_u32 s{S_C}, s{S_TASK}, 0x10001')
    A(f's_lshl_b32 s{S_C}, s{S_C}, 10')
    A(f's_and_b32 s{S_TMP}, s{S_TASK}, 1')
    A(f's_lshl_b32 s{S_TMP}, s{S_TMP}, 7')
    A(f's_add_u32 s{S_C}, s{S_C}, s{S_TMP}')
    A(f's_mul_i32 s{S_B}, s{S_A}, {4 * 81920}')
    A(f's_add_u32 s{S_B}, s{S_B}, s{S_C}')
    A(f's_mul_i32 s{S_TMP}, s{S_WV}, {10 * 2048}')
    A(f's_add_u32 s{S_B}, s{S_B}, s{S_TMP}')
    A(f's_add_u32 s{S_B}, s{S_B}, {WS_OPART:#x}')
    wait_flags(A, abort, S_FIN, 20, sleep=1)
    pt = {}
    for j in range(5):
        for kg in range(4):
            dst = X + 4 * j if kg == 0 else P1 + 20 * (kg - 1) + 4 * j
            A(f's_add_u32 s{S_TMP}, s{S_B}, {kg * 81920 + j * 2048}')
            pt[j] = A(f'buffer_load_dwordx4 v[{dst}:{dst + 3}], v{V_OP}, {WS}, s{S_TMP} offen sc1')
    A(f's_mul_i32 s{S_B}, s{S_A}, 40960')
    A(f's_add_u32 s{S_B}, s{S_B}, s{S_C}')
    A(f's_mul_i32 s{S_TMP}, s{S_WV}, {5 * 2048}')
    A(f's_add_u32 s{S_B}, s{S_B}, s{S_TMP}')
    A(f's_add_u32 s{S_C}, s{S_B}, {WS_X1:#x}')
    A(f's_add_u32 s{S_B}, s{S_B}, {WS_H2:#x}')
    A(f'v_mov_b64 v[{T2}:{T3}], 0')
    for j in range(5):
        A.wait(pt[j])
        for r in (0, 2):
            x = X + 4 * j + r
            p = P1 + 4 * j + r
            A(f'v_pk_add_f32 v[{x}:{x + 1}], v[{x}:{x + 1}], v[{p}:{p + 1}]')
            A(f'v_pk_add_f32 v[{p + 20}:{p + 21}], v[{p + 20}:{p + 21}], v[{p + 40}:{p + 41}]')
            A(f'v_pk_add_f32 v[{x}:{x + 1}], v[{x}:{x + 1}], v[{p + 20}:{p + 21}]')
            round2(A, x, x + 1, T0)
            A(f'v_pk_mul_f32 v[{x}:{x + 1}], v[{x}:{x + 1}], v[{GA + 4 * j + r}:{GA + 4 * j + r + 1}]')
            round2(A, x, x + 1, T0)
            xr = XR + 2 * j + r // 2
            unpack2(A, T0, T1, xr)
            A(f'v_pk_add_f32 v[{x}:{x + 1}], v[{x}:{x + 1}], v[{T0}:{T1}]')
            A(f'v_cvt_pk_bf16_f32 v{xr}, v{x}, v{x + 1}')
            unpack2(A, x, x + 1, xr)
            A(f'v_pk_add_f32 v[{T2}:{T3}], v[{T2}:{T3}], v[{x}:{x + 1}]')
        A(f'buffer_store_dwordx2 v[{XR + 2 * j}:{XR + 2 * j + 1}], v{V_O + j}, {WS}, s{S_C} offen sc1')

    def allred(off, dst):
        A(f'v_add_f32 v{T0}, v{T2}, v{T3}')
        xlane_allreduce_g(A, 'v_add_f32', T0, T1)
        A(f'v_add_f32_dpp v{T1}, v{T0}, v{T0} row_ror:8 row_mask:0xf bank_mask:0xf')
        A(f'ds_write_b32 v{V_LW}, v{T1} offset:{off}')
        A.wait_lg0()
        A('s_barrier')
        tk = [A(f'ds_read_b32 v{12 + j}, v{V_LR} offset:{off + 32 * j}') for j in range(4)]
        A.wait(tk[-1])
        A('v_add_f32 v12, v12, v13'); A('v_add_f32 v14, v14, v15'); A('v_add_f32 v12, v12, v14')
        A(f'v_mul_f32 v{dst}, {f32bits(1.0 / 640):#x}, v12')

    allred(0, MEAN)
    A(f'v_sub_f32 v{MEAN}, 0, v{MEAN}')
    A(f'v_mov_b32 v{MEAN + 1}, v{MEAN}')
    A(f'v_mov_b64 v[{T2}:{T3}], 0')
    for j in range(0, 20, 2):
        A(f'v_pk_add_f32 v[{T0}:{T1}], v[{X + j}:{X + j + 1}], v[{MEAN}:{MEAN + 1}]')
        A(f'v_pk_fma_f32 v[{T2}:{T3}], v[{T0}:{T1}], v[{T0}:{T1}], v[{T2}:{T3}]')
    allred(256, RD)
    round2(A, MEAN, RD, T0)
    A(f'v_mov_b32 v{MEAN + 1}, v{MEAN}')
    A(f'v_add_f32 v{RD}, {f32bits(1e-5):#x}, v{RD}')
    round_bf16(A, RD, RD)
    A(f'v_sqrt_f32 v{RD}, v{RD}')
    round_bf16(A, RD, RD)
    A(f'v_rcp_f32 v{RD}, v{RD}')
    A(f'v_mov_b32 v{RD + 1}, v{RD}')
    for j in range(5):
        for r in (0, 2):
            x = X + 4 * j + r
            A(f'v_pk_add_f32 v[{x}:{x + 1}], v[{x}:{x + 1}], v[{MEAN}:{MEAN + 1}]')
            round2(A, x, x + 1, T0)
            A(f'v_pk_mul_f32 v[{x}:{x + 1}], v[{x}:{x + 1}], v[{RD}:{RD + 1}]')
            round2(A, x, x + 1, T0)
            A(f'v_pk_mul_f32 v[{x}:{x + 1}], v[{x}:{x + 1}], v[{SC + 4 * j + r}:{SC + 4 * j + r + 1}]')
            round2(A, x, x + 1, T0)
            A(f'v_pk_add_f32 v[{x}:{x + 1}], v[{x}:{x + 1}], v[{SH + 4 * j + r}:{SH + 4 * j + r + 1}]')
            A(f'v_cvt_pk_bf16_f32 v{HO + 2 * j + r // 2}, v{x}, v{x + 1}')
        A(f'buffer_store_dwordx2 v[{HO + 2 * j}:{HO + 2 * j + 1}], v{V_O + j}, {WS}, s{S_B} offen sc1')
    signal(A, S_FOUT)
    A(f's_add_u32 s{S_TASK}, s{S_TASK}, {n}')
    A(f's_cmp_lt_u32 s{S_TASK}, 256')
    A.branch(f's_cbranch_scc1 {top}')


def emit_q(A, abort):
    A.comment('==== role Q ====')
    weight_addr_setup(A, 8192)
    load_ptr_srd(A, KA_WQ, 640 * 8192)
    A(f's_lshl_b32 s{S_SRC}, s{S_P0}, 8')
    A(f's_lshl_b32 s{S_TMP}, s{S_WV}, 6')
    A(f's_add_u32 s{S_SRC}, s{S_SRC}, s{S_TMP}')
    load_weights(A, S_SRC, 8192, 20, 2, lambda k, t: wlin(2 * k + t))
    A(f's_mov_b32 s{S_SEG}, 0')
    A(f's_mov_b32 s{S_SRC}, {WS_H:#x}')
    A(f's_mov_b32 s{S_FIN}, {F_H:#x}')
    A(f's_lshl_b32 s{S_FOUT}, s{S_P0}, 2')
    A(f's_add_u32 s{S_FOUT}, s{S_FOUT}, {F_Q:#x}')
    A(f's_lshl_b32 s{S_DST}, s{S_P0}, 13')
    A(f's_lshl_b32 s{S_TMP}, s{S_WV}, 10')
    A(f's_add_u32 s{S_DST}, s{S_DST}, s{S_TMP}')
    A(f's_add_u32 s{S_DST}, s{S_DST}, {WS_Q:#x}')
    acc = lambda t, tt: 12 + 4 * (t * 2 + tt)
    O = 68

    def epi(A):
        for tt in range(2):
            pack4(A, O + 4 * tt, acc(0, tt)); pack4(A, O + 4 * tt + 2, acc(1, tt))
            A(f's_add_u32 s{S_TMP}, s{S_DST}, {tt * 4096}')
            A(f'buffer_store_dwordx4 v[{O + 4 * tt}:{O + 4 * tt + 3}], v{V_L16}, {WS}, s{S_TMP} offen sc1')
        A(f's_add_u32 s{S_DST}, s{S_DST}, {32 * 8192}')

    tiles = [(lambda k: wlin(2 * k), True), (lambda k: wlin(2 * k + 1), True)]
    gemm_loop(A, abort, 20, 2, tiles, 40960, 2, 8, 128, 1, epi)


def emit_att(A, abort, ncu):
    A.comment('==== role ATT ====')
    S_TASK, S_SH, S_TT, S_SC, S_L2E, S_A, S_B = range(28, 35)
    KX, VX, KM, VM, QF, SS, OO = 12, 44, 76, 92, 108, 124, 136
    V_KMA, V_VMA, V_DIFF, V_D0 = 168, 169, 170, 171
    PP = 172
    T0, T1, T2 = V_T0, V_T1, V_T2
    A(f's_lshl_b32 s{S_TASK}, s{S_P0}, 2')
    A(f's_add_u32 s{S_TASK}, s{S_TASK}, s{S_WV}')
    A(f's_mov_b32 s{S_SC}, {f32bits(128 ** -0.5):#x}')
    A(f's_mov_b32 s{S_L2E}, {f32bits(math.log2(math.e)):#x}')
    A(f'v_and_b32 v{T0}, 7, v{V_I}')
    A(f'v_lshl_add_u32 v{T0}, v{V_G}, 3, v{T0}')
    A(f'v_lshlrev_b32 v{V_KMA}, 4, v{T0}')
    A(f'v_and_b32 v{T0}, 31, v{V_L}')
    A(f'v_lshlrev_b32 v{V_VMA}, 4, v{T0}')
    A(f'v_lshlrev_b32 v{T0}, 2, v{V_G}')
    A(f'v_sub_u32 v{V_D0}, v{V_I}, v{T0}')
    top = A.newlabel('L_att')
    A.flush_hazards()
    A.label(top)
    A.forget()
    A(f's_lshr_b32 s{S_SH}, s{S_TASK}, 1')
    A(f's_and_b32 s{S_TT}, s{S_TASK}, 1')
    A(f's_lshl_b32 s{S_TMP}, s{S_TT}, 4')
    A(f'v_add_u32 v{V_DIFF}, s{S_TMP}, v{V_D0}')
    A(f's_lshl_b32 s{S_A}, s{S_SH}, 2')
    A(f's_add_u32 s{S_B}, s{S_A}, {F_KV:#x}')
    wait_flags(A, abort, S_B, 1)
    A(f's_add_u32 s{S_B}, s{S_A}, {F_Q:#x}')
    wait_flags(A, abort, S_B, 1)
    A(f's_lshl_b32 s{S_A}, s{S_SH}, 13')
    A(f's_lshl_b32 s{S_TMP}, s{S_TT}, 12')
    A(f's_add_u32 s{S_B}, s{S_A}, s{S_TMP}')
    A(f's_add_u32 s{S_B}, s{S_B}, {WS_Q:#x}')
    qt = [A(f'buffer_load_dwordx4 v[{QF + 4 * k}:{QF + 4 * k + 3}], v{V_L16}, {WS}, s{S_B} offen offset:{k * 1024} sc1') for k in range(4)]
    kt = {}
    for f in range(8):
        A(f's_add_u32 s{S_B}, s{S_A}, {WS_KX + (f >> 2) * 4096:#x}')
        kt[f] = A(f'buffer_load_dwordx4 v[{KX + 4 * f}:{KX + 4 * f + 3}], v{V_L16}, {WS}, s{S_B} offen offset:{(f & 3) * 1024} sc1')
    for f in range(8):
        A(f's_add_u32 s{S_B}, s{S_A}, {WS_VX + (f >> 2) * 4096:#x}')
        A(f'buffer_load_dwordx4 v[{VX + 4 * f}:{VX + 4 * f + 3}], v{V_L16}, {WS}, s{S_B} offen offset:{(f & 3) * 1024} sc1')
    Sm, S0, S1 = SS, SS + 4, SS + 8
    for kt_i, s_ in ((0, S0), (1, S1)):
        for k in range(4):
            A.wait(qt[k], kt[kt_i * 4 + k])
            c = '0' if k == 0 else f'v[{s_}:{s_ + 3}]'
            b = KX + 4 * (kt_i * 4 + k)
            A(f'v_mfma_f32_16x16x32_bf16 v[{s_}:{s_ + 3}], v[{b}:{b + 3}], v[{QF + 4 * k}:{QF + 4 * k + 3}], {c}')

    def fix(base):
        for r in (0, 2):
            round2(A, base + r, base + r + 1, T0)
            A(f'v_mul_f32 v{base + r}, s{S_SC}, v{base + r}')
            A(f'v_mul_f32 v{base + r + 1}, s{S_SC}, v{base + r + 1}')
            round2(A, base + r, base + r + 1, T0)
    A(f'v_mov_b32 v{T2}, 0xce6e6b28')
    for kt_i, s_ in ((0, S0), (1, S1)):
        fix(s_)
        for r in range(4):
            A(f'v_cmp_le_i32 vcc, {16 * kt_i + r}, v{V_DIFF}')
            A(f'v_cndmask_b32 v{s_ + r}, v{T2}, v{s_ + r}, vcc')
    MX = V_T3
    A(f'v_max3_f32 v{MX}, v{S0}, v{S0 + 1}, v{S0 + 2}')
    A(f'v_max3_f32 v{MX}, v{MX}, v{S0 + 3}, v{S1}')
    A(f'v_max3_f32 v{MX}, v{MX}, v{S1 + 1}, v{S1 + 2}')
    A(f'v_max_f32 v{MX}, v{MX}, v{S1 + 3}')
    A(f's_lshl_b32 s{S_B}, s{S_SH}, 5')
    A(f's_add_u32 s{S_B}, s{S_B}, {F_M:#x}')
    wait_flags(A, abort, S_B, 2, sleep=1)
    A(f's_lshl_b32 s{S_A}, s{S_SH}, 11')
    A(f's_lshl_b32 s{S_B}, s{S_SH}, 12')
    A(f's_add_u32 s{S_B}, s{S_B}, {WS_KM:#x}')
    km = [A(f'buffer_load_dwordx4 v[{KM + 4 * k}:{KM + 4 * k + 3}], v{V_L16}, {WS}, s{S_B} offen offset:{k * 1024} sc1') for k in range(4)]
    A(f's_sub_u32 s{S_B}, s{S_B}, {WS_KM - WS_VM:#x}')
    vm = [A(f'buffer_load_dwordx2 v[{VM + 2 * j}:{VM + 2 * j + 1}], v{V_VMA}, {WS}, s{S_B} offen offset:{j * 512} sc1') for j in range(8)]
    for k in range(4):
        A.wait(km[k])
        c = '0' if k == 0 else f'v[{Sm}:{Sm + 3}]'
        A(f'v_mfma_f32_16x16x32_bf16 v[{Sm}:{Sm + 3}], v[{KM + 4 * k}:{KM + 4 * k + 3}], v[{QF + 4 * k}:{QF + 4 * k + 3}], {c}')
    A(f'v_cmp_gt_u32 vcc, 2, v{V_G}')
    fix(Sm)
    for r in range(4):
        A(f'v_cndmask_b32 v{Sm + r}, v{T2}, v{Sm + r}, vcc')
    A(f'v_max3_f32 v{T0}, v{MX}, v{Sm}, v{Sm + 1}')
    A(f'v_max3_f32 v{T0}, v{T0}, v{Sm + 2}, v{Sm + 3}')
    xlane_allreduce_g(A, 'v_max_f32', T0, T1)
    for j in range(12):
        A(f'v_sub_f32 v{SS + j}, v{SS + j}, v{T0}')
    for j in range(12):
        A(f'v_mul_f32 v{SS + j}, s{S_L2E}, v{SS + j}')
    for j in range(12):
        A(f'v_exp_f32 v{SS + j}, v{SS + j}')
    A(f'v_add_f32 v{T0}, v{SS}, v{SS + 1}')
    A(f'v_add_f32 v{T1}, v{SS + 2}, v{SS + 3}')
    for j in range(4, 12, 2):
        A(f'v_add_f32 v{T0}, v{T0}, v{SS + j}')
        A(f'v_add_f32 v{T1}, v{T1}, v{SS + j + 1}')
    A(f'v_add_f32 v{T0}, v{T0}, v{T1}')
    xlane_allreduce_g(A, 'v_add_f32', T0, T1)
    A(f'v_rcp_f32 v{T0}, v{T0}')
    for j in range(12):
        A(f'v_mul_f32 v{SS + j}, v{SS + j}, v{T0}')
    pack4(A, PP, S0); pack4(A, PP + 2, S1); pack4(A, PP + 4, Sm)
    A.wait(vm[-1])
    for j in range(8):
        o = OO + 4 * j
        A(f'v_mfma_f32_16x16x32_bf16 v[{o}:{o + 3}], v[{VX + 4 * j}:{VX + 4 * j + 3}], v[{PP}:{PP + 3}], 0')
    for j in range(8):
        o = OO + 4 * j
        A(f'v_mfma_f32_16x16x16_bf16 v[{o}:{o + 3}], v[{VM + 2 * j}:{VM + 2 * j + 1}], v[{PP + 4}:{PP + 5}], v[{o}:{o + 3}]')
    A(f's_lshl_b32 s{S_A}, s{S_SH}, 13')
    A(f's_lshl_b32 s{S_TMP}, s{S_TT}, 10')
    A(f's_add_u32 s{S_A}, s{S_A}, s{S_TMP}')
    A(f's_add_u32 s{S_A}, s{S_A}, {WS_O:#x}')
    for j in range(4):
        d = QF + 4 * j
        pack4(A, d, OO + 8 * j); pack4(A, d + 2, OO + 8 * j + 4)
        A(f's_add_u32 s{S_B}, s{S_A}, {j * 2048}')
        A(f'buffer_store_dwordx4 v[{d}:{d + 3}], v{V_L16}, {WS}, s{S_B} offen sc1')
    A.wait_vm0()
    A(f's_lshl_b32 s{S_B}, s{S_TASK}, 2')
    A(f's_add_u32 s{S_B}, s{S_B}, {F_O:#x}')
    A(f'v_mov_b32 v{T1}, 1')
    A('s_mov_b64 exec, 1')
    A(f'buffer_store_dword v{T1}, off, {WS}, s{S_B} sc1')
    A('s_mov_b64 exec, -1')
    A(f's_add_u32 s{S_TASK}, s{S_TASK}, {4 * ncu}')
    A(f's_cmp_lt_u32 s{S_TASK}, 4096')
    A.branch(f's_cbranch_scc1 {top}')
```

```python
import sys
from asmlib import *
from layout import *
import rec, roles
from roles import *

KNAME = "adaLN_cond__memory_aug_recurrent_mem_tr__swiglu_ffn__prompt_kernel"
HEADER = open('adaLN_cond__memory_aug_recurrent_mem_tr__swiglu_ffn__prompt.s.ref').read().split('; Override launch')[0]

def gen(path, coarse=False, stamps=False, dbg=''):
    A = Asm()
    A.raw(HEADER.rstrip('\n'))
    A.raw('; @launch grid=(256,1,1) block=(256,1,1) lds=163840')
    A.raw('.amdgcn_target "amdgcn-amd-amdhsa--gfx950"')
    A.raw(kernel_header(KNAME))
    END = 'L_end'
    A('s_cmp_ge_u32 s2, 256')
    A('s_cbranch_scc1 L_end0')
    S_X, S_IDX = 98, 99
    if coarse:
        A('s_memrealtime s[100:101]')
    A(f's_load_dwordx2 s[4:5], s[0:1], {KA_DBG}')
    A(f's_getreg_b32 s{S_X}, hwreg(HW_REG_XCC_ID)')
    A(f's_and_b32 s{S_X}, s{S_X}, 7')
    A('v_lshrrev_b32 v1, 6, v0')
    A('v_readfirstlane_b32 s3, v1')
    A('s_waitcnt lgkmcnt(0)')
    A.srd(8, 4, 5, 256)
    A('s_cmp_lg_u32 s3, 0')
    A('s_cbranch_scc1 L_claimed')
    A('s_mov_b32 s6, 0')
    A('s_mov_b64 exec, 1')
    A.label('L_claim')
    A(f's_lshl_b32 s7, s{S_X}, 2')
    A('s_add_u32 s7, s7, 32')
    A('v_mov_b32 v1, 1')
    A('buffer_atomic_add v1, off, s[8:11], s7 sc0 sc1')
    A('s_waitcnt vmcnt(0)')
    A(f'v_readfirstlane_b32 s{S_IDX}, v1')
    A(f's_cmp_lt_u32 s{S_IDX}, 32')
    A('s_cbranch_scc1 L_claim_ok')
    A(f's_add_u32 s{S_X}, s{S_X}, 1')
    A(f's_and_b32 s{S_X}, s{S_X}, 7')
    A('s_add_u32 s6, s6, 1')
    A('s_cmp_lt_u32 s6, 8')
    A('s_cbranch_scc1 L_claim')
    A(f's_mov_b32 s{S_IDX}, 255')
    A.label('L_claim_ok')
    A(f's_lshl_b32 s7, s{S_IDX}, 3')
    A(f's_or_b32 s7, s7, s{S_X}')
    A('v_mov_b32 v1, s7')
    A('v_mov_b32 v2, 0')
    A('ds_write_b32 v2, v1')
    A('s_waitcnt lgkmcnt(0)')
    A('s_mov_b64 exec, -1')
    A.label('L_claimed')
    A('s_barrier')
    A('v_mov_b32 v2, 0')
    A('ds_read_b32 v1, v2')
    A('s_waitcnt lgkmcnt(0)')
    A('v_readfirstlane_b32 s7, v1')
    A('s_barrier')
    A(f's_and_b32 s{S_X}, s7, 7')
    A(f's_lshr_b32 s{S_IDX}, s7, 3')
    A(f's_cmp_ge_u32 s{S_IDX}, 32')
    A('s_cbranch_scc1 L_end0')
    A(f's_cmp_lt_u32 s{S_X}, 2')
    A('s_cbranch_scc1 L_rec')
    common_setup(A)
    A(f's_cmp_lt_u32 s{S_X}, 4')
    A('s_cbranch_scc1 L_kv')
    A(f's_sub_u32 s{S_P0}, s{S_X}, 4')
    A(f's_lshl_b32 s{S_P0}, s{S_P0}, 5')
    A(f's_add_u32 s{S_P0}, s{S_P0}, s{S_IDX}')
    emit_init(A, END)
    wait_init(A, END)
    emit_ln(A, 1, S_P0)
    A(f's_lshl_b32 s{S_FOUT}, s{S_P0}, 2')
    A(f's_add_u32 s{S_FOUT}, s{S_FOUT}, {F_H:#x}')
    signal(A, S_FOUT)
    A('s_barrier')
    A(f's_cmp_eq_u32 s{S_X}, 4')
    A.branch('s_cbranch_scc1 L_q')
    A(f's_cmp_eq_u32 s{S_X}, 5')
    A.branch('s_cbranch_scc1 L_x5')
    A(f's_cmp_eq_u32 s{S_X}, 6')
    A.branch('s_cbranch_scc1 L_x6')
    A(f's_sub_u32 s{S_P0}, s{S_IDX}, 11')
    A(f's_cmp_ge_u32 s{S_IDX}, 20')
    A('s_cbranch_scc1 L_att')
    A(f's_and_b32 s{S_P0}, s{S_IDX}, 1')
    A(f's_lshr_b32 s{S_P1}, s{S_IDX}, 1')
    emit_ff2(A, END)
    A.branch(f's_branch {END}')
    A.label('L_x6'); A.forget()
    A(f's_sub_u32 s{S_P0}, s{S_IDX}, 23')
    A(f's_cmp_ge_u32 s{S_IDX}, 27')
    A('s_cbranch_scc1 L_att')
    A(f's_mov_b32 s{S_P0}, s{S_IDX}')
    emit_ff1(A, END)
    A.branch(f's_branch {END}')
    A.label('L_x5'); A.forget()
    A(f's_sub_u32 s{S_P0}, s{S_IDX}, 28')
    A(f's_cmp_ge_u32 s{S_IDX}, 28')
    A('s_cbranch_scc1 L_att')
    A(f's_cmp_ge_u32 s{S_IDX}, 20')
    A('s_cbranch_scc1 L_ln2r')
    A(f's_mul_i32 s{S_P0}, s{S_IDX}, 52')
    A(f's_lshr_b32 s{S_P0}, s{S_P0}, 8')
    A(f's_mul_i32 s{S_P1}, s{S_P0}, 5')
    A(f's_sub_u32 s{S_P1}, s{S_IDX}, s{S_P1}')
    emit_op(A, END)
    A.branch(f's_branch {END}')
    A.label('L_ln2r'); A.forget()
    A(f's_sub_u32 s{S_P0}, s{S_IDX}, 20')
    emit_ln2(A, END, 8)
    A.branch(f's_branch {END}')
    A.label('L_q'); A.forget()
    A(f's_mov_b32 s{S_P0}, s{S_IDX}')
    emit_q(A, END)
    A.branch(f's_branch {END}')
    A.label('L_att'); A.forget()
    emit_att(A, END, 21)
    A.branch(f's_branch {END}')
    A.label('L_kv'); A.forget()
    A(f's_mov_b32 s{S_P0}, s{S_IDX}')
    A(f's_sub_u32 s{S_P1}, s{S_X}, 2')
    emit_kv(A, END)
    A.branch(f's_branch {END}')
    A.label('L_rec'); A.forget()
    A(f's_mov_b32 s{rec.S_T}, s{S_X}')
    A(f's_mov_b32 s{rec.S_H}, s{S_IDX}')
    rec.emit_rec(A, END, mega=True, coarse=coarse, stamps=stamps, dbg=dbg)
    A.label(END)
    if coarse:
        A('s_memrealtime s[92:93]')
        A('s_waitcnt lgkmcnt(0)')
        A(f's_lshl_b32 s41, s{S_IDX}, 3')
        A(f's_or_b32 s41, s41, s{S_X}')
        A('s_lshl_b32 s41, s41, 4')
        A(f's_add_u32 s41, s41, {WS_STAMP + 0x300000:#x}')
        A('s_mov_b64 exec, 1')
        A('v_mov_b32 v2, s100')
        A('v_mov_b32 v3, s92')
        A('buffer_store_dwordx2 v[2:3], off, s[4:7], s41')
    A.label('L_end0')
    A('s_endpgm')
    A.raw(kernel_desc(KNAME))
    open(path, 'w').write(A.text())
    print('instructions:', A.ninstr, 'bytes of text:', len(A.text()))

if __name__ == '__main__':
    out = 'mega.s'
    gen(out, coarse='--coarse' in sys.argv, stamps='--stamps' in sys.argv)
    for d in ('nopub', 'nokvt', 'nopub,nokvt'):
        if '--dbg' in sys.argv:
            gen(f'mega_{d.replace(",", "_")}.s', coarse=True, stamps=True, dbg=d)
    if '--install' in sys.argv:
        import shutil
        shutil.copy(out, 'adaLN_cond__memory_aug_recurrent_mem_tr__swiglu_ffn__prompt.s')
```

```python
import math
import struct
from asmlib import *
from layout import *
from roles import F_P, F_M

VREG = 34816
MEMB = 4 * VREG
QKB = MEMB + 10240
OB = QKB + 4096
KXB = OB + 2048
assert KXB + 8192 == 163840

SPIN_LIMIT = 1 << 17


def f32bits(x):
    return struct.unpack('<I', struct.pack('<f', x))[0]


LDS_BLOCKS = [('v', s_, t_) for s_ in range(5) for t_ in range(2)] + [('k', s_, 1) for s_ in range(4)] + \
             [('q', s_, 1) for s_ in range(3)]
assert len(LDS_BLOCKS) == 17
_all = [(m, s_, t_) for m in 'qkv' for s_ in range(10) for t_ in range(2)] + [('o', k_, t_) for k_ in range(2) for t_ in range(5)]
_regb = [b for b in _all if b not in LDS_BLOCKS]
assert len(_regb) == 53
REG_OF = {b: (256 + 8 * i if i < 32 else 88 + 8 * (i - 32)) for i, b in enumerate(_regb)}
BLK_OF = {b: i for i, b in enumerate(LDS_BLOCKS)}


V_LANE, V_IDX, V_L16, V_KX, V_QKW, V_QKR, V_OW0, V_OR, V_PST, V_T2, V_T1, V_T0 = range(12)
VX0, VX1 = 12, 16
V_P4, V_P1, V_PUB = 12, 13, 14
Q0, Q1, K0, K1, VV0, VV1 = 20, 24, 28, 32, 36, 40
AR = 44
PL = 56
VW = 64
SS = 64
VXR = 80

S_WS, S_W, S_DBG = 4, 8, 12
S_T, S_H, S_WV, S_STEP, S_FAST = 16, 17, 18, 19, 20
S_PLOC, S_PREM, S_PS0, S_PS1, S_PS2, S_PA, S_PUBR, S_PUBL, S_KX, S_VX, S_RED, S_NOT1, S_C = range(21, 34)
S_MLO = 34
S_MPUB = 36
S_KM, S_VM, S_FL = 38, 39, 40
S_TMP = 41
S_PTR = 44
S_SPIN = 46
S_TMP2 = 47
S_ST = 48
S_STO = 80
S_KSEL = 96
S_FKV = 97
S_TABW, S_TABR = 36, 82
S_PREM0, S_PUBR0 = 39, 96
S_TMASK = 94
S_PAR, S_W1280, S_P1B, S_W512 = 72, 73, 74, 75
S_ONE = 76
S_HALF = 78
S_RDY = 25


def emit_rec(A, abort_label, nsteps=64, stamps=False, force_safe=False, coarse=False, backoff=6, ka=3, adelay=(0, 1, 1), mega=False, rp=(1, 2), cut=None, dbg='', kb=3, bgap=9, spec=True, kmahead=2):
    def stamp(i):
        if stamps:
            A(f's_memtime s[{S_ST + 2 * i}:{S_ST + 2 * i + 1}]')
        if cut == i:
            A.branch('s_branch L_cut')

    if coarse:
        A('s_memrealtime s[84:85]')
        A('s_memtime s[86:87]')
    A(f's_load_dwordx2 s[{S_PTR}:{S_PTR + 1}], s[0:1], {KA_WS}')
    A(f's_load_dwordx2 s[{S_TMP + 1}:{S_TMP + 2}], s[0:1], {KA_DBG}')
    A(f'v_lshrrev_b32 v1, 6, v0')
    A(f'v_readfirstlane_b32 s{S_WV}, v1')
    A(f'v_and_b32 v{V_LANE}, 63, v0')
    A('s_waitcnt lgkmcnt(0)')
    A.srd(S_WS, S_PTR, S_PTR + 1, WS_BYTES)
    A.srd(S_DBG, S_TMP + 1, S_TMP + 2, 256)
    A(f's_mov_b32 s{S_SPIN}, 0')
    L = V_LANE
    T0, T1 = V_T0, V_T1
    G, R_, C_ = 20, 21, 22
    A(f'v_lshrrev_b32 v{G}, 4, v{L}')
    A(f'v_bfe_u32 v{R_}, v{L}, 2, 2')
    A(f'v_and_b32 v{C_}, 3, v{L}')
    A(f'v_and_b32 v{T0}, 8, v{L}')
    A(f'v_cmp_eq_u32 vcc, 0, v{T0}')
    A(f'v_mov_b32 v{T0}, 0xeeee')
    A(f'v_mov_b32 v{T1}, 0x4444')
    A(f'v_cndmask_b32 v{V_IDX}, v{T0}, v{T1}, vcc')
    A(f's_mul_i32 s{S_TMP}, s{S_WV}, {VREG}')
    A(f'v_lshlrev_b32 v{T0}, 4, v{L}')
    A(f'v_add_u32 v{V_L16}, s{S_TMP}, v{T0}')
    A(f'v_add_u32 v{V_KX}, {MEMB}, v{T0}')
    A(f'v_lshrrev_b32 v{T0}, 5, v{L}')
    A(f'v_lshlrev_b32 v{T0}, 8, v{T0}')
    A(f'v_and_b32 v{T1}, 15, v{L}')
    A(f'v_lshl_add_u32 v{T0}, v{T1}, 4, v{T0}')
    A(f'v_and_b32 v{T1}, 1, v{G}')
    A(f'v_lshl_add_u32 v{T0}, v{T1}, 3, v{T0}')
    A(f's_lshl_b32 s{S_TMP}, s{S_WV}, 9')
    A(f's_add_u32 s{S_TMP}, s{S_TMP}, {QKB}')
    A(f'v_add_u32 v{V_QKW}, s{S_TMP}, v{T0}')
    A(f'v_lshlrev_b32 v{T0}, 6, v{G}')
    A(f'v_lshl_add_u32 v{T0}, v{R_}, 4, v{T0}')
    A(f'v_and_b32 v{T1}, 1, v{C_}')
    A(f'v_lshl_add_u32 v{T0}, v{T1}, 3, v{T0}')
    A(f'v_add_u32 v{V_QKR}, {QKB}, v{T0}')
    I_ = 23
    A(f'v_and_b32 v{I_}, 7, v{L}')
    A(f'v_lshrrev_b32 v{T0}, 1, v{G}')
    A(f's_lshl_b32 s{S_TMP}, s{S_WV}, 2')
    A(f'v_add_u32 v{T0}, s{S_TMP}, v{T0}')
    A(f'v_xor_b32 v{T0}, v{T0}, v{I_}')
    A(f'v_lshlrev_b32 v{T0}, 4, v{T0}')
    A(f'v_lshl_add_u32 v{T0}, v{I_}, 8, v{T0}')
    A(f'v_and_b32 v{T1}, 1, v{G}')
    A(f'v_lshl_add_u32 v{T0}, v{T1}, 3, v{T0}')
    A(f'v_add_u32 v{V_OW0}, {OB}, v{T0}')
    A(f'v_bfe_u32 v{T0}, v{L}, 3, 1')
    A(f'v_lshl_add_u32 v{T0}, v{G}, 1, v{T0}')
    A(f'v_xor_b32 v{T0}, v{T0}, v{I_}')
    A(f'v_lshlrev_b32 v{T0}, 4, v{T0}')
    A(f'v_lshl_add_u32 v{T0}, v{I_}, 8, v{T0}')
    A(f'v_add_u32 v{V_OR}, {OB}, v{T0}')
    A(f'v_and_b32 v{T0}, 1, v{G}')
    A(f'v_lshlrev_b32 v{T0}, 1, v{T0}')
    A(f'v_lshrrev_b32 v{T1}, 1, v{G}')
    A(f'v_add_u32 v{T0}, v{T0}, v{T1}')
    A(f'v_lshlrev_b32 v{T0}, 1, v{T0}')
    A(f'v_bfe_u32 v{T1}, v{L}, 3, 1')
    A(f'v_add_u32 v{T0}, v{T0}, v{T1}')
    A(f'v_lshlrev_b32 v{T0}, 12, v{T0}')
    A(f'v_lshl_add_u32 v{V_PST}, v{I_}, 4, v{T0}')
    A(f's_lshl_b32 s{S_KSEL}, s{S_T}, 2')
    A(f's_add_u32 s{S_KSEL}, s{S_KSEL}, s{S_WV}')
    A(f's_mov_b32 s{S_ONE}, 0x3f803f80')
    A(f's_mov_b32 s{S_ONE + 1}, 0x3f803f80')
    A(f's_mov_b32 s{S_HALF}, 0x3f003f00')
    A(f's_mov_b32 s{S_HALF + 1}, 0x3f003f00')
    A(f's_mov_b32 s{S_PAR}, 0')
    A(f's_mul_i32 s{S_W1280}, s{S_WV}, 1280')
    A(f's_add_u32 s{S_P1B}, s{S_W1280}, {MEMB + 1024}')
    A(f's_lshl_b32 s{S_W512}, s{S_WV}, 9')

    def rebuild():
        A(f'v_add_u32 v{V_P4}, s{S_W1280}, v{V_KX}')
        A(f'v_lshl_add_u32 v{V_P1}, v{L}, 2, s{S_P1B}')

    def rebuild_pub():
        A(f'v_and_b32 v{T0}, 7, v{L}')
        A(f'v_bfe_u32 v{T1}, v{L}, 4, 1')
        A(f'v_lshlrev_b32 v{T1}, 3, v{T1}')
        A(f'v_lshl_add_u32 v{V_PUB}, v{T0}, 4, v{T1}')

    rebuild()
    A(f's_mov_b32 s{S_MLO}, -1')
    A(f's_mov_b32 s{S_MLO + 1}, 0')
    A(f's_mov_b32 s{S_MPUB}, 0x00ff00ff')
    A(f's_mov_b32 s{S_MPUB + 1}, 0x00ff00ff')
    A(f's_mov_b32 s{S_NOT1}, 0xfffffffe')
    A(f's_mov_b32 s{S_C}, {f32bits((128 ** -0.5) * math.log2(math.e)):#x}')
    A(f's_mul_i32 s{S_TMP2}, s{S_WV}, {VREG}')
    A(f's_mul_i32 s{S_TMP}, s{S_T}, 5120')
    A(f's_add_u32 s{S_PLOC}, s{S_TMP}, {WS_MEML - MEMB:#x}')
    A(f's_xor_b32 s{S_TMP}, s{S_T}, 1')
    A(f's_lshl_b32 s{S_TMP}, s{S_TMP}, 14')
    A(f's_add_u32 s{S_PREM}, s{S_TMP}, {WS_MEMR - MEMB:#x}')
    A(f's_mul_i32 s{S_TMP}, s{S_T}, 163840')
    A(f's_add_u32 s{S_TMP}, s{S_TMP}, {WS_PART:#x}')
    A(f's_mul_i32 s{S_TMP + 1}, s{S_WV}, {10 * 4096}')
    A(f's_add_u32 s{S_PS0}, s{S_TMP}, s{S_TMP + 1}')
    A(f's_lshl_b32 s{S_TMP + 1}, s{S_H}, 7')
    A(f's_add_u32 s{S_PS0}, s{S_PS0}, s{S_TMP + 1}')
    A(f's_add_u32 s{S_PS1}, s{S_PS0}, 32768')
    A(f's_lshl_b32 s{S_RED}, s{S_WV}, 5')
    A(f's_add_u32 s{S_RED}, s{S_RED}, s{S_H}')
    A(f's_min_u32 s{S_TMP + 2}, s{S_RED}, 39')
    A(f's_lshl_b32 s{S_TMP + 1}, s{S_TMP + 2}, 12')
    A(f's_add_u32 s{S_PA}, s{S_TMP}, s{S_TMP + 1}')
    A(f's_sub_u32 s{S_PA}, s{S_PA}, s{S_TMP2}')
    A(f's_lshl_b32 s{S_TMP + 1}, s{S_TMP + 2}, 7')
    A(f's_lshl_b32 s{S_TMP}, s{S_T}, 14')
    A(f's_add_u32 s{S_PUBR}, s{S_TMP}, s{S_TMP + 1}')
    A(f's_add_u32 s{S_PUBR}, s{S_PUBR}, {WS_MEMR + 32768:#x}')
    A(f's_mul_i32 s{S_TMP}, s{S_T}, 5120')
    A(f's_add_u32 s{S_PUBL}, s{S_TMP}, s{S_TMP + 1}')
    A(f's_add_u32 s{S_PUBL}, s{S_PUBL}, {WS_MEML + 10240:#x}')
    A(f's_lshl_b32 s{S_TMP}, s{S_H}, 13')
    A(f's_lshl_b32 s{S_TMP + 1}, s{S_WV}, 11')
    A(f's_add_u32 s{S_TMP}, s{S_TMP}, s{S_TMP + 1}')
    A(f's_sub_u32 s{S_TMP}, s{S_TMP}, s{S_TMP2}')
    A(f's_add_u32 s{S_KX}, s{S_TMP}, {WS_KX:#x}')
    A(f's_add_u32 s{S_VX}, s{S_TMP}, {WS_VX:#x}')
    A(f's_lshl_b32 s{S_TMP}, s{S_H}, 12')
    A(f's_lshl_b32 s{S_TMP + 1}, s{S_WV}, 10')
    A(f's_add_u32 s{S_TMP}, s{S_TMP}, s{S_TMP + 1}')
    A(f's_sub_u32 s{S_TMP}, s{S_TMP}, s{S_TMP2}')
    A(f's_add_u32 s{S_KM}, s{S_TMP}, {WS_KM:#x}')
    A(f's_mul_i32 s{S_TMP}, s{S_T}, {WS_KM - WS_VM:#x}')
    A(f's_sub_u32 s{S_KM}, s{S_KM}, s{S_TMP}')
    A(f's_sub_u32 s{S_TMASK}, 0, s{S_T}')
    A(f's_mov_b32 s{S_TMASK + 1}, s{S_TMASK}')

    lskip = A.newlabel('L_ann'); lnc = A.newlabel('L_nocal')
    A(f's_cmp_lg_u32 s{S_WV}, 0')
    A.branch(f's_cbranch_scc1 {lskip}')
    A(f's_mov_b32 s{S_ST + 6}, 0')
    A(f's_or_b32 s{S_TMP}, s{S_T}, s{S_H}')
    A(f's_cmp_lg_u32 s{S_TMP}, 0' if not mega else 's_cmp_lg_u32 1, 0')
    A.branch(f's_cbranch_scc1 {lnc}')
    A(f'v_mov_b32 v{T0}, {WS_MEMR:#x}')
    A(f'v_mov_b32 v{T1}, {WS_MEMR + 8192:#x}')
    A('s_mov_b64 exec, 1')
    A(f's_mov_b32 s{S_ST + 8}, -1')
    A(f's_mov_b32 s{S_ST + 9}, -1')
    for rep in range(3):
        for c in range(2):
            A(f's_memtime s[{S_ST}:{S_ST + 1}]')
            A('s_waitcnt lgkmcnt(0)')
            A(f'buffer_store_dword v{T0}, v{(T0, T1)[c]}, s[{S_WS}:{S_WS + 3}], 0 offen sc1')
            A.wait_vm0()
            A(f's_memtime s[{S_ST + 2}:{S_ST + 3}]')
            A('s_waitcnt lgkmcnt(0)')
            A(f's_sub_u32 s{S_ST + 4}, s{S_ST + 2}, s{S_ST}')
            A(f's_min_u32 s{S_ST + 8 + c}, s{S_ST + 8 + c}, s{S_ST + 4}')
    A('s_mov_b64 exec, -1')
    A(f's_cmp_lt_u32 s{S_ST + 9}, s{S_ST + 8}')
    A(f's_cselect_b32 s{S_ST + 6}, 0x40000000, 0')
    A.label(lnc)
    A(f's_getreg_b32 s{S_TMP}, hwreg(HW_REG_XCC_ID)')
    A(f's_and_b32 s{S_TMP}, s{S_TMP}, 15')
    A(f's_mul_i32 s{S_TMP + 1}, s{S_TMP}, s{S_TMP}')
    A(f's_lshl_b32 s{S_TMP + 1}, s{S_TMP + 1}, 16')
    A(f's_lshl_b32 s{S_TMP}, s{S_TMP}, 6')
    A(f's_add_u32 s{S_TMP}, s{S_TMP}, s{S_TMP + 1}')
    A(f's_add_u32 s{S_TMP}, s{S_TMP}, 1')
    A(f's_add_u32 s{S_TMP}, s{S_TMP}, s{S_ST + 6}')
    A(f'v_mov_b32 v{T0}, s{S_TMP}')
    A(f's_lshl_b32 s{S_TMP + 1}, s{S_T}, 2')
    A('s_mov_b64 exec, 1')
    A(f'buffer_atomic_add v{T0}, off, s[{S_DBG}:{S_DBG + 3}], s{S_TMP + 1} offset:128 sc1')
    A('s_mov_b64 exec, -1')
    A.flush_hazards()
    A.label(lskip)

    VSRC, VB, VBO = 24, 25, 26
    VOS = 27
    TB = 32
    A(f'v_lshrrev_b32 v{T0}, 2, v{L}')
    A(f'v_lshlrev_b32 v{T0}, 13, v{T0}')
    A(f'v_lshl_add_u32 v{VSRC}, v{C_}, 4, v{T0}')
    A(f'v_lshrrev_b32 v{T0}, 1, v{G}')
    A(f'v_lshlrev_b32 v{T0}, 4, v{T0}')
    A(f'v_and_b32 v{T1}, 1, v{G}')
    A(f'v_lshl_add_u32 v{T0}, v{T1}, 2, v{T0}')
    A(f'v_lshrrev_b32 v{T1}, 1, v{R_}')
    A(f'v_lshl_add_u32 v{T0}, v{T1}, 3, v{T0}')
    A(f'v_and_b32 v{T1}, 1, v{R_}')
    A(f'v_add_u32 v{T0}, v{T1}, v{T0}')
    A(f'v_lshlrev_b32 v{T1}, 6, v{T0}')
    A(f'v_lshl_add_u32 v{T1}, v{C_}, 3, v{T1}')
    A(f'v_add_u32 v{VB}, s{S_TMP2}, v{T1}')
    A(f'v_mul_u32_u24 v{T0}, 160, v{T0}')
    A(f'v_lshl_add_u32 v{T0}, v{C_}, 3, v{T0}')
    A(f'v_add_u32 v{VBO}, s{S_TMP2}, v{T0}')
    for n in range(5):
        A(f'v_add_u32 v{T0}, {64 * n}, v{L}')
        A(f'v_mul_u32_u24 v{T1}, 6554, v{T0}')
        A(f'v_lshrrev_b32 v{T1}, 16, v{T1}')
        A(f'v_mul_u32_u24 v{VOS + n}, 10, v{T1}')
        A(f'v_sub_u32 v{T0}, v{T0}, v{VOS + n}')
        A(f'v_mul_u32_u24 v{T1}, 1280, v{T1}')
        A(f'v_lshl_add_u32 v{VOS + n}, v{T0}, 4, v{T1}')

    S_CB, S_R0 = S_ST + 10, S_ST + 11
    S_SO = S_ST + 12
    S_PQ, S_PK, S_PV, S_PO = S_ST + 14, S_ST + 16, S_ST + 18, S_ST + 20
    A(f's_load_dwordx2 s[{S_PQ}:{S_PQ + 1}], s[0:1], {KA_WQ}')
    A(f's_load_dwordx2 s[{S_PK}:{S_PK + 1}], s[0:1], {KA_WK}')
    A(f's_load_dwordx2 s[{S_PV}:{S_PV + 1}], s[0:1], {KA_WV}')
    A(f's_load_dwordx2 s[{S_PO}:{S_PO + 1}], s[0:1], {KA_WO}')
    A(f's_lshl_b32 s{S_CB}, s{S_H}, 8')
    A(f's_lshl_b32 s{S_TMP}, s{S_WV}, 6')
    A(f's_add_u32 s{S_CB}, s{S_CB}, s{S_TMP}')
    A('s_waitcnt lgkmcnt(0)')
    WBYTES = 640 * 8192
    cur = [None]

    def use(ptr):
        if cur[0] != ptr:
            A.srd(S_W, ptr, ptr + 1, WBYTES)
            cur[0] = ptr

    def dma_slot(ptr, sig, pos):
        use(ptr)
        A(f's_cmp_eq_u32 s{S_T}, 0')
        A(f's_cselect_b32 s{S_SO}, {sig}, {(sig + 5) % 10}')
        A(f's_lshl_b32 s{S_SO}, s{S_SO}, 19')
        A(f's_add_u32 s{S_SO}, s{S_SO}, s{S_CB}')
        tok = None
        for n in range(4):
            A(f's_add_u32 m0, s{S_TMP2}, {pos * 4096 + n * 1024}')
            tok = A(f'buffer_load_dwordx4 v{VSRC}, s[{S_W}:{S_W + 3}], s{S_SO} offen lds')
            if n < 3:
                A(f's_add_u32 s{S_SO}, s{S_SO}, {16 * 8192}')
        return tok

    def read_slot(tok, pos, dests):
        A.wait(tok)
        for tau in range(2):
            for u in range(4):
                off = pos * 4096 + (32 * (u >> 1) + 2 * (u & 1)) * 64 + tau * 32
                A(f'ds_read_b64_tr_b16 {wr(dests[tau] + 2 * u, 2)}, v{VB} offset:{off}')

    WOS = 0

    def dma_wo():
        use(S_PO)
        A(f's_mul_i32 s{S_SO}, s{S_H}, 163840')
        A(f's_mul_i32 s{S_TMP}, s{S_T}, 640')
        A(f's_add_u32 s{S_SO}, s{S_SO}, s{S_TMP}')
        A(f's_mul_i32 s{S_TMP}, s{S_WV}, 160')
        A(f's_add_u32 s{S_SO}, s{S_SO}, s{S_TMP}')
        tok = []
        for blk in range(4):
            for n in range(5):
                A(f's_add_u32 m0, s{S_TMP2}, {WOS + (blk * 5 + n) * 1024}')
                t = A(f'buffer_load_dwordx4 v{VOS + n}, s[{S_W}:{S_W + 3}], s{S_SO} offen lds')
            tok.append(t)
            if blk < 3:
                A(f's_add_u32 s{S_SO}, s{S_SO}, {32 * 1280}')
        return tok

    def put_block(reg, blk):
        for hf in range(2):
            A(f'ds_write_b128 v{V_L16}, v[{reg + 4 * hf}:{reg + 4 * hf + 3}] offset:{blk * 2048 + hf * 1024}')

    park = {b: TB + 8 * (BLK_OF[b] - 10) for b in LDS_BLOCKS[10:]}

    def dest_of(b):
        return REG_OF[b] if b in REG_OF else park[b]

    ptrs = {'q': S_PQ, 'k': S_PK, 'v': S_PV}
    stream = [('q', x) for x in range(10)] + [('k', x) for x in range(10)] + [('v', x) for x in range(5, 10)]
    tk = {}
    for i in range(8):
        tk[i] = dma_slot(ptrs[stream[i][0]], stream[i][1], i % 8)
    pos_of = {i: i % 8 for i in range(24)}
    pos_of[24] = 5
    tko = None
    for i in range(25):
        m, sig = stream[i]
        read_slot(tk[i], pos_of[i], [dest_of((m, sig, 0)), dest_of((m, sig, 1))])
        A.wait_lg0()
        if i + 8 < 24:
            tk[i + 8] = dma_slot(ptrs[stream[i + 8][0]], stream[i + 8][1], i % 8)
        if i == 20:
            tko = dma_wo()
        if i == 21:
            tk[24] = dma_slot(S_PV, stream[24][1], 5)
    for k2 in range(2):
        A.wait(tko[2 * k2 + 1])
        for tau in range(5):
            d = dest_of(('o', k2, tau))
            for u in range(4):
                off = WOS + (64 * k2 + 32 * (u >> 1) + 2 * (u & 1)) * 160 + tau * 32
                A(f'ds_read_b64_tr_b16 {wr(d + 2 * u, 2)}, v{VBO} offset:{off}')
    A.wait_lg0()
    tv = {sig: dma_slot(S_PV, sig, sig) for sig in range(5)}
    for b in LDS_BLOCKS[10:]:
        put_block(park[b], BLK_OF[b])
    A.wait_lg0()
    for sig in range(5):
        read_slot(tv[sig], sig, [TB, TB + 8])
        A.wait_lg0()
        put_block(TB, 2 * sig); put_block(TB + 8, 2 * sig + 1)
        A.wait_lg0()

    A(f's_load_dwordx2 s[{S_PQ}:{S_PQ + 1}], s[0:1], {KA_MEM0}')
    A('s_waitcnt lgkmcnt(0)')
    A.lg_done = A.lg_issued
    A.srd(S_W, S_PQ, S_PQ + 1, 8 * 1280)
    cur[0] = None
    for j in range(3):
        A(f's_mul_i32 s{S_TMP}, s{S_WV}, 160')
        A(f's_add_u32 s{S_TMP}, s{S_TMP}, {64 * j}')
        A(f'v_add_u32 v{T0}, s{S_TMP}, v{L}')
        A(f'v_lshrrev_b32 v{T1}, 3, v{T0}')
        A(f's_mul_i32 s{S_TMP + 1}, s{S_T}, 40')
        A(f'v_add_u32 v{T1}, s{S_TMP + 1}, v{T1}')
        A(f'v_subrev_u32 v24, 80, v{T1}')
        A(f'v_min_u32 v{T1}, v{T1}, v24')
        A(f'v_lshlrev_b32 v{T1}, 4, v{T1}')
        A(f'v_and_b32 v24, 7, v{T0}')
        A(f'v_mul_u32_u24 v24, 1280, v24')
        A(f'v_add_u32 v{T1}, v{T1}, v24')
        A(f'v_lshlrev_b32 v{T0}, 4, v{T0}')
        A(f'v_add_u32 v{T0}, {MEMB}, v{T0}')
        if j == 2:
            A(f's_mov_b64 exec, s[{S_MLO}:{S_MLO + 1}]')
        t = A(f'buffer_load_dwordx4 v[32:35], v{T1}, s[{S_W}:{S_W + 3}], 0 offen')
        A.wait(t)
        A(f'ds_write_b128 v{T0}, v[32:35]')
        if j == 2:
            A('s_mov_b64 exec, -1')
        A.wait_lg0()

    if coarse:
        A('s_memrealtime s[82:83]')
        A('s_waitcnt lgkmcnt(0)')
        A('s_mov_b32 s81, s82')
    lp = A.newlabel('L_mode')
    ld = A.newlabel('L_mode_done')
    A(f'v_mov_b32 v{T0}, 0')
    A.flush_hazards()
    A.label(lp)
    A(f'buffer_load_dwordx2 v[24:25], off, s[{S_DBG}:{S_DBG + 3}], 0 offset:128 sc1')
    A.wait_vm0()
    A(f'v_readfirstlane_b32 s{S_ST}, v24')
    A(f'v_readfirstlane_b32 s{S_ST + 1}, v25')
    A(f's_and_b32 s{S_TMP}, s{S_ST}, s{S_ST + 1}')
    A(f's_bitcmp1_b32 s{S_TMP}, 5')
    A.branch(f's_cbranch_scc1 {ld}')
    A('s_sleep 4')
    A(f's_add_u32 s{S_SPIN}, s{S_SPIN}, 1')
    A(f's_cmp_lt_u32 s{S_SPIN}, {SPIN_LIMIT}')
    A.branch(f's_cbranch_scc1 {lp}')
    A.branch(f's_branch {abort_label}')
    A.label(ld)
    A(f's_mov_b32 s{S_FAST}, {0 if force_safe else 1}')
    for t_ in range(2):
        A(f's_bfe_u32 s{S_TMP}, s{S_ST + t_}, 0xa0006')
        A(f's_mul_i32 s{S_TMP}, s{S_TMP}, s{S_TMP}')
        A(f's_bfe_u32 s{S_TMP + 1}, s{S_ST + t_}, 0xe0010')
        A(f's_lshl_b32 s{S_TMP + 1}, s{S_TMP + 1}, 5')
        A(f's_cmp_eq_u32 s{S_TMP}, s{S_TMP + 1}')
        A(f's_cselect_b32 s{S_FAST}, s{S_FAST}, 0')
    A(f's_bfe_u32 s{S_TMP}, s{S_ST}, 0x1001e')
    A(f's_lshl_b32 s{S_TMP}, s{S_TMP}, 13')
    A(f's_add_u32 s{S_PREM}, s{S_PREM}, s{S_TMP}')
    A(f's_add_u32 s{S_PUBR}, s{S_PUBR}, s{S_TMP}')
    if mega:
        lp2 = A.newlabel('L_init'); ld2 = A.newlabel('L_init_done')
        A.label(lp2)
        A(f'buffer_load_dword v24, v{T0}, s[{S_DBG}:{S_DBG + 3}], 0 offen offset:28 sc1')
        A.wait_vm0()
        A(f'v_readfirstlane_b32 s{S_TMP}, v24')
        A(f's_cmp_ge_u32 s{S_TMP}, 128')
        A.branch(f's_cbranch_scc1 {ld2}')
        A('s_sleep 4')
        A(f's_add_u32 s{S_SPIN}, s{S_SPIN}, 1')
        A(f's_cmp_lt_u32 s{S_SPIN}, {SPIN_LIMIT}')
        A.branch(f's_cbranch_scc1 {lp2}')
        A.branch(f's_branch {abort_label}')
        A.label(ld2)
        lp3 = A.newlabel('L_tab'); ld3 = A.newlabel('L_tab_done')
        A.label(lp3)
        A(f'buffer_load_dword v24, off, s[{S_DBG}:{S_DBG + 3}], 0 offset:160 sc1')
        A.wait_vm0()
        A(f'v_readfirstlane_b32 s{S_TMP}, v24')
        A(f's_cmp_ge_u32 s{S_TMP}, 64')
        A.branch(f's_cbranch_scc1 {ld3}')
        A('s_sleep 4')
        A(f's_add_u32 s{S_SPIN}, s{S_SPIN}, 1')
        A(f's_cmp_lt_u32 s{S_SPIN}, {SPIN_LIMIT}')
        A.branch(f's_cbranch_scc1 {lp3}')
        A.branch(f's_branch {abort_label}')
        A.label(ld3)
        A(f'buffer_load_dwordx4 v[24:27], off, s[{S_DBG}:{S_DBG + 3}], 0 offset:144 sc1')
        A.wait_vm0()
        for i_ in range(4):
            A(f'v_readfirstlane_b32 s{S_ST + i_}, v{24 + i_}')
        A(f's_cmp_eq_u32 s{S_T}, 0')
        A(f's_cselect_b64 s[{S_TABW}:{S_TABW + 1}], s[{S_ST}:{S_ST + 1}], s[{S_ST + 2}:{S_ST + 3}]')
        A(f's_cselect_b64 s[{S_TABR}:{S_TABR + 1}], s[{S_ST + 2}:{S_ST + 3}], s[{S_ST}:{S_ST + 1}]')
    else:
        A(f's_mov_b64 s[{S_TABW}:{S_TABW + 1}], 0')
        A(f's_mov_b64 s[{S_TABR}:{S_TABR + 1}], 0')
    A(f's_mov_b32 s{S_PREM0}, s{S_PREM}')
    A(f's_mov_b32 s{S_PUBR0}, s{S_PUBR}')

    def next_pages():
        A(f's_lshr_b64 s[{S_TABW}:{S_TABW + 1}], s[{S_TABW}:{S_TABW + 1}], 1')
        A(f's_lshr_b64 s[{S_TABR}:{S_TABR + 1}], s[{S_TABR}:{S_TABR + 1}], 1')
        A(f's_add_u32 s{S_PREM0}, s{S_PREM0}, 32768')
        A(f's_and_b32 s{S_TMP}, s{S_TABR}, 1')
        A(f's_lshl_b32 s{S_TMP}, s{S_TMP}, 13')
        A(f's_add_u32 s{S_PREM}, s{S_PREM0}, s{S_TMP}')
        A(f's_and_b32 s{S_TMP}, s{S_TABW}, 1')
        A(f's_lshl_b32 s{S_TMP}, s{S_TMP}, 13')
        A(f's_add_u32 s{S_PUBR}, s{S_PUBR0}, s{S_TMP}')
        A(f's_add_u32 s{S_PUBR0}, s{S_PUBR0}, 32768')

    WS = f's[{S_WS}:{S_WS + 3}]'

    def issue_kx_vx():
        A(f's_lshl_b32 s{S_TMP}, s{S_WV}, 11')
        A(f's_add_u32 m0, s{S_TMP}, {KXB}')
        for n in range(2):
            A(f'buffer_load_dwordx4 v{V_L16}, {WS}, s{S_KX} offen offset:{n * 1024} sc1 lds')
        if 'nokvt' not in dbg:
            A(f's_add_u32 s{S_KX}, s{S_KX}, {32 * 8192}')

    deferred = []

    def kv_wait(need_plus):
        if not mega:
            return
        lp = A.newlabel('L_kv'); ls = A.newlabel('L_kvs')
        A.label(lp)
        A(f's_add_u32 s{S_TMP}, s{S_STEP}, {need_plus}')
        A(f's_cmp_ge_u32 s{S_TMP}, s{S_RDY}')
        A(f's_cbranch_scc1 {ls}')

        def slow():
            A.label(ls)
            A(f'v_lshlrev_b32 v{T0}, 9, v{L}')
            A(f'buffer_load_dwordx2 v[{T1}:{T0}], v{T0}, {WS}, s{S_FKV} offen sc1')
            A('s_waitcnt vmcnt(0)')
            A(f'v_and_b32 v{T1}, v{T1}, v{T0}')
            A(f'v_cmp_eq_u32 vcc, 1, v{T1}')
            A(f's_ff0_i32_b64 s{S_RDY}, vcc')
            A(f's_min_u32 s{S_RDY}, s{S_RDY}, 65')
            A(f's_add_u32 s{S_SPIN}, s{S_SPIN}, 1')
            A(f's_cmp_lt_u32 s{S_SPIN}, {SPIN_LIMIT}')
            A(f's_cbranch_scc1 {lp}')
            A(f's_branch {abort_label}')
        deferred.append(slow)

    def m_flag():
        if not mega:
            return
        le = A.newlabel('L_mf')
        A(f's_cmp_lg_u32 s{S_WV}, 3')
        A(f's_cbranch_scc1 {le}')
        A(f'v_mov_b32 v{T0}, 1')
        A('s_mov_b64 exec, 1')
        A(f'buffer_store_dword v{T0}, off, {WS}, s{S_FL} sc1')
        A('s_mov_b64 exec, -1')
        A.label(le)
        A(f's_add_u32 s{S_FL}, s{S_FL}, 1024')

    if mega:
        A(f's_lshl_b32 s{S_TMP}, s{S_H}, 4')
        A(f's_add_u32 s{S_FKV}, s{S_TMP}, {F_P:#x}')
        A(f's_mov_b32 s{S_RDY}, 0')
        A(f's_lshl_b32 s{S_TMP}, s{S_H}, 5')
        A(f's_lshl_b32 s{S_TMP + 1}, s{S_T}, 2')
        A(f's_add_u32 s{S_FL}, s{S_TMP}, s{S_TMP + 1}')
        A(f's_add_u32 s{S_FL}, s{S_FL}, {F_M - 1024:#x}')
    A(f's_mov_b32 s{S_STEP}, 0')

    def touches():
        l3 = A.newlabel('L_t3'); le = A.newlabel('L_te')
        A(f's_cmp_lt_u32 s{S_WV}, 2')
        A(f's_cbranch_scc1 {le}')
        A(f'v_lshlrev_b32 v{T0}, 7, v{L}')
        A(f's_cmp_eq_u32 s{S_WV}, 3')
        A(f's_cbranch_scc1 {l3}')
        A(f'v_min_u32 v{T1}, {39 * 128}, v{T0}')
        A(f's_add_u32 s{S_TMP}, s{S_PLOC}, {MEMB}')
        A(f'buffer_load_dword v{V_T2}, v{T1}, {WS}, s{S_TMP} offen sc1')
        A(f's_add_u32 s{S_TMP}, s{S_PREM}, {MEMB}')
        A(f'buffer_load_dword v{V_T2}, v{T1}, {WS}, s{S_TMP} offen sc1')
        A(f'buffer_load_dword v{V_T2}, off, {WS}, s{S_PA} sc1')
        A(f's_branch {le}')
        A.label(l3)
        A(f's_add_u32 s{S_TMP}, s{S_KX}, {3 * VREG - 3 * 2048}')
        A(f'buffer_load_dword v{V_T2}, v{T0}, {WS}, s{S_TMP} offen sc1')
        A(f's_add_u32 s{S_TMP}, s{S_TMP}, {WS_VX - WS_KX:#x}')
        A(f'buffer_load_dword v{V_T2}, v{T0}, {WS}, s{S_TMP} offen sc1')
        if mega:
            A(f'v_mov_b32 v{T0}, 1')
            A('s_mov_b64 exec, 1')
            A(f'buffer_store_dword v{T0}, off, {WS}, s{S_FL} sc1')
            A('s_mov_b64 exec, -1')
        else:
            A(f'buffer_load_dword v{V_T2}, off, {WS}, s{S_PA} sc1')
        A.label(le)
        A(f's_add_u32 s{S_FL}, s{S_FL}, 1024')

    kv_wait(0)
    issue_kx_vx()
    A(f's_mov_b32 s{S_STEP}, 0')
    A.wait_all()
    if stamps:
        A(f's_lshl_b32 s{S_TMP}, s{S_H}, 3')
        A(f's_lshl_b32 s{S_TMP + 1}, s{S_T}, 2')
        A(f's_add_u32 s{S_TMP}, s{S_TMP}, s{S_TMP + 1}')
        A(f's_add_u32 s{S_TMP}, s{S_TMP}, s{S_WV}')
        A(f's_mul_i32 s{S_STO}, s{S_TMP}, {64 * 64}')
        A(f's_add_u32 s{S_STO}, s{S_STO}, {WS_STAMP:#x}')
    if coarse:
        A('s_memrealtime s[88:89]')
        A('s_memtime s[90:91]')
        A('s_waitcnt lgkmcnt(0)')
    top = A.newlabel('L_step')
    done = A.newlabel('L_rec_done')
    A.flush_hazards()
    A.label(top)
    A.forget()

    def fifth(base):
        return 15 if base == 16 else base + 4

    def poll_issue(soff, base):
        A(f'buffer_load_dwordx4 v[{base}:{base + 3}], v{V_P4}, {WS}, s{soff} offen sc1')
        A(f'buffer_load_dword v{fifth(base)}, v{V_P1}, {WS}, s{soff} offen sc1')

    def poll_loop(soff, bases, half, preissued, gap=0):
        k = len(bases)
        lp = A.newlabel('L_poll'); ld = A.newlabel('L_polld')
        if not preissued:
            for j, b in enumerate(bases):
                poll_issue(soff, b)
                if gap and j < k - 1:
                    A(f's_nop {gap}')
        A.label(lp)
        wins = []
        for j, base in enumerate(bases):
            A(f's_waitcnt vmcnt({2 * (k - 1)})')
            A(f'v_max3_u32 v{T0}, v{base}, v{base + 1}, v{base + 2}')
            A(f'v_max3_u32 v{T0}, v{T0}, v{base + 3}, v{fifth(base)}')
            A(f'v_cmp_eq_u32 vcc, -1, v{T0}')
            lw = A.newlabel('L_pollw'); wins.append(lw)
            A(f's_cbranch_vccz {lw}')
            poll_issue(soff, base)
        A(f's_add_u32 s{S_SPIN}, s{S_SPIN}, 1')
        A(f's_cmp_lt_u32 s{S_SPIN}, {SPIN_LIMIT}')
        A(f's_cbranch_scc1 {lp}')
        A(f's_branch {abort_label}')
        for j, base in enumerate(bases):
            A.label(wins[j])
            A(f'ds_write_b128 v{V_P4}, v[{base}:{base + 3}] offset:{half * 5120}')
            A(f'ds_write_b32 v{V_P1}, v{fifth(base)} offset:{half * 5120}')
            if j < k - 1:
                A(f's_branch {ld}')
        A.label(ld)

    def a_read(sig, slot):
        return A(f'ds_read_b128 v[{AR + 4 * slot}:{AR + 4 * slot + 3}], v{V_KX} offset:{sig * 1024}')

    def smf(d, a, b):
        A(f'v_smfmac_f32_16x16x64_bf16 v[{d}:{d + 3}], v[{a}:{a + 3}], {wr(b, 8)}, v{V_IDX}')

    def SL(i):
        return 20 + 4 * i

    def blk_load(blk, b):
        A(f'ds_read_b128 v[{b}:{b + 3}], v{V_L16} offset:{blk * 2048}')
        return A(f'ds_read_b128 v[{b + 4}:{b + 7}], v{V_L16} offset:{blk * 2048 + 1024}')

    def zero(base, n):
        for r in range(base, base + n, 2):
            A(f'v_mov_b64 v[{r}:{r + 1}], 0')

    def poll_check(base, lwin):
        A(f'v_max3_u32 v{T0}, v{base}, v{base + 1}, v{base + 2}')
        A(f'v_max3_u32 v{T0}, v{T0}, v{base + 3}, v{fifth(base)}')
        A(f'v_cmp_eq_u32 vcc, -1, v{T0}')
        A(f's_cbranch_vccz {lwin}')

    def poll_put(base, half):
        A(f'ds_write_b128 v{V_P4}, v[{base}:{base + 3}] offset:{half * 5120}')
        A(f'ds_write_b32 v{V_P1}, v{fifth(base)} offset:{half * 5120}')

    stamp(0)
    zero(Q0, 24)
    lseq = [(m, sig, tau) for sig in range(5) for (m, tau) in (('v', 0), ('q', 0), ('k', 1), ('q', 1), ('v', 1), ('k', 0))]
    lfed = [b for b in lseq if b in BLK_OF]
    LR = [64, 72, 56]
    wt = {}; wreg_ = {}
    nl = [0]

    def lnext(reg):
        if nl[0] < len(lfed):
            b = lfed[nl[0]]; nl[0] += 1
            wt[b] = blk_load(BLK_OF[b], reg); wreg_[b] = reg

    lnext(LR[0]); lnext(LR[1])
    l_s0a = A.newlabel('L_s0a')
    A(f's_cmp_eq_u32 s{S_STEP}, 0' if cut is None else 's_cmp_eq_u32 0, 0')
    A(f's_cbranch_scc1 {l_s0a}')
    poll_loop(S_PLOC, [PL, VXR, 16][:kb], 0, False, gap=bgap)
    A.label(l_s0a)
    A.wait_lg0()
    A('s_barrier')
    stamp(1)
    at = {}

    ACC = {'q': Q0, 'k': K0, 'v': VV0}

    def local_slot(sig):
        a = AR + 4 * (sig % 3)
        A.wait(at[sig])
        for b in lseq[6 * sig:6 * sig + 6]:
            m, _, tau = b
            if b in BLK_OF:
                A.wait(wt[b])
                smf(ACC[m] + 4 * tau, a, wreg_[b])
                lnext(wreg_[b])
            else:
                smf(ACC[m] + 4 * tau, a, REG_OF[b])
        if sig + 3 < 5:
            at[sig + 3] = a_read(sig + 3, sig % 3)

    RS = [80, 56, 16][:kb]
    for j in range(3):
        at[j] = a_read(j, j)
    for sig in range(4):
        if sig == rp[0]:
            poll_issue(S_PREM, RS[0])
        if sig == rp[1]:
            poll_issue(S_PREM, RS[1])
        local_slot(sig)
    stamp(2)
    rslot = [0, 2, 3, 4, 1]
    l_s0 = A.newlabel('L_rs0')
    A(f's_cmp_eq_u32 s{S_STEP}, 0' if cut is None else 's_cmp_eq_u32 0, 0')
    A(f's_cbranch_scc1 {l_s0}')
    hs_ = [h_ for h_ in A.hist if h_.kind in ('mfma', 'valu')]
    for b_ in RS[2:]:
        poll_issue(S_PREM, b_)
    poll_loop(S_PREM, RS, 1, True)
    A.label(l_s0)
    A.hist = hs_
    A.wait_lg0()
    A('s_barrier')
    for j in range(2):
        at[5 + j] = a_read(5 + j, rslot[j])
    local_slot(4)
    at[9] = a_read(9, rslot[4])
    A.wait_vm0()
    for j in range(2, 4):
        at[5 + j] = a_read(5 + j, rslot[j])
    stamp(3)
    A(f's_add_u32 s{S_PLOC}, s{S_PLOC}, 10240')
    npg = []
    _op = A.op
    A.op = lambda t: npg.append(t)
    A.__class__.__call__ = lambda self, t: self.op(t)
    next_pages()
    A.op = _op
    RA = [AR + 4 * rslot[j] for j in range(5)]

    def halfsum_ops(x, y, off):
        ops = []
        for r in range(4):
            ops.append(f'v_permlane32_swap_b32 v{x + r}, v{y + r}')
        for r in range(0, 4, 2):
            ops.append(f'v_pk_add_f32 v[{x + r}:{x + r + 1}], v[{x + r}:{x + r + 1}], v[{y + r}:{y + r + 1}]')
        ops.append(f'v_cvt_pk_bf16_f32 v{y}, v{x}, v{x + 1}')
        ops.append(f'v_cvt_pk_bf16_f32 v{y + 1}, v{x + 2}, v{x + 3}')
        if off is not None:
            ops.append(f'ds_write_b64 v{V_QKW}, v[{y}:{y + 1}] offset:{off}')
        return ops

    VM, VMA, VMB = VV1, VV0, VV0 + 2
    def pub_read(tmp):
        t = None
        A(f'v_add_u32 v{tmp + 3}, s{S_W512}, v{V_QKR}')
        for rho in range(2):
            t = A(f'ds_read_b64_tr_b16 v[{tmp + 2 * rho}:{tmp + 2 * rho + 1}], v{tmp + 3} offset:{2048 + rho * 256}')
        return t

    def pub_sel(tmp):
        return [f'v_cndmask_b32 v{tmp + r}, v{tmp + r}, v{VM + r}, s[{S_TMASK}:{S_TMASK + 1}]' for r in range(2)]

    def pub_store(tmp):
        if 'nopub' not in dbg:
            A(f'buffer_store_dwordx4 v[{tmp}:{tmp + 3}], v{V_L16}, {WS}, s{S_KM} offen sc1' + (' nt' if 'pubnt' in dbg else ''))
            A(f's_add_u32 s{S_KM}, s{S_KM}, {32 * 4096}')

    QFR = [SL(0), SL(1), SL(11), SL(12)]
    S0, S1 = SL(15), SL(16)
    qt = {}; xt = {}; xreg = {}; last = [None]

    def xread(i, b):
        kap, kt_ = i >> 1, i & 1
        xt[i] = A(f'ds_read_b128 v[{b}:{b + 3}], v{V_KX} offset:{KXB - MEMB + (kt_ * 4 + kap) * 1024}')
        xreg[i] = b

    def trread(b, off):
        t = None
        for rho in range(2):
            t = A(f'ds_read_b64_tr_b16 v[{b + 2 * rho}:{b + 2 * rho + 1}], v{V_QKR} offset:{off + rho * 256}')
        return t

    def take(fl, n):
        for _ in range(n):
            if fl:
                t = A(fl.pop(0))
                if t:
                    last[0] = t

    def ksm(i):
        smf(K0 + 4 * (i & 1), RA[i >> 1], REG_OF['k', 5 + (i >> 1), i & 1])

    def vsm(n):
        smf(VV0 + 4 * (n & 1), RA[(n - 10) // 2], REG_OF['v', n >> 1, n & 1])

    def xsm(i):
        kap, kt_ = i >> 1, i & 1
        acc = (S0, S1)[kt_]
        A.wait(qt[kap], xt[i])
        c = '0' if kap == 0 else f'v[{acc}:{acc + 3}]'
        A(f'v_mfma_f32_16x16x32_bf16 v[{acc}:{acc + 3}], v[{xreg[i]}:{xreg[i] + 3}], v[{QFR[kap]}:{QFR[kap] + 3}], {c}')

    for n_, j in enumerate((0, 1, 4, 2, 3)):
        A.wait(at[5 + j])
        smf(Q0, RA[j], REG_OF['q', 5 + j, 0])
        if n_ < 2:
            take(npg, 3)
        if n_ == 1:
            xread(0, SL(13))
        if n_ == 0:
            A(f'buffer_load_dwordx4 v[{VX0}:{VX0 + 3}], v{V_L16}, {WS}, s{S_VX} offen sc1')
        if n_ == 2:
            hs_ = [h_ for h_ in A.hist if h_.kind in ('mfma', 'valu')]
            touches()
            A.hist = hs_
        smf(Q1, RA[j], REG_OF['q', 5 + j, 1])
        if n_ < 2:
            take(npg, 2)
        if n_ == 0:
            A(f'buffer_load_dwordx4 v[{VX1}:{VX1 + 3}], v{V_L16}, {WS}, s{S_VX} offen offset:1024 sc1')
        if n_ == 1:
            xread(1, SL(14))
    fill = halfsum_ops(Q0, Q1, 0)
    ksm(0); ksm(1); ksm(2); ksm(3)
    for i in range(4, 8):
        take(fill, 1); ksm(i)
    take(fill, 3); ksm(8); take(fill, 2); assert not fill
    qw = last[0]
    ksm(9)
    stamp(4)
    vsm(10); vsm(11)
    xread(2, RA[0])
    vsm(12)
    A.wait(qw)
    A('s_barrier')
    qt[0] = trread(QFR[0], 0)
    fill = halfsum_ops(K0, K1, 2048)
    vsm(13); take(fill, 2)
    xread(3, RA[1])
    vsm(14); take(fill, 2)
    vsm(15); take(fill, 3)
    xsm(0); take(fill, 2); assert not fill
    kw = last[0]
    qt[1] = trread(QFR[1], 512)
    xsm(1); xread(4, xreg[0])
    vsm(16); xread(5, xreg[1])
    qt[2] = trread(QFR[2], 1024)
    vsm(17)
    qt[3] = trread(QFR[3], 1536)
    xsm(2); xread(6, xreg[2])
    xsm(3); xread(7, xreg[3])
    xsm(4)
    A.wait_lg0()
    A('s_barrier')
    stamp(5)
    KF = [SL(2), SL(3), RA[2], RA[3]]
    kt = {}
    kt[0] = trread(KF[0], 2048)
    kt[1] = trread(KF[1], 2048 + 512)
    xsm(5)
    kt[2] = trread(KF[2], 2048 + 1024)
    xsm(6)
    kt[3] = trread(KF[3], 2048 + 1536)
    xsm(7)
    PUBT = xreg[4]
    pbt = pub_read(PUBT)
    vsm(18)
    hs_ = [h_ for h_ in A.hist if h_.kind in ('mfma', 'valu')]
    kv_wait(1)
    A.hist = hs_
    issue_kx_vx()
    vsm(19)
    Sm = xreg[6]
    stamp(6)
    VM, VMA, VMB = VV1, VV0, VV0 + 2
    M_, M2 = T1, T0

    def msm(kap):
        b = KF[kap]
        A.wait(qt[kap], kt[kap])
        c = '0' if kap == 0 else f'v[{Sm}:{Sm + 3}]'
        A(f'v_mfma_f32_16x16x32_bf16 v[{Sm}:{Sm + 3}], v[{b}:{b + 3}], v[{QFR[kap]}:{QFR[kap] + 3}], {c}')

    fx = [f'v_max3_f32 v{M_}, v{S0}, v{S0 + 1}, v{S0 + 2}',
          f'v_max3_f32 v{M2}, v{S0 + 3}, v{S1}, v{S1 + 1}',
          f'v_max3_f32 v{M_}, v{M_}, v{S1 + 2}, v{S1 + 3}',
          f'v_max_f32 v{M_}, v{M_}, v{M2}',
          f'v_mov_b32 v{M2}, v{M_}']
    fv = halfsum_ops(VV0, VV1, None)
    for r in range(2):
        fv.append(f'v_cndmask_b32 v{VMA + r}, 0, v{VM + r}, s[{S_MLO}:{S_MLO + 1}]')
        fv.append(f'v_cndmask_b32 v{VMB + r}, v{VM + r}, 0, s[{S_MLO}:{S_MLO + 1}]')
    msm(0); take(fx, 2)
    A('s_waitcnt vmcnt(5)')
    A(f's_cmp_ge_u32 s{S_WV}, 2')
    msm(1)
    lvx = A.newlabel('L_vx')
    A(f's_cbranch_scc1 {lvx}')
    A('s_waitcnt vmcnt(2)')
    A.label(lvx)
    take(fx, 3); msm(2); take(fv, 1)
    if 'nokvt' not in dbg:
        A(f's_add_u32 s{S_VX}, s{S_VX}, {32 * 8192}')
    msm(3)
    A(f'v_permlane32_swap_b32 v{M_}, v{M2}')
    A(f'v_max_f32 v{M_}, v{M_}, v{M2}')
    A.wait(pbt)
    take(fv, 7)
    take(pub_sel(PUBT), 2)
    if cut is None:
        A(f's_cmp_eq_u32 s{S_STEP}, {nsteps - 1}')
        A(f's_cbranch_scc1 {done}')
    stamp(7)

    used = {Sm, S0, S1, VV0, VV1}
    free = [SL(i) for i in range(17) if SL(i) not in used]
    P01, PM, O0, O1 = SL(2), SL(3), SL(0), SL(1)
    for x in (P01, PM, O0, O1):
        free.remove(x)
    free.remove(PUBT)
    ONES, LS = free[0], free[1]
    OAS = free[2:7]
    zf = [f'v_mov_b64 v[{r}:{r + 1}], 0' for x in OAS for r in (x, x + 2)]
    A(f'v_max3_f32 v{M_}, v{M_}, v{Sm}, v{Sm + 1}')
    A(f'v_max3_f32 v{M_}, v{M_}, v{Sm + 2}, v{Sm + 3}')
    A(f'v_mov_b32 v{M2}, v{M_}')
    take(fv, 2)
    A(f'v_permlane16_swap_b32 v{M_}, v{M2}')
    A(f'v_max_f32 v{M_}, v{M_}, v{M2}')
    A(f'v_mul_f32 v{M_}, s{S_C}, v{M_}')

    def pkf(x):
        A(f'v_pk_fma_f32 v[{x}:{x + 1}], v[{x}:{x + 1}], s[{S_C - 1}:{S_C}], v[{M_}:{M_ + 1}] op_sel:[0,1,0] op_sel_hi:[1,1,0] neg_lo:[0,0,1] neg_hi:[0,0,1]')
    assert S_C % 2 == 1 and M_ % 2 == 0
    xs = [S0 + r for r in range(4)] + [S1 + r for r in range(4)]
    for j in range(4):
        pkf(xs[2 * j])
    for x in xs:
        A(f'v_exp_f32 v{x}, v{x}')
    pkf(Sm); pkf(Sm + 2)
    for j in range(4):
        A(f'v_cvt_pk_bf16_f32 v{P01 + j}, v{xs[2 * j]}, v{xs[2 * j + 1]}')
    A(f'v_exp_f32 v{Sm}, v{Sm}')
    A(f'v_exp_f32 v{Sm + 1}, v{Sm + 1}')
    A(f'v_mfma_f32_16x16x32_bf16 v[{O0}:{O0 + 3}], v[{VX0}:{VX0 + 3}], v[{P01}:{P01 + 3}], 0')
    pub_store(PUBT)
    A(f'v_exp_f32 v{Sm + 2}, v{Sm + 2}')
    A(f'v_mov_b64 v[{ONES}:{ONES + 1}], s[{S_ONE}:{S_ONE + 1}]')
    A(f'v_mfma_f32_16x16x32_bf16 v[{O1}:{O1 + 3}], v[{VX1}:{VX1 + 3}], v[{P01}:{P01 + 3}], 0')
    A(f'v_exp_f32 v{Sm + 3}, v{Sm + 3}')
    A(f'v_mov_b64 v[{ONES + 2}:{ONES + 3}], s[{S_ONE}:{S_ONE + 1}]')
    A(f'v_cvt_pk_bf16_f32 v{PM}, v{Sm}, v{Sm + 1}')
    A(f'v_cvt_pk_bf16_f32 v{PM + 1}, v{Sm + 2}, v{Sm + 3}')
    A(f'v_mfma_f32_16x16x32_bf16 v[{LS}:{LS + 3}], v[{ONES}:{ONES + 3}], v[{P01}:{P01 + 3}], 0')
    take(fv, 9)
    A(f'v_mov_b64 v[{PM + 2}:{PM + 3}], s[{S_HALF}:{S_HALF + 1}]')
    A(f'v_xor_b32 v{M2}, 32, v{V_OW0}')
    A(f'v_mfma_f32_16x16x16_bf16 v[{LS}:{LS + 3}], v[{PM + 2}:{PM + 3}], v[{PM}:{PM + 1}], v[{LS}:{LS + 3}]')
    take(zf, 2)
    A(f'v_mfma_f32_16x16x16_bf16 v[{O0}:{O0 + 3}], v[{VMA}:{VMA + 1}], v[{PM}:{PM + 1}], v[{O0}:{O0 + 3}]')
    take(zf, 2)
    A(f'v_mfma_f32_16x16x16_bf16 v[{O1}:{O1 + 3}], v[{VMB}:{VMB + 1}], v[{PM}:{PM + 1}], v[{O1}:{O1 + 3}]')
    take(zf, 2)
    A(f'v_rcp_f32 v{M_}, v{LS}')
    take(zf, 9)
    for tau in range(2):
        o = O0 + 4 * tau
        for r in (0, 2):
            A(f'v_pk_mul_f32 v[{o + r}:{o + r + 1}], v[{o + r}:{o + r + 1}], v[{M_}:{M_ + 1}] op_sel_hi:[1,0]')
        A(f'v_cvt_pk_bf16_f32 v{o}, v{o}, v{o + 1}')
        A(f'v_cvt_pk_bf16_f32 v{o + 1}, v{o + 2}, v{o + 3}')
        owt = A(f'ds_write_b64 v{V_OW0 if tau == 0 else M2}, v[{o}:{o + 1}]')
    A.wait(owt)
    A('s_barrier')
    stamp(8)
    OF = [O0, O1]
    G0, G1, X4 = P01, PM, ONES

    def post(n):
        x, y = OAS[2 * n], OAS[2 * n + 1]
        ops = [f'v_permlane32_swap_b32 v{x + r}, v{y + r}' for r in range(4)]
        ops += [f'v_pk_add_f32 v[{x + r}:{x + r + 1}], v[{x + r}:{x + r + 1}], v[{y + r}:{y + r + 1}]' for r in (0, 2)]
        ops += [f'v_cvt_pk_bf16_f32 v{G0 + 2 * n}, v{x}, v{x + 1}', f'v_cvt_pk_bf16_f32 v{G0 + 2 * n + 1}, v{x + 2}, v{x + 3}']
        return ops

    lsafe = A.newlabel('L_psafe'); lpe = A.newlabel('L_pend')

    def outproj(sc):
        x, y = OAS[4], X4
        p4 = [f'v_mov_b64 v[{y}:{y + 1}], v[{x}:{x + 1}]', f'v_mov_b64 v[{y + 2}:{y + 3}], v[{x + 2}:{x + 3}]']
        p4 += [f'v_permlane32_swap_b32 v{x + r}, v{y + r}' for r in range(4)]
        p4 += [f'v_pk_add_f32 v[{x + r}:{x + r + 1}], v[{x + r}:{x + r + 1}], v[{y + r}:{y + r + 1}]' for r in (0, 2)]
        p4 += [f'v_cvt_pk_bf16_f32 v{G1}, v{x}, v{x + 1}', f'v_cvt_pk_bf16_f32 v{G1 + 1}, v{x + 2}, v{x + 3}',
               f'v_mov_b64 v[{G1 + 2}:{G1 + 3}], v[{G1}:{G1 + 1}]']
        worder = [(0, 4), (1, 4), (0, 0), (0, 1), (1, 0), (1, 1), (0, 2), (0, 3), (1, 2), (1, 3)]
        nfill = [0, 0, 0, 0, 0, 0, 2, 1, 1, 2]
        pre = [f'v_and_b32 v{T0}, 0x1fff, v{V_PST}',
               f'v_add_u32 v{V_P4}, s{S_W1280}, v{V_KX}', f'v_lshl_add_u32 v{V_P1}, v{L}, 2, s{S_P1B}']
        for i, (k2, tau) in enumerate(worder):
            if i < 2:
                A(f's_waitcnt lgkmcnt({1 - i})')
            smf(OAS[tau], OF[k2], REG_OF['o', k2, tau])
            if i >= 2:
                take(pre, 1)
            take(p4, nfill[i])
        take(p4, 20)
        take(post(0), 9)
        A(f'v_permlane16_swap_b32 v{G1}, v{G1 + 2}')
        A(f'v_permlane16_swap_b32 v{G1 + 1}, v{G1 + 3}')
        A(f'v_and_or_b32 v{G1}, v{G1}, -2, s{S_PAR}')
        pp = post(1)
        take(pp, 1)
        A(f'buffer_store_dwordx4 v[{G1}:{G1 + 3}], v{T0}, {WS}, s{S_PS1} offen{sc}')
        take(pp, 9)
        A(f'v_permlane16_swap_b32 v{G0}, v{G0 + 2}')
        A(f'v_permlane16_swap_b32 v{G0 + 1}, v{G0 + 3}')
        A(f'v_and_or_b32 v{G0}, v{G0}, -2, s{S_PAR}')
        A(f'buffer_store_dwordx4 v[{G0}:{G0 + 3}], v{V_PST}, {WS}, s{S_PS0} offen{sc}')

    for k2 in range(2):
        A(f'ds_read_b128 v[{OF[k2]}:{OF[k2] + 3}], v{V_OR} offset:{128 * k2}')
    A(f's_cmp_eq_u32 s{S_FAST}, 0')
    A(f's_cbranch_scc1 {lsafe}')
    saved = list(A.hist)

    def safe_variant():
        A.label(lsafe)
        A.hist = list(saved)
        outproj(' sc1')
        A.branch(f's_branch {lpe}')
    deferred.append(safe_variant)
    outproj('')
    A.lg_done = A.lg_issued
    A.flush_hazards()
    A.label(lpe)
    stamp(9)
    lnr = A.newlabel('L_nored'); lnr2 = A.newlabel('L_nored2')
    A(f's_cmp_ge_u32 s{S_RED}, 40')
    A(f's_cbranch_scc1 {lnr2}')
    RBS = [20, 44, 60][:ka]
    SEL = 36
    DD = 80
    lp = A.newlabel('L_pa'); lw = A.newlabel('L_paw')

    def pa_issue(RB):
        for j in range(4):
            A(f'buffer_load_dwordx4 v[{RB + 4 * j}:{RB + 4 * j + 3}], v{V_L16}, {WS}, s{S_PA} offen offset:{1024 * j} sc1')
    rebuild_pub()
    A(f'v_and_b32 v{T0}, 1, v{L}')
    A(f'v_lshlrev_b32 v{T0}, 4, v{T0}')
    A(f'v_mov_b32 v{T1}, 0x3f80')
    A(f'v_lshlrev_b32 v{T0}, v{T0}, v{T1}')
    A(f'v_bfe_u32 v{T1}, v{L}, 1, 2')
    for d in range(4):
        A(f'v_cmp_eq_u32 vcc, {d}, v{T1}')
        A(f'v_cndmask_b32 v{SEL + d}, 0, v{T0}, vcc')
    for j, RB in enumerate(RBS):
        if adelay[j]:
            for _ in range(adelay[j]):
                A('s_nop 15')
        pa_issue(RB)

    def tt(f):
        t = 0
        for a_ in range(2):
            for b_ in range(2):
                for c_ in range(2):
                    if f(a_, b_, c_):
                        t |= 1 << ((a_ << 2) | (b_ << 1) | c_)
        return t
    t1 = tt(lambda a, b, c: (a ^ c) | (b ^ c))
    t2 = tt(lambda a, b, c: (a | b) & c)
    A.flush_hazards()
    A.label(lp)
    for RB in RBS:
        A(f's_waitcnt vmcnt({4 * (ka - 1)})')
        chk = [f'v_bitop3_b32 v{T0}, v{RB}, v{RB + 4}, s{S_PAR} bitop3:{t1:#x}',
               f'v_bitop3_b32 v{T1}, v{RB + 8}, v{RB + 12}, s{S_PAR} bitop3:{t1:#x}',
               f'v_bitop3_b32 v{T0}, v{T0}, v{T1}, 1 bitop3:{t2:#x}',
               f'v_cmp_ne_u32 vcc, 0, v{T0}']
        if spec:
            for j in range(4):
                c = '0' if j == 0 else f'v[{DD}:{DD + 3}]'
                A(f'v_mfma_f32_16x16x32_bf16 v[{DD}:{DD + 3}], v[{RB + 4 * j}:{RB + 4 * j + 3}], v[{SEL}:{SEL + 3}], {c}')
                A(chk[j])
            A(f's_cbranch_vccz {lw}')
        else:
            for j in range(4):
                A(chk[j])
            A(f's_cbranch_vccz {lw}_{RB}')
        pa_issue(RB)
    A(f's_add_u32 s{S_SPIN}, s{S_SPIN}, 1')
    A(f's_cmp_lt_u32 s{S_SPIN}, {SPIN_LIMIT}')
    A(f's_cbranch_scc1 {lp}')
    A(f's_branch {abort_label}')
    if not spec:
        for RB in RBS:
            A.label(f'{lw}_{RB}')
            for j in range(4):
                c = '0' if j == 0 else f'v[{DD}:{DD + 3}]'
                A(f'v_mfma_f32_16x16x32_bf16 v[{DD}:{DD + 3}], v[{RB + 4 * j}:{RB + 4 * j + 3}], v[{SEL}:{SEL + 3}], {c}')
            A(f's_branch {lw}')
    A.label(lw)
    A('s_nop 6')
    stamp(10)
    RB = 76
    A(f'v_mov_b64 v[{RB}:{RB + 1}], v[{DD}:{DD + 1}]')
    A(f'v_mov_b64 v[{RB + 2}:{RB + 3}], v[{DD + 2}:{DD + 3}]')
    for r in range(4):
        A(f'v_permlane32_swap_b32 v{RB + r}, v{DD + r}')
    for r in (0, 2):
        A(f'v_pk_add_f32 v[{RB + r}:{RB + r + 1}], v[{RB + r}:{RB + r + 1}], v[{DD + r}:{DD + r + 1}]')
    a0 = RB
    A(f'v_cvt_pk_bf16_f32 v{a0}, v{RB}, v{RB + 1}')
    A(f'v_cvt_pk_bf16_f32 v{a0 + 1}, v{RB + 2}, v{RB + 3}')
    A(f'v_min_u32 v{a0}, -2, v{a0}')
    A(f'v_min_u32 v{a0 + 1}, -2, v{a0 + 1}')
    A('s_mov_b64 exec, 0x00ff00ff')
    A(f'buffer_store_dwordx2 v[{a0}:{a0 + 1}], v{V_PUB}, {WS}, s{S_PUBR} offen sc1')
    lps = A.newlabel('L_pubs'); lpd = A.newlabel('L_pubd')
    A(f's_cmp_eq_u32 s{S_FAST}, 0')
    A(f's_cbranch_scc1 {lps}')
    A(f'buffer_store_dwordx2 v[{a0}:{a0 + 1}], v{V_PUB}, {WS}, s{S_PUBL} offen')
    A(f's_branch {lpd}')
    A.label(lps)
    A(f'buffer_store_dwordx2 v[{a0}:{a0 + 1}], v{V_PUB}, {WS}, s{S_PUBL} offen sc1')
    A.label(lpd)
    A('s_mov_b64 exec, -1')
    A('s_waitcnt vmcnt(2)')
    A.branch(f's_branch {lnr}')
    A.label(lnr2)
    if backoff:
        A(f's_sleep {backoff}')
    A.label(lnr)
    stamp(11)
    if stamps:
        A('s_waitcnt lgkmcnt(0)')
        for i in range(12):
            A(f'v_writelane_b32 v{T0}, s{S_ST + 2 * i}, {i}')
        A(f'v_lshlrev_b32 v{T1}, 2, v{L}')
        A('s_mov_b64 exec, 0xfff')
        A(f'buffer_store_dword v{T0}, v{T1}, {WS}, s{S_STO} offen')
        A('s_mov_b64 exec, -1')
        A(f's_add_u32 s{S_STO}, s{S_STO}, 64')
    if cut is not None:
        A.label('L_cut')
        A.wait_all()
        rebuild()
        A.wait_all()
        A('s_sleep 8')
        A(f's_cmp_eq_u32 s{S_STEP}, {nsteps - 1}')
        A(f's_cbranch_scc1 {done}')
    A(f's_add_u32 s{S_PUBL}, s{S_PUBL}, 10240')
    A(f's_xor_b32 s{S_PAR}, s{S_PAR}, 1')
    A(f's_add_u32 s{S_STEP}, s{S_STEP}, 1')
    A.branch(f's_branch {top}')
    for f_ in deferred:
        f_()
    A.label(done)
    pub_store(PUBT)
    A.wait_all()
    A('s_barrier')
    m_flag()
    if coarse:
        A('s_memrealtime s[92:93]')
        A('s_memtime s[94:95]')
        A('s_waitcnt lgkmcnt(0)')
        A(f's_lshl_b32 s{S_TMP}, s{S_H}, 3')
        A(f's_lshl_b32 s{S_TMP + 1}, s{S_T}, 2')
        A(f's_add_u32 s{S_TMP}, s{S_TMP}, s{S_TMP + 1}')
        A(f's_add_u32 s{S_TMP}, s{S_TMP}, s{S_WV}')
        A(f's_lshl_b32 s{S_TMP}, s{S_TMP}, 6')
        A(f's_add_u32 s{S_TMP}, s{S_TMP}, {WS_STAMP + 0x200000:#x}')
        A('s_mov_b64 exec, 1')
        A(f'v_mov_b32 v{T1}, s{S_TMP}')
        for i in range(6):
            A(f'v_mov_b32 v{T0}, s{84 + 2 * i}')
            A(f'buffer_store_dword v{T0}, v{T1}, {WS}, 0 offen offset:{4 * i}')
        A(f'v_mov_b32 v{T0}, s{S_SPIN}')
        A(f'buffer_store_dword v{T0}, v{T1}, {WS}, 0 offen offset:24')
        A(f'v_mov_b32 v{T0}, s81')
        A(f'buffer_store_dword v{T0}, v{T1}, {WS}, 0 offen offset:28')
        A.wait_all()
```

```python
import math
import struct
from asmlib import *
from layout import *

SPIN_LIMIT = 1 << 17

F_H = WS_FLAG + 0x0
F_KV = WS_FLAG + 0x1000
F_M = WS_FLAG + 0x4000
F_O = WS_FLAG + 0x20000
F_P = WS_FLAG + 0x18000
F_OP = WS_FLAG + 0x24000
F_H2 = WS_FLAG + 0x28000
F_ACT = WS_FLAG + 0x2C000
F_END = WS_FLAG + 0x30000

S_WS, S_W, S_DBG = 4, 8, 12
S_P0, S_P1 = 16, 17
S_WV, S_SEG = 18, 19
S_TMP = 41
S_PTR = 44
S_SPIN = 46
S_STG = 47
WS = f's[{S_WS}:{S_WS + 3}]'
WW = f's[{S_W}:{S_W + 3}]'
DBG = f's[{S_DBG}:{S_DBG + 3}]'

V_L, V_G, V_I, V_L16, V_T0, V_T1, V_T2, V_T3 = range(8)


def f32bits(x):
    return struct.unpack('<I', struct.pack('<f', x))[0]


DEBUG_STAMPS = [False]


def tstamp(A, idx):
    if not DEBUG_STAMPS[0]:
        return
    A('s_memrealtime s[92:93]')
    A('s_waitcnt lgkmcnt(0)')
    A('s_lshl_b32 s93, s99, 3')
    A('s_or_b32 s93, s93, s98')
    A('s_lshl_b32 s93, s93, 6')
    A(f's_add_u32 s93, s93, {WS_STAMP + 0x380000 + 4 * idx:#x}')
    A(f'v_mov_b32 v{V_T3}, s92')
    A('s_mov_b64 exec, 1')
    A(f'buffer_store_dword v{V_T3}, off, {WS}, s93')
    A('s_mov_b64 exec, -1')


def common_setup(A):
    A(f's_load_dwordx2 s[{S_PTR}:{S_PTR + 1}], s[0:1], {KA_WS}')
    A(f's_load_dwordx2 s[{S_TMP + 1}:{S_TMP + 2}], s[0:1], {KA_DBG}')
    A('v_lshrrev_b32 v1, 6, v0')
    A(f'v_readfirstlane_b32 s{S_WV}, v1')
    A(f'v_and_b32 v{V_L}, 63, v0')
    A('s_waitcnt lgkmcnt(0)')
    A.srd(S_WS, S_PTR, S_PTR + 1, WS_BYTES)
    A.srd(S_DBG, S_TMP + 1, S_TMP + 2, 256)
    A(f's_mov_b32 s{S_SPIN}, 0')
    A(f'v_lshrrev_b32 v{V_G}, 4, v{V_L}')
    A(f'v_and_b32 v{V_I}, 15, v{V_L}')
    A(f'v_lshlrev_b32 v{V_L16}, 4, v{V_L}')
    A(f's_mul_i32 s{S_STG}, s{S_WV}, 40960')


def load_ptr_srd(A, ka, nbytes):
    A(f's_load_dwordx2 s[{S_PTR}:{S_PTR + 1}], s[0:1], {ka}')
    A('s_waitcnt lgkmcnt(0)')
    A.lg_done = A.lg_issued
    A.srd(S_W, S_PTR, S_PTR + 1, nbytes)


def wait_flags(A, abort, soff, n, srd=WS, value=1, sleep=2, ge=False):
    lp = A.newlabel('L_wf'); ld = A.newlabel('L_wfd')
    A(f'v_min_u32 v{V_T0}, {n - 1}, v{V_L}')
    A(f'v_lshlrev_b32 v{V_T0}, 2, v{V_T0}')
    A.label(lp)
    A(f'buffer_load_dword v{V_T1}, v{V_T0}, {srd}, s{soff} offen sc1')
    A.wait_vm0()
    if ge:
        A(f'v_cmp_gt_u32 vcc, {value}, v{V_T1}')
    else:
        A(f'v_cmp_ne_u32 vcc, {value}, v{V_T1}')
    A(f's_cbranch_vccz {ld}')
    if sleep:
        A(f's_sleep {sleep}')
    A(f's_add_u32 s{S_SPIN}, s{S_SPIN}, 1')
    A(f's_cmp_lt_u32 s{S_SPIN}, {SPIN_LIMIT}')
    A(f's_cbranch_scc1 {lp}')
    A(f's_branch {abort}')
    A.label(ld)


def signal(A, soff):
    A.wait_all()
    A('s_barrier')
    ls = A.newlabel('L_sig')
    A(f's_cmp_lg_u32 s{S_WV}, 0')
    A(f's_cbranch_scc1 {ls}')
    A(f'v_mov_b32 v{V_T0}, 0')
    A(f'v_mov_b32 v{V_T1}, 1')
    A('s_mov_b64 exec, 1')
    A(f'buffer_store_dword v{V_T1}, v{V_T0}, {WS}, s{soff} offen sc1')
    A('s_mov_b64 exec, -1')
    A.label(ls)


def round_bf16(A, dst, src, tmp=None):
    A(f'v_cvt_pk_bf16_f32 v{dst}, v{src}, v{src}')
    A(f'v_and_b32 v{dst}, 0xffff0000, v{dst}')


def round2(A, a, b, t):
    A(f'v_cvt_pk_bf16_f32 v{t}, v{a}, v{b}')
    A(f'v_lshlrev_b32 v{a}, 16, v{t}')
    A(f'v_and_b32 v{b}, 0xffff0000, v{t}')


def unpack2(A, lo, hi, src):
    A(f'v_lshlrev_b32 v{lo}, 16, v{src}')
    A(f'v_and_b32 v{hi}, 0xffff0000, v{src}')


def xlane_allreduce_g(A, op, x, t):
    for sw in ('v_permlane16_swap_b32', 'v_permlane32_swap_b32'):
        A(f'v_mov_b32 v{t}, v{x}')
        A(f'{sw} v{x}, v{t}')
        A(f'{op} v{x}, v{x}, v{t}')


def arrive(A, dbg_off):
    A.wait_all()
    A('s_barrier')
    ls = A.newlabel('L_arr')
    A(f's_cmp_lg_u32 s{S_WV}, 0')
    A(f's_cbranch_scc1 {ls}')
    A(f'v_mov_b32 v{V_T1}, 1')
    A('s_mov_b64 exec, 1')
    A(f'buffer_atomic_add v{V_T1}, off, {DBG}, 0 offset:{dbg_off} sc1')
    A('s_mov_b64 exec, -1')
    A.label(ls)


def emit_init(A, abort, part=1):
    A.comment('---- init: sentinels / flags ----')
    T0, T1 = V_T0, V_T1
    A(f's_lshl_b32 s{S_TMP}, s{S_WV}, 6')
    A(f'v_add_u32 v19, s{S_TMP}, v{V_L}')
    A(f'v_lshlrev_b32 v{V_T2}, 4, v19')
    A('v_mov_b32 v20, -1'); A('v_mov_b32 v21, -1'); A('v_mov_b32 v22, -1'); A('v_mov_b32 v23, -1')
    A('v_mov_b32 v24, 0'); A('v_mov_b32 v25, 0'); A('v_mov_b32 v26, 0'); A('v_mov_b32 v27, 0')
    def fill(base, units, reg):
        n = (units + 127) // 128
        for i in range(n):
            A(f's_add_u32 s{S_TMP}, s{S_P0}, {128 * i}')
            l = A.newlabel('L_fill')
            A(f's_cmp_ge_u32 s{S_TMP}, {units}')
            A(f's_cbranch_scc1 {l}')
            A(f's_lshl_b32 s{S_TMP}, s{S_TMP}, 12')
            A(f's_add_u32 s{S_TMP}, s{S_TMP}, {base:#x}')
            A(f'buffer_store_dwordx4 v[{reg}:{reg + 3}], v{V_T2}, {WS}, s{S_TMP} offen sc1')
            A.label(l)
    if part == 2:
        fill(WS_MEML, 160, 20)
        fill(WS_MEMR + 32768, 504, 20)
        fill(WS_PART, 80, 20)
        arrive(A, 28)
        return
    fill(WS_FLAG, 48, 24)

    lskip = A.newlabel('L_nomod')
    A(f's_cmp_ge_u32 s{S_P0}, 120')
    A(f's_cbranch_scc1 {lskip}')
    load_ptr_srd(A, KA_C, 1280)
    A(f'v_lshrrev_b32 v{T0}, 2, v19')
    A(f'v_lshlrev_b32 v{T1}, 1, v{T0}')
    ct = []
    for i in range(10):
        ct.append(A(f'buffer_load_ushort v{30 + i}, v{T1}, {WW}, 0 offen offset:{128 * i}'))
    load_ptr_srd(A, KA_WMOD, 640 * 7680)
    A(f'v_mul_u32_u24 v{T1}, 7680, v{T0}')
    A(f'v_and_b32 v{T0}, 3, v19')
    A(f'v_lshl_add_u32 v{T1}, v{T0}, 4, v{T1}')
    A(f's_lshl_b32 s{S_TMP}, s{S_P0}, 6')
    wt = []
    for i in range(10):
        wt.append(A(f'buffer_load_dwordx4 v[{40 + 4 * i}:{43 + 4 * i}], v{T1}, {WW}, s{S_TMP} offen'))
        A(f's_add_u32 s{S_TMP}, s{S_TMP}, {64 * 7680}')
    A(f's_mov_b32 s{S_TMP}, {f32bits(-math.log2(math.e)):#x}')
    for i in range(10):
        A.wait(ct[i])
        c = 30 + i
        A(f'v_lshlrev_b32 v{c}, 16, v{c}')
        A(f'v_mul_f32 v{T0}, s{S_TMP}, v{c}')
        A(f'v_exp_f32 v{T0}, v{T0}')
        A(f'v_add_f32 v{T0}, 1.0, v{T0}')
        A(f'v_rcp_f32 v{T0}, v{T0}')
        A(f'v_mul_f32 v{c}, v{c}, v{T0}')
        round_bf16(A, c, c)
    for j in range(8):
        A(f'v_mov_b32 v{20 + j}, 0')
    for i in range(10):
        A.wait(wt[i])
        for d in range(4):
            unpack2(A, T0, T1, 40 + 4 * i + d)
            A(f'v_fmac_f32 v{20 + 2 * d}, v{30 + i}, v{T0}')
            A(f'v_fmac_f32 v{21 + 2 * d}, v{30 + i}, v{T1}')
    A(f'v_lshlrev_b32 v{T0}, 5, v19')
    A(f'ds_write_b128 v{T0}, v[20:23]')
    A(f'ds_write_b128 v{T0}, v[24:27] offset:16')
    A.wait_lg0()
    A('s_barrier')
    A(f'v_and_b32 v{T0}, 31, v19')
    A(f'v_lshlrev_b32 v{T0}, 2, v{T0}')
    A(f'v_lshrrev_b32 v{T1}, 5, v19')
    A(f'v_lshl_add_u32 v{T0}, v{T1}, 10, v{T0}')
    tk = [A(f'ds_read_b32 v{20 + j}, v{T0} offset:{128 * j}') for j in range(8)]
    A.wait(tk[-1])
    for j in range(1, 8):
        A(f'v_add_f32 v20, v20, v{20 + j}')
    A(f'v_lshlrev_b32 v{T0}, 2, v19')
    A(f'ds_write_b32 v{T0}, v20 offset:8192')
    A.wait_lg0()
    A('s_barrier')
    A(f'v_and_b32 v{T0}, 31, v19')
    A(f'v_lshlrev_b32 v{T0}, 2, v{T0}')
    tk = [A(f'ds_read_b32 v{20 + j}, v{T0} offset:{8192 + 128 * j}') for j in range(8)]
    A.wait(tk[-1])
    for j in range(1, 8):
        A(f'v_add_f32 v20, v20, v{20 + j}')
    round_bf16(A, 20, 20)
    A(f's_lshl_b32 s{S_TMP}, s{S_P0}, 7')
    A(f's_add_u32 s{S_TMP}, s{S_TMP}, {WS_MOD:#x}')
    A(f'buffer_store_dword v20, v{T0}, {WS}, s{S_TMP} offen sc1')
    A.flush_hazards()
    A.label(lskip)
    arrive(A, 16)


def wait_init(A, abort):
    l = A.newlabel('L_wi')
    A(f's_cmp_lg_u32 s{S_WV}, 0')
    A(f's_cbranch_scc1 {l}')
    A(f's_mov_b32 s{S_TMP}, 16')
    wait_flags(A, abort, S_TMP, 1, srd=DBG, value=128, sleep=6, ge=True)
    A.label(l)
    A('s_barrier')


def emit_ln(A, which, s_tile, mid=None):
    T0, T1, T2, T3 = V_T0, V_T1, V_T2, V_T3
    X = 20
    XR = 60
    MB = 80
    PB = 120
    load_ptr_srd(A, KA_X, 2048 * 1280)
    A(f'v_mul_u32_u24 v{T2}, 1280, v{V_I}')
    A(f'v_lshl_add_u32 v{T2}, v{V_G}, 3, v{T2}')
    A(f's_mul_i32 s{S_TMP}, s{s_tile}, {16 * 1280}')
    A(f's_mul_i32 s{S_TMP + 1}, s{S_WV}, 320')
    A(f's_add_u32 s{S_TMP}, s{S_TMP}, s{S_TMP + 1}')
    xt = []
    for k in range(5):
        for hf in range(2):
            b = XR + 4 * k + 2 * hf
            xt.append(A(f'buffer_load_dwordx2 v[{b}:{b + 1}], v{T2}, {WW}, s{S_TMP} offen offset:{64 * k + 32 * hf}'))
    A(f'v_lshlrev_b32 v{T3}, 4, v{V_G}')
    A(f's_mul_i32 s{S_TMP + 1}, s{S_WV}, 640')

    def load_mod(idx, base):
        A(f's_add_u32 s{S_TMP + 2}, s{S_TMP + 1}, {WS_MOD + idx * 2560:#x}')
        t = None
        for t_ in range(10):
            t = A(f'buffer_load_dwordx4 v[{base + 4 * t_}:{base + 4 * t_ + 3}], v{T3}, {WS}, s{S_TMP + 2} offen offset:{64 * t_} sc1')
        return t

    if which == 2:
        gt = load_mod(2, MB)
        A(f's_lshr_b32 s{S_TMP}, s{s_tile}, 1')
        A(f's_mul_i32 s{S_TMP}, s{S_TMP}, {4 * 81920}')
        A(f's_and_b32 s{S_TMP + 2}, s{s_tile}, 1')
        A(f's_lshl_b32 s{S_TMP + 2}, s{S_TMP + 2}, 10')
        A(f's_add_u32 s{S_TMP}, s{S_TMP}, s{S_TMP + 2}')
        A(f's_mul_i32 s{S_TMP + 2}, s{S_WV}, {10 * 2048}')
        A(f's_add_u32 s{S_TMP}, s{S_TMP}, s{S_TMP + 2}')
        A(f's_add_u32 s{S_TMP}, s{S_TMP}, {WS_OPART:#x}')
        pt = {}
        for kg in range(4):
            for t_ in range(10):
                dst = X + 4 * t_ if kg == 0 else PB + 40 * (kg - 1) + 4 * t_
                A(f's_add_u32 s{S_TMP + 2}, s{S_TMP}, {kg * 81920 + t_ * 2048}')
                pt[kg, t_] = A(f'buffer_load_dwordx4 v[{dst}:{dst + 3}], v{V_L16}, {WS}, s{S_TMP + 2} offen sc1')
        for t_ in range(10):
            A.wait(pt[3, t_], gt, xt[-1])
            for r in range(0, 4, 2):
                x = X + 4 * t_ + r
                for kg in range(1, 4):
                    p = PB + 40 * (kg - 1) + 4 * t_ + r
                    A(f'v_pk_add_f32 v[{x}:{x + 1}], v[{x}:{x + 1}], v[{p}:{p + 1}]')
                round2(A, x, x + 1, T0)
                A(f'v_pk_mul_f32 v[{x}:{x + 1}], v[{x}:{x + 1}], v[{MB + 4 * t_ + r}:{MB + 4 * t_ + r + 1}]')
                round2(A, x, x + 1, T0)
                unpack2(A, T0, T1, XR + 2 * t_ + r // 2)
                A(f'v_pk_add_f32 v[{x}:{x + 1}], v[{x}:{x + 1}], v[{T0}:{T1}]')
                A(f'v_cvt_pk_bf16_f32 v{XR + 2 * t_ + r // 2}, v{x}, v{x + 1}')
                unpack2(A, x, x + 1, XR + 2 * t_ + r // 2)
        frag_base(A, s_tile, WS_X1, S_TMP)
        for k in range(5):
            A(f's_add_u32 s{S_TMP + 2}, s{S_TMP}, {k * 2048}')
            A(f'buffer_store_dwordx4 v[{XR + 4 * k}:{XR + 4 * k + 3}], v{V_L16}, {WS}, s{S_TMP + 2} offen sc1')
        A(f's_mul_i32 s{S_TMP + 1}, s{S_WV}, 640')
    else:
        A.wait(xt[-1])
        for j in range(20):
            unpack2(A, X + 2 * j, X + 2 * j + 1, XR + j)
    A(f'v_mov_b32 v{T0}, 0')
    A(f'v_mov_b32 v{T1}, 0')
    for j in range(0, 40, 2):
        A(f'v_pk_add_f32 v[{T0}:{T1}], v[{T0}:{T1}], v[{X + j}:{X + j + 1}]')
    A(f'v_add_f32 v{T0}, v{T0}, v{T1}')
    xlane_allreduce_g(A, 'v_add_f32', T0, T1)
    A(f's_lshl_b32 s{S_TMP}, s{S_WV}, 6')
    A(f'v_lshlrev_b32 v{T2}, 2, v{V_I}')
    A(f'v_add_u32 v{T3}, s{S_TMP}, v{T2}')
    A('s_barrier')
    A(f'ds_write_b32 v{T3}, v{T0}')
    A.wait_lg0()
    A('s_barrier')
    tk = [A(f'ds_read_b32 v{8 + j}, v{T2} offset:{64 * j}') for j in range(4)]
    A.wait(tk[-1])
    A('v_add_f32 v8, v8, v9'); A('v_add_f32 v10, v10, v11'); A('v_add_f32 v8, v8, v10')
    A(f'v_mul_f32 v8, {f32bits(1.0 / 640):#x}, v8')
    A(f'v_mov_b32 v{T0}, 0')
    for j in range(40):
        A(f'v_sub_f32 v{T1}, v{X + j}, v8')
        A(f'v_fmac_f32 v{T0}, v{T1}, v{T1}')
    xlane_allreduce_g(A, 'v_add_f32', T0, T1)
    A(f'ds_write_b32 v{T3}, v{T0} offset:256')
    A.wait_lg0()
    A('s_barrier')
    tk = [A(f'ds_read_b32 v{9 + j}, v{T2} offset:{256 + 64 * j}') for j in range(4)]
    A.wait(tk[-1])
    A('v_add_f32 v9, v9, v10'); A('v_add_f32 v11, v11, v12'); A('v_add_f32 v9, v9, v11')
    A(f'v_mul_f32 v9, {f32bits(1.0 / 640):#x}, v9')
    round2(A, 8, 9, T0)
    A(f'v_add_f32 v9, {f32bits(1e-5):#x}, v9')
    round_bf16(A, 9, 9)
    A('v_sqrt_f32 v9, v9')
    round_bf16(A, 9, 9)
    A('v_rcp_f32 v10, v9')
    for j in range(0, 40, 2):
        x = X + j
        A(f'v_sub_f32 v{x}, v{x}, v8')
        A(f'v_sub_f32 v{x + 1}, v{x + 1}, v8')
        round2(A, x, x + 1, T0)
        for y in (x, x + 1):
            A(f'v_mul_f32 v{T1}, v{y}, v10')
            A(f'v_fma_f32 v{y}, -v{T1}, v9, v{y}')
            A(f'v_fma_f32 v{y}, v{y}, v10, v{T1}')
        round2(A, x, x + 1, T0)
    if mid:
        mid()
    A(f'v_lshlrev_b32 v{T3}, 4, v{V_G}')
    A(f's_mul_i32 s{S_TMP + 1}, s{S_WV}, 640')
    ct = load_mod(1 if which == 1 else 4, MB)
    st = load_mod(0 if which == 1 else 3, PB)
    A.wait(ct, st)
    for j in range(0, 40, 2):
        x = X + j
        A(f'v_add_f32 v{MB + j}, 1.0, v{MB + j}')
        A(f'v_add_f32 v{MB + j + 1}, 1.0, v{MB + j + 1}')
        round2(A, MB + j, MB + j + 1, T0)
        A(f'v_pk_mul_f32 v[{x}:{x + 1}], v[{x}:{x + 1}], v[{MB + j}:{MB + j + 1}]')
        round2(A, x, x + 1, T0)
        A(f'v_pk_add_f32 v[{x}:{x + 1}], v[{x}:{x + 1}], v[{PB + j}:{PB + j + 1}]')
        A(f'v_cvt_pk_bf16_f32 v{160 + j // 2}, v{x}, v{x + 1}')
    frag_base(A, s_tile, WS_H if which == 1 else WS_H2, S_TMP)
    for k in range(5):
        A(f's_add_u32 s{S_TMP + 2}, s{S_TMP}, {k * 2048}')
        A(f'buffer_store_dwordx4 v[{160 + 4 * k}:{160 + 4 * k + 3}], v{V_L16}, {WS}, s{S_TMP + 2} offen sc1')


def frag_base(A, s_tile, region, dst):
    A(f's_lshr_b32 s{dst}, s{s_tile}, 1')
    A(f's_mul_i32 s{dst}, s{dst}, 40960')
    A(f's_and_b32 s{dst + 2}, s{s_tile}, 1')
    A(f's_lshl_b32 s{dst + 2}, s{dst + 2}, 10')
    A(f's_add_u32 s{dst}, s{dst}, s{dst + 2}')
    A(f's_mul_i32 s{dst + 2}, s{S_WV}, {5 * 2048}')
    A(f's_add_u32 s{dst}, s{dst}, s{dst + 2}')
    A(f's_add_u32 s{dst}, s{dst}, {region:#x}')


V_WSRC2, V_WSRC1, V_WRD2, V_WRD1 = 8, 9, 10, 11


def weight_addr_setup(A, pitch):
    T0, T1 = V_T0, V_T1
    A(f's_mov_b32 s{S_TMP}, {pitch}')
    A(f'v_lshrrev_b32 v{T0}, 2, v{V_L}')
    A(f'v_mul_lo_u32 v{T0}, v{T0}, s{S_TMP}')
    A(f'v_and_b32 v{T1}, 3, v{V_L}')
    A(f'v_lshl_add_u32 v{V_WSRC2}, v{T1}, 4, v{T0}')
    A(f'v_lshrrev_b32 v{T0}, 1, v{V_L}')
    A(f'v_mul_lo_u32 v{T0}, v{T0}, s{S_TMP}')
    A(f'v_and_b32 v{T1}, 1, v{V_L}')
    A(f'v_lshl_add_u32 v{V_WSRC1}, v{T1}, 4, v{T0}')
    A(f'v_lshrrev_b32 v{T0}, 2, v{V_L}')
    A(f'v_and_b32 v{T1}, 3, v{V_L}')
    A(f'v_lshlrev_b32 v{T1}, 3, v{T1}')
    A(f'v_lshl_add_u32 v{V_WRD2}, v{T0}, 6, v{T1}')
    A(f'v_add_u32 v{V_WRD2}, s{S_STG}, v{V_WRD2}')
    A(f'v_lshl_add_u32 v{V_WRD1}, v{T0}, 5, v{T1}')
    A(f'v_add_u32 v{V_WRD1}, s{S_STG}, v{V_WRD1}')


def load_weights(A, s_off, pitch, nk, width, dest):
    kb = 32 * 32 * width
    per = 40960 // kb
    src = V_WSRC2 if width == 2 else V_WSRC1
    rd = V_WRD2 if width == 2 else V_WRD1
    rows_per_instr = 16 if width == 2 else 32
    for k0 in range(0, nk, per):
        ks = list(range(k0, min(nk, k0 + per)))
        tok = {}
        A.wait_lg0()
        for k in ks:
            for n in range(32 // rows_per_instr):
                A(f's_add_u32 m0, s{S_STG}, {(k - k0) * kb + n * 1024}')
                tok[k] = A(f'buffer_load_dwordx4 v{src}, {WW}, s{s_off} offen lds')
                A(f's_add_u32 s{s_off}, s{s_off}, {rows_per_instr * pitch}')
        for k in ks:
            A.wait(tok[k])
            for t in range(width):
                for rho in range(2):
                    off = (k - k0) * kb + 16 * rho * 32 * width + t * 32
                    A(f'ds_read_b64_tr_b16 {wr(dest(k, t) + 2 * rho, 2)}, v{rd} offset:{off}')
    A.wait_lg0()


S_SRC, S_FIN, S_FOUT, S_DST, S_PRE, S_BUF, S_DST2 = 20, 21, 22, 23, 24, 25, 26
S_LAST = 27


def gemm_loop(A, abort, nk, ntt, tiles, src_stride, fin_n, fin_stride, fout_stride, seg_step, epilogue,
              acc0=12, frag0=None, pre_compute=None, tt_stride=1024, k_stride=2048, n_epi_vm=None):
    T = len(tiles)
    nfr = nk * ntt
    bufsz = nfr * 1024
    assert 2 * bufsz <= 163840 - 4096
    DEC = 2 * bufsz
    FR = frag0 if frag0 is not None else acc0 + 4 * T * ntt
    NR = 3
    V_RD, V_RD2, V_FA, V_FS = 8, 9, 10, 11
    S_PEND, S_DL, S_DG = 37, 38, 39
    n_it = (nfr + 3) // 4
    step = 4096 if ntt == 2 else 4 * k_stride

    def dma_setup():
        A(f's_lshl_b32 s{S_DL}, s{S_WV}, 10')
        A(f's_add_u32 s{S_DL}, s{S_DL}, s{S_BUF}')
        if ntt == 2:
            assert tt_stride == 1024 and k_stride == 2048
            A(f's_lshl_b32 s{S_DG}, s{S_WV}, 10')
        else:
            A(f's_mul_i32 s{S_DG}, s{S_WV}, {k_stride}')
        A(f's_add_u32 s{S_DG}, s{S_DG}, s{S_SRC}')
        A(f's_add_u32 s{S_SRC}, s{S_SRC}, {src_stride}')
        A(f's_add_u32 s{S_FIN}, s{S_FIN}, {fin_stride}')

    def dma_one(i):
        l = None
        if 4 * i + 3 >= nfr:
            l = A.newlabel('L_dm')
            A(f's_cmp_ge_u32 s{S_WV}, {nfr - 4 * i}')
            A(f's_cbranch_scc1 {l}')
        A(f's_add_u32 m0, s{S_DL}, {4096 * i}')
        A(f'buffer_load_dwordx4 v{V_L16}, {WS}, s{S_DG} offen sc1 lds')
        if l:
            A.label(l)
        A(f's_add_u32 s{S_DG}, s{S_DG}, {step}')

    def sample():
        A(f'buffer_load_dword v{V_FS}, v{V_FA}, {WS}, s{S_FIN} offen sc1')

    def send_flag():
        ls = A.newlabel('L_sig')
        A(f's_cmp_lg_u32 s{S_WV}, 0')
        A(f's_cbranch_scc1 {ls}')
        A(f'v_mov_b32 v{V_T1}, 1')
        A('s_mov_b64 exec, 1')
        A(f'buffer_store_dword v{V_T1}, off, {WS}, s{S_FOUT} sc1')
        A('s_mov_b64 exec, -1')
        A.label(ls)
        A(f's_add_u32 s{S_FOUT}, s{S_FOUT}, {fout_stride}')

    A(f'v_min_u32 v{V_FA}, {fin_n - 1}, v{V_L}')
    A(f'v_lshlrev_b32 v{V_FA}, 2, v{V_FA}')
    A(f's_mov_b32 s{S_BUF}, 0')
    top = A.newlabel('L_gtop'); end = A.newlabel('L_gend'); load = A.newlabel('L_gload'); go = A.newlabel('L_ggo')
    A.flush_hazards()
    A.label(load)
    A.forget()
    wait_flags(A, abort, S_FIN, fin_n, sleep=1)
    if DEBUG_STAMPS[0]:
        lx = A.newlabel('L_ts')
        A(f's_cmp_ge_u32 s{S_SEG}, 2')
        A(f's_cbranch_scc1 {lx}')
        tstamp(A, 2)
        A.label(lx)
    dma_setup()
    for i in range(n_it):
        dma_one(i)
    sample()
    A(f's_mov_b32 s{S_PEND}, 0')
    A.wait_all()
    A.branch(f's_branch {go}')
    A.label(top)
    A.forget()
    marker = len(A.lines)
    A.raw('WAITMARK')
    A.label(go)
    A('s_barrier')
    A(f'v_add_u32 v{V_RD}, s{S_BUF}, v{V_L16}')
    if bufsz > 65536 - 1024:
        A(f'v_add_u32 v{V_RD2}, 0x10000, v{V_RD}')
    A(f's_add_u32 s{S_LAST}, s{S_SEG}, {seg_step}')
    A(f's_sub_u32 s{S_BUF}, {bufsz}, s{S_BUF}')
    ft = {}

    def rd(k):
        for tt in range(ntt):
            f = k * ntt + tt
            b = FR + 4 * ((k % NR) * ntt + tt)
            off = f * 1024
            base = V_RD
            if off >= 65536:
                off -= 65536; base = V_RD2
            ft[k] = A(f'ds_read_b128 v[{b}:{b + 3}], v{base} offset:{off}')

    kB = max(2, nk // 4)
    slots = list(range(kB + 1, nk))
    per = -(-n_it // len(slots))
    nd = 0
    for k in range(min(NR, nk)):
        rd(k)
    for k in range(nk):
        A.wait(ft[k])
        for t, (wreg, tr) in enumerate(tiles):
            for tt in range(ntt):
                acc = acc0 + 4 * (t * ntt + tt)
                fr = f'v[{FR + 4 * ((k % NR) * ntt + tt)}:{FR + 4 * ((k % NR) * ntt + tt) + 3}]'
                w = wr(wreg(k), 4)
                c = '0' if k == 0 else f'v[{acc}:{acc + 3}]'
                a_, b_ = (w, fr) if tr else (fr, w)
                A(f'v_mfma_f32_16x16x32_bf16 v[{acc}:{acc + 3}], {a_}, {b_}, {c}')
        if k + NR < nk:
            rd(k + NR)
        if k == kB:
            hs = [h_ for h_ in A.hist if h_.kind in ('mfma', 'valu')]
            A.wait_vm0()
            A(f'v_cmp_ne_u32 vcc, 1, v{V_FS}')
            A('s_cmp_eq_u64 vcc, 0')
            A(f's_cselect_b32 s{S_PRE}, 1, 0')
            A(f's_cmp_ge_u32 s{S_LAST}, 64')
            A(f's_cselect_b32 s{S_PRE}, 0, s{S_PRE}')
            A(f'v_mov_b32 v{V_T0}, {DEC}')
            lw = A.newlabel('L_dec')
            A(f's_cmp_lg_u32 s{S_WV}, 0')
            A(f's_cbranch_scc1 {lw}')
            A(f'v_mov_b32 v{V_T1}, s{S_PRE}')
            A(f'ds_write_b32 v{V_T0}, v{V_T1}')
            A.label(lw)
            A.wait_lg0()
            A('s_barrier')
            A(f'ds_read_b32 v{V_T1}, v{V_T0}')
            lp = A.newlabel('L_pend')
            A(f's_cmp_eq_u32 s{S_PEND}, 0')
            A(f's_cbranch_scc1 {lp}')
            A(f'v_mov_b32 v{V_T2}, 1')
            ls = A.newlabel('L_sig')
            A(f's_cmp_lg_u32 s{S_WV}, 0')
            A(f's_cbranch_scc1 {ls}')
            A('s_mov_b64 exec, 1')
            A(f'buffer_store_dword v{V_T2}, off, {WS}, s{S_FOUT} sc1')
            A('s_mov_b64 exec, -1')
            A.label(ls)
            A(f's_add_u32 s{S_FOUT}, s{S_FOUT}, {fout_stride}')
            A.label(lp)
            A.wait_lg0()
            A(f'v_readfirstlane_b32 s{S_PRE}, v{V_T1}')
            ln = A.newlabel('L_nos')
            A(f's_cmp_eq_u32 s{S_PRE}, 0')
            A(f's_cbranch_scc1 {ln}')
            dma_setup()
            A.label(ln)
            if pre_compute:
                pre_compute(A)
            A.hist = hs
        if k > kB and nd < n_it:
            hs = [h_ for h_ in A.hist if h_.kind in ('mfma', 'valu')]
            ln = A.newlabel('L_nod')
            A(f's_cmp_eq_u32 s{S_PRE}, 0')
            A(f's_cbranch_scc1 {ln}')
            for _ in range(per):
                if nd < n_it:
                    dma_one(nd); nd += 1
            A.label(ln)
            A.hist = hs
    assert nd == n_it
    if DEBUG_STAMPS[0]:
        lx = A.newlabel('L_ts')
        A(f's_cmp_ge_u32 s{S_SEG}, 2')
        A(f's_cbranch_scc1 {lx}')
        tstamp(A, 3)
        A.label(lx)
        A('s_nop 7')
    v0 = A.vm_issued
    epilogue(A)
    sample()
    nvm = A.vm_issued - v0
    A.lines[marker] = f'    s_waitcnt vmcnt({nvm})'
    A(f's_mov_b32 s{S_SEG}, s{S_LAST}')
    A(f's_mov_b32 s{S_PEND}, 1')
    A(f's_cmp_eq_u32 s{S_PRE}, 1')
    A.branch(f's_cbranch_scc1 {top}')
    A.wait_all()
    A('s_barrier')
    send_flag()
    A(f's_cmp_lt_u32 s{S_SEG}, 64')
    A.branch(f's_cbranch_scc1 {load}')
    A.label(end)


def wlin(i, vb=96):
    return 256 + 4 * i if i < 64 else vb + 4 * (i - 64)


def pack4(A, dst, src):
    A(f'v_cvt_pk_bf16_f32 v{dst}, v{src}, v{src + 1}')
    A(f'v_cvt_pk_bf16_f32 v{dst + 1}, v{src + 2}, v{src + 3}')


def emit_op(A, abort):
    A.comment('==== role OP ====')
    weight_addr_setup(A, 1280)
    load_ptr_srd(A, KA_WO, 4096 * 1280)
    A(f's_mul_i32 s{S_SRC}, s{S_P0}, {1024 * 1280}')
    A(f's_lshl_b32 s{S_TMP}, s{S_P1}, 8')
    A(f's_add_u32 s{S_SRC}, s{S_SRC}, s{S_TMP}')
    A(f's_lshl_b32 s{S_TMP}, s{S_WV}, 6')
    A(f's_add_u32 s{S_SRC}, s{S_SRC}, s{S_TMP}')
    load_weights(A, S_SRC, 1280, 32, 2, lambda k, t: wlin(2 * k + t))
    A(f's_mov_b32 s{S_SEG}, 0')
    A(f's_lshl_b32 s{S_SRC}, s{S_P0}, 16')
    A(f's_add_u32 s{S_SRC}, s{S_SRC}, {WS_O:#x}')
    A(f's_lshl_b32 s{S_FIN}, s{S_P0}, 6')
    A(f's_add_u32 s{S_FIN}, s{S_FIN}, {F_O:#x}')
    A(f's_mul_i32 s{S_FOUT}, s{S_P0}, 5')
    A(f's_add_u32 s{S_FOUT}, s{S_FOUT}, s{S_P1}')
    A(f's_lshl_b32 s{S_FOUT}, s{S_FOUT}, 2')
    A(f's_add_u32 s{S_FOUT}, s{S_FOUT}, {F_OP:#x}')
    A(f's_mul_i32 s{S_DST}, s{S_P0}, 81920')
    A(f's_lshl_b32 s{S_TMP}, s{S_P1}, 14')
    A(f's_add_u32 s{S_DST}, s{S_DST}, s{S_TMP}')
    A(f's_lshl_b32 s{S_TMP}, s{S_WV}, 12')
    A(f's_add_u32 s{S_DST}, s{S_DST}, s{S_TMP}')
    A(f's_add_u32 s{S_DST}, s{S_DST}, {WS_OPART:#x}')

    def epi(A):
        for j in range(4):
            A(f'buffer_store_dwordx4 v[{12 + 4 * j}:{15 + 4 * j}], v{V_L16}, {WS}, s{S_DST} offen offset:{j * 1024} sc1')
        A(f's_add_u32 s{S_DST}, s{S_DST}, {4 * 81920}')

    tiles = [(lambda k: wlin(2 * k), True), (lambda k: wlin(2 * k + 1), True)]
    gemm_loop(A, abort, 32, 2, tiles, 262144, 16, 256, 128, 1, epi)


def emit_ff1(A, abort):
    A.comment('==== role FF1 ====')
    weight_addr_setup(A, 3456)
    for m, ka in enumerate((KA_WG, KA_WU)):
        load_ptr_srd(A, ka, 640 * 3456)
        A(f's_lshl_b32 s{S_SRC}, s{S_P0}, 7')
        A(f's_lshl_b32 s{S_TMP}, s{S_WV}, 5')
        A(f's_add_u32 s{S_SRC}, s{S_SRC}, s{S_TMP}')
        load_weights(A, S_SRC, 3456, 20, 1, lambda k, t, m=m: wlin(m * 20 + k))
    A(f's_mov_b32 s{S_SEG}, 0')
    A(f's_mov_b32 s{S_SRC}, {WS_H2:#x}')
    A(f's_mov_b32 s{S_FIN}, {F_H2:#x}')
    A(f's_lshl_b32 s{S_FOUT}, s{S_P0}, 2')
    A(f's_add_u32 s{S_FOUT}, s{S_FOUT}, {F_ACT:#x}')
    A(f's_lshl_b32 s{S_DST}, s{S_P0}, 12')
    A(f's_lshr_b32 s{S_TMP}, s{S_WV}, 1')
    A(f's_lshl_b32 s{S_TMP}, s{S_TMP}, 11')
    A(f's_add_u32 s{S_DST}, s{S_DST}, s{S_TMP}')
    A(f's_and_b32 s{S_TMP}, s{S_WV}, 1')
    A(f's_lshl_b32 s{S_TMP}, s{S_TMP}, 3')
    A(f's_add_u32 s{S_DST}, s{S_DST}, s{S_TMP}')
    A(f's_add_u32 s{S_DST}, s{S_DST}, {WS_ACT:#x}')
    A(f's_mov_b32 s{S_DST2}, {f32bits(-math.log2(math.e)):#x}')
    T0, T1 = V_T0, V_T1

    def epi(A):
        for tt in range(2):
            g = 12 + 4 * tt; u = 20 + 4 * tt
            for r in (0, 2):
                round2(A, g + r, g + r + 1, T0)
                round2(A, u + r, u + r + 1, T0)
                for y in (g + r, g + r + 1):
                    A(f'v_mul_f32 v{T1}, s{S_DST2}, v{y}')
                    A(f'v_exp_f32 v{T1}, v{T1}')
                    A(f'v_add_f32 v{T1}, 1.0, v{T1}')
                    A(f'v_rcp_f32 v{T1}, v{T1}')
                    A(f'v_mul_f32 v{y}, v{y}, v{T1}')
                round2(A, g + r, g + r + 1, T0)
                A(f'v_pk_mul_f32 v[{g + r}:{g + r + 1}], v[{g + r}:{g + r + 1}], v[{u + r}:{u + r + 1}]')
            pack4(A, u, g)
            A(f'buffer_store_dwordx2 v[{u}:{u + 1}], v{V_L16}, {WS}, s{S_DST} offen offset:{tt * 1024} sc1')
        A(f's_add_u32 s{S_DST}, s{S_DST}, {54 * 2048}')

    tiles = [(lambda k: wlin(k), True), (lambda k: wlin(20 + k), True)]
    gemm_loop(A, abort, 20, 2, tiles, 40960, 4, 128, 128, 1, epi)


def emit_ff2(A, abort):
    A.comment('==== role FF2 ====')
    weight_addr_setup(A, 1280)
    load_ptr_srd(A, KA_WD, 1728 * 1280)
    A(f's_lshl_b32 s{S_SRC}, s{S_P1}, 7')
    A(f's_lshl_b32 s{S_TMP}, s{S_WV}, 5')
    A(f's_add_u32 s{S_SRC}, s{S_SRC}, s{S_TMP}')
    load_weights(A, S_SRC, 1280, 54, 1, lambda k, t: wlin(k))
    A(f's_mov_b32 s{S_SEG}, 0')
    A(f's_lshl_b32 s{S_SRC}, s{S_P0}, 10')
    A(f's_add_u32 s{S_SRC}, s{S_SRC}, {WS_ACT:#x}')
    A(f's_mov_b32 s{S_FIN}, {F_ACT:#x}')
    A(f's_mov_b32 s{S_FOUT}, {F_END:#x}')
    S_TILE = 28
    A(f's_lshl_b32 s{S_TILE}, s{S_P1}, 2')
    A(f's_add_u32 s{S_TILE}, s{S_TILE}, s{S_WV}')
    GB, XX, VO = 40, 44, 46
    A(f'v_lshlrev_b32 v{V_T0}, 4, v{V_G}')
    A(f's_lshl_b32 s{S_TMP}, s{S_TILE}, 6')
    A(f's_add_u32 s{S_TMP}, s{S_TMP}, {WS_MOD + 5 * 2560:#x}')
    A(f'buffer_load_dwordx4 v[{GB}:{GB + 3}], v{V_T0}, {WS}, s{S_TMP} offen sc1')
    A(f's_lshr_b32 s{S_DST2}, s{S_TILE}, 1')
    A(f's_lshl_b32 s{S_DST2}, s{S_DST2}, 11')
    A(f's_lshl_b32 s{S_TMP}, s{S_P0}, 10')
    A(f's_add_u32 s{S_DST2}, s{S_DST2}, s{S_TMP}')
    A(f's_and_b32 s{S_TMP}, s{S_TILE}, 1')
    A(f's_lshl_b32 s{S_TMP}, s{S_TMP}, 3')
    A(f's_add_u32 s{S_DST2}, s{S_DST2}, s{S_TMP}')
    A(f's_add_u32 s{S_DST2}, s{S_DST2}, {WS_X1:#x}')
    A(f'v_mul_u32_u24 v{VO}, 1280, v{V_I}')
    A(f'v_lshl_add_u32 v{VO}, v{V_G}, 3, v{VO}')
    A(f's_mul_i32 s{S_DST}, s{S_P0}, {16 * 1280}')
    A(f's_lshl_b32 s{S_TMP}, s{S_TILE}, 5')
    A(f's_add_u32 s{S_DST}, s{S_DST}, s{S_TMP}')
    load_ptr_srd(A, KA_OUT, 2048 * 1280)
    T0, T1 = V_T0, V_T1

    def pre(A):
        A(f'buffer_load_dwordx2 v[{XX}:{XX + 1}], v{V_L16}, {WS}, s{S_DST2} offen sc1')
        A(f's_add_u32 s{S_DST2}, s{S_DST2}, 40960')

    def epi(A):
        A.wait_vm0()
        for r in (0, 2):
            f = 12 + r
            round2(A, f, f + 1, T0)
            A(f'v_pk_mul_f32 v[{f}:{f + 1}], v[{f}:{f + 1}], v[{GB + r}:{GB + r + 1}]')
            round2(A, f, f + 1, T0)
            unpack2(A, T0, T1, XX + r // 2)
            A(f'v_pk_add_f32 v[{f}:{f + 1}], v[{f}:{f + 1}], v[{T0}:{T1}]')
        pack4(A, XX, 12)
        A(f'buffer_store_dwordx2 v[{XX}:{XX + 1}], v{VO}, {WW}, s{S_DST} offen')
        A(f's_add_u32 s{S_DST}, s{S_DST}, {32 * 1280}')

    gemm_loop(A, abort, 54, 1, [(lambda k: wlin(k), True)], 54 * 2048, 27, 128, 0, 1, epi, pre_compute=pre)


def emit_ln2(A, abort, n):
    A.comment('==== role LN2 ====')
    T0, T1, T2, T3 = V_T0, V_T1, V_T2, V_T3
    S_TASK, S_A, S_B, S_C = 28, 29, 30, 31
    GA, SC, SH = 20, 40, 60
    X, P1, XR, HO = 80, 100, 160, 170
    V_OP, V_X, V_O, V_LW, V_LR = 180, 181, 182, 187, 188
    MEAN, RD = 190, 192
    HB, TK = 8, 9
    A(f'v_bfe_u32 v{HB}, v{V_L}, 3, 1')
    A(f'v_and_b32 v{TK}, 7, v{V_L}')
    A(f'v_lshl_add_u32 v{T2}, v{V_G}, 4, v{TK}')
    A(f'v_lshlrev_b32 v{T2}, 4, v{T2}')
    A(f'v_mul_u32_u24 v{T0}, {5 * 2048}, v{HB}')
    A(f'v_add_u32 v{V_OP}, v{T0}, v{T2}')
    A(f'v_mul_u32_u24 v{T0}, 1280, v{TK}')
    A(f'v_mul_u32_u24 v{T1}, 160, v{HB}')
    A(f'v_add_u32 v{T0}, v{T0}, v{T1}')
    A(f'v_lshl_add_u32 v{V_X}, v{V_G}, 3, v{T0}')
    for j in range(5):
        A(f'v_mul_u32_u24 v{T0}, 5, v{HB}')
        A(f'v_add_u32 v{T0}, {j}, v{T0}')
        A(f'v_lshrrev_b32 v{T1}, 1, v{T0}')
        A(f'v_lshlrev_b32 v{T1}, 11, v{T1}')
        A(f'v_and_b32 v{T0}, 1, v{T0}')
        A(f'v_lshl_add_u32 v{T0}, v{T0}, 3, v{T1}')
        A(f'v_add_u32 v{V_O + j}, v{T0}, v{T2}')
    A(f's_lshl_b32 s{S_TMP}, s{S_WV}, 5')
    A(f'v_lshlrev_b32 v{V_LR}, 2, v{TK}')
    A(f'v_add_u32 v{V_LW}, s{S_TMP}, v{V_LR}')
    A(f'v_mul_u32_u24 v{T0}, 320, v{HB}')
    A(f'v_lshl_add_u32 v{T0}, v{V_G}, 4, v{T0}')
    A(f's_mul_i32 s{S_TMP}, s{S_WV}, 640')
    for idx, base in ((2, GA), (4, SC), (3, SH)):
        A(f's_add_u32 s{S_TMP + 1}, s{S_TMP}, {WS_MOD + idx * 2560:#x}')
        for j in range(5):
            A(f'buffer_load_dwordx4 v[{base + 4 * j}:{base + 4 * j + 3}], v{T0}, {WS}, s{S_TMP + 1} offen offset:{64 * j} sc1')
    A.wait_vm0()
    for j in range(0, 20, 2):
        A(f'v_add_f32 v{SC + j}, 1.0, v{SC + j}')
        A(f'v_add_f32 v{SC + j + 1}, 1.0, v{SC + j + 1}')
        round2(A, SC + j, SC + j + 1, T0)
    load_ptr_srd(A, KA_X, 2048 * 1280)
    A(f's_mov_b32 s{S_TASK}, s{S_P0}')
    top = A.newlabel('L_ln2')
    A.flush_hazards()
    A.label(top)
    A.forget()
    A(f's_lshr_b32 s{S_A}, s{S_TASK}, 2')
    A(f's_lshl_b32 s{S_FIN}, s{S_A}, 7')
    A(f's_and_b32 s{S_FOUT}, s{S_TASK}, 3')
    A(f's_lshl_b32 s{S_FOUT}, s{S_FOUT}, 2')
    A(f's_add_u32 s{S_FOUT}, s{S_FOUT}, s{S_FIN}')
    A(f's_add_u32 s{S_FOUT}, s{S_FOUT}, {F_H2:#x}')
    A(f's_add_u32 s{S_FIN}, s{S_FIN}, {F_OP:#x}')
    A(f's_mul_i32 s{S_B}, s{S_TASK}, {8 * 1280}')
    A(f's_mul_i32 s{S_TMP}, s{S_WV}, 320')
    A(f's_add_u32 s{S_B}, s{S_B}, s{S_TMP}')
    for j in range(5):
        A(f'buffer_load_dwordx2 v[{XR + 2 * j}:{XR + 2 * j + 1}], v{V_X}, {WW}, s{S_B} offen offset:{32 * j}')
    A(f's_bfe_u32 s{S_C}, s{S_TASK}, 0x10001')
    A(f's_lshl_b32 s{S_C}, s{S_C}, 10')
    A(f's_and_b32 s{S_TMP}, s{S_TASK}, 1')
    A(f's_lshl_b32 s{S_TMP}, s{S_TMP}, 7')
    A(f's_add_u32 s{S_C}, s{S_C}, s{S_TMP}')
    A(f's_mul_i32 s{S_B}, s{S_A}, {4 * 81920}')
    A(f's_add_u32 s{S_B}, s{S_B}, s{S_C}')
    A(f's_mul_i32 s{S_TMP}, s{S_WV}, {10 * 2048}')
    A(f's_add_u32 s{S_B}, s{S_B}, s{S_TMP}')
    A(f's_add_u32 s{S_B}, s{S_B}, {WS_OPART:#x}')
    wait_flags(A, abort, S_FIN, 20, sleep=1)
    pt = {}
    for j in range(5):
        for kg in range(4):
            dst = X + 4 * j if kg == 0 else P1 + 20 * (kg - 1) + 4 * j
            A(f's_add_u32 s{S_TMP}, s{S_B}, {kg * 81920 + j * 2048}')
            pt[j] = A(f'buffer_load_dwordx4 v[{dst}:{dst + 3}], v{V_OP}, {WS}, s{S_TMP} offen sc1')
    A(f's_mul_i32 s{S_B}, s{S_A}, 40960')
    A(f's_add_u32 s{S_B}, s{S_B}, s{S_C}')
    A(f's_mul_i32 s{S_TMP}, s{S_WV}, {5 * 2048}')
    A(f's_add_u32 s{S_B}, s{S_B}, s{S_TMP}')
    A(f's_add_u32 s{S_C}, s{S_B}, {WS_X1:#x}')
    A(f's_add_u32 s{S_B}, s{S_B}, {WS_H2:#x}')
    A(f'v_mov_b64 v[{T2}:{T3}], 0')
    for j in range(5):
        A.wait(pt[j])
        for r in (0, 2):
            x = X + 4 * j + r
            p = P1 + 4 * j + r
            A(f'v_pk_add_f32 v[{x}:{x + 1}], v[{x}:{x + 1}], v[{p}:{p + 1}]')
            A(f'v_pk_add_f32 v[{p + 20}:{p + 21}], v[{p + 20}:{p + 21}], v[{p + 40}:{p + 41}]')
            A(f'v_pk_add_f32 v[{x}:{x + 1}], v[{x}:{x + 1}], v[{p + 20}:{p + 21}]')
            round2(A, x, x + 1, T0)
            A(f'v_pk_mul_f32 v[{x}:{x + 1}], v[{x}:{x + 1}], v[{GA + 4 * j + r}:{GA + 4 * j + r + 1}]')
            round2(A, x, x + 1, T0)
            xr = XR + 2 * j + r // 2
            unpack2(A, T0, T1, xr)
            A(f'v_pk_add_f32 v[{x}:{x + 1}], v[{x}:{x + 1}], v[{T0}:{T1}]')
            A(f'v_cvt_pk_bf16_f32 v{xr}, v{x}, v{x + 1}')
            unpack2(A, x, x + 1, xr)
            A(f'v_pk_add_f32 v[{T2}:{T3}], v[{T2}:{T3}], v[{x}:{x + 1}]')
        A(f'buffer_store_dwordx2 v[{XR + 2 * j}:{XR + 2 * j + 1}], v{V_O + j}, {WS}, s{S_C} offen sc1')

    def allred(off, dst):
        A(f'v_add_f32 v{T0}, v{T2}, v{T3}')
        xlane_allreduce_g(A, 'v_add_f32', T0, T1)
        A(f'v_add_f32_dpp v{T1}, v{T0}, v{T0} row_ror:8 row_mask:0xf bank_mask:0xf')
        A(f'ds_write_b32 v{V_LW}, v{T1} offset:{off}')
        A.wait_lg0()
        A('s_barrier')
        tk = [A(f'ds_read_b32 v{12 + j}, v{V_LR} offset:{off + 32 * j}') for j in range(4)]
        A.wait(tk[-1])
        A('v_add_f32 v12, v12, v13'); A('v_add_f32 v14, v14, v15'); A('v_add_f32 v12, v12, v14')
        A(f'v_mul_f32 v{dst}, {f32bits(1.0 / 640):#x}, v12')

    allred(0, MEAN)
    A(f'v_sub_f32 v{MEAN}, 0, v{MEAN}')
    A(f'v_mov_b32 v{MEAN + 1}, v{MEAN}')
    A(f'v_mov_b64 v[{T2}:{T3}], 0')
    for j in range(0, 20, 2):
        A(f'v_pk_add_f32 v[{T0}:{T1}], v[{X + j}:{X + j + 1}], v[{MEAN}:{MEAN + 1}]')
        A(f'v_pk_fma_f32 v[{T2}:{T3}], v[{T0}:{T1}], v[{T0}:{T1}], v[{T2}:{T3}]')
    allred(256, RD)
    round2(A, MEAN, RD, T0)
    A(f'v_mov_b32 v{MEAN + 1}, v{MEAN}')
    A(f'v_add_f32 v{RD}, {f32bits(1e-5):#x}, v{RD}')
    round_bf16(A, RD, RD)
    A(f'v_sqrt_f32 v{RD}, v{RD}')
    round_bf16(A, RD, RD)
    A(f'v_rcp_f32 v{RD}, v{RD}')
    A(f'v_mov_b32 v{RD + 1}, v{RD}')
    for j in range(5):
        for r in (0, 2):
            x = X + 4 * j + r
            A(f'v_pk_add_f32 v[{x}:{x + 1}], v[{x}:{x + 1}], v[{MEAN}:{MEAN + 1}]')
            round2(A, x, x + 1, T0)
            A(f'v_pk_mul_f32 v[{x}:{x + 1}], v[{x}:{x + 1}], v[{RD}:{RD + 1}]')
            round2(A, x, x + 1, T0)
            A(f'v_pk_mul_f32 v[{x}:{x + 1}], v[{x}:{x + 1}], v[{SC + 4 * j + r}:{SC + 4 * j + r + 1}]')
            round2(A, x, x + 1, T0)
            A(f'v_pk_add_f32 v[{x}:{x + 1}], v[{x}:{x + 1}], v[{SH + 4 * j + r}:{SH + 4 * j + r + 1}]')
            A(f'v_cvt_pk_bf16_f32 v{HO + 2 * j + r // 2}, v{x}, v{x + 1}')
        A(f'buffer_store_dwordx2 v[{HO + 2 * j}:{HO + 2 * j + 1}], v{V_O + j}, {WS}, s{S_B} offen sc1')
    signal(A, S_FOUT)
    A(f's_add_u32 s{S_TASK}, s{S_TASK}, {n}')
    A(f's_cmp_lt_u32 s{S_TASK}, 256')
    A.branch(f's_cbranch_scc1 {top}')


def emit_proj(A, abort, m, need_init):
    A.comment(f'==== role projection {m} ====')
    weight_addr_setup(A, 8192)
    load_ptr_srd(A, {'q': KA_WQ, 'k': KA_WK, 'v': KA_WV}[m], 640 * 8192)
    A(f's_lshl_b32 s{S_SRC}, s{S_P0}, 8')
    A(f's_lshl_b32 s{S_TMP}, s{S_WV}, 6')
    A(f's_add_u32 s{S_SRC}, s{S_SRC}, s{S_TMP}')
    load_weights(A, S_SRC, 8192, 20, 2, lambda k, t: wlin(2 * k + t))
    tstamp(A, 0)
    if need_init:
        A(f's_add_u32 s{S_DST}, s{S_P0}, {0 if m == "k" else 32}')
        emit_calib(A, S_DST)
        wait_init(A, abort)
    tstamp(A, 1)
    A(f's_mov_b32 s{S_SEG}, 0')
    A(f's_mov_b32 s{S_SRC}, {WS_H:#x}')
    A(f's_mov_b32 s{S_FIN}, {F_H:#x}')
    A(f's_lshl_b32 s{S_FOUT}, s{S_P0}, 4')
    A(f's_add_u32 s{S_FOUT}, s{S_FOUT}, {F_P + 4 * "kvq".index(m):#x}')
    if m != 'q':
        A(f's_lshl_b32 s{S_DST2}, s{S_P0}, 12')
        A(f's_lshl_b32 s{S_TMP}, s{S_WV}, 10')
        A(f's_add_u32 s{S_DST2}, s{S_DST2}, s{S_TMP}')
        A(f's_add_u32 s{S_DST2}, s{S_DST2}, {dict(k=WS_KM, v=WS_VM)[m]:#x}')
    A(f's_lshl_b32 s{S_DST}, s{S_P0}, 13')
    A(f's_lshl_b32 s{S_TMP}, s{S_WV}, {11 if m == "v" else 10}')
    A(f's_add_u32 s{S_DST}, s{S_DST}, s{S_TMP}')
    A(f's_add_u32 s{S_DST}, s{S_DST}, {dict(q=WS_Q, k=WS_KX, v=WS_VX)[m]:#x}')
    acc = lambda t, tt: 12 + 4 * (t * 2 + tt)
    O = 68

    def epi(A):
        for j in range(2):
            o = O + 4 * j
            if m == 'v':
                pack4(A, o, acc(j, 0)); pack4(A, o + 2, acc(j, 1))
                A(f'buffer_store_dwordx4 v[{o}:{o + 3}], v{V_L16}, {WS}, s{S_DST} offen offset:{j * 1024} sc1')
            else:
                pack4(A, o, acc(0, j)); pack4(A, o + 2, acc(1, j))
                A(f's_add_u32 s{S_TMP}, s{S_DST}, {j * 4096}')
                A(f'buffer_store_dwordx4 v[{o}:{o + 3}], v{V_L16}, {WS}, s{S_TMP} offen sc1')
        A(f's_add_u32 s{S_DST}, s{S_DST}, {32 * 8192}')
        if m != 'q':
            A(f'buffer_store_dwordx4 v[{O}:{O + 3}], v{V_L16}, {WS}, s{S_DST2} offen sc1')
            A(f's_add_u32 s{S_DST2}, s{S_DST2}, {32 * 4096}')

    tr = m != 'v'
    tiles = [(lambda k: wlin(2 * k), tr), (lambda k: wlin(2 * k + 1), tr)]
    gemm_loop(A, abort, 20, 2, tiles, 40960, 2, 8, 512, 1, epi)


def emit_att(A, abort, ncu, done_label, attsleep=3):
    A.comment('==== role ATT ====')
    S_TASK, S_SH, S_TT, S_SC, S_L2E, S_A, S_B = range(28, 35)
    KX, VX, KM, VM, QF, SS, OO = 12, 44, 76, 92, 108, 124, 136
    V_KMA, V_VMA, V_DIFF, V_D0 = 168, 169, 170, 171
    PP = 172
    T0, T1, T2 = V_T0, V_T1, V_T2
    A(f's_lshl_b32 s{S_TASK}, s{S_P0}, 2')
    A(f's_add_u32 s{S_TASK}, s{S_TASK}, s{S_WV}')
    A(f's_mov_b32 s{S_SC}, {f32bits(128 ** -0.5):#x}')
    A(f's_mov_b32 s{S_L2E}, {f32bits(math.log2(math.e)):#x}')
    A(f'v_and_b32 v{T0}, 7, v{V_I}')
    A(f'v_lshl_add_u32 v{T0}, v{V_G}, 3, v{T0}')
    A(f'v_lshlrev_b32 v{V_KMA}, 4, v{T0}')
    A(f'v_and_b32 v{T0}, 31, v{V_L}')
    A(f'v_lshlrev_b32 v{V_VMA}, 4, v{T0}')
    A(f'v_lshlrev_b32 v{T0}, 2, v{V_G}')
    A(f'v_sub_u32 v{V_D0}, v{V_I}, v{T0}')
    top = A.newlabel('L_att')
    A.flush_hazards()
    A.label(top)
    A.forget()
    A(f'v_mov_b32 v{T1}, 1')
    A('s_mov_b64 exec, 1')
    A(f'buffer_atomic_add v{T1}, off, {DBG}, 0 offset:20 sc0 sc1')
    A('s_mov_b64 exec, -1')
    A.wait_vm0()
    A(f'v_readfirstlane_b32 s{S_TASK}, v{T1}')
    A(f's_cmp_ge_u32 s{S_TASK}, 4096')
    A(f's_cbranch_scc1 {done_label}')
    A(f's_lshr_b32 s{S_SH}, s{S_TASK}, 1')
    A(f's_and_b32 s{S_TT}, s{S_TASK}, 1')
    A(f's_lshl_b32 s{S_TMP}, s{S_TT}, 4')
    A(f'v_add_u32 v{V_DIFF}, s{S_TMP}, v{V_D0}')
    A(f's_lshl_b32 s{S_A}, s{S_SH}, 4')
    A(f's_add_u32 s{S_B}, s{S_A}, {F_P:#x}')
    wait_flags(A, abort, S_B, 3)
    A(f's_lshl_b32 s{S_A}, s{S_SH}, 13')
    A(f's_lshl_b32 s{S_TMP}, s{S_TT}, 12')
    A(f's_add_u32 s{S_B}, s{S_A}, s{S_TMP}')
    A(f's_add_u32 s{S_B}, s{S_B}, {WS_Q:#x}')
    qt = [A(f'buffer_load_dwordx4 v[{QF + 4 * k}:{QF + 4 * k + 3}], v{V_L16}, {WS}, s{S_B} offen offset:{k * 1024} sc1') for k in range(4)]
    kt = {}
    for f in range(8):
        A(f's_add_u32 s{S_B}, s{S_A}, {WS_KX + (f >> 2) * 4096:#x}')
        kt[f] = A(f'buffer_load_dwordx4 v[{KX + 4 * f}:{KX + 4 * f + 3}], v{V_L16}, {WS}, s{S_B} offen offset:{(f & 3) * 1024} sc1')
    for f in range(8):
        A(f's_add_u32 s{S_B}, s{S_A}, {WS_VX + (f >> 2) * 4096:#x}')
        A(f'buffer_load_dwordx4 v[{VX + 4 * f}:{VX + 4 * f + 3}], v{V_L16}, {WS}, s{S_B} offen offset:{(f & 3) * 1024} sc1')
    Sm, S0, S1 = SS, SS + 4, SS + 8
    for kt_i, s_ in ((0, S0), (1, S1)):
        for k in range(4):
            A.wait(qt[k], kt[kt_i * 4 + k])
            c = '0' if k == 0 else f'v[{s_}:{s_ + 3}]'
            b = KX + 4 * (kt_i * 4 + k)
            A(f'v_mfma_f32_16x16x32_bf16 v[{s_}:{s_ + 3}], v[{b}:{b + 3}], v[{QF + 4 * k}:{QF + 4 * k + 3}], {c}')

    def fix(base):
        for r in (0, 2):
            round2(A, base + r, base + r + 1, T0)
            A(f'v_mul_f32 v{base + r}, s{S_SC}, v{base + r}')
            A(f'v_mul_f32 v{base + r + 1}, s{S_SC}, v{base + r + 1}')
            round2(A, base + r, base + r + 1, T0)
    A(f'v_mov_b32 v{T2}, 0xce6e6b28')
    for kt_i, s_ in ((0, S0), (1, S1)):
        fix(s_)
        for r in range(4):
            A(f'v_cmp_le_i32 vcc, {16 * kt_i + r}, v{V_DIFF}')
            A(f'v_cndmask_b32 v{s_ + r}, v{T2}, v{s_ + r}, vcc')
    MX = V_T3
    A(f'v_max3_f32 v{MX}, v{S0}, v{S0 + 1}, v{S0 + 2}')
    A(f'v_max3_f32 v{MX}, v{MX}, v{S0 + 3}, v{S1}')
    A(f'v_max3_f32 v{MX}, v{MX}, v{S1 + 1}, v{S1 + 2}')
    A(f'v_max_f32 v{MX}, v{MX}, v{S1 + 3}')
    A(f's_lshl_b32 s{S_B}, s{S_SH}, 5')
    A(f's_add_u32 s{S_B}, s{S_B}, {F_M:#x}')
    wait_flags(A, abort, S_B, 2, sleep=attsleep)
    A(f's_lshl_b32 s{S_A}, s{S_SH}, 11')
    A(f's_lshl_b32 s{S_B}, s{S_SH}, 12')
    A(f's_add_u32 s{S_B}, s{S_B}, {WS_KM:#x}')
    km = [A(f'buffer_load_dwordx4 v[{KM + 4 * k}:{KM + 4 * k + 3}], v{V_L16}, {WS}, s{S_B} offen offset:{k * 1024} sc1') for k in range(4)]
    A(f's_sub_u32 s{S_B}, s{S_B}, {WS_KM - WS_VM:#x}')
    vm = [A(f'buffer_load_dwordx2 v[{VM + 2 * j}:{VM + 2 * j + 1}], v{V_VMA}, {WS}, s{S_B} offen offset:{j * 512} sc1') for j in range(8)]
    for k in range(4):
        A.wait(km[k])
        c = '0' if k == 0 else f'v[{Sm}:{Sm + 3}]'
        A(f'v_mfma_f32_16x16x32_bf16 v[{Sm}:{Sm + 3}], v[{KM + 4 * k}:{KM + 4 * k + 3}], v[{QF + 4 * k}:{QF + 4 * k + 3}], {c}')
    A(f'v_cmp_gt_u32 vcc, 2, v{V_G}')
    fix(Sm)
    for r in range(4):
        A(f'v_cndmask_b32 v{Sm + r}, v{T2}, v{Sm + r}, vcc')
    A(f'v_max3_f32 v{T0}, v{MX}, v{Sm}, v{Sm + 1}')
    A(f'v_max3_f32 v{T0}, v{T0}, v{Sm + 2}, v{Sm + 3}')
    xlane_allreduce_g(A, 'v_max_f32', T0, T1)
    for j in range(12):
        A(f'v_sub_f32 v{SS + j}, v{SS + j}, v{T0}')
    for j in range(12):
        A(f'v_mul_f32 v{SS + j}, s{S_L2E}, v{SS + j}')
    for j in range(12):
        A(f'v_exp_f32 v{SS + j}, v{SS + j}')
    A(f'v_add_f32 v{T0}, v{SS}, v{SS + 1}')
    A(f'v_add_f32 v{T1}, v{SS + 2}, v{SS + 3}')
    for j in range(4, 12, 2):
        A(f'v_add_f32 v{T0}, v{T0}, v{SS + j}')
        A(f'v_add_f32 v{T1}, v{T1}, v{SS + j + 1}')
    A(f'v_add_f32 v{T0}, v{T0}, v{T1}')
    xlane_allreduce_g(A, 'v_add_f32', T0, T1)
    A(f'v_rcp_f32 v{T0}, v{T0}')
    for j in range(12):
        A(f'v_mul_f32 v{SS + j}, v{SS + j}, v{T0}')
    pack4(A, PP, S0); pack4(A, PP + 2, S1); pack4(A, PP + 4, Sm)
    A.wait(vm[-1])
    for j in range(8):
        o = OO + 4 * j
        A(f'v_mfma_f32_16x16x32_bf16 v[{o}:{o + 3}], v[{VX + 4 * j}:{VX + 4 * j + 3}], v[{PP}:{PP + 3}], 0')
    for j in range(8):
        o = OO + 4 * j
        A(f'v_mfma_f32_16x16x16_bf16 v[{o}:{o + 3}], v[{VM + 2 * j}:{VM + 2 * j + 1}], v[{PP + 4}:{PP + 5}], v[{o}:{o + 3}]')
    A(f's_lshl_b32 s{S_A}, s{S_SH}, 13')
    A(f's_lshl_b32 s{S_TMP}, s{S_TT}, 10')
    A(f's_add_u32 s{S_A}, s{S_A}, s{S_TMP}')
    A(f's_add_u32 s{S_A}, s{S_A}, {WS_O:#x}')
    for j in range(4):
        d = QF + 4 * j
        pack4(A, d, OO + 8 * j); pack4(A, d + 2, OO + 8 * j + 4)
        A(f's_add_u32 s{S_B}, s{S_A}, {j * 2048}')
        A(f'buffer_store_dwordx4 v[{d}:{d + 3}], v{V_L16}, {WS}, s{S_B} offen sc1')
    A.wait_vm0()
    A(f's_lshl_b32 s{S_B}, s{S_TASK}, 2')
    A(f's_add_u32 s{S_B}, s{S_B}, {F_O:#x}')
    A(f'v_mov_b32 v{T1}, 1')
    A('s_mov_b64 exec, 1')
    A(f'buffer_store_dword v{T1}, off, {WS}, s{S_B} sc1')
    A('s_mov_b64 exec, -1')
    A.branch(f's_branch {top}')


def emit_warm(A, s_j, first_seg):
    A.comment('==== late warm-up ====')
    T0 = V_T0
    A(f's_lshl_b32 s{S_TMP}, s{S_WV}, 6')
    A(f'v_add_u32 v{T0}, s{S_TMP}, v{V_L}')
    A(f'v_lshlrev_b32 v{T0}, 7, v{T0}')
    load_ptr_srd(A, KA_OUT, 2048 * 1280)
    regions = [(WS_O, 262144, WS), (WS_OPART, 327680, WS), (WS_X1, 40960, WS), (WS_H2, 40960, WS), (WS_ACT, 110592, WS), (0, 40960, WW)]
    n = 0
    for base, per, srd in regions:
        lo = base + first_seg * per
        units = ((64 - first_seg) * per + 32767) // 32768
        for i in range((units + 63) // 64):
            A(f's_add_u32 s{S_TMP}, s{s_j}, {64 * i}')
            A(f's_min_u32 s{S_TMP}, s{S_TMP}, {units - 1}')
            A(f's_lshl_b32 s{S_TMP}, s{S_TMP}, 15')
            A(f's_add_u32 s{S_TMP}, s{S_TMP}, {lo:#x}')
            A(f'buffer_load_dword v{12 + n % 8}, v{T0}, {srd}, s{S_TMP} offen sc1')
            n += 1
            if n % 4 == 0:
                A('s_waitcnt vmcnt(4)')
    A.wait_vm0()


def emit_calib(A, s_j):
    A.comment('==== page calibration ====')
    le = A.newlabel('L_cal')
    A(f's_cmp_lg_u32 s{S_WV}, 0')
    A(f's_cbranch_scc1 {le}')
    A(f'v_mov_b32 v{V_T0}, -1')
    A('s_mov_b64 exec, 1')
    A.wait_vm0()
    for d in range(2):
        A('s_mov_b32 s60, -1')
        A('s_mov_b32 s61, -1')
        for rep in range(3):
            for c in range(2):
                A(f's_lshl_b32 s{S_TMP}, s{s_j}, 15')
                A(f's_add_u32 s{S_TMP}, s{S_TMP}, {WS_MEMR + d * 16384 + c * 8192 + 6144:#x}')
                A('s_memtime s[56:57]')
                A('s_waitcnt lgkmcnt(0)')
                A(f'buffer_store_dword v{V_T0}, off, {WS}, s{S_TMP} sc1')
                A.wait_vm0()
                A('s_memtime s[58:59]')
                A('s_waitcnt lgkmcnt(0)')
                A('s_sub_u32 s58, s58, s56')
                A(f's_min_u32 s{60 + c}, s{60 + c}, s58')
        A('s_cmp_lt_u32 s61, s60')
        A(f's_cselect_b32 s{62 + d}, 1, 0')
    for d in range(2):
        A(f's_and_b32 s{S_TMP}, s{s_j}, 31')
        A(f's_lshl_b32 s{62 + d}, s{62 + d}, s{S_TMP}')
        A(f'v_mov_b32 v{V_T1}, s{62 + d}')
        A(f's_lshr_b32 s{S_TMP}, s{s_j}, 5')
        A(f's_lshl_b32 s{S_TMP}, s{S_TMP}, 2')
        A(f'buffer_atomic_or v{V_T1}, off, {DBG}, s{S_TMP} offset:{144 + 8 * d} sc1')
    A.wait_vm0()
    A(f'v_mov_b32 v{V_T1}, 1')
    A(f'buffer_atomic_add v{V_T1}, off, {DBG}, 0 offset:160 sc1')
    A('s_mov_b64 exec, -1')
    A.label(le)
```

```python
import sys
from asmlib import *
from layout import *
import rec, roles
from roles import *

KNAME = "adaLN_cond__memory_aug_recurrent_mem_tr__swiglu_ffn__prompt_kernel"
HEADER = open('adaLN_cond__memory_aug_recurrent_mem_tr__swiglu_ffn__prompt.s.ref').read().split('; Override launch')[0]

def gen(path, coarse=False, stamps=False, dbg='', gate=0, join='q', attsleep=3, warm=32, **kw):
    A = Asm()
    roles.DEBUG_STAMPS[0] = stamps
    A.raw(HEADER.rstrip('\n'))
    A.raw('; @launch grid=(256,1,1) block=(256,1,1) lds=163840')
    A.raw('.amdgcn_target "amdgcn-amd-amdhsa--gfx950"')
    A.raw(kernel_header(KNAME))
    END = 'L_end'
    A('s_cmp_ge_u32 s2, 256')
    A('s_cbranch_scc1 L_end0')
    S_X, S_IDX = 98, 99
    if coarse:
        A('s_memrealtime s[100:101]')
    A(f's_load_dwordx2 s[4:5], s[0:1], {KA_DBG}')
    A(f's_getreg_b32 s{S_X}, hwreg(HW_REG_XCC_ID)')
    A(f's_and_b32 s{S_X}, s{S_X}, 7')
    A('v_lshrrev_b32 v1, 6, v0')
    A('v_readfirstlane_b32 s3, v1')
    A('s_waitcnt lgkmcnt(0)')
    A.srd(8, 4, 5, 256)
    A('s_cmp_lg_u32 s3, 0')
    A('s_cbranch_scc1 L_claimed')
    A('s_mov_b32 s6, 0')
    A('s_mov_b64 exec, 1')
    A.label('L_claim')
    A(f's_lshl_b32 s7, s{S_X}, 2')
    A('s_add_u32 s7, s7, 32')
    A('v_mov_b32 v1, 1')
    A('buffer_atomic_add v1, off, s[8:11], s7 sc0 sc1')
    A('s_waitcnt vmcnt(0)')
    A(f'v_readfirstlane_b32 s{S_IDX}, v1')
    A(f's_cmp_lt_u32 s{S_IDX}, 32')
    A('s_cbranch_scc1 L_claim_ok')
    A(f's_add_u32 s{S_X}, s{S_X}, 1')
    A(f's_and_b32 s{S_X}, s{S_X}, 7')
    A('s_add_u32 s6, s6, 1')
    A('s_cmp_lt_u32 s6, 8')
    A('s_cbranch_scc1 L_claim')
    A(f's_mov_b32 s{S_IDX}, 255')
    A.label('L_claim_ok')
    A(f's_lshl_b32 s7, s{S_IDX}, 3')
    A(f's_or_b32 s7, s7, s{S_X}')
    A('v_mov_b32 v1, s7')
    A('v_mov_b32 v2, 0')
    A('ds_write_b32 v2, v1')
    A('s_waitcnt lgkmcnt(0)')
    A('s_mov_b64 exec, -1')
    A.label('L_claimed')
    A('s_barrier')
    A('v_mov_b32 v2, 0')
    A('ds_read_b32 v1, v2')
    A('s_waitcnt lgkmcnt(0)')
    A('v_readfirstlane_b32 s7, v1')
    A('s_barrier')
    A(f's_and_b32 s{S_X}, s7, 7')
    A(f's_lshr_b32 s{S_IDX}, s7, 3')
    A(f's_cmp_ge_u32 s{S_IDX}, 32')
    A('s_cbranch_scc1 L_end0')
    A(f's_cmp_lt_u32 s{S_X}, 2')
    A('s_cbranch_scc1 L_rec')
    common_setup(A)
    A(f's_cmp_lt_u32 s{S_X}, 4')
    A('s_cbranch_scc1 L_kv')
    A(f's_sub_u32 s{S_P0}, s{S_X}, 4')
    A(f's_lshl_b32 s{S_P0}, s{S_P0}, 5')
    A(f's_add_u32 s{S_P0}, s{S_P0}, s{S_IDX}')
    emit_init(A, END)
    tstamp(A, 4)
    emit_ln(A, 1, S_P0, mid=lambda: (wait_init(A, END), tstamp(A, 5)))
    tstamp(A, 6)
    A(f's_lshl_b32 s{S_FOUT}, s{S_P0}, 2')
    A(f's_add_u32 s{S_FOUT}, s{S_FOUT}, {F_H:#x}')
    signal(A, S_FOUT)
    emit_init(A, END, part=2)
    if gate:
        A(f's_cmp_lg_u32 s{S_WV}, 0')
        A('s_cbranch_scc1 L_gate')
        A(f's_mov_b32 s{S_TMP}, {WS_FLAG + 0x3800:#x}')
        wait_flags(A, 'L_gate', S_TMP, 1, value=gate, sleep=32, ge=True)
        A.label('L_gate')
    A('s_barrier')
    A(f's_cmp_eq_u32 s{S_X}, 4')
    A.branch('s_cbranch_scc1 L_q')
    A(f's_cmp_eq_u32 s{S_X}, 5')
    A.branch('s_cbranch_scc1 L_x5')
    A(f's_cmp_eq_u32 s{S_X}, 6')
    A.branch('s_cbranch_scc1 L_x6')
    A(f's_sub_u32 s{S_P0}, s{S_IDX}, 11')
    A(f's_cmp_ge_u32 s{S_IDX}, 20')
    A('s_cbranch_scc1 L_att')
    A(f's_and_b32 s{S_P0}, s{S_IDX}, 1')
    A(f's_lshr_b32 s{S_P1}, s{S_IDX}, 1')
    emit_ff2(A, END)
    A.branch(f's_branch {END}')
    A.label('L_x6'); A.forget()
    A(f's_sub_u32 s{S_P0}, s{S_IDX}, 23')
    A(f's_cmp_ge_u32 s{S_IDX}, 27')
    A('s_cbranch_scc1 L_att')
    A(f's_mov_b32 s{S_P0}, s{S_IDX}')
    emit_ff1(A, END)
    A.branch(f's_branch {END}')
    A.label('L_x5'); A.forget()
    A(f's_sub_u32 s{S_P0}, s{S_IDX}, 28')
    A(f's_cmp_ge_u32 s{S_IDX}, 28')
    A('s_cbranch_scc1 L_att')
    A(f's_cmp_ge_u32 s{S_IDX}, 20')
    A('s_cbranch_scc1 L_ln2r')
    A(f's_mul_i32 s{S_P0}, s{S_IDX}, 52')
    A(f's_lshr_b32 s{S_P0}, s{S_P0}, 8')
    A(f's_mul_i32 s{S_P1}, s{S_P0}, 5')
    A(f's_sub_u32 s{S_P1}, s{S_IDX}, s{S_P1}')
    emit_op(A, END)
    A.branch(f's_branch {END}')
    A.label('L_ln2r'); A.forget()
    A(f's_sub_u32 s{S_P0}, s{S_IDX}, 20')
    emit_ln2(A, END, 8)
    A.branch(f's_branch {END}')
    A.label('L_q'); A.forget()
    A(f's_mov_b32 s{S_P0}, s{S_IDX}')
    emit_proj(A, END, 'q', False)
    A(f's_mov_b32 s{S_P0}, 99')
    A.branch('s_branch L_att' if 'q' in join else f's_branch {END}')
    A.label('L_att'); A.forget()
    emit_att(A, END, 21, END, attsleep)
    A.branch(f's_branch {END}')
    A.label('L_kv'); A.forget()
    A(f's_mov_b32 s{S_P0}, s{S_IDX}')
    A(f's_sub_u32 s{S_P1}, s{S_X}, 2')
    A(f's_cmp_eq_u32 s{S_X}, 3')
    A('s_cbranch_scc1 L_vp')
    emit_proj(A, END, 'k', True)
    A.branch('s_branch L_kvd')
    A.label('L_vp'); A.forget()
    emit_proj(A, END, 'v', True)
    A.label('L_kvd'); A.forget()
    A(f's_lshl_b32 s{S_P1}, s{S_P1}, 5')
    A(f's_add_u32 s{S_P1}, s{S_P1}, s{S_P0}')
    if warm:
        emit_warm(A, S_P1, warm)
    A(f's_mov_b32 s{S_P0}, 99')
    A.branch('s_branch L_att' if 'kv' in join else f's_branch {END}')
    A.label('L_rec'); A.forget()
    A(f's_mov_b32 s{rec.S_T}, s{S_X}')
    A(f's_mov_b32 s{rec.S_H}, s{S_IDX}')
    rec.emit_rec(A, END, mega=True, coarse=coarse, stamps=stamps, dbg=dbg, **kw)
    A.label(END)
    if coarse:
        A('s_memrealtime s[92:93]')
        A('s_waitcnt lgkmcnt(0)')
        A(f's_lshl_b32 s41, s{S_IDX}, 3')
        A(f's_or_b32 s41, s41, s{S_X}')
        A('s_lshl_b32 s41, s41, 4')
        A(f's_add_u32 s41, s41, {WS_STAMP + 0x300000:#x}')
        A('s_mov_b64 exec, 1')
        A('v_mov_b32 v2, s100')
        A('v_mov_b32 v3, s92')
        A('buffer_store_dwordx2 v[2:3], off, s[4:7], s41')
    A.label('L_end0')
    A('s_endpgm')
    A.raw(kernel_desc(KNAME))
    open(path, 'w').write(A.text())
    print('instructions:', A.ninstr, 'bytes of text:', len(A.text()))

if __name__ == '__main__':
    out = 'mega.s'
    gen(out, coarse='--coarse' in sys.argv, stamps='--stamps' in sys.argv)
    for d in ('nokmt', 'nokmt,pubnt'):
        if '--dbg' in sys.argv:
            gen(f'mega_{d.replace(",", "_")}.s', coarse=True, stamps=True, dbg=d)
    if '--install' in sys.argv:
        import shutil
        shutil.copy(out, 'adaLN_cond__memory_aug_recurrent_mem_tr__swiglu_ffn__prompt.s')
```

```python
import math
import struct
from asmlib import *
from layout import *
from roles import F_P, F_M

VREG = 34816
MEMB = 4 * VREG
QKB = MEMB + 10240
OB = QKB + 4096
KXB = OB + 2048
assert KXB + 8192 == 163840

SPIN_LIMIT = 1 << 17


def f32bits(x):
    return struct.unpack('<I', struct.pack('<f', x))[0]


LDS_BLOCKS = [('v', s_, t_) for s_ in range(5) for t_ in range(2)] + [('k', s_, 1) for s_ in range(4)] + \
             [('q', s_, 1) for s_ in range(3)]
assert len(LDS_BLOCKS) == 17
_all = [(m, s_, t_) for m in 'qkv' for s_ in range(10) for t_ in range(2)] + [('o', k_, t_) for k_ in range(2) for t_ in range(5)]
_regb = [b for b in _all if b not in LDS_BLOCKS]
assert len(_regb) == 53
REG_OF = {b: (256 + 8 * i if i < 32 else 88 + 8 * (i - 32)) for i, b in enumerate(_regb)}
BLK_OF = {b: i for i, b in enumerate(LDS_BLOCKS)}


V_LANE, V_IDX, V_L16, V_KX, V_QKW, V_QKR, V_OW0, V_OR, V_PST, V_T2, V_T1, V_T0 = range(12)
VX0, VX1 = 12, 16
V_P4, V_P1, V_PUB = 12, 13, 14
Q0, Q1, K0, K1, VV0, VV1 = 20, 24, 28, 32, 36, 40
AR = 44
PL = 56
VW = 64
SS = 64
VXR = 80

S_WS, S_W, S_DBG = 4, 8, 12
S_T, S_H, S_WV, S_STEP, S_FAST = 16, 17, 18, 19, 20
S_PLOC, S_PREM, S_PS0, S_PS1, S_PS2, S_PA, S_PUBR, S_PUBL, S_KX, S_VX, S_RED, S_NOT1, S_C = range(21, 34)
S_MLO = 34
S_MPUB = 36
S_KM, S_VM, S_FL = 38, 39, 40
S_TMP = 41
S_PTR = 44
S_SPIN = 46
S_TMP2 = 47
S_ST = 48
S_STO = 80
S_KSEL = 96
S_FKV = 97
S_TA = 32
S_TABW, S_TABR = 36, 82
S_PREM0, S_PUBR0 = 39, 96
S_TMASK = 94
S_PAR, S_W1280, S_P1B, S_W512 = 72, 73, 74, 75
S_ONE = 76
S_HALF = 78
S_RDY = 25


def emit_rec(A, abort_label, nsteps=64, stamps=False, force_safe=False, coarse=False, backoff=13, ka=2, adelay=(1, 2), mega=False, rp=(0, 2), cut=None, dbg='', kb=2, bgap=15, spec=True, kmahead=2, align=None, kxlate=True, tlate=False):
    def stamp(i):
        if stamps:
            A(f'{"s_memrealtime" if stamps == "rt" else "s_memtime"} s[{S_ST + 2 * i}:{S_ST + 2 * i + 1}]')
        if cut == i:
            A.branch('s_branch L_cut')

    if coarse:
        A('s_memrealtime s[84:85]')
        A('s_memtime s[86:87]')
    A(f's_load_dwordx2 s[{S_PTR}:{S_PTR + 1}], s[0:1], {KA_WS}')
    A(f's_load_dwordx2 s[{S_TMP + 1}:{S_TMP + 2}], s[0:1], {KA_DBG}')
    A(f'v_lshrrev_b32 v1, 6, v0')
    A(f'v_readfirstlane_b32 s{S_WV}, v1')
    A(f'v_and_b32 v{V_LANE}, 63, v0')
    A('s_waitcnt lgkmcnt(0)')
    A.srd(S_WS, S_PTR, S_PTR + 1, WS_BYTES)
    A.srd(S_DBG, S_TMP + 1, S_TMP + 2, 256)
    A(f's_mov_b32 s{S_SPIN}, 0')
    L = V_LANE
    T0, T1 = V_T0, V_T1
    G, R_, C_ = 20, 21, 22
    A(f'v_lshrrev_b32 v{G}, 4, v{L}')
    A(f'v_bfe_u32 v{R_}, v{L}, 2, 2')
    A(f'v_and_b32 v{C_}, 3, v{L}')
    A(f'v_and_b32 v{T0}, 8, v{L}')
    A(f'v_cmp_eq_u32 vcc, 0, v{T0}')
    A(f'v_mov_b32 v{T0}, 0xeeee')
    A(f'v_mov_b32 v{T1}, 0x4444')
    A(f'v_cndmask_b32 v{V_IDX}, v{T0}, v{T1}, vcc')
    A(f's_mul_i32 s{S_TMP}, s{S_WV}, {VREG}')
    A(f'v_lshlrev_b32 v{T0}, 4, v{L}')
    A(f'v_add_u32 v{V_L16}, s{S_TMP}, v{T0}')
    A(f'v_add_u32 v{V_KX}, {MEMB}, v{T0}')
    A(f'v_lshrrev_b32 v{T0}, 5, v{L}')
    A(f'v_lshlrev_b32 v{T0}, 8, v{T0}')
    A(f'v_and_b32 v{T1}, 15, v{L}')
    A(f'v_lshl_add_u32 v{T0}, v{T1}, 4, v{T0}')
    A(f'v_and_b32 v{T1}, 1, v{G}')
    A(f'v_lshl_add_u32 v{T0}, v{T1}, 3, v{T0}')
    A(f's_lshl_b32 s{S_TMP}, s{S_WV}, 9')
    A(f's_add_u32 s{S_TMP}, s{S_TMP}, {QKB}')
    A(f'v_add_u32 v{V_QKW}, s{S_TMP}, v{T0}')
    A(f'v_lshlrev_b32 v{T0}, 6, v{G}')
    A(f'v_lshl_add_u32 v{T0}, v{R_}, 4, v{T0}')
    A(f'v_and_b32 v{T1}, 1, v{C_}')
    A(f'v_lshl_add_u32 v{T0}, v{T1}, 3, v{T0}')
    A(f'v_add_u32 v{V_QKR}, {QKB}, v{T0}')
    I_ = 23
    A(f'v_and_b32 v{I_}, 7, v{L}')
    A(f'v_lshrrev_b32 v{T0}, 1, v{G}')
    A(f's_lshl_b32 s{S_TMP}, s{S_WV}, 2')
    A(f'v_add_u32 v{T0}, s{S_TMP}, v{T0}')
    A(f'v_xor_b32 v{T0}, v{T0}, v{I_}')
    A(f'v_lshlrev_b32 v{T0}, 4, v{T0}')
    A(f'v_lshl_add_u32 v{T0}, v{I_}, 8, v{T0}')
    A(f'v_and_b32 v{T1}, 1, v{G}')
    A(f'v_lshl_add_u32 v{T0}, v{T1}, 3, v{T0}')
    A(f'v_add_u32 v{V_OW0}, {OB}, v{T0}')
    A(f'v_bfe_u32 v{T0}, v{L}, 3, 1')
    A(f'v_lshl_add_u32 v{T0}, v{G}, 1, v{T0}')
    A(f'v_xor_b32 v{T0}, v{T0}, v{I_}')
    A(f'v_lshlrev_b32 v{T0}, 4, v{T0}')
    A(f'v_lshl_add_u32 v{T0}, v{I_}, 8, v{T0}')
    A(f'v_add_u32 v{V_OR}, {OB}, v{T0}')
    A(f'v_and_b32 v{T0}, 1, v{G}')
    A(f'v_lshlrev_b32 v{T0}, 1, v{T0}')
    A(f'v_lshrrev_b32 v{T1}, 1, v{G}')
    A(f'v_add_u32 v{T0}, v{T0}, v{T1}')
    A(f'v_lshlrev_b32 v{T0}, 1, v{T0}')
    A(f'v_bfe_u32 v{T1}, v{L}, 3, 1')
    A(f'v_add_u32 v{T0}, v{T0}, v{T1}')
    A(f'v_lshlrev_b32 v{T0}, 12, v{T0}')
    A(f'v_lshl_add_u32 v{V_PST}, v{I_}, 4, v{T0}')
    A(f's_lshl_b32 s{S_KSEL}, s{S_T}, 2')
    A(f's_add_u32 s{S_KSEL}, s{S_KSEL}, s{S_WV}')
    A(f's_mov_b32 s{S_ONE}, 0x3f803f80')
    A(f's_mov_b32 s{S_ONE + 1}, 0x3f803f80')
    A(f's_mov_b32 s{S_HALF}, 0x3f003f00')
    A(f's_mov_b32 s{S_HALF + 1}, 0x3f003f00')
    A(f's_mov_b32 s{S_PAR}, 0')
    A(f's_mul_i32 s{S_W1280}, s{S_WV}, 1280')
    A(f's_add_u32 s{S_P1B}, s{S_W1280}, {MEMB + 1024}')
    A(f's_lshl_b32 s{S_W512}, s{S_WV}, 9')

    def rebuild():
        A(f'v_add_u32 v{V_P4}, s{S_W1280}, v{V_KX}')
        A(f'v_lshl_add_u32 v{V_P1}, v{L}, 2, s{S_P1B}')

    def rebuild_pub():
        A(f'v_and_b32 v{T0}, 7, v{L}')
        A(f'v_bfe_u32 v{T1}, v{L}, 4, 1')
        A(f'v_lshlrev_b32 v{T1}, 3, v{T1}')
        A(f'v_lshl_add_u32 v{V_PUB}, v{T0}, 4, v{T1}')

    rebuild()
    A(f's_mov_b32 s{S_MLO}, -1')
    A(f's_mov_b32 s{S_MLO + 1}, 0')
    A(f's_mov_b32 s{S_MPUB}, 0x00ff00ff')
    A(f's_mov_b32 s{S_MPUB + 1}, 0x00ff00ff')
    A(f's_mov_b32 s{S_NOT1}, 0xfffffffe')
    A(f's_mov_b32 s{S_C}, {f32bits((128 ** -0.5) * math.log2(math.e)):#x}')
    A(f's_mul_i32 s{S_TMP2}, s{S_WV}, {VREG}')
    A(f's_mul_i32 s{S_TMP}, s{S_T}, 5120')
    A(f's_add_u32 s{S_PLOC}, s{S_TMP}, {WS_MEML - MEMB:#x}')
    A(f's_xor_b32 s{S_TMP}, s{S_T}, 1')
    A(f's_lshl_b32 s{S_TMP}, s{S_TMP}, 14')
    A(f's_add_u32 s{S_PREM}, s{S_TMP}, {WS_MEMR - MEMB:#x}')
    A(f's_mul_i32 s{S_TMP}, s{S_T}, 163840')
    A(f's_add_u32 s{S_TMP}, s{S_TMP}, {WS_PART:#x}')
    A(f's_mul_i32 s{S_TMP + 1}, s{S_WV}, {10 * 4096}')
    A(f's_add_u32 s{S_PS0}, s{S_TMP}, s{S_TMP + 1}')
    A(f's_lshl_b32 s{S_TMP + 1}, s{S_H}, 7')
    A(f's_add_u32 s{S_PS0}, s{S_PS0}, s{S_TMP + 1}')
    A(f's_add_u32 s{S_PS1}, s{S_PS0}, 32768')
    A(f's_lshl_b32 s{S_RED}, s{S_WV}, 5')
    A(f's_add_u32 s{S_RED}, s{S_RED}, s{S_H}')
    A(f's_min_u32 s{S_TMP + 2}, s{S_RED}, 39')
    A(f's_lshl_b32 s{S_TMP + 1}, s{S_TMP + 2}, 12')
    A(f's_add_u32 s{S_PA}, s{S_TMP}, s{S_TMP + 1}')
    A(f's_sub_u32 s{S_PA}, s{S_PA}, s{S_TMP2}')
    A(f's_lshl_b32 s{S_TMP + 1}, s{S_TMP + 2}, 7')
    A(f's_lshl_b32 s{S_TMP}, s{S_T}, 14')
    A(f's_add_u32 s{S_PUBR}, s{S_TMP}, s{S_TMP + 1}')
    A(f's_add_u32 s{S_PUBR}, s{S_PUBR}, {WS_MEMR + 32768:#x}')
    A(f's_mul_i32 s{S_TMP}, s{S_T}, 5120')
    A(f's_add_u32 s{S_PUBL}, s{S_TMP}, s{S_TMP + 1}')
    A(f's_add_u32 s{S_PUBL}, s{S_PUBL}, {WS_MEML + 10240:#x}')
    A(f's_lshl_b32 s{S_TMP}, s{S_H}, 13')
    A(f's_lshl_b32 s{S_TMP + 1}, s{S_WV}, 11')
    A(f's_add_u32 s{S_TMP}, s{S_TMP}, s{S_TMP + 1}')
    A(f's_sub_u32 s{S_TMP}, s{S_TMP}, s{S_TMP2}')
    A(f's_add_u32 s{S_KX}, s{S_TMP}, {WS_KX:#x}')
    A(f's_add_u32 s{S_VX}, s{S_TMP}, {WS_VX:#x}')
    A(f's_lshl_b32 s{S_TMP}, s{S_H}, 12')
    A(f's_lshl_b32 s{S_TMP + 1}, s{S_WV}, 10')
    A(f's_add_u32 s{S_TMP}, s{S_TMP}, s{S_TMP + 1}')
    A(f's_sub_u32 s{S_TMP}, s{S_TMP}, s{S_TMP2}')
    A(f's_add_u32 s{S_KM}, s{S_TMP}, {WS_KM:#x}')
    A(f's_mul_i32 s{S_TMP}, s{S_T}, {WS_KM - WS_VM:#x}')
    A(f's_sub_u32 s{S_KM}, s{S_KM}, s{S_TMP}')
    A(f's_sub_u32 s{S_TMASK}, 0, s{S_T}')
    A(f's_mov_b32 s{S_TMASK + 1}, s{S_TMASK}')

    lskip = A.newlabel('L_ann'); lnc = A.newlabel('L_nocal')
    A(f's_cmp_lg_u32 s{S_WV}, 0')
    A.branch(f's_cbranch_scc1 {lskip}')
    A(f's_mov_b32 s{S_ST + 6}, 0')
    A(f's_or_b32 s{S_TMP}, s{S_T}, s{S_H}')
    A(f's_cmp_lg_u32 s{S_TMP}, 0' if not mega else 's_cmp_lg_u32 1, 0')
    A.branch(f's_cbranch_scc1 {lnc}')
    A(f'v_mov_b32 v{T0}, {WS_MEMR:#x}')
    A(f'v_mov_b32 v{T1}, {WS_MEMR + 8192:#x}')
    A('s_mov_b64 exec, 1')
    A(f's_mov_b32 s{S_ST + 8}, -1')
    A(f's_mov_b32 s{S_ST + 9}, -1')
    for rep in range(3):
        for c in range(2):
            A(f's_memtime s[{S_ST}:{S_ST + 1}]')
            A('s_waitcnt lgkmcnt(0)')
            A(f'buffer_store_dword v{T0}, v{(T0, T1)[c]}, s[{S_WS}:{S_WS + 3}], 0 offen sc1')
            A.wait_vm0()
            A(f's_memtime s[{S_ST + 2}:{S_ST + 3}]')
            A('s_waitcnt lgkmcnt(0)')
            A(f's_sub_u32 s{S_ST + 4}, s{S_ST + 2}, s{S_ST}')
            A(f's_min_u32 s{S_ST + 8 + c}, s{S_ST + 8 + c}, s{S_ST + 4}')
    A('s_mov_b64 exec, -1')
    A(f's_cmp_lt_u32 s{S_ST + 9}, s{S_ST + 8}')
    A(f's_cselect_b32 s{S_ST + 6}, 0x40000000, 0')
    A.label(lnc)
    A(f's_getreg_b32 s{S_TMP}, hwreg(HW_REG_XCC_ID)')
    A(f's_and_b32 s{S_TMP}, s{S_TMP}, 15')
    A(f's_mul_i32 s{S_TMP + 1}, s{S_TMP}, s{S_TMP}')
    A(f's_lshl_b32 s{S_TMP + 1}, s{S_TMP + 1}, 16')
    A(f's_lshl_b32 s{S_TMP}, s{S_TMP}, 6')
    A(f's_add_u32 s{S_TMP}, s{S_TMP}, s{S_TMP + 1}')
    A(f's_add_u32 s{S_TMP}, s{S_TMP}, 1')
    A(f's_add_u32 s{S_TMP}, s{S_TMP}, s{S_ST + 6}')
    A(f'v_mov_b32 v{T0}, s{S_TMP}')
    A(f's_lshl_b32 s{S_TMP + 1}, s{S_T}, 2')
    A('s_mov_b64 exec, 1')
    A(f'buffer_atomic_add v{T0}, off, s[{S_DBG}:{S_DBG + 3}], s{S_TMP + 1} offset:128 sc1')
    A('s_mov_b64 exec, -1')
    A.flush_hazards()
    A.label(lskip)

    VSRC, VB, VBO = 24, 25, 26
    VOS = 27
    TB = 32
    A(f'v_lshrrev_b32 v{T0}, 2, v{L}')
    A(f'v_lshlrev_b32 v{T0}, 13, v{T0}')
    A(f'v_lshl_add_u32 v{VSRC}, v{C_}, 4, v{T0}')
    A(f'v_lshrrev_b32 v{T0}, 1, v{G}')
    A(f'v_lshlrev_b32 v{T0}, 4, v{T0}')
    A(f'v_and_b32 v{T1}, 1, v{G}')
    A(f'v_lshl_add_u32 v{T0}, v{T1}, 2, v{T0}')
    A(f'v_lshrrev_b32 v{T1}, 1, v{R_}')
    A(f'v_lshl_add_u32 v{T0}, v{T1}, 3, v{T0}')
    A(f'v_and_b32 v{T1}, 1, v{R_}')
    A(f'v_add_u32 v{T0}, v{T1}, v{T0}')
    A(f'v_lshlrev_b32 v{T1}, 6, v{T0}')
    A(f'v_lshl_add_u32 v{T1}, v{C_}, 3, v{T1}')
    A(f'v_add_u32 v{VB}, s{S_TMP2}, v{T1}')
    A(f'v_mul_u32_u24 v{T0}, 160, v{T0}')
    A(f'v_lshl_add_u32 v{T0}, v{C_}, 3, v{T0}')
    A(f'v_add_u32 v{VBO}, s{S_TMP2}, v{T0}')
    for n in range(5):
        A(f'v_add_u32 v{T0}, {64 * n}, v{L}')
        A(f'v_mul_u32_u24 v{T1}, 6554, v{T0}')
        A(f'v_lshrrev_b32 v{T1}, 16, v{T1}')
        A(f'v_mul_u32_u24 v{VOS + n}, 10, v{T1}')
        A(f'v_sub_u32 v{T0}, v{T0}, v{VOS + n}')
        A(f'v_mul_u32_u24 v{T1}, 1280, v{T1}')
        A(f'v_lshl_add_u32 v{VOS + n}, v{T0}, 4, v{T1}')

    S_CB, S_R0 = S_ST + 10, S_ST + 11
    S_SO = S_ST + 12
    S_PQ, S_PK, S_PV, S_PO = S_ST + 14, S_ST + 16, S_ST + 18, S_ST + 20
    A(f's_load_dwordx2 s[{S_PQ}:{S_PQ + 1}], s[0:1], {KA_WQ}')
    A(f's_load_dwordx2 s[{S_PK}:{S_PK + 1}], s[0:1], {KA_WK}')
    A(f's_load_dwordx2 s[{S_PV}:{S_PV + 1}], s[0:1], {KA_WV}')
    A(f's_load_dwordx2 s[{S_PO}:{S_PO + 1}], s[0:1], {KA_WO}')
    A(f's_lshl_b32 s{S_CB}, s{S_H}, 8')
    A(f's_lshl_b32 s{S_TMP}, s{S_WV}, 6')
    A(f's_add_u32 s{S_CB}, s{S_CB}, s{S_TMP}')
    A('s_waitcnt lgkmcnt(0)')
    WBYTES = 640 * 8192
    cur = [None]

    def use(ptr):
        if cur[0] != ptr:
            A.srd(S_W, ptr, ptr + 1, WBYTES)
            cur[0] = ptr

    def dma_slot(ptr, sig, pos):
        use(ptr)
        A(f's_cmp_eq_u32 s{S_T}, 0')
        A(f's_cselect_b32 s{S_SO}, {sig}, {(sig + 5) % 10}')
        A(f's_lshl_b32 s{S_SO}, s{S_SO}, 19')
        A(f's_add_u32 s{S_SO}, s{S_SO}, s{S_CB}')
        tok = None
        for n in range(4):
            A(f's_add_u32 m0, s{S_TMP2}, {pos * 4096 + n * 1024}')
            tok = A(f'buffer_load_dwordx4 v{VSRC}, s[{S_W}:{S_W + 3}], s{S_SO} offen lds')
            if n < 3:
                A(f's_add_u32 s{S_SO}, s{S_SO}, {16 * 8192}')
        return tok

    def read_slot(tok, pos, dests):
        A.wait(tok)
        for tau in range(2):
            for u in range(4):
                off = pos * 4096 + (32 * (u >> 1) + 2 * (u & 1)) * 64 + tau * 32
                A(f'ds_read_b64_tr_b16 {wr(dests[tau] + 2 * u, 2)}, v{VB} offset:{off}')

    WOS = 0

    def dma_wo():
        use(S_PO)
        A(f's_mul_i32 s{S_SO}, s{S_H}, 163840')
        A(f's_mul_i32 s{S_TMP}, s{S_T}, 640')
        A(f's_add_u32 s{S_SO}, s{S_SO}, s{S_TMP}')
        A(f's_mul_i32 s{S_TMP}, s{S_WV}, 160')
        A(f's_add_u32 s{S_SO}, s{S_SO}, s{S_TMP}')
        tok = []
        for blk in range(4):
            for n in range(5):
                A(f's_add_u32 m0, s{S_TMP2}, {WOS + (blk * 5 + n) * 1024}')
                t = A(f'buffer_load_dwordx4 v{VOS + n}, s[{S_W}:{S_W + 3}], s{S_SO} offen lds')
            tok.append(t)
            if blk < 3:
                A(f's_add_u32 s{S_SO}, s{S_SO}, {32 * 1280}')
        return tok

    def put_block(reg, blk):
        for hf in range(2):
            A(f'ds_write_b128 v{V_L16}, v[{reg + 4 * hf}:{reg + 4 * hf + 3}] offset:{blk * 2048 + hf * 1024}')

    park = {b: TB + 8 * (BLK_OF[b] - 10) for b in LDS_BLOCKS[10:]}

    def dest_of(b):
        return REG_OF[b] if b in REG_OF else park[b]

    ptrs = {'q': S_PQ, 'k': S_PK, 'v': S_PV}
    stream = [('q', x) for x in range(10)] + [('k', x) for x in range(10)] + [('v', x) for x in range(5, 10)]
    tk = {}
    for i in range(8):
        tk[i] = dma_slot(ptrs[stream[i][0]], stream[i][1], i % 8)
    pos_of = {i: i % 8 for i in range(24)}
    pos_of[24] = 5
    tko = None
    for i in range(25):
        m, sig = stream[i]
        read_slot(tk[i], pos_of[i], [dest_of((m, sig, 0)), dest_of((m, sig, 1))])
        A.wait_lg0()
        if i + 8 < 24:
            tk[i + 8] = dma_slot(ptrs[stream[i + 8][0]], stream[i + 8][1], i % 8)
        if i == 20:
            tko = dma_wo()
        if i == 21:
            tk[24] = dma_slot(S_PV, stream[24][1], 5)
    for k2 in range(2):
        A.wait(tko[2 * k2 + 1])
        for tau in range(5):
            d = dest_of(('o', k2, tau))
            for u in range(4):
                off = WOS + (64 * k2 + 32 * (u >> 1) + 2 * (u & 1)) * 160 + tau * 32
                A(f'ds_read_b64_tr_b16 {wr(d + 2 * u, 2)}, v{VBO} offset:{off}')
    A.wait_lg0()
    tv = {sig: dma_slot(S_PV, sig, sig) for sig in range(5)}
    for b in LDS_BLOCKS[10:]:
        put_block(park[b], BLK_OF[b])
    A.wait_lg0()
    for sig in range(5):
        read_slot(tv[sig], sig, [TB, TB + 8])
        A.wait_lg0()
        put_block(TB, 2 * sig); put_block(TB + 8, 2 * sig + 1)
        A.wait_lg0()

    A(f's_load_dwordx2 s[{S_PQ}:{S_PQ + 1}], s[0:1], {KA_MEM0}')
    A('s_waitcnt lgkmcnt(0)')
    A.lg_done = A.lg_issued
    A.srd(S_W, S_PQ, S_PQ + 1, 8 * 1280)
    cur[0] = None
    for j in range(3):
        A(f's_mul_i32 s{S_TMP}, s{S_WV}, 160')
        A(f's_add_u32 s{S_TMP}, s{S_TMP}, {64 * j}')
        A(f'v_add_u32 v{T0}, s{S_TMP}, v{L}')
        A(f'v_lshrrev_b32 v{T1}, 3, v{T0}')
        A(f's_mul_i32 s{S_TMP + 1}, s{S_T}, 40')
        A(f'v_add_u32 v{T1}, s{S_TMP + 1}, v{T1}')
        A(f'v_subrev_u32 v24, 80, v{T1}')
        A(f'v_min_u32 v{T1}, v{T1}, v24')
        A(f'v_lshlrev_b32 v{T1}, 4, v{T1}')
        A(f'v_and_b32 v24, 7, v{T0}')
        A(f'v_mul_u32_u24 v24, 1280, v24')
        A(f'v_add_u32 v{T1}, v{T1}, v24')
        A(f'v_lshlrev_b32 v{T0}, 4, v{T0}')
        A(f'v_add_u32 v{T0}, {MEMB}, v{T0}')
        if j == 2:
            A(f's_mov_b64 exec, s[{S_MLO}:{S_MLO + 1}]')
        t = A(f'buffer_load_dwordx4 v[32:35], v{T1}, s[{S_W}:{S_W + 3}], 0 offen')
        A.wait(t)
        A(f'ds_write_b128 v{T0}, v[32:35]')
        if j == 2:
            A('s_mov_b64 exec, -1')
        A.wait_lg0()

    if coarse:
        A('s_memrealtime s[82:83]')
        A('s_waitcnt lgkmcnt(0)')
        A('s_mov_b32 s81, s82')
    lp = A.newlabel('L_mode')
    ld = A.newlabel('L_mode_done')
    A(f'v_mov_b32 v{T0}, 0')
    A.flush_hazards()
    A.label(lp)
    A(f'buffer_load_dwordx2 v[24:25], off, s[{S_DBG}:{S_DBG + 3}], 0 offset:128 sc1')
    A.wait_vm0()
    A(f'v_readfirstlane_b32 s{S_ST}, v24')
    A(f'v_readfirstlane_b32 s{S_ST + 1}, v25')
    A(f's_and_b32 s{S_TMP}, s{S_ST}, s{S_ST + 1}')
    A(f's_bitcmp1_b32 s{S_TMP}, 5')
    A.branch(f's_cbranch_scc1 {ld}')
    A('s_sleep 4')
    A(f's_add_u32 s{S_SPIN}, s{S_SPIN}, 1')
    A(f's_cmp_lt_u32 s{S_SPIN}, {SPIN_LIMIT}')
    A.branch(f's_cbranch_scc1 {lp}')
    A.branch(f's_branch {abort_label}')
    A.label(ld)
    A(f's_mov_b32 s{S_FAST}, {0 if force_safe else 1}')
    for t_ in range(2):
        A(f's_bfe_u32 s{S_TMP}, s{S_ST + t_}, 0xa0006')
        A(f's_mul_i32 s{S_TMP}, s{S_TMP}, s{S_TMP}')
        A(f's_bfe_u32 s{S_TMP + 1}, s{S_ST + t_}, 0xe0010')
        A(f's_lshl_b32 s{S_TMP + 1}, s{S_TMP + 1}, 5')
        A(f's_cmp_eq_u32 s{S_TMP}, s{S_TMP + 1}')
        A(f's_cselect_b32 s{S_FAST}, s{S_FAST}, 0')
    A(f's_bfe_u32 s{S_TMP}, s{S_ST}, 0x1001e')
    A(f's_lshl_b32 s{S_TMP}, s{S_TMP}, 13')
    A(f's_add_u32 s{S_PREM}, s{S_PREM}, s{S_TMP}')
    A(f's_add_u32 s{S_PUBR}, s{S_PUBR}, s{S_TMP}')
    if mega:
        lp2 = A.newlabel('L_init'); ld2 = A.newlabel('L_init_done')
        A.label(lp2)
        A(f'buffer_load_dword v24, v{T0}, s[{S_DBG}:{S_DBG + 3}], 0 offen offset:28 sc1')
        A.wait_vm0()
        A(f'v_readfirstlane_b32 s{S_TMP}, v24')
        A(f's_cmp_ge_u32 s{S_TMP}, 128')
        A.branch(f's_cbranch_scc1 {ld2}')
        A('s_sleep 4')
        A(f's_add_u32 s{S_SPIN}, s{S_SPIN}, 1')
        A(f's_cmp_lt_u32 s{S_SPIN}, {SPIN_LIMIT}')
        A.branch(f's_cbranch_scc1 {lp2}')
        A.branch(f's_branch {abort_label}')
        A.label(ld2)
        lp3 = A.newlabel('L_tab'); ld3 = A.newlabel('L_tab_done')
        A.label(lp3)
        A(f'buffer_load_dword v24, off, s[{S_DBG}:{S_DBG + 3}], 0 offset:160 sc1')
        A.wait_vm0()
        A(f'v_readfirstlane_b32 s{S_TMP}, v24')
        A(f's_cmp_ge_u32 s{S_TMP}, 64')
        A.branch(f's_cbranch_scc1 {ld3}')
        A('s_sleep 4')
        A(f's_add_u32 s{S_SPIN}, s{S_SPIN}, 1')
        A(f's_cmp_lt_u32 s{S_SPIN}, {SPIN_LIMIT}')
        A.branch(f's_cbranch_scc1 {lp3}')
        A.branch(f's_branch {abort_label}')
        A.label(ld3)
        A(f'buffer_load_dwordx4 v[24:27], off, s[{S_DBG}:{S_DBG + 3}], 0 offset:144 sc1')
        A.wait_vm0()
        for i_ in range(4):
            A(f'v_readfirstlane_b32 s{S_ST + i_}, v{24 + i_}')
        A(f's_cmp_eq_u32 s{S_T}, 0')
        A(f's_cselect_b64 s[{S_TABW}:{S_TABW + 1}], s[{S_ST}:{S_ST + 1}], s[{S_ST + 2}:{S_ST + 3}]')
        A(f's_cselect_b64 s[{S_TABR}:{S_TABR + 1}], s[{S_ST + 2}:{S_ST + 3}], s[{S_ST}:{S_ST + 1}]')
    else:
        A(f's_mov_b64 s[{S_TABW}:{S_TABW + 1}], 0')
        A(f's_mov_b64 s[{S_TABR}:{S_TABR + 1}], 0')
    A(f's_mov_b32 s{S_PREM0}, s{S_PREM}')
    A(f's_mov_b32 s{S_PUBR0}, s{S_PUBR}')

    def next_pages():
        A(f's_lshr_b64 s[{S_TABW}:{S_TABW + 1}], s[{S_TABW}:{S_TABW + 1}], 1')
        A(f's_lshr_b64 s[{S_TABR}:{S_TABR + 1}], s[{S_TABR}:{S_TABR + 1}], 1')
        A(f's_add_u32 s{S_PREM0}, s{S_PREM0}, 32768')
        A(f's_and_b32 s{S_TMP}, s{S_TABR}, 1')
        A(f's_lshl_b32 s{S_TMP}, s{S_TMP}, 13')
        A(f's_add_u32 s{S_PREM}, s{S_PREM0}, s{S_TMP}')
        A(f's_and_b32 s{S_TMP}, s{S_TABW}, 1')
        A(f's_lshl_b32 s{S_TMP}, s{S_TMP}, 13')
        A(f's_add_u32 s{S_PUBR}, s{S_PUBR0}, s{S_TMP}')
        A(f's_add_u32 s{S_PUBR0}, s{S_PUBR0}, 32768')

    WS = f's[{S_WS}:{S_WS + 3}]'

    def issue_kx_vx():
        A(f's_lshl_b32 s{S_TMP}, s{S_WV}, 11')
        A(f's_add_u32 m0, s{S_TMP}, {KXB}')
        for n in range(2):
            A(f'buffer_load_dwordx4 v{V_L16}, {WS}, s{S_KX} offen offset:{n * 1024} sc1 lds')
        if 'nokvt' not in dbg:
            A(f's_add_u32 s{S_KX}, s{S_KX}, {32 * 8192}')

    deferred = []

    def kv_wait(need_plus):
        if not mega:
            return
        lp = A.newlabel('L_kv'); ls = A.newlabel('L_kvs')
        A.label(lp)
        A(f's_add_u32 s{S_TMP}, s{S_STEP}, {need_plus}')
        A(f's_cmp_ge_u32 s{S_TMP}, s{S_RDY}')
        A(f's_cbranch_scc1 {ls}')

        def slow():
            A.label(ls)
            A(f'v_lshlrev_b32 v{T0}, 9, v{L}')
            A(f'buffer_load_dwordx2 v[{T1}:{T0}], v{T0}, {WS}, s{S_FKV} offen sc1')
            A('s_waitcnt vmcnt(0)')
            A(f'v_and_b32 v{T1}, v{T1}, v{T0}')
            A(f'v_cmp_eq_u32 vcc, 1, v{T1}')
            A(f's_ff0_i32_b64 s{S_RDY}, vcc')
            A(f's_min_u32 s{S_RDY}, s{S_RDY}, 65')
            A(f's_add_u32 s{S_SPIN}, s{S_SPIN}, 1')
            A(f's_cmp_lt_u32 s{S_SPIN}, {SPIN_LIMIT}')
            A(f's_cbranch_scc1 {lp}')
            A(f's_branch {abort_label}')
        deferred.append(slow)

    def m_flag():
        if not mega:
            return
        le = A.newlabel('L_mf')
        A(f's_cmp_lg_u32 s{S_WV}, 3')
        A(f's_cbranch_scc1 {le}')
        A(f'v_mov_b32 v{T0}, 1')
        A('s_mov_b64 exec, 1')
        A(f'buffer_store_dword v{T0}, off, {WS}, s{S_FL} sc1')
        A('s_mov_b64 exec, -1')
        A.label(le)
        A(f's_add_u32 s{S_FL}, s{S_FL}, 1024')

    if mega:
        A(f's_lshl_b32 s{S_TMP}, s{S_H}, 4')
        A(f's_add_u32 s{S_FKV}, s{S_TMP}, {F_P:#x}')
        A(f's_mov_b32 s{S_RDY}, 0')
        A(f's_lshl_b32 s{S_TMP}, s{S_H}, 5')
        A(f's_lshl_b32 s{S_TMP + 1}, s{S_T}, 2')
        A(f's_add_u32 s{S_FL}, s{S_TMP}, s{S_TMP + 1}')
        A(f's_add_u32 s{S_FL}, s{S_FL}, {F_M - 1024:#x}')
    A(f's_mov_b32 s{S_STEP}, 0')

    def touch_prep():
        A(f's_add_u32 s{S_TA}, s{S_PLOC}, {MEMB + 10240}')
        A(f's_bfe_u32 s{S_TMP}, s{S_TABR}, 0x10001')
        A(f's_lshl_b32 s{S_TMP}, s{S_TMP}, 13')
        A(f's_add_u32 s{S_TMP}, s{S_TMP}, s{S_PREM0}')
        A(f's_add_u32 s{S_TMP}, s{S_TMP}, {MEMB + 32768}')
        A(f's_cmp_eq_u32 s{S_WV}, 1')
        A(f's_cselect_b32 s{S_TA}, s{S_TMP}, s{S_TA}')
        A(f's_add_u32 s{S_TMP}, s{S_KX}, {2 * VREG - 2 * 2048}')
        A(f's_cmp_eq_u32 s{S_WV}, 2')
        A(f's_cselect_b32 s{S_TA}, s{S_TMP}, s{S_TA}')
        A(f's_add_u32 s{S_TMP}, s{S_KX}, {3 * VREG - 3 * 2048 + WS_VX - WS_KX:#x}')
        A(f's_cmp_eq_u32 s{S_WV}, 3')
        A(f's_cselect_b32 s{S_TA}, s{S_TMP}, s{S_TA}')
        A(f's_cmp_lt_u32 s{S_WV}, 2')
        A(f's_cselect_b32 s{S_TMP}, 39, 63')
        A(f'v_min_u32 v{V_T2}, s{S_TMP}, v{L}')
        A(f'v_lshlrev_b32 v{V_T2}, 7, v{V_T2}')

    def touch():
        A(f'buffer_load_dword v{V_T2}, v{V_T2}, {WS}, s{S_TA} offen sc1')

    def kv_refresh(after):
        if not mega:
            return
        le = A.newlabel('L_kr')
        A(f's_add_u32 s{S_TMP}, s{S_STEP}, 6')
        A(f's_min_u32 s{S_TMP}, s{S_TMP}, 65')
        A(f's_cmp_ge_u32 s{S_RDY}, s{S_TMP}')
        A(f's_cbranch_scc1 {le}')
        A(f'v_lshlrev_b32 v{T0}, 9, v{L}')
        A(f'buffer_load_dwordx2 v[{T1}:{T0}], v{T0}, {WS}, s{S_FKV} offen sc1')
        A('s_waitcnt vmcnt(0)')
        A(f'v_and_b32 v{T1}, v{T1}, v{T0}')
        A(f'v_cmp_eq_u32 vcc, 1, v{T1}')
        A(f's_ff0_i32_b64 s{S_RDY}, vcc')
        A(f's_min_u32 s{S_RDY}, s{S_RDY}, 65')
        A(f's_branch {after}')
        A.label(le)

    kv_wait(0)
    if mega:
        assert kxlate
        A(f's_cmp_eq_u32 s{S_WV}, 2')
        A(f's_cselect_b32 s{S_RDY}, s{S_RDY}, 65')
    issue_kx_vx()
    touch_prep()
    A(f's_mov_b32 s{S_STEP}, 0')
    A.wait_all()
    if stamps:
        A(f's_lshl_b32 s{S_TMP}, s{S_H}, 3')
        A(f's_lshl_b32 s{S_TMP + 1}, s{S_T}, 2')
        A(f's_add_u32 s{S_TMP}, s{S_TMP}, s{S_TMP + 1}')
        A(f's_add_u32 s{S_TMP}, s{S_TMP}, s{S_WV}')
        A(f's_mul_i32 s{S_STO}, s{S_TMP}, {64 * 64}')
        A(f's_add_u32 s{S_STO}, s{S_STO}, {WS_STAMP:#x}')
    if coarse:
        A('s_memrealtime s[88:89]')
        A('s_memtime s[90:91]')
        A('s_waitcnt lgkmcnt(0)')
    top = A.newlabel('L_step')
    done = A.newlabel('L_rec_done')
    A.flush_hazards()
    if align is not None:
        A.raw('.p2align 6')
        for _ in range(align):
            A('s_nop 0')
    A.label(top)
    A.forget()

    def fifth(base):
        return 15 if base == 16 else base + 4

    def poll_issue(soff, base):
        A(f'buffer_load_dwordx4 v[{base}:{base + 3}], v{V_P4}, {WS}, s{soff} offen sc1')
        A(f'buffer_load_dword v{fifth(base)}, v{V_P1}, {WS}, s{soff} offen sc1')

    def poll_loop(soff, bases, half, preissued, gap=0):
        k = len(bases)
        lp = A.newlabel('L_poll'); ld = A.newlabel('L_polld')
        if not preissued:
            for j, b in enumerate(bases):
                poll_issue(soff, b)
                if gap and j < k - 1:
                    A(f's_nop {gap}')
        A.label(lp)
        wins = []
        for j, base in enumerate(bases):
            A(f's_waitcnt vmcnt({2 * (k - 1)})')
            A(f'v_max3_u32 v{T0}, v{base}, v{base + 1}, v{base + 2}')
            A(f'v_max3_u32 v{T0}, v{T0}, v{base + 3}, v{fifth(base)}')
            A(f'v_cmp_eq_u32 vcc, -1, v{T0}')
            lw = A.newlabel('L_pollw'); wins.append(lw)
            A(f's_cbranch_vccz {lw}')
            poll_issue(soff, base)
        A(f's_add_u32 s{S_SPIN}, s{S_SPIN}, 1')
        A(f's_cmp_lt_u32 s{S_SPIN}, {SPIN_LIMIT}')
        A(f's_cbranch_scc1 {lp}')
        A(f's_branch {abort_label}')
        for j, base in enumerate(bases):
            A.label(wins[j])
            A(f'ds_write_b128 v{V_P4}, v[{base}:{base + 3}] offset:{half * 5120}')
            A(f'ds_write_b32 v{V_P1}, v{fifth(base)} offset:{half * 5120}')
            if j < k - 1:
                A(f's_branch {ld}')
        A.label(ld)

    def a_read(sig, slot):
        return A(f'ds_read_b128 v[{AR + 4 * slot}:{AR + 4 * slot + 3}], v{V_KX} offset:{sig * 1024}')

    def smf(d, a, b):
        A(f'v_smfmac_f32_16x16x64_bf16 v[{d}:{d + 3}], v[{a}:{a + 3}], {wr(b, 8)}, v{V_IDX}')

    def SL(i):
        return 20 + 4 * i

    def blk_load(blk, b):
        A(f'ds_read_b128 v[{b}:{b + 3}], v{V_L16} offset:{blk * 2048}')
        return A(f'ds_read_b128 v[{b + 4}:{b + 7}], v{V_L16} offset:{blk * 2048 + 1024}')

    def zero(base, n):
        for r in range(base, base + n, 2):
            A(f'v_mov_b64 v[{r}:{r + 1}], 0')

    def poll_check(base, lwin):
        A(f'v_max3_u32 v{T0}, v{base}, v{base + 1}, v{base + 2}')
        A(f'v_max3_u32 v{T0}, v{T0}, v{base + 3}, v{fifth(base)}')
        A(f'v_cmp_eq_u32 vcc, -1, v{T0}')
        A(f's_cbranch_vccz {lwin}')

    def poll_put(base, half):
        A(f'ds_write_b128 v{V_P4}, v[{base}:{base + 3}] offset:{half * 5120}')
        A(f'ds_write_b32 v{V_P1}, v{fifth(base)} offset:{half * 5120}')

    stamp(0)
    zero(Q0, 24)
    lseq = [(m, sig, tau) for sig in range(5) for (m, tau) in (('v', 0), ('q', 0), ('k', 1), ('q', 1), ('v', 1), ('k', 0))]
    lfed = [b for b in lseq if b in BLK_OF]
    LR = [64, 72, 56]
    wt = {}; wreg_ = {}
    nl = [0]

    def lnext(reg):
        if nl[0] < len(lfed):
            b = lfed[nl[0]]; nl[0] += 1
            wt[b] = blk_load(BLK_OF[b], reg); wreg_[b] = reg

    lnext(LR[0]); lnext(LR[1])
    l_s0a = A.newlabel('L_s0a')
    A(f's_cmp_eq_u32 s{S_STEP}, 0' if cut is None else 's_cmp_eq_u32 0, 0')
    A(f's_cbranch_scc1 {l_s0a}')
    poll_loop(S_PLOC, [PL, VXR, 16][:kb], 0, False, gap=bgap)
    A.label(l_s0a)
    A.wait_lg0()
    A('s_barrier')
    stamp(1)
    at = {}

    ACC = {'q': Q0, 'k': K0, 'v': VV0}

    def local_slot(sig):
        a = AR + 4 * (sig % 3)
        A.wait(at[sig])
        for b in lseq[6 * sig:6 * sig + 6]:
            m, _, tau = b
            if b in BLK_OF:
                A.wait(wt[b])
                smf(ACC[m] + 4 * tau, a, wreg_[b])
                lnext(wreg_[b])
            else:
                smf(ACC[m] + 4 * tau, a, REG_OF[b])
        if sig + 3 < 5:
            at[sig + 3] = a_read(sig + 3, sig % 3)

    RS = [80, 56, 16][:kb]
    for j in range(3):
        at[j] = a_read(j, j)
    for sig in range(4):
        if sig == rp[0]:
            poll_issue(S_PREM, RS[0])
        if sig == rp[1]:
            poll_issue(S_PREM, RS[1])
        local_slot(sig)
    stamp(2)
    rslot = [0, 2, 3, 4, 1]
    l_s0 = A.newlabel('L_rs0')
    A(f's_cmp_eq_u32 s{S_STEP}, 0' if cut is None else 's_cmp_eq_u32 0, 0')
    A(f's_cbranch_scc1 {l_s0}')
    hs_ = [h_ for h_ in A.hist if h_.kind in ('mfma', 'valu')]
    for b_ in RS[2:]:
        poll_issue(S_PREM, b_)
    poll_loop(S_PREM, RS, 1, True)
    A.label(l_s0)
    A.hist = hs_
    A.wait_lg0()
    A('s_barrier')
    for j in range(2):
        at[5 + j] = a_read(5 + j, rslot[j])
    local_slot(4)
    at[9] = a_read(9, rslot[4])
    A.wait_vm0()
    hs_ = [h_ for h_ in A.hist if h_.kind in ('mfma', 'valu')]
    m_flag()
    A.hist = hs_
    for j in range(2, 4):
        at[5 + j] = a_read(5 + j, rslot[j])
    stamp(3)
    A(f's_add_u32 s{S_PLOC}, s{S_PLOC}, 10240')
    npg = []
    _op = A.op
    A.op = lambda t: npg.append(t)
    A.__class__.__call__ = lambda self, t: self.op(t)
    next_pages()
    A.op = _op
    RA = [AR + 4 * rslot[j] for j in range(5)]

    def halfsum_ops(x, y, off):
        ops = []
        for r in range(4):
            ops.append(f'v_permlane32_swap_b32 v{x + r}, v{y + r}')
        for r in range(0, 4, 2):
            ops.append(f'v_pk_add_f32 v[{x + r}:{x + r + 1}], v[{x + r}:{x + r + 1}], v[{y + r}:{y + r + 1}]')
        ops.append(f'v_cvt_pk_bf16_f32 v{y}, v{x}, v{x + 1}')
        ops.append(f'v_cvt_pk_bf16_f32 v{y + 1}, v{x + 2}, v{x + 3}')
        if off is not None:
            ops.append(f'ds_write_b64 v{V_QKW}, v[{y}:{y + 1}] offset:{off}')
        return ops

    VM, VMA, VMB = VV1, VV0, VV0 + 2
    def pub_read(tmp):
        t = None
        A(f'v_add_u32 v{tmp + 3}, s{S_W512}, v{V_QKR}')
        for rho in range(2):
            t = A(f'ds_read_b64_tr_b16 v[{tmp + 2 * rho}:{tmp + 2 * rho + 1}], v{tmp + 3} offset:{2048 + rho * 256}')
        return t

    def pub_sel(tmp):
        return [f'v_cndmask_b32 v{tmp + r}, v{tmp + r}, v{VM + r}, s[{S_TMASK}:{S_TMASK + 1}]' for r in range(2)]

    def pub_store(tmp):
        if 'nopub' not in dbg:
            A(f'buffer_store_dwordx4 v[{tmp}:{tmp + 3}], v{V_L16}, {WS}, s{S_KM} offen sc1' + (' nt' if 'pubnt' in dbg else ''))
            A(f's_add_u32 s{S_KM}, s{S_KM}, {32 * 4096}')

    QFR = [SL(0), SL(1), SL(11), SL(12)]
    S0, S1 = SL(15), SL(16)
    qt = {}; xt = {}; xreg = {}; last = [None]

    def xread(i, b):
        kap, kt_ = i >> 1, i & 1
        xt[i] = A(f'ds_read_b128 v[{b}:{b + 3}], v{V_KX} offset:{KXB - MEMB + (kt_ * 4 + kap) * 1024}')
        xreg[i] = b

    def trread(b, off):
        t = None
        for rho in range(2):
            t = A(f'ds_read_b64_tr_b16 v[{b + 2 * rho}:{b + 2 * rho + 1}], v{V_QKR} offset:{off + rho * 256}')
        return t

    def take(fl, n):
        for _ in range(n):
            if fl:
                t = A(fl.pop(0))
                if t:
                    last[0] = t

    def ksm(i):
        smf(K0 + 4 * (i & 1), RA[i >> 1], REG_OF['k', 5 + (i >> 1), i & 1])

    def vsm(n):
        smf(VV0 + 4 * (n & 1), RA[(n - 10) // 2], REG_OF['v', n >> 1, n & 1])

    def xsm(i):
        kap, kt_ = i >> 1, i & 1
        acc = (S0, S1)[kt_]
        A.wait(qt[kap], xt[i])
        c = '0' if kap == 0 else f'v[{acc}:{acc + 3}]'
        A(f'v_mfma_f32_16x16x32_bf16 v[{acc}:{acc + 3}], v[{xreg[i]}:{xreg[i] + 3}], v[{QFR[kap]}:{QFR[kap] + 3}], {c}')

    for n_, j in enumerate((0, 1, 4, 2, 3)):
        A.wait(at[5 + j])
        smf(Q0, RA[j], REG_OF['q', 5 + j, 0])
        if n_ < 2:
            take(npg, 3)
        if n_ == 1:
            xread(0, SL(13))
        if n_ == 0:
            A(f'buffer_load_dwordx4 v[{VX0}:{VX0 + 3}], v{V_L16}, {WS}, s{S_VX} offen sc1')
        if n_ == 2:
            touch()
        smf(Q1, RA[j], REG_OF['q', 5 + j, 1])
        if n_ < 2:
            take(npg, 2)
        if n_ == 0:
            A(f'buffer_load_dwordx4 v[{VX1}:{VX1 + 3}], v{V_L16}, {WS}, s{S_VX} offen offset:1024 sc1')
        if n_ == 1:
            xread(1, SL(14))
    fill = halfsum_ops(Q0, Q1, 0)
    ksm(0); ksm(1); ksm(2); ksm(3)
    for i in range(4, 8):
        take(fill, 1); ksm(i)
    take(fill, 3); ksm(8); take(fill, 2); assert not fill
    qw = last[0]
    ksm(9)
    stamp(4)
    vsm(10); vsm(11)
    xread(2, RA[0])
    vsm(12)
    A.wait(qw)
    A('s_barrier')
    qt[0] = trread(QFR[0], 0)
    fill = halfsum_ops(K0, K1, 2048)
    vsm(13); take(fill, 2)
    xread(3, RA[1])
    vsm(14); take(fill, 2)
    vsm(15); take(fill, 3)
    xsm(0); take(fill, 2); assert not fill
    kw = last[0]
    qt[1] = trread(QFR[1], 512)
    xsm(1); xread(4, xreg[0])
    vsm(16); xread(5, xreg[1])
    qt[2] = trread(QFR[2], 1024)
    vsm(17)
    qt[3] = trread(QFR[3], 1536)
    xsm(2); xread(6, xreg[2])
    xsm(3); xread(7, xreg[3])
    xsm(4)
    if kxlate:
        A.wait(kw)
    else:
        A.wait_lg0()
    A('s_barrier')
    stamp(5)
    KF = [SL(2), SL(3), RA[2], RA[3]]
    kt = {}
    kt[0] = trread(KF[0], 2048)
    kt[1] = trread(KF[1], 2048 + 512)
    xsm(5)
    kt[2] = trread(KF[2], 2048 + 1024)
    xsm(6)
    kt[3] = trread(KF[3], 2048 + 1536)
    xsm(7)
    PUBT = xreg[4]
    pbt = pub_read(PUBT)
    vsm(18)
    hs_ = [h_ for h_ in A.hist if h_.kind in ('mfma', 'valu')]
    kv_wait(1)
    A.hist = hs_
    if not kxlate:
        issue_kx_vx()
    vsm(19)
    Sm = xreg[6]
    stamp(6)
    VM, VMA, VMB = VV1, VV0, VV0 + 2
    M_, M2 = T1, T0

    def msm(kap):
        b = KF[kap]
        A.wait(qt[kap], kt[kap])
        c = '0' if kap == 0 else f'v[{Sm}:{Sm + 3}]'
        A(f'v_mfma_f32_16x16x32_bf16 v[{Sm}:{Sm + 3}], v[{b}:{b + 3}], v[{QFR[kap]}:{QFR[kap] + 3}], {c}')

    fx = [f'v_max3_f32 v{M_}, v{S0}, v{S0 + 1}, v{S0 + 2}',
          f'v_max3_f32 v{M2}, v{S0 + 3}, v{S1}, v{S1 + 1}',
          f'v_max3_f32 v{M_}, v{M_}, v{S1 + 2}, v{S1 + 3}',
          f'v_max_f32 v{M_}, v{M_}, v{M2}',
          f'v_mov_b32 v{M2}, v{M_}']
    fv = halfsum_ops(VV0, VV1, None)
    for r in range(2):
        fv.append(f'v_cndmask_b32 v{VMA + r}, 0, v{VM + r}, s[{S_MLO}:{S_MLO + 1}]')
        fv.append(f'v_cndmask_b32 v{VMB + r}, v{VM + r}, 0, s[{S_MLO}:{S_MLO + 1}]')
    msm(0); take(fx, 2)
    A('s_waitcnt vmcnt(1)')
    msm(1)
    take(fx, 3); msm(2); take(fv, 1)
    if 'nokvt' not in dbg:
        A(f's_add_u32 s{S_VX}, s{S_VX}, {32 * 8192}')
    msm(3)
    A(f'v_permlane32_swap_b32 v{M_}, v{M2}')
    A(f'v_max_f32 v{M_}, v{M_}, v{M2}')
    A.wait(pbt)
    take(fv, 7)
    take(pub_sel(PUBT), 2)
    if cut is None:
        A(f's_cmp_eq_u32 s{S_STEP}, {nsteps - 1}')
        A(f's_cbranch_scc1 {done}')
    stamp(7)

    used = {Sm, S0, S1, VV0, VV1}
    free = [SL(i) for i in range(17) if SL(i) not in used]
    P01, PM, O0, O1 = SL(2), SL(3), SL(0), SL(1)
    for x in (P01, PM, O0, O1):
        free.remove(x)
    free.remove(PUBT)
    ONES, LS = free[0], free[1]
    OAS = free[2:7]
    zf = [f'v_mov_b64 v[{r}:{r + 1}], 0' for x in OAS for r in (x, x + 2)]
    A(f'v_max3_f32 v{M_}, v{M_}, v{Sm}, v{Sm + 1}')
    A(f'v_max3_f32 v{M_}, v{M_}, v{Sm + 2}, v{Sm + 3}')
    A(f'v_mov_b32 v{M2}, v{M_}')
    take(fv, 2)
    A(f'v_permlane16_swap_b32 v{M_}, v{M2}')
    A(f'v_max_f32 v{M_}, v{M_}, v{M2}')
    A(f'v_mul_f32 v{M_}, s{S_C}, v{M_}')

    def pkf(x):
        A(f'v_pk_fma_f32 v[{x}:{x + 1}], v[{x}:{x + 1}], s[{S_C - 1}:{S_C}], v[{M_}:{M_ + 1}] op_sel:[0,1,0] op_sel_hi:[1,1,0] neg_lo:[0,0,1] neg_hi:[0,0,1]')
    assert S_C % 2 == 1 and M_ % 2 == 0
    xs = [S0 + r for r in range(4)] + [S1 + r for r in range(4)]
    for j in range(4):
        pkf(xs[2 * j])
    for x in xs:
        A(f'v_exp_f32 v{x}, v{x}')
    pkf(Sm); pkf(Sm + 2)
    for j in range(4):
        A(f'v_cvt_pk_bf16_f32 v{P01 + j}, v{xs[2 * j]}, v{xs[2 * j + 1]}')
    A(f'v_exp_f32 v{Sm}, v{Sm}')
    A(f'v_exp_f32 v{Sm + 1}, v{Sm + 1}')
    A(f'v_mfma_f32_16x16x32_bf16 v[{O0}:{O0 + 3}], v[{VX0}:{VX0 + 3}], v[{P01}:{P01 + 3}], 0')
    pub_store(PUBT)
    A(f'v_exp_f32 v{Sm + 2}, v{Sm + 2}')
    A(f'v_mov_b64 v[{ONES}:{ONES + 1}], s[{S_ONE}:{S_ONE + 1}]')
    A(f'v_mfma_f32_16x16x32_bf16 v[{O1}:{O1 + 3}], v[{VX1}:{VX1 + 3}], v[{P01}:{P01 + 3}], 0')
    A(f'v_exp_f32 v{Sm + 3}, v{Sm + 3}')
    A(f'v_mov_b64 v[{ONES + 2}:{ONES + 3}], s[{S_ONE}:{S_ONE + 1}]')
    A(f'v_cvt_pk_bf16_f32 v{PM}, v{Sm}, v{Sm + 1}')
    A(f'v_cvt_pk_bf16_f32 v{PM + 1}, v{Sm + 2}, v{Sm + 3}')
    A(f'v_mfma_f32_16x16x32_bf16 v[{LS}:{LS + 3}], v[{ONES}:{ONES + 3}], v[{P01}:{P01 + 3}], 0')
    take(fv, 9)
    A(f'v_mov_b64 v[{PM + 2}:{PM + 3}], s[{S_HALF}:{S_HALF + 1}]')
    A(f'v_xor_b32 v{M2}, 32, v{V_OW0}')
    A(f'v_mfma_f32_16x16x16_bf16 v[{LS}:{LS + 3}], v[{PM + 2}:{PM + 3}], v[{PM}:{PM + 1}], v[{LS}:{LS + 3}]')
    take(zf, 2)
    A(f'v_mfma_f32_16x16x16_bf16 v[{O0}:{O0 + 3}], v[{VMA}:{VMA + 1}], v[{PM}:{PM + 1}], v[{O0}:{O0 + 3}]')
    take(zf, 2)
    A(f'v_mfma_f32_16x16x16_bf16 v[{O1}:{O1 + 3}], v[{VMB}:{VMB + 1}], v[{PM}:{PM + 1}], v[{O1}:{O1 + 3}]')
    take(zf, 2)
    A(f'v_rcp_f32 v{M_}, v{LS}')
    take(zf, 9)
    for tau in range(2):
        o = O0 + 4 * tau
        for r in (0, 2):
            A(f'v_pk_mul_f32 v[{o + r}:{o + r + 1}], v[{o + r}:{o + r + 1}], v[{M_}:{M_ + 1}] op_sel_hi:[1,0]')
        A(f'v_cvt_pk_bf16_f32 v{o}, v{o}, v{o + 1}')
        A(f'v_cvt_pk_bf16_f32 v{o + 1}, v{o + 2}, v{o + 3}')
        owt = A(f'ds_write_b64 v{V_OW0 if tau == 0 else M2}, v[{o}:{o + 1}]')
    A.wait(owt)
    A('s_barrier')
    stamp(8)
    OF = [O0, O1]
    G0, G1, X4 = P01, PM, ONES

    def post(n):
        x, y = OAS[2 * n], OAS[2 * n + 1]
        ops = [f'v_permlane32_swap_b32 v{x + r}, v{y + r}' for r in range(4)]
        ops += [f'v_pk_add_f32 v[{x + r}:{x + r + 1}], v[{x + r}:{x + r + 1}], v[{y + r}:{y + r + 1}]' for r in (0, 2)]
        ops += [f'v_cvt_pk_bf16_f32 v{G0 + 2 * n}, v{x}, v{x + 1}', f'v_cvt_pk_bf16_f32 v{G0 + 2 * n + 1}, v{x + 2}, v{x + 3}']
        return ops

    lsafe = A.newlabel('L_psafe'); lpe = A.newlabel('L_pend')

    def outproj(sc):
        x, y = OAS[4], X4
        p4 = [f'v_mov_b64 v[{y}:{y + 1}], v[{x}:{x + 1}]', f'v_mov_b64 v[{y + 2}:{y + 3}], v[{x + 2}:{x + 3}]']
        p4 += [f'v_permlane32_swap_b32 v{x + r}, v{y + r}' for r in range(4)]
        p4 += [f'v_pk_add_f32 v[{x + r}:{x + r + 1}], v[{x + r}:{x + r + 1}], v[{y + r}:{y + r + 1}]' for r in (0, 2)]
        p4 += [f'v_cvt_pk_bf16_f32 v{G1}, v{x}, v{x + 1}', f'v_cvt_pk_bf16_f32 v{G1 + 1}, v{x + 2}, v{x + 3}',
               f'v_mov_b64 v[{G1 + 2}:{G1 + 3}], v[{G1}:{G1 + 1}]']
        worder = [(0, 4), (1, 4), (0, 0), (0, 1), (1, 0), (1, 1), (0, 2), (0, 3), (1, 2), (1, 3)]
        nfill = [0, 0, 0, 0, 0, 0, 2, 1, 1, 2]
        pre = [f'v_and_b32 v{T0}, 0x1fff, v{V_PST}',
               f'v_add_u32 v{V_P4}, s{S_W1280}, v{V_KX}', f'v_lshl_add_u32 v{V_P1}, v{L}, 2, s{S_P1B}']
        for i, (k2, tau) in enumerate(worder):
            if i < 2:
                A(f's_waitcnt lgkmcnt({1 - i})')
            smf(OAS[tau], OF[k2], REG_OF['o', k2, tau])
            if i >= 2:
                take(pre, 1)
            take(p4, nfill[i])
        take(p4, 20)
        take(post(0), 9)
        A(f'v_permlane16_swap_b32 v{G1}, v{G1 + 2}')
        A(f'v_permlane16_swap_b32 v{G1 + 1}, v{G1 + 3}')
        A(f'v_and_or_b32 v{G1}, v{G1}, -2, s{S_PAR}')
        pp = post(1)
        take(pp, 1)
        A(f'buffer_store_dwordx4 v[{G1}:{G1 + 3}], v{T0}, {WS}, s{S_PS1} offen{sc}')
        take(pp, 9)
        A(f'v_permlane16_swap_b32 v{G0}, v{G0 + 2}')
        A(f'v_permlane16_swap_b32 v{G0 + 1}, v{G0 + 3}')
        A(f'v_and_or_b32 v{G0}, v{G0}, -2, s{S_PAR}')
        A(f'buffer_store_dwordx4 v[{G0}:{G0 + 3}], v{V_PST}, {WS}, s{S_PS0} offen{sc}')

    for k2 in range(2):
        A(f'ds_read_b128 v[{OF[k2]}:{OF[k2] + 3}], v{V_OR} offset:{128 * k2}')
    if kxlate:
        issue_kx_vx()
    A(f's_cmp_eq_u32 s{S_FAST}, 0')
    A(f's_cbranch_scc1 {lsafe}')
    saved = list(A.hist)

    def safe_variant():
        A.label(lsafe)
        A.hist = list(saved)
        outproj(' sc1')
        A.branch(f's_branch {lpe}')
    deferred.append(safe_variant)
    outproj('')
    A.lg_done = A.lg_issued
    A.flush_hazards()
    A.label(lpe)
    stamp(9)
    A('s_waitcnt vmcnt(5)')
    touch_prep()
    lnr = A.newlabel('L_nored'); lnr2 = A.newlabel('L_nored2')
    A(f's_cmp_ge_u32 s{S_RED}, 40')
    A(f's_cbranch_scc1 {lnr2}')
    RBS = [20, 44, 60][:ka]
    SEL = 36
    DD = 80
    lp = A.newlabel('L_pa'); lw = A.newlabel('L_paw')

    def pa_issue(RB):
        for j in range(4):
            A(f'buffer_load_dwordx4 v[{RB + 4 * j}:{RB + 4 * j + 3}], v{V_L16}, {WS}, s{S_PA} offen offset:{1024 * j} sc1')
    rebuild_pub()
    A(f'v_and_b32 v{T0}, 1, v{L}')
    A(f'v_lshlrev_b32 v{T0}, 4, v{T0}')
    A(f'v_mov_b32 v{T1}, 0x3f80')
    A(f'v_lshlrev_b32 v{T0}, v{T0}, v{T1}')
    A(f'v_bfe_u32 v{T1}, v{L}, 1, 2')
    for d in range(4):
        A(f'v_cmp_eq_u32 vcc, {d}, v{T1}')
        A(f'v_cndmask_b32 v{SEL + d}, 0, v{T0}, vcc')
    for j, RB in enumerate(RBS):
        if adelay[j]:
            for _ in range(adelay[j]):
                A('s_nop 15')
        pa_issue(RB)

    def tt(f):
        t = 0
        for a_ in range(2):
            for b_ in range(2):
                for c_ in range(2):
                    if f(a_, b_, c_):
                        t |= 1 << ((a_ << 2) | (b_ << 1) | c_)
        return t
    t1 = tt(lambda a, b, c: (a ^ c) | (b ^ c))
    t2 = tt(lambda a, b, c: (a | b) & c)
    A.flush_hazards()
    A.label(lp)
    for RB in RBS:
        A(f's_waitcnt vmcnt({4 * (ka - 1)})')
        chk = [f'v_bitop3_b32 v{T0}, v{RB}, v{RB + 4}, s{S_PAR} bitop3:{t1:#x}',
               f'v_bitop3_b32 v{T1}, v{RB + 8}, v{RB + 12}, s{S_PAR} bitop3:{t1:#x}',
               f'v_bitop3_b32 v{T0}, v{T0}, v{T1}, 1 bitop3:{t2:#x}',
               f'v_cmp_ne_u32 vcc, 0, v{T0}']
        if spec:
            for j in range(4):
                c = '0' if j == 0 else f'v[{DD}:{DD + 3}]'
                A(f'v_mfma_f32_16x16x32_bf16 v[{DD}:{DD + 3}], v[{RB + 4 * j}:{RB + 4 * j + 3}], v[{SEL}:{SEL + 3}], {c}')
                A(chk[j])
            A(f's_cbranch_vccz {lw}')
        else:
            for j in range(4):
                A(chk[j])
            A(f's_cbranch_vccz {lw}_{RB}')
        pa_issue(RB)
    A(f's_add_u32 s{S_SPIN}, s{S_SPIN}, 1')
    A(f's_cmp_lt_u32 s{S_SPIN}, {SPIN_LIMIT}')
    A(f's_cbranch_scc1 {lp}')
    A(f's_branch {abort_label}')
    if not spec:
        for RB in RBS:
            A.label(f'{lw}_{RB}')
            for j in range(4):
                c = '0' if j == 0 else f'v[{DD}:{DD + 3}]'
                A(f'v_mfma_f32_16x16x32_bf16 v[{DD}:{DD + 3}], v[{RB + 4 * j}:{RB + 4 * j + 3}], v[{SEL}:{SEL + 3}], {c}')
            A(f's_branch {lw}')
    A.label(lw)
    A('s_nop 6')
    stamp(10)
    RB = 76
    A(f'v_mov_b64 v[{RB}:{RB + 1}], v[{DD}:{DD + 1}]')
    A(f'v_mov_b64 v[{RB + 2}:{RB + 3}], v[{DD + 2}:{DD + 3}]')
    for r in range(4):
        A(f'v_permlane32_swap_b32 v{RB + r}, v{DD + r}')
    for r in (0, 2):
        A(f'v_pk_add_f32 v[{RB + r}:{RB + r + 1}], v[{RB + r}:{RB + r + 1}], v[{DD + r}:{DD + r + 1}]')
    a0 = RB
    A(f'v_cvt_pk_bf16_f32 v{a0}, v{RB}, v{RB + 1}')
    A(f'v_cvt_pk_bf16_f32 v{a0 + 1}, v{RB + 2}, v{RB + 3}')
    A(f'v_min_u32 v{a0}, -2, v{a0}')
    A(f'v_min_u32 v{a0 + 1}, -2, v{a0 + 1}')
    A('s_mov_b64 exec, 0x00ff00ff')
    A(f'buffer_store_dwordx2 v[{a0}:{a0 + 1}], v{V_PUB}, {WS}, s{S_PUBR} offen sc1')
    lps = A.newlabel('L_pubs'); lpd = A.newlabel('L_pubd')
    A(f's_cmp_eq_u32 s{S_FAST}, 0')
    A(f's_cbranch_scc1 {lps}')
    A(f'buffer_store_dwordx2 v[{a0}:{a0 + 1}], v{V_PUB}, {WS}, s{S_PUBL} offen')
    A(f's_branch {lpd}')
    A.label(lps)
    A(f'buffer_store_dwordx2 v[{a0}:{a0 + 1}], v{V_PUB}, {WS}, s{S_PUBL} offen sc1')
    A.label(lpd)
    A('s_mov_b64 exec, -1')
    A('s_waitcnt vmcnt(2)')
    A.branch(f's_branch {lnr}')
    A.label(lnr2)
    kv_refresh(lnr)
    if backoff:
        A(f's_sleep {backoff}')
    A.label(lnr)
    stamp(11)
    if stamps:
        A('s_waitcnt lgkmcnt(0)')
        for i in range(12):
            A(f'v_writelane_b32 v{T0}, s{S_ST + 2 * i}, {i}')
        A(f'v_lshlrev_b32 v{T1}, 2, v{L}')
        A('s_mov_b64 exec, 0xfff')
        A(f'buffer_store_dword v{T0}, v{T1}, {WS}, s{S_STO} offen')
        A('s_mov_b64 exec, -1')
        A(f's_add_u32 s{S_STO}, s{S_STO}, 64')
    if cut is not None:
        A.label('L_cut')
        A.wait_all()
        rebuild()
        A.wait_all()
        A('s_sleep 8')
        A(f's_cmp_eq_u32 s{S_STEP}, {nsteps - 1}')
        A(f's_cbranch_scc1 {done}')
    A(f's_add_u32 s{S_PUBL}, s{S_PUBL}, 10240')
    A(f's_xor_b32 s{S_PAR}, s{S_PAR}, 1')
    A(f's_add_u32 s{S_STEP}, s{S_STEP}, 1')
    A.branch(f's_branch {top}')
    for f_ in deferred:
        f_()
    A.label(done)
    pub_store(PUBT)
    A.wait_all()
    A('s_barrier')
    m_flag()
    if coarse:
        A('s_memrealtime s[92:93]')
        A('s_memtime s[94:95]')
        A('s_waitcnt lgkmcnt(0)')
        A(f's_lshl_b32 s{S_TMP}, s{S_H}, 3')
        A(f's_lshl_b32 s{S_TMP + 1}, s{S_T}, 2')
        A(f's_add_u32 s{S_TMP}, s{S_TMP}, s{S_TMP + 1}')
        A(f's_add_u32 s{S_TMP}, s{S_TMP}, s{S_WV}')
        A(f's_lshl_b32 s{S_TMP}, s{S_TMP}, 6')
        A(f's_add_u32 s{S_TMP}, s{S_TMP}, {WS_STAMP + 0x200000:#x}')
        A('s_mov_b64 exec, 1')
        A(f'v_mov_b32 v{T1}, s{S_TMP}')
        for i in range(6):
            A(f'v_mov_b32 v{T0}, s{84 + 2 * i}')
            A(f'buffer_store_dword v{T0}, v{T1}, {WS}, 0 offen offset:{4 * i}')
        A(f'v_mov_b32 v{T0}, s{S_SPIN}')
        A(f'buffer_store_dword v{T0}, v{T1}, {WS}, 0 offen offset:24')
        A(f'v_mov_b32 v{T0}, s81')
        A(f'buffer_store_dword v{T0}, v{T1}, {WS}, 0 offen offset:28')
        A.wait_all()
```

```python
import math
import struct
from asmlib import *
from layout import *

SPIN_LIMIT = 1 << 17

F_H = WS_FLAG + 0x0
F_KV = WS_FLAG + 0x1000
F_M = WS_FLAG + 0x4000
F_O = WS_FLAG + 0x20000
F_P = WS_FLAG + 0x18000
F_OP = WS_FLAG + 0x24000
F_H2 = WS_FLAG + 0x28000
F_ACT = WS_FLAG + 0x2C000
F_END = WS_FLAG + 0x30000

S_WS, S_W, S_DBG = 4, 8, 12
S_P0, S_P1 = 16, 17
S_WV, S_SEG = 18, 19
S_TMP = 41
S_PTR = 44
S_SPIN = 46
S_STG = 47
WS = f's[{S_WS}:{S_WS + 3}]'
WW = f's[{S_W}:{S_W + 3}]'
DBG = f's[{S_DBG}:{S_DBG + 3}]'

V_L, V_G, V_I, V_L16, V_T0, V_T1, V_T2, V_T3 = range(8)


def f32bits(x):
    return struct.unpack('<I', struct.pack('<f', x))[0]


DEBUG_STAMPS = [False]


def tstamp(A, idx):
    if not DEBUG_STAMPS[0]:
        return
    A('s_memrealtime s[92:93]')
    A('s_waitcnt lgkmcnt(0)')
    A('s_lshl_b32 s93, s99, 3')
    A('s_or_b32 s93, s93, s98')
    A('s_lshl_b32 s93, s93, 6')
    A(f's_add_u32 s93, s93, {WS_STAMP + 0x380000 + 4 * idx:#x}')
    A(f'v_mov_b32 v{V_T3}, s92')
    A('s_mov_b64 exec, 1')
    A(f'buffer_store_dword v{V_T3}, off, {WS}, s93')
    A('s_mov_b64 exec, -1')


def common_setup(A):
    A(f's_load_dwordx2 s[{S_PTR}:{S_PTR + 1}], s[0:1], {KA_WS}')
    A(f's_load_dwordx2 s[{S_TMP + 1}:{S_TMP + 2}], s[0:1], {KA_DBG}')
    A('v_lshrrev_b32 v1, 6, v0')
    A(f'v_readfirstlane_b32 s{S_WV}, v1')
    A(f'v_and_b32 v{V_L}, 63, v0')
    A('s_waitcnt lgkmcnt(0)')
    A.srd(S_WS, S_PTR, S_PTR + 1, WS_BYTES)
    A.srd(S_DBG, S_TMP + 1, S_TMP + 2, 256)
    A(f's_mov_b32 s{S_SPIN}, 0')
    A(f'v_lshrrev_b32 v{V_G}, 4, v{V_L}')
    A(f'v_and_b32 v{V_I}, 15, v{V_L}')
    A(f'v_lshlrev_b32 v{V_L16}, 4, v{V_L}')
    A(f's_mul_i32 s{S_STG}, s{S_WV}, 40960')


def load_ptr_srd(A, ka, nbytes):
    A(f's_load_dwordx2 s[{S_PTR}:{S_PTR + 1}], s[0:1], {ka}')
    A('s_waitcnt lgkmcnt(0)')
    A.lg_done = A.lg_issued
    A.srd(S_W, S_PTR, S_PTR + 1, nbytes)


def wait_flags(A, abort, soff, n, srd=WS, value=1, sleep=2, ge=False):
    lp = A.newlabel('L_wf'); ld = A.newlabel('L_wfd')
    A(f'v_min_u32 v{V_T0}, {n - 1}, v{V_L}')
    A(f'v_lshlrev_b32 v{V_T0}, 2, v{V_T0}')
    A.label(lp)
    A(f'buffer_load_dword v{V_T1}, v{V_T0}, {srd}, s{soff} offen sc1')
    A.wait_vm0()
    if ge:
        A(f'v_cmp_gt_u32 vcc, {value}, v{V_T1}')
    else:
        A(f'v_cmp_ne_u32 vcc, {value}, v{V_T1}')
    A(f's_cbranch_vccz {ld}')
    if sleep:
        A(f's_sleep {sleep}')
    A(f's_add_u32 s{S_SPIN}, s{S_SPIN}, 1')
    A(f's_cmp_lt_u32 s{S_SPIN}, {SPIN_LIMIT}')
    A(f's_cbranch_scc1 {lp}')
    A(f's_branch {abort}')
    A.label(ld)


def signal(A, soff):
    A.wait_all()
    A('s_barrier')
    ls = A.newlabel('L_sig')
    A(f's_cmp_lg_u32 s{S_WV}, 0')
    A(f's_cbranch_scc1 {ls}')
    A(f'v_mov_b32 v{V_T0}, 0')
    A(f'v_mov_b32 v{V_T1}, 1')
    A('s_mov_b64 exec, 1')
    A(f'buffer_store_dword v{V_T1}, v{V_T0}, {WS}, s{soff} offen sc1')
    A('s_mov_b64 exec, -1')
    A.label(ls)


def round_bf16(A, dst, src, tmp=None):
    A(f'v_cvt_pk_bf16_f32 v{dst}, v{src}, v{src}')
    A(f'v_and_b32 v{dst}, 0xffff0000, v{dst}')


def round2(A, a, b, t):
    A(f'v_cvt_pk_bf16_f32 v{t}, v{a}, v{b}')
    A(f'v_lshlrev_b32 v{a}, 16, v{t}')
    A(f'v_and_b32 v{b}, 0xffff0000, v{t}')


def unpack2(A, lo, hi, src):
    A(f'v_lshlrev_b32 v{lo}, 16, v{src}')
    A(f'v_and_b32 v{hi}, 0xffff0000, v{src}')


def xlane_allreduce_g(A, op, x, t):
    for sw in ('v_permlane16_swap_b32', 'v_permlane32_swap_b32'):
        A(f'v_mov_b32 v{t}, v{x}')
        A(f'{sw} v{x}, v{t}')
        A(f'{op} v{x}, v{x}, v{t}')


def arrive(A, dbg_off):
    A.wait_all()
    A('s_barrier')
    ls = A.newlabel('L_arr')
    A(f's_cmp_lg_u32 s{S_WV}, 0')
    A(f's_cbranch_scc1 {ls}')
    A(f'v_mov_b32 v{V_T1}, 1')
    A('s_mov_b64 exec, 1')
    A(f'buffer_atomic_add v{V_T1}, off, {DBG}, 0 offset:{dbg_off} sc1')
    A('s_mov_b64 exec, -1')
    A.label(ls)


def emit_init(A, abort, part=1):
    A.comment('---- init: sentinels / flags ----')
    T0, T1 = V_T0, V_T1
    A(f's_lshl_b32 s{S_TMP}, s{S_WV}, 6')
    A(f'v_add_u32 v19, s{S_TMP}, v{V_L}')
    A(f'v_lshlrev_b32 v{V_T2}, 4, v19')
    A('v_mov_b32 v20, -1'); A('v_mov_b32 v21, -1'); A('v_mov_b32 v22, -1'); A('v_mov_b32 v23, -1')
    A('v_mov_b32 v24, 0'); A('v_mov_b32 v25, 0'); A('v_mov_b32 v26, 0'); A('v_mov_b32 v27, 0')
    def fill(base, units, reg):
        n = (units + 127) // 128
        for i in range(n):
            A(f's_add_u32 s{S_TMP}, s{S_P0}, {128 * i}')
            l = A.newlabel('L_fill')
            A(f's_cmp_ge_u32 s{S_TMP}, {units}')
            A(f's_cbranch_scc1 {l}')
            A(f's_lshl_b32 s{S_TMP}, s{S_TMP}, 12')
            A(f's_add_u32 s{S_TMP}, s{S_TMP}, {base:#x}')
            A(f'buffer_store_dwordx4 v[{reg}:{reg + 3}], v{V_T2}, {WS}, s{S_TMP} offen sc1')
            A.label(l)
    if part == 2:
        fill(WS_MEML, 160, 20)
        fill(WS_MEMR + 32768, 504, 20)
        fill(WS_PART, 80, 20)
        arrive(A, 28)
        return
    fill(WS_FLAG, 48, 24)

    lskip = A.newlabel('L_nomod')
    A(f's_cmp_ge_u32 s{S_P0}, 120')
    A(f's_cbranch_scc1 {lskip}')
    load_ptr_srd(A, KA_C, 1280)
    A(f'v_lshrrev_b32 v{T0}, 2, v19')
    A(f'v_lshlrev_b32 v{T1}, 1, v{T0}')
    ct = []
    for i in range(10):
        ct.append(A(f'buffer_load_ushort v{30 + i}, v{T1}, {WW}, 0 offen offset:{128 * i}'))
    load_ptr_srd(A, KA_WMOD, 640 * 7680)
    A(f'v_mul_u32_u24 v{T1}, 7680, v{T0}')
    A(f'v_and_b32 v{T0}, 3, v19')
    A(f'v_lshl_add_u32 v{T1}, v{T0}, 4, v{T1}')
    A(f's_lshl_b32 s{S_TMP}, s{S_P0}, 6')
    wt = []
    for i in range(10):
        wt.append(A(f'buffer_load_dwordx4 v[{40 + 4 * i}:{43 + 4 * i}], v{T1}, {WW}, s{S_TMP} offen'))
        A(f's_add_u32 s{S_TMP}, s{S_TMP}, {64 * 7680}')
    A(f's_mov_b32 s{S_TMP}, {f32bits(-math.log2(math.e)):#x}')
    for i in range(10):
        A.wait(ct[i])
        c = 30 + i
        A(f'v_lshlrev_b32 v{c}, 16, v{c}')
        A(f'v_mul_f32 v{T0}, s{S_TMP}, v{c}')
        A(f'v_exp_f32 v{T0}, v{T0}')
        A(f'v_add_f32 v{T0}, 1.0, v{T0}')
        A(f'v_rcp_f32 v{T0}, v{T0}')
        A(f'v_mul_f32 v{c}, v{c}, v{T0}')
        round_bf16(A, c, c)
    for j in range(8):
        A(f'v_mov_b32 v{20 + j}, 0')
    for i in range(10):
        A.wait(wt[i])
        for d in range(4):
            unpack2(A, T0, T1, 40 + 4 * i + d)
            A(f'v_fmac_f32 v{20 + 2 * d}, v{30 + i}, v{T0}')
            A(f'v_fmac_f32 v{21 + 2 * d}, v{30 + i}, v{T1}')
    A(f'v_lshlrev_b32 v{T0}, 5, v19')
    A(f'ds_write_b128 v{T0}, v[20:23]')
    A(f'ds_write_b128 v{T0}, v[24:27] offset:16')
    A.wait_lg0()
    A('s_barrier')
    A(f'v_and_b32 v{T0}, 31, v19')
    A(f'v_lshlrev_b32 v{T0}, 2, v{T0}')
    A(f'v_lshrrev_b32 v{T1}, 5, v19')
    A(f'v_lshl_add_u32 v{T0}, v{T1}, 10, v{T0}')
    tk = [A(f'ds_read_b32 v{20 + j}, v{T0} offset:{128 * j}') for j in range(8)]
    A.wait(tk[-1])
    for j in range(1, 8):
        A(f'v_add_f32 v20, v20, v{20 + j}')
    A(f'v_lshlrev_b32 v{T0}, 2, v19')
    A(f'ds_write_b32 v{T0}, v20 offset:8192')
    A.wait_lg0()
    A('s_barrier')
    A(f'v_and_b32 v{T0}, 31, v19')
    A(f'v_lshlrev_b32 v{T0}, 2, v{T0}')
    tk = [A(f'ds_read_b32 v{20 + j}, v{T0} offset:{8192 + 128 * j}') for j in range(8)]
    A.wait(tk[-1])
    for j in range(1, 8):
        A(f'v_add_f32 v20, v20, v{20 + j}')
    round_bf16(A, 20, 20)
    A(f's_lshl_b32 s{S_TMP}, s{S_P0}, 7')
    A(f's_add_u32 s{S_TMP}, s{S_TMP}, {WS_MOD:#x}')
    A(f'buffer_store_dword v20, v{T0}, {WS}, s{S_TMP} offen sc1')
    A.flush_hazards()
    A.label(lskip)
    arrive(A, 16)


def wait_init(A, abort):
    l = A.newlabel('L_wi')
    A(f's_cmp_lg_u32 s{S_WV}, 0')
    A(f's_cbranch_scc1 {l}')
    A(f's_mov_b32 s{S_TMP}, 16')
    wait_flags(A, abort, S_TMP, 1, srd=DBG, value=128, sleep=6, ge=True)
    A.label(l)
    A('s_barrier')


def emit_ln(A, which, s_tile, mid=None):
    T0, T1, T2, T3 = V_T0, V_T1, V_T2, V_T3
    X = 20
    XR = 60
    MB = 80
    PB = 120
    load_ptr_srd(A, KA_X, 2048 * 1280)
    A(f'v_mul_u32_u24 v{T2}, 1280, v{V_I}')
    A(f'v_lshl_add_u32 v{T2}, v{V_G}, 3, v{T2}')
    A(f's_mul_i32 s{S_TMP}, s{s_tile}, {16 * 1280}')
    A(f's_mul_i32 s{S_TMP + 1}, s{S_WV}, 320')
    A(f's_add_u32 s{S_TMP}, s{S_TMP}, s{S_TMP + 1}')
    xt = []
    for k in range(5):
        for hf in range(2):
            b = XR + 4 * k + 2 * hf
            xt.append(A(f'buffer_load_dwordx2 v[{b}:{b + 1}], v{T2}, {WW}, s{S_TMP} offen offset:{64 * k + 32 * hf}'))
    A(f'v_lshlrev_b32 v{T3}, 4, v{V_G}')
    A(f's_mul_i32 s{S_TMP + 1}, s{S_WV}, 640')

    def load_mod(idx, base):
        A(f's_add_u32 s{S_TMP + 2}, s{S_TMP + 1}, {WS_MOD + idx * 2560:#x}')
        t = None
        for t_ in range(10):
            t = A(f'buffer_load_dwordx4 v[{base + 4 * t_}:{base + 4 * t_ + 3}], v{T3}, {WS}, s{S_TMP + 2} offen offset:{64 * t_} sc1')
        return t

    if which == 2:
        gt = load_mod(2, MB)
        A(f's_lshr_b32 s{S_TMP}, s{s_tile}, 1')
        A(f's_mul_i32 s{S_TMP}, s{S_TMP}, {4 * 81920}')
        A(f's_and_b32 s{S_TMP + 2}, s{s_tile}, 1')
        A(f's_lshl_b32 s{S_TMP + 2}, s{S_TMP + 2}, 10')
        A(f's_add_u32 s{S_TMP}, s{S_TMP}, s{S_TMP + 2}')
        A(f's_mul_i32 s{S_TMP + 2}, s{S_WV}, {10 * 2048}')
        A(f's_add_u32 s{S_TMP}, s{S_TMP}, s{S_TMP + 2}')
        A(f's_add_u32 s{S_TMP}, s{S_TMP}, {WS_OPART:#x}')
        pt = {}
        for kg in range(4):
            for t_ in range(10):
                dst = X + 4 * t_ if kg == 0 else PB + 40 * (kg - 1) + 4 * t_
                A(f's_add_u32 s{S_TMP + 2}, s{S_TMP}, {kg * 81920 + t_ * 2048}')
                pt[kg, t_] = A(f'buffer_load_dwordx4 v[{dst}:{dst + 3}], v{V_L16}, {WS}, s{S_TMP + 2} offen sc1')
        for t_ in range(10):
            A.wait(pt[3, t_], gt, xt[-1])
            for r in range(0, 4, 2):
                x = X + 4 * t_ + r
                for kg in range(1, 4):
                    p = PB + 40 * (kg - 1) + 4 * t_ + r
                    A(f'v_pk_add_f32 v[{x}:{x + 1}], v[{x}:{x + 1}], v[{p}:{p + 1}]')
                round2(A, x, x + 1, T0)
                A(f'v_pk_mul_f32 v[{x}:{x + 1}], v[{x}:{x + 1}], v[{MB + 4 * t_ + r}:{MB + 4 * t_ + r + 1}]')
                round2(A, x, x + 1, T0)
                unpack2(A, T0, T1, XR + 2 * t_ + r // 2)
                A(f'v_pk_add_f32 v[{x}:{x + 1}], v[{x}:{x + 1}], v[{T0}:{T1}]')
                A(f'v_cvt_pk_bf16_f32 v{XR + 2 * t_ + r // 2}, v{x}, v{x + 1}')
                unpack2(A, x, x + 1, XR + 2 * t_ + r // 2)
        frag_base(A, s_tile, WS_X1, S_TMP)
        for k in range(5):
            A(f's_add_u32 s{S_TMP + 2}, s{S_TMP}, {k * 2048}')
            A(f'buffer_store_dwordx4 v[{XR + 4 * k}:{XR + 4 * k + 3}], v{V_L16}, {WS}, s{S_TMP + 2} offen sc1')
        A(f's_mul_i32 s{S_TMP + 1}, s{S_WV}, 640')
    else:
        A.wait(xt[-1])
        for j in range(20):
            unpack2(A, X + 2 * j, X + 2 * j + 1, XR + j)
    A(f'v_mov_b32 v{T0}, 0')
    A(f'v_mov_b32 v{T1}, 0')
    for j in range(0, 40, 2):
        A(f'v_pk_add_f32 v[{T0}:{T1}], v[{T0}:{T1}], v[{X + j}:{X + j + 1}]')
    A(f'v_add_f32 v{T0}, v{T0}, v{T1}')
    xlane_allreduce_g(A, 'v_add_f32', T0, T1)
    A(f's_lshl_b32 s{S_TMP}, s{S_WV}, 6')
    A(f'v_lshlrev_b32 v{T2}, 2, v{V_I}')
    A(f'v_add_u32 v{T3}, s{S_TMP}, v{T2}')
    A('s_barrier')
    A(f'ds_write_b32 v{T3}, v{T0}')
    A.wait_lg0()
    A('s_barrier')
    tk = [A(f'ds_read_b32 v{8 + j}, v{T2} offset:{64 * j}') for j in range(4)]
    A.wait(tk[-1])
    A('v_add_f32 v8, v8, v9'); A('v_add_f32 v10, v10, v11'); A('v_add_f32 v8, v8, v10')
    A(f'v_mul_f32 v8, {f32bits(1.0 / 640):#x}, v8')
    A(f'v_mov_b32 v{T0}, 0')
    for j in range(40):
        A(f'v_sub_f32 v{T1}, v{X + j}, v8')
        A(f'v_fmac_f32 v{T0}, v{T1}, v{T1}')
    xlane_allreduce_g(A, 'v_add_f32', T0, T1)
    A(f'ds_write_b32 v{T3}, v{T0} offset:256')
    A.wait_lg0()
    A('s_barrier')
    tk = [A(f'ds_read_b32 v{9 + j}, v{T2} offset:{256 + 64 * j}') for j in range(4)]
    A.wait(tk[-1])
    A('v_add_f32 v9, v9, v10'); A('v_add_f32 v11, v11, v12'); A('v_add_f32 v9, v9, v11')
    A(f'v_mul_f32 v9, {f32bits(1.0 / 640):#x}, v9')
    round2(A, 8, 9, T0)
    A(f'v_add_f32 v9, {f32bits(1e-5):#x}, v9')
    round_bf16(A, 9, 9)
    A('v_sqrt_f32 v9, v9')
    round_bf16(A, 9, 9)
    A('v_rcp_f32 v10, v9')
    for j in range(0, 40, 2):
        x = X + j
        A(f'v_sub_f32 v{x}, v{x}, v8')
        A(f'v_sub_f32 v{x + 1}, v{x + 1}, v8')
        round2(A, x, x + 1, T0)
        for y in (x, x + 1):
            A(f'v_mul_f32 v{T1}, v{y}, v10')
            A(f'v_fma_f32 v{y}, -v{T1}, v9, v{y}')
            A(f'v_fma_f32 v{y}, v{y}, v10, v{T1}')
        round2(A, x, x + 1, T0)
    if mid:
        mid()
    A(f'v_lshlrev_b32 v{T3}, 4, v{V_G}')
    A(f's_mul_i32 s{S_TMP + 1}, s{S_WV}, 640')
    ct = load_mod(1 if which == 1 else 4, MB)
    st = load_mod(0 if which == 1 else 3, PB)
    A.wait(ct, st)
    for j in range(0, 40, 2):
        x = X + j
        A(f'v_add_f32 v{MB + j}, 1.0, v{MB + j}')
        A(f'v_add_f32 v{MB + j + 1}, 1.0, v{MB + j + 1}')
        round2(A, MB + j, MB + j + 1, T0)
        A(f'v_pk_mul_f32 v[{x}:{x + 1}], v[{x}:{x + 1}], v[{MB + j}:{MB + j + 1}]')
        round2(A, x, x + 1, T0)
        A(f'v_pk_add_f32 v[{x}:{x + 1}], v[{x}:{x + 1}], v[{PB + j}:{PB + j + 1}]')
        A(f'v_cvt_pk_bf16_f32 v{160 + j // 2}, v{x}, v{x + 1}')
    frag_base(A, s_tile, WS_H if which == 1 else WS_H2, S_TMP)
    for k in range(5):
        A(f's_add_u32 s{S_TMP + 2}, s{S_TMP}, {k * 2048}')
        A(f'buffer_store_dwordx4 v[{160 + 4 * k}:{160 + 4 * k + 3}], v{V_L16}, {WS}, s{S_TMP + 2} offen sc1')


def frag_base(A, s_tile, region, dst):
    A(f's_lshr_b32 s{dst}, s{s_tile}, 1')
    A(f's_mul_i32 s{dst}, s{dst}, 40960')
    A(f's_and_b32 s{dst + 2}, s{s_tile}, 1')
    A(f's_lshl_b32 s{dst + 2}, s{dst + 2}, 10')
    A(f's_add_u32 s{dst}, s{dst}, s{dst + 2}')
    A(f's_mul_i32 s{dst + 2}, s{S_WV}, {5 * 2048}')
    A(f's_add_u32 s{dst}, s{dst}, s{dst + 2}')
    A(f's_add_u32 s{dst}, s{dst}, {region:#x}')


V_WSRC2, V_WSRC1, V_WRD2, V_WRD1 = 8, 9, 10, 11


def weight_addr_setup(A, pitch):
    T0, T1 = V_T0, V_T1
    A(f's_mov_b32 s{S_TMP}, {pitch}')
    A(f'v_lshrrev_b32 v{T0}, 2, v{V_L}')
    A(f'v_mul_lo_u32 v{T0}, v{T0}, s{S_TMP}')
    A(f'v_and_b32 v{T1}, 3, v{V_L}')
    A(f'v_lshl_add_u32 v{V_WSRC2}, v{T1}, 4, v{T0}')
    A(f'v_lshrrev_b32 v{T0}, 1, v{V_L}')
    A(f'v_mul_lo_u32 v{T0}, v{T0}, s{S_TMP}')
    A(f'v_and_b32 v{T1}, 1, v{V_L}')
    A(f'v_lshl_add_u32 v{V_WSRC1}, v{T1}, 4, v{T0}')
    A(f'v_lshrrev_b32 v{T0}, 2, v{V_L}')
    A(f'v_and_b32 v{T1}, 3, v{V_L}')
    A(f'v_lshlrev_b32 v{T1}, 3, v{T1}')
    A(f'v_lshl_add_u32 v{V_WRD2}, v{T0}, 6, v{T1}')
    A(f'v_add_u32 v{V_WRD2}, s{S_STG}, v{V_WRD2}')
    A(f'v_lshl_add_u32 v{V_WRD1}, v{T0}, 5, v{T1}')
    A(f'v_add_u32 v{V_WRD1}, s{S_STG}, v{V_WRD1}')


def load_weights(A, s_off, pitch, nk, width, dest):
    kb = 32 * 32 * width
    per = 40960 // kb
    src = V_WSRC2 if width == 2 else V_WSRC1
    rd = V_WRD2 if width == 2 else V_WRD1
    rows_per_instr = 16 if width == 2 else 32
    for k0 in range(0, nk, per):
        ks = list(range(k0, min(nk, k0 + per)))
        tok = {}
        A.wait_lg0()
        for k in ks:
            for n in range(32 // rows_per_instr):
                A(f's_add_u32 m0, s{S_STG}, {(k - k0) * kb + n * 1024}')
                tok[k] = A(f'buffer_load_dwordx4 v{src}, {WW}, s{s_off} offen lds')
                A(f's_add_u32 s{s_off}, s{s_off}, {rows_per_instr * pitch}')
        for k in ks:
            A.wait(tok[k])
            for t in range(width):
                for rho in range(2):
                    off = (k - k0) * kb + 16 * rho * 32 * width + t * 32
                    A(f'ds_read_b64_tr_b16 {wr(dest(k, t) + 2 * rho, 2)}, v{rd} offset:{off}')
    A.wait_lg0()


S_SRC, S_FIN, S_FOUT, S_DST, S_PRE, S_BUF, S_DST2 = 20, 21, 22, 23, 24, 25, 26
S_LAST = 27
S_LIM = 40


def gemm_loop(A, abort, nk, ntt, tiles, src_stride, fin_n, fin_stride, fout_stride, seg_step, epilogue,
              acc0=12, frag0=None, pre_compute=None, tt_stride=1024, k_stride=2048, adv=()):
    T = len(tiles)
    nfr = nk * ntt
    bufsz = nfr * 1024
    assert 2 * bufsz <= 163840 - 4096
    DEC = 2 * bufsz
    FR = frag0 if frag0 is not None else acc0 + 4 * T * ntt
    NR = 3
    V_RD, V_RD2, V_FA, V_FS = 8, 9, 10, 11
    S_PEND, S_DL, S_DG = 37, 38, 39
    n_it = (nfr + 3) // 4
    step = 4096 if ntt == 2 else 4 * k_stride

    def dma_setup():
        A(f's_lshl_b32 s{S_DL}, s{S_WV}, 10')
        A(f's_add_u32 s{S_DL}, s{S_DL}, s{S_BUF}')
        if ntt == 2:
            assert tt_stride == 1024 and k_stride == 2048
            A(f's_lshl_b32 s{S_DG}, s{S_WV}, 10')
        else:
            A(f's_mul_i32 s{S_DG}, s{S_WV}, {k_stride}')
        A(f's_add_u32 s{S_DG}, s{S_DG}, s{S_SRC}')
        A(f's_add_u32 s{S_SRC}, s{S_SRC}, {src_stride}')
        A(f's_add_u32 s{S_FIN}, s{S_FIN}, {fin_stride}')

    def dma_one(i):
        l = None
        if 4 * i + 3 >= nfr:
            l = A.newlabel('L_dm')
            A(f's_cmp_ge_u32 s{S_WV}, {nfr - 4 * i}')
            A(f's_cbranch_scc1 {l}')
        A(f's_add_u32 m0, s{S_DL}, {4096 * i}')
        A(f'buffer_load_dwordx4 v{V_L16}, {WS}, s{S_DG} offen sc1 lds')
        if l:
            A.label(l)
        A(f's_add_u32 s{S_DG}, s{S_DG}, {step}')

    def sample():
        A(f'buffer_load_dword v{V_FS}, v{V_FA}, {WS}, s{S_FIN} offen sc1')

    def send_flag():
        ls = A.newlabel('L_sig')
        A(f's_cmp_lg_u32 s{S_WV}, 0')
        A(f's_cbranch_scc1 {ls}')
        A(f'v_mov_b32 v{V_T1}, 1')
        A('s_mov_b64 exec, 1')
        A(f'buffer_store_dword v{V_T1}, off, {WS}, s{S_FOUT} sc1')
        A('s_mov_b64 exec, -1')
        A.label(ls)
        A(f's_add_u32 s{S_FOUT}, s{S_FOUT}, {fout_stride}')

    A(f'v_min_u32 v{V_FA}, {fin_n - 1}, v{V_L}')
    A(f'v_lshlrev_b32 v{V_FA}, 2, v{V_FA}')
    A(f's_mov_b32 s{S_BUF}, 0')
    for reg, stride in [(S_SRC, src_stride), (S_FIN, fin_stride), (S_FOUT, fout_stride)] + list(adv):
        if stride:
            A(f's_mul_i32 s{S_TMP}, s{S_SEG}, {stride}')
            A(f's_add_u32 s{reg}, s{reg}, s{S_TMP}')
    top = A.newlabel('L_gtop'); end = A.newlabel('L_gend'); load = A.newlabel('L_gload'); go = A.newlabel('L_ggo')
    A.flush_hazards()
    A.label(load)
    A.forget()
    wait_flags(A, abort, S_FIN, fin_n, sleep=1)
    if DEBUG_STAMPS[0]:
        lx = A.newlabel('L_ts')
        A(f's_cmp_ge_u32 s{S_SEG}, 2')
        A(f's_cbranch_scc1 {lx}')
        tstamp(A, 2)
        A.label(lx)
    dma_setup()
    for i in range(n_it):
        dma_one(i)
    sample()
    A(f's_mov_b32 s{S_PEND}, 0')
    A.wait_all()
    A.branch(f's_branch {go}')
    A.label(top)
    A.forget()
    marker = len(A.lines)
    A.raw('WAITMARK')
    A.label(go)
    A('s_barrier')
    A(f'v_add_u32 v{V_RD}, s{S_BUF}, v{V_L16}')
    if bufsz > 65536 - 1024:
        A(f'v_add_u32 v{V_RD2}, 0x10000, v{V_RD}')
    A(f's_add_u32 s{S_LAST}, s{S_SEG}, {seg_step}')
    A(f's_sub_u32 s{S_BUF}, {bufsz}, s{S_BUF}')
    ft = {}

    def rd(k):
        for tt in range(ntt):
            f = k * ntt + tt
            b = FR + 4 * ((k % NR) * ntt + tt)
            off = f * 1024
            base = V_RD
            if off >= 65536:
                off -= 65536; base = V_RD2
            ft[k] = A(f'ds_read_b128 v[{b}:{b + 3}], v{base} offset:{off}')

    kB = max(2, nk // 4)
    slots = list(range(kB + 1, nk))
    per = -(-n_it // len(slots))
    nd = 0
    for k in range(min(NR, nk)):
        rd(k)
    for k in range(nk):
        A.wait(ft[k])
        for t, (wreg, tr) in enumerate(tiles):
            for tt in range(ntt):
                acc = acc0 + 4 * (t * ntt + tt)
                fr = f'v[{FR + 4 * ((k % NR) * ntt + tt)}:{FR + 4 * ((k % NR) * ntt + tt) + 3}]'
                w = wr(wreg(k), 4)
                c = '0' if k == 0 else f'v[{acc}:{acc + 3}]'
                a_, b_ = (w, fr) if tr else (fr, w)
                A(f'v_mfma_f32_16x16x32_bf16 v[{acc}:{acc + 3}], {a_}, {b_}, {c}')
        if k + NR < nk:
            rd(k + NR)
        if k == kB:
            hs = [h_ for h_ in A.hist if h_.kind in ('mfma', 'valu')]
            A.wait_vm0()
            A(f'v_cmp_ne_u32 vcc, 1, v{V_FS}')
            A('s_cmp_eq_u64 vcc, 0')
            A(f's_cselect_b32 s{S_PRE}, 1, 0')
            A(f's_cmp_ge_u32 s{S_LAST}, s{S_LIM}')
            A(f's_cselect_b32 s{S_PRE}, 0, s{S_PRE}')
            A(f'v_mov_b32 v{V_T0}, {DEC}')
            lw = A.newlabel('L_dec')
            A(f's_cmp_lg_u32 s{S_WV}, 0')
            A(f's_cbranch_scc1 {lw}')
            A(f'v_mov_b32 v{V_T1}, s{S_PRE}')
            A(f'ds_write_b32 v{V_T0}, v{V_T1}')
            A.label(lw)
            A.wait_lg0()
            A('s_barrier')
            A(f'ds_read_b32 v{V_T1}, v{V_T0}')
            lp = A.newlabel('L_pend')
            A(f's_cmp_eq_u32 s{S_PEND}, 0')
            A(f's_cbranch_scc1 {lp}')
            A(f'v_mov_b32 v{V_T2}, 1')
            ls = A.newlabel('L_sig')
            A(f's_cmp_lg_u32 s{S_WV}, 0')
            A(f's_cbranch_scc1 {ls}')
            A('s_mov_b64 exec, 1')
            A(f'buffer_store_dword v{V_T2}, off, {WS}, s{S_FOUT} sc1')
            A('s_mov_b64 exec, -1')
            A.label(ls)
            A(f's_add_u32 s{S_FOUT}, s{S_FOUT}, {fout_stride}')
            A.label(lp)
            A.wait_lg0()
            A(f'v_readfirstlane_b32 s{S_PRE}, v{V_T1}')
            ln = A.newlabel('L_nos')
            A(f's_cmp_eq_u32 s{S_PRE}, 0')
            A(f's_cbranch_scc1 {ln}')
            dma_setup()
            A.label(ln)
            if pre_compute:
                pre_compute(A)
            A.hist = hs
        if k > kB and nd < n_it:
            hs = [h_ for h_ in A.hist if h_.kind in ('mfma', 'valu')]
            ln = A.newlabel('L_nod')
            A(f's_cmp_eq_u32 s{S_PRE}, 0')
            A(f's_cbranch_scc1 {ln}')
            for _ in range(per):
                if nd < n_it:
                    dma_one(nd); nd += 1
            A.label(ln)
            A.hist = hs
    assert nd == n_it
    if DEBUG_STAMPS[0]:
        lx = A.newlabel('L_ts')
        A(f's_cmp_ge_u32 s{S_SEG}, 2')
        A(f's_cbranch_scc1 {lx}')
        tstamp(A, 3)
        A.label(lx)
        A('s_nop 7')
    v0 = A.vm_issued
    epilogue(A)
    sample()
    nvm = A.vm_issued - v0
    A.lines[marker] = f'    s_waitcnt vmcnt({nvm})'
    A(f's_mov_b32 s{S_SEG}, s{S_LAST}')
    A(f's_mov_b32 s{S_PEND}, 1')
    A(f's_cmp_eq_u32 s{S_PRE}, 1')
    A.branch(f's_cbranch_scc1 {top}')
    A.wait_all()
    A('s_barrier')
    send_flag()
    A(f's_cmp_lt_u32 s{S_SEG}, s{S_LIM}')
    A.branch(f's_cbranch_scc1 {load}')
    A.label(end)


def wlin(i, vb=96):
    return 256 + 4 * i if i < 64 else vb + 4 * (i - 64)


def pack4(A, dst, src):
    A(f'v_cvt_pk_bf16_f32 v{dst}, v{src}, v{src + 1}')
    A(f'v_cvt_pk_bf16_f32 v{dst + 1}, v{src + 2}, v{src + 3}')


S_P2 = 29


def emit_op(A, abort, split=False):
    A.comment('==== role OP ====')
    weight_addr_setup(A, 1280)
    load_ptr_srd(A, KA_WO, 4096 * 1280)
    A(f's_mul_i32 s{S_SRC}, s{S_P0}, {1024 * 1280}')
    A(f's_lshl_b32 s{S_TMP}, s{S_P1}, 8')
    A(f's_add_u32 s{S_SRC}, s{S_SRC}, s{S_TMP}')
    A(f's_lshl_b32 s{S_TMP}, s{S_WV}, 6')
    A(f's_add_u32 s{S_SRC}, s{S_SRC}, s{S_TMP}')
    load_weights(A, S_SRC, 1280, 32, 2, lambda k, t: wlin(2 * k + t))
    A(f's_lshl_b32 s{S_SRC}, s{S_P0}, 16')
    A(f's_add_u32 s{S_SRC}, s{S_SRC}, {WS_O:#x}')
    A(f's_lshl_b32 s{S_FIN}, s{S_P0}, 6')
    A(f's_add_u32 s{S_FIN}, s{S_FIN}, {F_O:#x}')
    A(f's_mul_i32 s{S_FOUT}, s{S_P0}, 5')
    A(f's_add_u32 s{S_FOUT}, s{S_FOUT}, s{S_P1}')
    A(f's_lshl_b32 s{S_FOUT}, s{S_FOUT}, 2')
    A(f's_add_u32 s{S_FOUT}, s{S_FOUT}, {F_OP:#x}')
    A(f's_mul_i32 s{S_DST}, s{S_P0}, 81920')
    A(f's_lshl_b32 s{S_TMP}, s{S_P1}, 14')
    A(f's_add_u32 s{S_DST}, s{S_DST}, s{S_TMP}')
    A(f's_lshl_b32 s{S_TMP}, s{S_WV}, 12')
    A(f's_add_u32 s{S_DST}, s{S_DST}, s{S_TMP}')
    A(f's_add_u32 s{S_DST}, s{S_DST}, {WS_OPART:#x}')
    if split:
        A(f's_lshl_b32 s{S_TMP}, s{S_P2}, 10')
        A(f's_add_u32 s{S_SRC}, s{S_SRC}, s{S_TMP}')
        A(f's_add_u32 s{S_DST}, s{S_DST}, s{S_TMP}')
        A(f's_lshl_b32 s{S_TMP}, s{S_P2}, 7')
        A(f's_add_u32 s{S_FOUT}, s{S_FOUT}, s{S_TMP}')

    def epi(A):
        if split:
            for j in range(2):
                A(f'buffer_store_dwordx4 v[{12 + 4 * j}:{15 + 4 * j}], v{V_L16}, {WS}, s{S_DST} offen offset:{j * 2048} sc1')
        else:
            for j in range(4):
                A(f'buffer_store_dwordx4 v[{12 + 4 * j}:{15 + 4 * j}], v{V_L16}, {WS}, s{S_DST} offen offset:{j * 1024} sc1')
        A(f's_add_u32 s{S_DST}, s{S_DST}, {4 * 81920}')

    tiles = [(lambda k: wlin(2 * k), True), (lambda k: wlin(2 * k + 1), True)]
    gemm_loop(A, abort, 32, 1 if split else 2, tiles, 262144, 16, 256, 128, 1, epi, adv=[(S_DST, 4 * 81920)])


def emit_ff1(A, abort):
    A.comment('==== role FF1 ====')
    weight_addr_setup(A, 3456)
    for m, ka in enumerate((KA_WG, KA_WU)):
        load_ptr_srd(A, ka, 640 * 3456)
        A(f's_lshl_b32 s{S_SRC}, s{S_P0}, 7')
        A(f's_lshl_b32 s{S_TMP}, s{S_WV}, 5')
        A(f's_add_u32 s{S_SRC}, s{S_SRC}, s{S_TMP}')
        load_weights(A, S_SRC, 3456, 20, 1, lambda k, t, m=m: wlin(m * 20 + k))
    A(f's_mov_b32 s{S_SRC}, {WS_H2:#x}')
    A(f's_mov_b32 s{S_FIN}, {F_H2:#x}')
    A(f's_lshl_b32 s{S_FOUT}, s{S_P0}, 2')
    A(f's_add_u32 s{S_FOUT}, s{S_FOUT}, {F_ACT:#x}')
    A(f's_lshl_b32 s{S_DST}, s{S_P0}, 12')
    A(f's_lshr_b32 s{S_TMP}, s{S_WV}, 1')
    A(f's_lshl_b32 s{S_TMP}, s{S_TMP}, 11')
    A(f's_add_u32 s{S_DST}, s{S_DST}, s{S_TMP}')
    A(f's_and_b32 s{S_TMP}, s{S_WV}, 1')
    A(f's_lshl_b32 s{S_TMP}, s{S_TMP}, 3')
    A(f's_add_u32 s{S_DST}, s{S_DST}, s{S_TMP}')
    A(f's_add_u32 s{S_DST}, s{S_DST}, {WS_ACT:#x}')
    A(f's_mov_b32 s{S_DST2}, {f32bits(-math.log2(math.e)):#x}')
    T0, T1 = V_T0, V_T1

    def epi(A):
        for tt in range(2):
            g = 12 + 4 * tt; u = 20 + 4 * tt
            for r in (0, 2):
                round2(A, g + r, g + r + 1, T0)
                round2(A, u + r, u + r + 1, T0)
                for y in (g + r, g + r + 1):
                    A(f'v_mul_f32 v{T1}, s{S_DST2}, v{y}')
                    A(f'v_exp_f32 v{T1}, v{T1}')
                    A(f'v_add_f32 v{T1}, 1.0, v{T1}')
                    A(f'v_rcp_f32 v{T1}, v{T1}')
                    A(f'v_mul_f32 v{y}, v{y}, v{T1}')
                round2(A, g + r, g + r + 1, T0)
                A(f'v_pk_mul_f32 v[{g + r}:{g + r + 1}], v[{g + r}:{g + r + 1}], v[{u + r}:{u + r + 1}]')
            pack4(A, u, g)
            A(f'buffer_store_dwordx2 v[{u}:{u + 1}], v{V_L16}, {WS}, s{S_DST} offen offset:{tt * 1024} sc1')
        A(f's_add_u32 s{S_DST}, s{S_DST}, {54 * 2048}')

    tiles = [(lambda k: wlin(k), True), (lambda k: wlin(20 + k), True)]
    gemm_loop(A, abort, 20, 2, tiles, 40960, 4, 128, 128, 1, epi, adv=[(S_DST, 54 * 2048)])


def emit_ff2(A, abort):
    A.comment('==== role FF2 ====')
    weight_addr_setup(A, 1280)
    load_ptr_srd(A, KA_WD, 1728 * 1280)
    A(f's_lshl_b32 s{S_SRC}, s{S_P1}, 7')
    A(f's_lshl_b32 s{S_TMP}, s{S_WV}, 5')
    A(f's_add_u32 s{S_SRC}, s{S_SRC}, s{S_TMP}')
    load_weights(A, S_SRC, 1280, 54, 1, lambda k, t: wlin(k))
    A(f's_lshl_b32 s{S_SRC}, s{S_P0}, 10')
    A(f's_add_u32 s{S_SRC}, s{S_SRC}, {WS_ACT:#x}')
    A(f's_mov_b32 s{S_FIN}, {F_ACT:#x}')
    A(f's_mov_b32 s{S_FOUT}, {F_END:#x}')
    S_TILE = 28
    A(f's_lshl_b32 s{S_TILE}, s{S_P1}, 2')
    A(f's_add_u32 s{S_TILE}, s{S_TILE}, s{S_WV}')
    GB, XX, VO = 40, 44, 46
    A(f'v_lshlrev_b32 v{V_T0}, 4, v{V_G}')
    A(f's_lshl_b32 s{S_TMP}, s{S_TILE}, 6')
    A(f's_add_u32 s{S_TMP}, s{S_TMP}, {WS_MOD + 5 * 2560:#x}')
    A(f'buffer_load_dwordx4 v[{GB}:{GB + 3}], v{V_T0}, {WS}, s{S_TMP} offen sc1')
    A(f's_lshr_b32 s{S_DST2}, s{S_TILE}, 1')
    A(f's_lshl_b32 s{S_DST2}, s{S_DST2}, 11')
    A(f's_lshl_b32 s{S_TMP}, s{S_P0}, 10')
    A(f's_add_u32 s{S_DST2}, s{S_DST2}, s{S_TMP}')
    A(f's_and_b32 s{S_TMP}, s{S_TILE}, 1')
    A(f's_lshl_b32 s{S_TMP}, s{S_TMP}, 3')
    A(f's_add_u32 s{S_DST2}, s{S_DST2}, s{S_TMP}')
    A(f's_add_u32 s{S_DST2}, s{S_DST2}, {WS_X1:#x}')
    A(f'v_mul_u32_u24 v{VO}, 1280, v{V_I}')
    A(f'v_lshl_add_u32 v{VO}, v{V_G}, 3, v{VO}')
    A(f's_mul_i32 s{S_DST}, s{S_P0}, {16 * 1280}')
    A(f's_lshl_b32 s{S_TMP}, s{S_TILE}, 5')
    A(f's_add_u32 s{S_DST}, s{S_DST}, s{S_TMP}')
    load_ptr_srd(A, KA_OUT, 2048 * 1280)
    T0, T1 = V_T0, V_T1

    def pre(A):
        A(f'buffer_load_dwordx2 v[{XX}:{XX + 1}], v{V_L16}, {WS}, s{S_DST2} offen sc1')
        A(f's_add_u32 s{S_DST2}, s{S_DST2}, 40960')

    def epi(A):
        A.wait_vm0()
        for r in (0, 2):
            f = 12 + r
            round2(A, f, f + 1, T0)
            A(f'v_pk_mul_f32 v[{f}:{f + 1}], v[{f}:{f + 1}], v[{GB + r}:{GB + r + 1}]')
            round2(A, f, f + 1, T0)
            unpack2(A, T0, T1, XX + r // 2)
            A(f'v_pk_add_f32 v[{f}:{f + 1}], v[{f}:{f + 1}], v[{T0}:{T1}]')
        pack4(A, XX, 12)
        A(f'buffer_store_dwordx2 v[{XX}:{XX + 1}], v{VO}, {WW}, s{S_DST} offen')
        A(f's_add_u32 s{S_DST}, s{S_DST}, {32 * 1280}')

    gemm_loop(A, abort, 54, 1, [(lambda k: wlin(k), True)], 54 * 2048, 27, 128, 0, 1, epi, pre_compute=pre, adv=[(S_DST, 32 * 1280), (S_DST2, 40960)])


def emit_ln2(A, abort, n, repl=False):
    A.comment('==== role LN2 ====')
    T0, T1, T2, T3 = V_T0, V_T1, V_T2, V_T3
    S_TASK, S_A, S_B, S_C = 28, 29, 30, 31
    GA, SC, SH = 20, 40, 60
    X, P1, XR, HO = 80, 100, 160, 170
    V_OP, V_X, V_O, V_LW, V_LR = 180, 181, 182, 187, 188
    MEAN, RD = 190, 192
    HB, TK = 8, 9
    A(f'v_bfe_u32 v{HB}, v{V_L}, 3, 1')
    A(f'v_and_b32 v{TK}, 7, v{V_L}')
    A(f'v_lshl_add_u32 v{T2}, v{V_G}, 4, v{TK}')
    A(f'v_lshlrev_b32 v{T2}, 4, v{T2}')
    A(f'v_mul_u32_u24 v{T0}, {5 * 2048}, v{HB}')
    A(f'v_add_u32 v{V_OP}, v{T0}, v{T2}')
    A(f'v_mul_u32_u24 v{T0}, 1280, v{TK}')
    A(f'v_mul_u32_u24 v{T1}, 160, v{HB}')
    A(f'v_add_u32 v{T0}, v{T0}, v{T1}')
    A(f'v_lshl_add_u32 v{V_X}, v{V_G}, 3, v{T0}')
    for j in range(5):
        A(f'v_mul_u32_u24 v{T0}, 5, v{HB}')
        A(f'v_add_u32 v{T0}, {j}, v{T0}')
        A(f'v_lshrrev_b32 v{T1}, 1, v{T0}')
        A(f'v_lshlrev_b32 v{T1}, 11, v{T1}')
        A(f'v_and_b32 v{T0}, 1, v{T0}')
        A(f'v_lshl_add_u32 v{T0}, v{T0}, 3, v{T1}')
        A(f'v_add_u32 v{V_O + j}, v{T0}, v{T2}')
    A(f's_lshl_b32 s{S_TMP}, s{S_WV}, 5')
    A(f'v_lshlrev_b32 v{V_LR}, 2, v{TK}')
    A(f'v_add_u32 v{V_LW}, s{S_TMP}, v{V_LR}')
    A(f'v_mul_u32_u24 v{T0}, 320, v{HB}')
    A(f'v_lshl_add_u32 v{T0}, v{V_G}, 4, v{T0}')
    A(f's_mul_i32 s{S_TMP}, s{S_WV}, 640')
    for idx, base in ((2, GA), (4, SC), (3, SH)):
        A(f's_add_u32 s{S_TMP + 1}, s{S_TMP}, {WS_MOD + idx * 2560:#x}')
        for j in range(5):
            A(f'buffer_load_dwordx4 v[{base + 4 * j}:{base + 4 * j + 3}], v{T0}, {WS}, s{S_TMP + 1} offen offset:{64 * j} sc1')
    A.wait_vm0()
    for j in range(0, 20, 2):
        A(f'v_add_f32 v{SC + j}, 1.0, v{SC + j}')
        A(f'v_add_f32 v{SC + j + 1}, 1.0, v{SC + j + 1}')
        round2(A, SC + j, SC + j + 1, T0)
    load_ptr_srd(A, KA_X, 2048 * 1280)
    A(f's_mov_b32 s{S_TASK}, s{S_P0}')
    top = A.newlabel('L_ln2')
    A.flush_hazards()
    A.label(top)
    A.forget()
    A(f's_lshr_b32 s{S_A}, s{S_TASK}, 2')
    A(f's_lshl_b32 s{S_FIN}, s{S_A}, 7')
    A(f's_and_b32 s{S_FOUT}, s{S_TASK}, 3')
    A(f's_lshl_b32 s{S_FOUT}, s{S_FOUT}, 2')
    A(f's_add_u32 s{S_FOUT}, s{S_FOUT}, s{S_FIN}')
    A(f's_add_u32 s{S_FOUT}, s{S_FOUT}, {F_H2:#x}')
    A(f's_add_u32 s{S_FIN}, s{S_FIN}, {F_OP:#x}')
    if repl:
        A(f's_cmp_ge_u32 s{S_TASK}, 254')
        A(f's_cselect_b32 s{S_TMP}, 128, 0')
        A(f's_add_u32 s{S_FIN}, s{S_FIN}, s{S_TMP}')
    A(f's_mul_i32 s{S_B}, s{S_TASK}, {8 * 1280}')
    A(f's_mul_i32 s{S_TMP}, s{S_WV}, 320')
    A(f's_add_u32 s{S_B}, s{S_B}, s{S_TMP}')
    for j in range(5):
        A(f'buffer_load_dwordx2 v[{XR + 2 * j}:{XR + 2 * j + 1}], v{V_X}, {WW}, s{S_B} offen offset:{32 * j}')
    A(f's_bfe_u32 s{S_C}, s{S_TASK}, 0x10001')
    A(f's_lshl_b32 s{S_C}, s{S_C}, 10')
    A(f's_and_b32 s{S_TMP}, s{S_TASK}, 1')
    A(f's_lshl_b32 s{S_TMP}, s{S_TMP}, 7')
    A(f's_add_u32 s{S_C}, s{S_C}, s{S_TMP}')
    A(f's_mul_i32 s{S_B}, s{S_A}, {4 * 81920}')
    A(f's_add_u32 s{S_B}, s{S_B}, s{S_C}')
    A(f's_mul_i32 s{S_TMP}, s{S_WV}, {10 * 2048}')
    A(f's_add_u32 s{S_B}, s{S_B}, s{S_TMP}')
    A(f's_add_u32 s{S_B}, s{S_B}, {WS_OPART:#x}')
    wait_flags(A, abort, S_FIN, 20, sleep=1)
    pt = {}
    for j in range(5):
        for kg in range(4):
            dst = X + 4 * j if kg == 0 else P1 + 20 * (kg - 1) + 4 * j
            A(f's_add_u32 s{S_TMP}, s{S_B}, {kg * 81920 + j * 2048}')
            pt[j] = A(f'buffer_load_dwordx4 v[{dst}:{dst + 3}], v{V_OP}, {WS}, s{S_TMP} offen sc1')
    A(f's_mul_i32 s{S_B}, s{S_A}, 40960')
    A(f's_add_u32 s{S_B}, s{S_B}, s{S_C}')
    A(f's_mul_i32 s{S_TMP}, s{S_WV}, {5 * 2048}')
    A(f's_add_u32 s{S_B}, s{S_B}, s{S_TMP}')
    A(f's_add_u32 s{S_C}, s{S_B}, {WS_X1:#x}')
    A(f's_add_u32 s{S_B}, s{S_B}, {WS_H2:#x}')
    A(f'v_mov_b64 v[{T2}:{T3}], 0')
    for j in range(5):
        A.wait(pt[j])
        for r in (0, 2):
            x = X + 4 * j + r
            p = P1 + 4 * j + r
            A(f'v_pk_add_f32 v[{x}:{x + 1}], v[{x}:{x + 1}], v[{p}:{p + 1}]')
            A(f'v_pk_add_f32 v[{p + 20}:{p + 21}], v[{p + 20}:{p + 21}], v[{p + 40}:{p + 41}]')
            A(f'v_pk_add_f32 v[{x}:{x + 1}], v[{x}:{x + 1}], v[{p + 20}:{p + 21}]')
            round2(A, x, x + 1, T0)
            A(f'v_pk_mul_f32 v[{x}:{x + 1}], v[{x}:{x + 1}], v[{GA + 4 * j + r}:{GA + 4 * j + r + 1}]')
            round2(A, x, x + 1, T0)
            xr = XR + 2 * j + r // 2
            unpack2(A, T0, T1, xr)
            A(f'v_pk_add_f32 v[{x}:{x + 1}], v[{x}:{x + 1}], v[{T0}:{T1}]')
            A(f'v_cvt_pk_bf16_f32 v{xr}, v{x}, v{x + 1}')
            unpack2(A, x, x + 1, xr)
            A(f'v_pk_add_f32 v[{T2}:{T3}], v[{T2}:{T3}], v[{x}:{x + 1}]')
        A(f'buffer_store_dwordx2 v[{XR + 2 * j}:{XR + 2 * j + 1}], v{V_O + j}, {WS}, s{S_C} offen sc1')

    def allred(off, dst):
        A(f'v_add_f32 v{T0}, v{T2}, v{T3}')
        xlane_allreduce_g(A, 'v_add_f32', T0, T1)
        A(f'v_add_f32_dpp v{T1}, v{T0}, v{T0} row_ror:8 row_mask:0xf bank_mask:0xf')
        A(f'ds_write_b32 v{V_LW}, v{T1} offset:{off}')
        A.wait_lg0()
        A('s_barrier')
        tk = [A(f'ds_read_b32 v{12 + j}, v{V_LR} offset:{off + 32 * j}') for j in range(4)]
        A.wait(tk[-1])
        A('v_add_f32 v12, v12, v13'); A('v_add_f32 v14, v14, v15'); A('v_add_f32 v12, v12, v14')
        A(f'v_mul_f32 v{dst}, {f32bits(1.0 / 640):#x}, v12')

    allred(0, MEAN)
    A(f'v_sub_f32 v{MEAN}, 0, v{MEAN}')
    A(f'v_mov_b32 v{MEAN + 1}, v{MEAN}')
    A(f'v_mov_b64 v[{T2}:{T3}], 0')
    for j in range(0, 20, 2):
        A(f'v_pk_add_f32 v[{T0}:{T1}], v[{X + j}:{X + j + 1}], v[{MEAN}:{MEAN + 1}]')
        A(f'v_pk_fma_f32 v[{T2}:{T3}], v[{T0}:{T1}], v[{T0}:{T1}], v[{T2}:{T3}]')
    allred(256, RD)
    round2(A, MEAN, RD, T0)
    A(f'v_mov_b32 v{MEAN + 1}, v{MEAN}')
    A(f'v_add_f32 v{RD}, {f32bits(1e-5):#x}, v{RD}')
    round_bf16(A, RD, RD)
    A(f'v_sqrt_f32 v{RD}, v{RD}')
    round_bf16(A, RD, RD)
    A(f'v_rcp_f32 v{RD}, v{RD}')
    A(f'v_mov_b32 v{RD + 1}, v{RD}')
    for j in range(5):
        for r in (0, 2):
            x = X + 4 * j + r
            A(f'v_pk_add_f32 v[{x}:{x + 1}], v[{x}:{x + 1}], v[{MEAN}:{MEAN + 1}]')
            round2(A, x, x + 1, T0)
            A(f'v_pk_mul_f32 v[{x}:{x + 1}], v[{x}:{x + 1}], v[{RD}:{RD + 1}]')
            round2(A, x, x + 1, T0)
            A(f'v_pk_mul_f32 v[{x}:{x + 1}], v[{x}:{x + 1}], v[{SC + 4 * j + r}:{SC + 4 * j + r + 1}]')
            round2(A, x, x + 1, T0)
            A(f'v_pk_add_f32 v[{x}:{x + 1}], v[{x}:{x + 1}], v[{SH + 4 * j + r}:{SH + 4 * j + r + 1}]')
            A(f'v_cvt_pk_bf16_f32 v{HO + 2 * j + r // 2}, v{x}, v{x + 1}')
        A(f'buffer_store_dwordx2 v[{HO + 2 * j}:{HO + 2 * j + 1}], v{V_O + j}, {WS}, s{S_B} offen sc1')
    signal(A, S_FOUT)
    A(f's_add_u32 s{S_TASK}, s{S_TASK}, {n}')
    A(f's_cmp_lt_u32 s{S_TASK}, 256')
    A.branch(f's_cbranch_scc1 {top}')


def emit_proj(A, abort, m, need_init):
    A.comment(f'==== role projection {m} ====')
    weight_addr_setup(A, 8192)
    load_ptr_srd(A, {'q': KA_WQ, 'k': KA_WK, 'v': KA_WV}[m], 640 * 8192)
    A(f's_lshl_b32 s{S_SRC}, s{S_P0}, 8')
    A(f's_lshl_b32 s{S_TMP}, s{S_WV}, 6')
    A(f's_add_u32 s{S_SRC}, s{S_SRC}, s{S_TMP}')
    load_weights(A, S_SRC, 8192, 20, 2, lambda k, t: wlin(2 * k + t))
    tstamp(A, 0)
    if need_init:
        A(f's_add_u32 s{S_DST}, s{S_P0}, {0 if m == "k" else 32}')
        emit_calib(A, S_DST)
        wait_init(A, abort)
    tstamp(A, 1)
    A(f's_mov_b32 s{S_SEG}, 0')
    A(f's_mov_b32 s{S_LIM}, 64')
    A(f's_mov_b32 s{S_SRC}, {WS_H:#x}')
    A(f's_mov_b32 s{S_FIN}, {F_H:#x}')
    A(f's_lshl_b32 s{S_FOUT}, s{S_P0}, 4')
    A(f's_add_u32 s{S_FOUT}, s{S_FOUT}, {F_P + 4 * "kvq".index(m):#x}')
    if m != 'q':
        A(f's_lshl_b32 s{S_DST2}, s{S_P0}, 12')
        A(f's_lshl_b32 s{S_TMP}, s{S_WV}, 10')
        A(f's_add_u32 s{S_DST2}, s{S_DST2}, s{S_TMP}')
        A(f's_add_u32 s{S_DST2}, s{S_DST2}, {dict(k=WS_KM, v=WS_VM)[m]:#x}')
    A(f's_lshl_b32 s{S_DST}, s{S_P0}, 13')
    A(f's_lshl_b32 s{S_TMP}, s{S_WV}, {11 if m == "v" else 10}')
    A(f's_add_u32 s{S_DST}, s{S_DST}, s{S_TMP}')
    A(f's_add_u32 s{S_DST}, s{S_DST}, {dict(q=WS_Q, k=WS_KX, v=WS_VX)[m]:#x}')
    acc = lambda t, tt: 12 + 4 * (t * 2 + tt)
    O = 68

    def epi(A):
        for j in range(2):
            o = O + 4 * j
            if m == 'v':
                pack4(A, o, acc(j, 0)); pack4(A, o + 2, acc(j, 1))
                A(f'buffer_store_dwordx4 v[{o}:{o + 3}], v{V_L16}, {WS}, s{S_DST} offen offset:{j * 1024} sc1')
            else:
                pack4(A, o, acc(0, j)); pack4(A, o + 2, acc(1, j))
                A(f's_add_u32 s{S_TMP}, s{S_DST}, {j * 4096}')
                A(f'buffer_store_dwordx4 v[{o}:{o + 3}], v{V_L16}, {WS}, s{S_TMP} offen sc1')
        A(f's_add_u32 s{S_DST}, s{S_DST}, {32 * 8192}')
        if m != 'q':
            A(f'buffer_store_dwordx4 v[{O}:{O + 3}], v{V_L16}, {WS}, s{S_DST2} offen sc1')
            A(f's_add_u32 s{S_DST2}, s{S_DST2}, {32 * 4096}')

    tr = m != 'v'
    tiles = [(lambda k: wlin(2 * k), tr), (lambda k: wlin(2 * k + 1), tr)]
    gemm_loop(A, abort, 20, 2, tiles, 40960, 2, 8, 512, 1, epi)


def emit_att(A, abort, ncu, done_label, attsleep=3):
    A.comment('==== role ATT ====')
    S_TASK, S_SH, S_TT, S_SC, S_L2E, S_A, S_B = range(28, 35)
    KX, VX, KM, VM, QF, SS, OO = 12, 44, 76, 92, 108, 124, 136
    V_KMA, V_VMA, V_DIFF, V_D0 = 168, 169, 170, 171
    PP = 172
    T0, T1, T2 = V_T0, V_T1, V_T2
    A(f's_lshl_b32 s{S_TASK}, s{S_P0}, 2')
    A(f's_add_u32 s{S_TASK}, s{S_TASK}, s{S_WV}')
    A(f's_mov_b32 s{S_SC}, {f32bits(128 ** -0.5):#x}')
    A(f's_mov_b32 s{S_L2E}, {f32bits(math.log2(math.e)):#x}')
    A(f'v_and_b32 v{T0}, 7, v{V_I}')
    A(f'v_lshl_add_u32 v{T0}, v{V_G}, 3, v{T0}')
    A(f'v_lshlrev_b32 v{V_KMA}, 4, v{T0}')
    A(f'v_and_b32 v{T0}, 31, v{V_L}')
    A(f'v_lshlrev_b32 v{V_VMA}, 4, v{T0}')
    A(f'v_lshlrev_b32 v{T0}, 2, v{V_G}')
    A(f'v_sub_u32 v{V_D0}, v{V_I}, v{T0}')
    top = A.newlabel('L_att')
    A.flush_hazards()
    A.label(top)
    A.forget()
    A(f'v_mov_b32 v{T1}, 1')
    A('s_mov_b64 exec, 1')
    A(f'buffer_atomic_add v{T1}, off, {DBG}, 0 offset:20 sc0 sc1')
    A('s_mov_b64 exec, -1')
    A.wait_vm0()
    A(f'v_readfirstlane_b32 s{S_TASK}, v{T1}')
    A(f's_cmp_ge_u32 s{S_TASK}, 4096')
    A(f's_cbranch_scc1 {done_label}')
    A(f's_lshr_b32 s{S_SH}, s{S_TASK}, 1')
    A(f's_and_b32 s{S_TT}, s{S_TASK}, 1')
    A(f's_lshl_b32 s{S_TMP}, s{S_TT}, 4')
    A(f'v_add_u32 v{V_DIFF}, s{S_TMP}, v{V_D0}')
    A(f's_lshl_b32 s{S_A}, s{S_SH}, 4')
    A(f's_add_u32 s{S_B}, s{S_A}, {F_P:#x}')
    wait_flags(A, abort, S_B, 3)
    A(f's_lshl_b32 s{S_A}, s{S_SH}, 13')
    A(f's_lshl_b32 s{S_TMP}, s{S_TT}, 12')
    A(f's_add_u32 s{S_B}, s{S_A}, s{S_TMP}')
    A(f's_add_u32 s{S_B}, s{S_B}, {WS_Q:#x}')
    qt = [A(f'buffer_load_dwordx4 v[{QF + 4 * k}:{QF + 4 * k + 3}], v{V_L16}, {WS}, s{S_B} offen offset:{k * 1024} sc1') for k in range(4)]
    kt = {}
    for f in range(8):
        A(f's_add_u32 s{S_B}, s{S_A}, {WS_KX + (f >> 2) * 4096:#x}')
        kt[f] = A(f'buffer_load_dwordx4 v[{KX + 4 * f}:{KX + 4 * f + 3}], v{V_L16}, {WS}, s{S_B} offen offset:{(f & 3) * 1024} sc1')
    for f in range(8):
        A(f's_add_u32 s{S_B}, s{S_A}, {WS_VX + (f >> 2) * 4096:#x}')
        A(f'buffer_load_dwordx4 v[{VX + 4 * f}:{VX + 4 * f + 3}], v{V_L16}, {WS}, s{S_B} offen offset:{(f & 3) * 1024} sc1')
    Sm, S0, S1 = SS, SS + 4, SS + 8
    for kt_i, s_ in ((0, S0), (1, S1)):
        for k in range(4):
            A.wait(qt[k], kt[kt_i * 4 + k])
            c = '0' if k == 0 else f'v[{s_}:{s_ + 3}]'
            b = KX + 4 * (kt_i * 4 + k)
            A(f'v_mfma_f32_16x16x32_bf16 v[{s_}:{s_ + 3}], v[{b}:{b + 3}], v[{QF + 4 * k}:{QF + 4 * k + 3}], {c}')

    def fix(base):
        for r in (0, 2):
            round2(A, base + r, base + r + 1, T0)
            A(f'v_mul_f32 v{base + r}, s{S_SC}, v{base + r}')
            A(f'v_mul_f32 v{base + r + 1}, s{S_SC}, v{base + r + 1}')
            round2(A, base + r, base + r + 1, T0)
    A(f'v_mov_b32 v{T2}, 0xce6e6b28')
    for kt_i, s_ in ((0, S0), (1, S1)):
        fix(s_)
        for r in range(4):
            A(f'v_cmp_le_i32 vcc, {16 * kt_i + r}, v{V_DIFF}')
            A(f'v_cndmask_b32 v{s_ + r}, v{T2}, v{s_ + r}, vcc')
    MX = V_T3
    A(f'v_max3_f32 v{MX}, v{S0}, v{S0 + 1}, v{S0 + 2}')
    A(f'v_max3_f32 v{MX}, v{MX}, v{S0 + 3}, v{S1}')
    A(f'v_max3_f32 v{MX}, v{MX}, v{S1 + 1}, v{S1 + 2}')
    A(f'v_max_f32 v{MX}, v{MX}, v{S1 + 3}')
    A(f's_lshl_b32 s{S_B}, s{S_SH}, 5')
    A(f's_add_u32 s{S_B}, s{S_B}, {F_M:#x}')
    wait_flags(A, abort, S_B, 2, sleep=attsleep)
    A(f's_lshl_b32 s{S_A}, s{S_SH}, 11')
    A(f's_lshl_b32 s{S_B}, s{S_SH}, 12')
    A(f's_add_u32 s{S_B}, s{S_B}, {WS_KM:#x}')
    km = [A(f'buffer_load_dwordx4 v[{KM + 4 * k}:{KM + 4 * k + 3}], v{V_L16}, {WS}, s{S_B} offen offset:{k * 1024} sc1') for k in range(4)]
    A(f's_sub_u32 s{S_B}, s{S_B}, {WS_KM - WS_VM:#x}')
    vm = [A(f'buffer_load_dwordx2 v[{VM + 2 * j}:{VM + 2 * j + 1}], v{V_VMA}, {WS}, s{S_B} offen offset:{j * 512} sc1') for j in range(8)]
    for k in range(4):
        A.wait(km[k])
        c = '0' if k == 0 else f'v[{Sm}:{Sm + 3}]'
        A(f'v_mfma_f32_16x16x32_bf16 v[{Sm}:{Sm + 3}], v[{KM + 4 * k}:{KM + 4 * k + 3}], v[{QF + 4 * k}:{QF + 4 * k + 3}], {c}')
    A(f'v_cmp_gt_u32 vcc, 2, v{V_G}')
    fix(Sm)
    for r in range(4):
        A(f'v_cndmask_b32 v{Sm + r}, v{T2}, v{Sm + r}, vcc')
    A(f'v_max3_f32 v{T0}, v{MX}, v{Sm}, v{Sm + 1}')
    A(f'v_max3_f32 v{T0}, v{T0}, v{Sm + 2}, v{Sm + 3}')
    xlane_allreduce_g(A, 'v_max_f32', T0, T1)
    for j in range(12):
        A(f'v_sub_f32 v{SS + j}, v{SS + j}, v{T0}')
    for j in range(12):
        A(f'v_mul_f32 v{SS + j}, s{S_L2E}, v{SS + j}')
    for j in range(12):
        A(f'v_exp_f32 v{SS + j}, v{SS + j}')
    A(f'v_add_f32 v{T0}, v{SS}, v{SS + 1}')
    A(f'v_add_f32 v{T1}, v{SS + 2}, v{SS + 3}')
    for j in range(4, 12, 2):
        A(f'v_add_f32 v{T0}, v{T0}, v{SS + j}')
        A(f'v_add_f32 v{T1}, v{T1}, v{SS + j + 1}')
    A(f'v_add_f32 v{T0}, v{T0}, v{T1}')
    xlane_allreduce_g(A, 'v_add_f32', T0, T1)
    A(f'v_rcp_f32 v{T0}, v{T0}')
    for j in range(12):
        A(f'v_mul_f32 v{SS + j}, v{SS + j}, v{T0}')
    pack4(A, PP, S0); pack4(A, PP + 2, S1); pack4(A, PP + 4, Sm)
    A.wait(vm[-1])
    for j in range(8):
        o = OO + 4 * j
        A(f'v_mfma_f32_16x16x32_bf16 v[{o}:{o + 3}], v[{VX + 4 * j}:{VX + 4 * j + 3}], v[{PP}:{PP + 3}], 0')
    for j in range(8):
        o = OO + 4 * j
        A(f'v_mfma_f32_16x16x16_bf16 v[{o}:{o + 3}], v[{VM + 2 * j}:{VM + 2 * j + 1}], v[{PP + 4}:{PP + 5}], v[{o}:{o + 3}]')
    A(f's_lshl_b32 s{S_A}, s{S_SH}, 13')
    A(f's_lshl_b32 s{S_TMP}, s{S_TT}, 10')
    A(f's_add_u32 s{S_A}, s{S_A}, s{S_TMP}')
    A(f's_add_u32 s{S_A}, s{S_A}, {WS_O:#x}')
    for j in range(4):
        d = QF + 4 * j
        pack4(A, d, OO + 8 * j); pack4(A, d + 2, OO + 8 * j + 4)
        A(f's_add_u32 s{S_B}, s{S_A}, {j * 2048}')
        A(f'buffer_store_dwordx4 v[{d}:{d + 3}], v{V_L16}, {WS}, s{S_B} offen sc1')
    A.wait_vm0()
    A(f's_lshl_b32 s{S_B}, s{S_TASK}, 2')
    A(f's_add_u32 s{S_B}, s{S_B}, {F_O:#x}')
    A(f'v_mov_b32 v{T1}, 1')
    A('s_mov_b64 exec, 1')
    A(f'buffer_store_dword v{T1}, off, {WS}, s{S_B} sc1')
    A('s_mov_b64 exec, -1')
    A.branch(f's_branch {top}')


def emit_warm(A, s_j, first_seg):
    A.comment('==== late warm-up ====')
    T0 = V_T0
    A(f's_lshl_b32 s{S_TMP}, s{S_WV}, 6')
    A(f'v_add_u32 v{T0}, s{S_TMP}, v{V_L}')
    A(f'v_lshlrev_b32 v{T0}, 7, v{T0}')
    load_ptr_srd(A, KA_OUT, 2048 * 1280)
    regions = [(WS_O, 262144, WS), (WS_OPART, 327680, WS), (WS_X1, 40960, WS), (WS_H2, 40960, WS), (WS_ACT, 110592, WS), (0, 40960, WW)]
    n = 0
    for base, per, srd in regions:
        lo = base + first_seg * per
        units = ((64 - first_seg) * per + 32767) // 32768
        for i in range((units + 63) // 64):
            A(f's_add_u32 s{S_TMP}, s{s_j}, {64 * i}')
            A(f's_min_u32 s{S_TMP}, s{S_TMP}, {units - 1}')
            A(f's_lshl_b32 s{S_TMP}, s{S_TMP}, 15')
            A(f's_add_u32 s{S_TMP}, s{S_TMP}, {lo:#x}')
            A(f'buffer_load_dword v{12 + n % 8}, v{T0}, {srd}, s{S_TMP} offen sc1')
            n += 1
            if n % 4 == 0:
                A('s_waitcnt vmcnt(4)')
    A.wait_vm0()


def emit_calib(A, s_j):
    A.comment('==== page calibration ====')
    le = A.newlabel('L_cal')
    A(f's_cmp_lg_u32 s{S_WV}, 0')
    A(f's_cbranch_scc1 {le}')
    A(f'v_mov_b32 v{V_T0}, -1')
    A('s_mov_b64 exec, 1')
    A.wait_vm0()
    for d in range(2):
        A('s_mov_b32 s60, -1')
        A('s_mov_b32 s61, -1')
        for rep in range(3):
            for c in range(2):
                A(f's_lshl_b32 s{S_TMP}, s{s_j}, 15')
                A(f's_add_u32 s{S_TMP}, s{S_TMP}, {WS_MEMR + d * 16384 + c * 8192 + 6144:#x}')
                A('s_memtime s[56:57]')
                A('s_waitcnt lgkmcnt(0)')
                A(f'buffer_store_dword v{V_T0}, off, {WS}, s{S_TMP} sc1')
                A.wait_vm0()
                A('s_memtime s[58:59]')
                A('s_waitcnt lgkmcnt(0)')
                A('s_sub_u32 s58, s58, s56')
                A(f's_min_u32 s{60 + c}, s{60 + c}, s58')
        A('s_cmp_lt_u32 s61, s60')
        A(f's_cselect_b32 s{62 + d}, 1, 0')
    for d in range(2):
        A(f's_and_b32 s{S_TMP}, s{s_j}, 31')
        A(f's_lshl_b32 s{62 + d}, s{62 + d}, s{S_TMP}')
        A(f'v_mov_b32 v{V_T1}, s{62 + d}')
        A(f's_lshr_b32 s{S_TMP}, s{s_j}, 5')
        A(f's_lshl_b32 s{S_TMP}, s{S_TMP}, 2')
        A(f'buffer_atomic_or v{V_T1}, off, {DBG}, s{S_TMP} offset:{144 + 8 * d} sc1')
    A.wait_vm0()
    A(f'v_mov_b32 v{V_T1}, 1')
    A(f'buffer_atomic_add v{V_T1}, off, {DBG}, 0 offset:160 sc1')
    A('s_mov_b64 exec, -1')
    A.label(le)
```

```python
import sys
from asmlib import *
from layout import *
import rec, roles
from roles import *

KNAME = "adaLN_cond__memory_aug_recurrent_mem_tr__swiglu_ffn__prompt_kernel"
HEADER = open('adaLN_cond__memory_aug_recurrent_mem_tr__swiglu_ffn__prompt.s.ref').read().split('; Override launch')[0]

def gen(path, coarse=False, stamps=False, dbg='', gate=0, join='q', attsleep=3, warm=32, repl=False, scramble=False, **kw):
    A = Asm()
    roles.DEBUG_STAMPS[0] = stamps
    A.raw(HEADER.rstrip('\n'))
    A.raw('; @launch grid=(256,1,1) block=(256,1,1) lds=163840')
    A.raw('.amdgcn_target "amdgcn-amd-amdhsa--gfx950"')
    A.raw(kernel_header(KNAME))
    END = 'L_end'
    A('s_cmp_ge_u32 s2, 256')
    A('s_cbranch_scc1 L_end0')
    S_X, S_IDX = 98, 99
    if coarse:
        A('s_memrealtime s[100:101]')
    A(f's_load_dwordx2 s[4:5], s[0:1], {KA_DBG}')
    A(f's_getreg_b32 s{S_X}, hwreg(HW_REG_XCC_ID)')
    if scramble:
        A('s_lshr_b32 s6, s2, 3')
        A(f's_add_u32 s{S_X}, s{S_X}, s6')
    A(f's_and_b32 s{S_X}, s{S_X}, 7')
    A('v_lshrrev_b32 v1, 6, v0')
    A('v_readfirstlane_b32 s3, v1')
    A('s_waitcnt lgkmcnt(0)')
    A.srd(8, 4, 5, 256)
    A('s_cmp_lg_u32 s3, 0')
    A('s_cbranch_scc1 L_claimed')
    A('s_mov_b32 s6, 0')
    A('s_mov_b64 exec, 1')
    A.label('L_claim')
    A(f's_lshl_b32 s7, s{S_X}, 2')
    A('s_add_u32 s7, s7, 32')
    A('v_mov_b32 v1, 1')
    A('buffer_atomic_add v1, off, s[8:11], s7 sc0 sc1')
    A('s_waitcnt vmcnt(0)')
    A(f'v_readfirstlane_b32 s{S_IDX}, v1')
    A(f's_cmp_lt_u32 s{S_IDX}, 32')
    A('s_cbranch_scc1 L_claim_ok')
    A(f's_add_u32 s{S_X}, s{S_X}, 1')
    A(f's_and_b32 s{S_X}, s{S_X}, 7')
    A('s_add_u32 s6, s6, 1')
    A('s_cmp_lt_u32 s6, 8')
    A('s_cbranch_scc1 L_claim')
    A(f's_mov_b32 s{S_IDX}, 255')
    A.label('L_claim_ok')
    A(f's_lshl_b32 s7, s{S_IDX}, 3')
    A(f's_or_b32 s7, s7, s{S_X}')
    A('v_mov_b32 v1, s7')
    A('v_mov_b32 v2, 0')
    A('ds_write_b32 v2, v1')
    A('s_waitcnt lgkmcnt(0)')
    A('s_mov_b64 exec, -1')
    A.label('L_claimed')
    A('s_barrier')
    A('v_mov_b32 v2, 0')
    A('ds_read_b32 v1, v2')
    A('s_waitcnt lgkmcnt(0)')
    A('v_readfirstlane_b32 s7, v1')
    A('s_barrier')
    A(f's_and_b32 s{S_X}, s7, 7')
    A(f's_lshr_b32 s{S_IDX}, s7, 3')
    A('s_mov_b32 s3, s7')
    A(f's_cmp_ge_u32 s{S_IDX}, 32')
    A('s_cbranch_scc1 L_end0')
    A(f's_cmp_lt_u32 s{S_X}, 2')
    A('s_cbranch_scc1 L_rec')
    common_setup(A)
    A(f's_cmp_lt_u32 s{S_X}, 4')
    A('s_cbranch_scc1 L_kv')
    A(f's_sub_u32 s{S_P0}, s{S_X}, 4')
    A(f's_lshl_b32 s{S_P0}, s{S_P0}, 5')
    A(f's_add_u32 s{S_P0}, s{S_P0}, s{S_IDX}')
    emit_init(A, END)
    tstamp(A, 4)
    emit_ln(A, 1, S_P0, mid=lambda: (wait_init(A, END), tstamp(A, 5)))
    tstamp(A, 6)
    A(f's_lshl_b32 s{S_FOUT}, s{S_P0}, 2')
    A(f's_add_u32 s{S_FOUT}, s{S_FOUT}, {F_H:#x}')
    signal(A, S_FOUT)
    emit_init(A, END, part=2)
    if gate:
        A(f's_cmp_lg_u32 s{S_WV}, 0')
        A('s_cbranch_scc1 L_gate')
        A(f's_mov_b32 s{S_TMP}, {WS_FLAG + 0x3800:#x}')
        wait_flags(A, 'L_gate', S_TMP, 1, value=gate, sleep=32, ge=True)
        A.label('L_gate')
    A('s_barrier')
    A(f's_mov_b32 s{S_SEG}, 0')
    A(f's_mov_b32 s{S_LIM}, {63 if repl else 64}')
    A(f's_cmp_eq_u32 s{S_X}, 4')
    A.branch('s_cbranch_scc1 L_q')
    A(f's_cmp_eq_u32 s{S_X}, 5')
    A.branch('s_cbranch_scc1 L_x5')
    A(f's_cmp_eq_u32 s{S_X}, 6')
    A.branch('s_cbranch_scc1 L_x6')
    A(f's_sub_u32 s{S_P0}, s{S_IDX}, 11')
    A(f's_cmp_ge_u32 s{S_IDX}, 20')
    A('s_cbranch_scc1 L_att')
    A.label('L_ff2'); A.forget()
    A(f's_and_b32 s{S_P0}, s{S_IDX}, 1')
    A(f's_lshr_b32 s{S_P1}, s{S_IDX}, 1')
    emit_ff2(A, END)
    A.branch(f's_branch {END}')
    A.label('L_x6'); A.forget()
    A(f's_sub_u32 s{S_P0}, s{S_IDX}, 23')
    A(f's_cmp_ge_u32 s{S_IDX}, 27')
    A('s_cbranch_scc1 L_att')
    A.label('L_ff1'); A.forget()
    A(f's_mov_b32 s{S_P0}, s{S_IDX}')
    emit_ff1(A, END)
    A.branch(f's_branch {END}')
    A.label('L_x5'); A.forget()
    A(f's_sub_u32 s{S_P0}, s{S_IDX}, 28')
    A(f's_cmp_ge_u32 s{S_IDX}, 28')
    A('s_cbranch_scc1 L_att')
    A(f's_cmp_ge_u32 s{S_IDX}, 20')
    A('s_cbranch_scc1 L_ln2r')
    A(f's_mul_i32 s{S_P0}, s{S_IDX}, 52')
    A(f's_lshr_b32 s{S_P0}, s{S_P0}, 8')
    A(f's_mul_i32 s{S_P1}, s{S_P0}, 5')
    A(f's_sub_u32 s{S_P1}, s{S_IDX}, s{S_P1}')
    emit_op(A, END)
    A.branch(f's_branch {END}')
    A.label('L_ln2r'); A.forget()
    A(f's_sub_u32 s{S_P0}, s{S_IDX}, 20')
    emit_ln2(A, END, 8, repl)
    A.branch(f's_branch {END}')
    A.label('L_q'); A.forget()
    A(f's_mov_b32 s{S_P0}, s{S_IDX}')
    emit_proj(A, END, 'q', False)
    A('s_barrier')
    A(f's_mov_b32 s{S_SEG}, 63')
    A(f's_mov_b32 s{S_LIM}, 64')
    if repl:
        A(f's_cmp_lt_u32 s{S_IDX}, 27')
        A.branch('s_cbranch_scc1 L_ff1')
    A(f's_mov_b32 s{S_P0}, 99')
    A.branch('s_branch L_att' if 'q' in join else f's_branch {END}')
    A.label('L_att'); A.forget()
    emit_att(A, END, 21, END, attsleep)
    A.branch(f's_branch {END}')
    A.label('L_kv'); A.forget()
    A(f's_mov_b32 s{S_P0}, s{S_IDX}')
    A(f's_sub_u32 s{S_P1}, s{S_X}, 2')
    A(f's_cmp_eq_u32 s{S_X}, 3')
    A('s_cbranch_scc1 L_vp')
    emit_proj(A, END, 'k', True)
    A.branch('s_branch L_kvd')
    A.label('L_vp'); A.forget()
    emit_proj(A, END, 'v', True)
    A.label('L_kvd'); A.forget()
    A(f's_lshl_b32 s{S_P1}, s{S_P1}, 5')
    A(f's_add_u32 s{S_P1}, s{S_P1}, s{S_P0}')
    if warm:
        emit_warm(A, S_P1, warm)
    A('s_barrier')
    A(f's_mov_b32 s{S_SEG}, 63')
    A(f's_mov_b32 s{S_LIM}, 64')
    A(f's_mov_b32 s{S_P0}, 99')
    if not repl:
        A.branch(f's_branch {END}')
    else:
        A(f's_cmp_ge_u32 s{S_P1}, 60')
        A.branch('s_cbranch_scc1 L_att')
        A(f's_mov_b32 s97, s{S_IDX}')
        A(f's_sub_u32 s{S_IDX}, s{S_P1}, 40')
        A(f's_cmp_ge_u32 s{S_P1}, 40')
        A.branch('s_cbranch_scc1 L_ff2')
        A(f's_mov_b32 s{S_IDX}, s97')
        A(f's_and_b32 s{S_P2}, s{S_P1}, 1')
        A(f's_lshr_b32 s{S_TMP}, s{S_P1}, 1')
        A(f's_mul_i32 s{S_P0}, s{S_TMP}, 52')
        A(f's_lshr_b32 s{S_P0}, s{S_P0}, 8')
        A(f's_mul_i32 s{S_P1}, s{S_P0}, 5')
        A(f's_sub_u32 s{S_P1}, s{S_TMP}, s{S_P1}')
        emit_op(A, END, split=True)
        A.branch(f's_branch {END}')
    A.label('L_rec'); A.forget()
    A(f's_mov_b32 s{rec.S_T}, s{S_X}')
    A(f's_mov_b32 s{rec.S_H}, s{S_IDX}')
    rec.emit_rec(A, END, mega=True, coarse=coarse, stamps=stamps, dbg=dbg, **kw)
    A.label(END)
    if coarse:
        A('s_memrealtime s[92:93]')
        A('s_waitcnt lgkmcnt(0)')
        A('s_lshl_b32 s41, s3, 4')
        A(f's_add_u32 s41, s41, {WS_STAMP + 0x300000:#x}')
        A('s_mov_b64 exec, 1')
        A('v_mov_b32 v2, s100')
        A('v_mov_b32 v3, s92')
        A('buffer_store_dwordx2 v[2:3], off, s[4:7], s41')
    A.label('L_end0')
    A('s_endpgm')
    A.raw(kernel_desc(KNAME))
    open(path, 'w').write(A.text())
    print('instructions:', A.ninstr, 'bytes of text:', len(A.text()))

if __name__ == '__main__':
    out = 'mega.s'
    gen(out, coarse='--coarse' in sys.argv, stamps='--stamps' in sys.argv)
    for d in ('nokmt', 'nokmt,pubnt'):
        if '--dbg' in sys.argv:
            gen(f'mega_{d.replace(",", "_")}.s', coarse=True, stamps=True, dbg=d)
    if '--install' in sys.argv:
        import shutil
        shutil.copy(out, 'adaLN_cond__memory_aug_recurrent_mem_tr__swiglu_ffn__prompt.s')
```

```python
import math
import struct
from asmlib import *
from layout import *
from roles import F_P, F_M

VREG = 34816
MEMB = 4 * VREG
QKB = MEMB + 10240
OB = QKB + 4096
KXB = OB + 2048
assert KXB + 8192 == 163840

SPIN_LIMIT = 1 << 17


def f32bits(x):
    return struct.unpack('<I', struct.pack('<f', x))[0]


LDS_BLOCKS = [('v', s_, t_) for s_ in range(5) for t_ in range(2)] + [('k', s_, 1) for s_ in range(3)] + \
             [('k', 5, 0), ('k', 6, 0), ('k', 7, 1), ('k', 9, 0)]
assert len(LDS_BLOCKS) == 17
_all = [(m, s_, t_) for m in 'qkv' for s_ in range(10) for t_ in range(2)] + [('o', k_, t_) for k_ in range(2) for t_ in range(5)]
_regb = [b for b in _all if b not in LDS_BLOCKS]
assert len(_regb) == 53
REG_OF = {b: (256 + 8 * i if i < 32 else 88 + 8 * (i - 32)) for i, b in enumerate(_regb)}
BLK_OF = {b: i for i, b in enumerate(LDS_BLOCKS)}


V_LANE, V_IDX, V_L16, V_KX, V_QKW, V_QKR, V_OW0, V_OR, V_PST, V_T2, V_T1, V_T0 = range(12)
VX0, VX1 = 12, 16
V_P4, V_P1, V_PUB = 12, 13, 14
Q0, Q1, K0, K1, VV0, VV1 = 20, 24, 28, 32, 36, 40
AR = 44
PL = 56
VW = 64
SS = 64
VXR = 80

S_WS, S_W, S_DBG = 4, 8, 12
S_T, S_H, S_WV, S_STEP, S_FAST = 16, 17, 18, 19, 20
S_PLOC, S_PREM, S_PS0, S_PS1, S_PS2, S_PA, S_PUBR, S_PUBL, S_KX, S_VX, S_RED, S_NOT1, S_C = range(21, 34)
S_MLO = 34
S_MPUB = 36
S_KM, S_VM, S_FL = 38, 39, 40
S_TMP = 41
S_PTR = 44
S_SPIN = 46
S_TMP2 = 47
S_ST = 48
S_STO = 80
S_KSEL = 96
S_FKV = 97
S_EARLY = 81
S_TA = 32
S_TABW, S_TABR = 36, 82
S_PREM0, S_PUBR0 = 39, 96
S_TMASK = 94
S_PAR, S_W1280, S_P1B, S_W512 = 72, 73, 74, 75
S_ONE = 76
S_HALF = 78
S_RDY = 25


def emit_rec(A, abort_label, nsteps=64, stamps=False, force_safe=False, coarse=False, backoff=13, ka=2, adelay=(1, 2), mega=False, rp=(0, 2), cut=None, dbg='', kb=2, bgap=15, spec=True, kmahead=2, align=None, kxlate=True, tlate=False, early=True):
    def stamp(i):
        if stamps:
            A(f'{"s_memrealtime" if stamps == "rt" else "s_memtime"} s[{S_ST + 2 * i}:{S_ST + 2 * i + 1}]')
        if cut == i:
            A.branch('s_branch L_cut')

    if coarse:
        A('s_memrealtime s[84:85]')
        A('s_memtime s[86:87]')
    A(f's_load_dwordx2 s[{S_PTR}:{S_PTR + 1}], s[0:1], {KA_WS}')
    A(f's_load_dwordx2 s[{S_TMP + 1}:{S_TMP + 2}], s[0:1], {KA_DBG}')
    A(f'v_lshrrev_b32 v1, 6, v0')
    A(f'v_readfirstlane_b32 s{S_WV}, v1')
    A(f'v_and_b32 v{V_LANE}, 63, v0')
    A('s_waitcnt lgkmcnt(0)')
    A.srd(S_WS, S_PTR, S_PTR + 1, WS_BYTES)
    A.srd(S_DBG, S_TMP + 1, S_TMP + 2, 256)
    A(f's_mov_b32 s{S_SPIN}, 0')
    L = V_LANE
    T0, T1 = V_T0, V_T1
    G, R_, C_ = 20, 21, 22
    A(f'v_lshrrev_b32 v{G}, 4, v{L}')
    A(f'v_bfe_u32 v{R_}, v{L}, 2, 2')
    A(f'v_and_b32 v{C_}, 3, v{L}')
    A(f'v_and_b32 v{T0}, 8, v{L}')
    A(f'v_cmp_eq_u32 vcc, 0, v{T0}')
    A(f'v_mov_b32 v{T0}, 0xeeee')
    A(f'v_mov_b32 v{T1}, 0x4444')
    A(f'v_cndmask_b32 v{V_IDX}, v{T0}, v{T1}, vcc')
    A(f's_mul_i32 s{S_TMP}, s{S_WV}, {VREG}')
    A(f'v_lshlrev_b32 v{T0}, 4, v{L}')
    A(f'v_add_u32 v{V_L16}, s{S_TMP}, v{T0}')
    A(f'v_add_u32 v{V_KX}, {MEMB}, v{T0}')
    A(f'v_lshrrev_b32 v{T0}, 5, v{L}')
    A(f'v_lshlrev_b32 v{T0}, 8, v{T0}')
    A(f'v_and_b32 v{T1}, 15, v{L}')
    A(f'v_lshl_add_u32 v{T0}, v{T1}, 4, v{T0}')
    A(f'v_and_b32 v{T1}, 1, v{G}')
    A(f'v_lshl_add_u32 v{T0}, v{T1}, 3, v{T0}')
    A(f's_lshl_b32 s{S_TMP}, s{S_WV}, 9')
    A(f's_add_u32 s{S_TMP}, s{S_TMP}, {QKB}')
    A(f'v_add_u32 v{V_QKW}, s{S_TMP}, v{T0}')
    A(f'v_lshlrev_b32 v{T0}, 6, v{G}')
    A(f'v_lshl_add_u32 v{T0}, v{R_}, 4, v{T0}')
    A(f'v_and_b32 v{T1}, 1, v{C_}')
    A(f'v_lshl_add_u32 v{T0}, v{T1}, 3, v{T0}')
    A(f'v_add_u32 v{V_QKR}, {QKB}, v{T0}')
    I_ = 23
    A(f'v_and_b32 v{I_}, 7, v{L}')
    A(f'v_lshrrev_b32 v{T0}, 1, v{G}')
    A(f's_lshl_b32 s{S_TMP}, s{S_WV}, 2')
    A(f'v_add_u32 v{T0}, s{S_TMP}, v{T0}')
    A(f'v_xor_b32 v{T0}, v{T0}, v{I_}')
    A(f'v_lshlrev_b32 v{T0}, 4, v{T0}')
    A(f'v_lshl_add_u32 v{T0}, v{I_}, 8, v{T0}')
    A(f'v_and_b32 v{T1}, 1, v{G}')
    A(f'v_lshl_add_u32 v{T0}, v{T1}, 3, v{T0}')
    A(f'v_add_u32 v{V_OW0}, {OB}, v{T0}')
    A(f'v_bfe_u32 v{T0}, v{L}, 3, 1')
    A(f'v_lshl_add_u32 v{T0}, v{G}, 1, v{T0}')
    A(f'v_xor_b32 v{T0}, v{T0}, v{I_}')
    A(f'v_lshlrev_b32 v{T0}, 4, v{T0}')
    A(f'v_lshl_add_u32 v{T0}, v{I_}, 8, v{T0}')
    A(f'v_add_u32 v{V_OR}, {OB}, v{T0}')
    A(f'v_and_b32 v{T0}, 1, v{G}')
    A(f'v_lshlrev_b32 v{T0}, 1, v{T0}')
    A(f'v_lshrrev_b32 v{T1}, 1, v{G}')
    A(f'v_add_u32 v{T0}, v{T0}, v{T1}')
    A(f'v_lshlrev_b32 v{T0}, 1, v{T0}')
    A(f'v_bfe_u32 v{T1}, v{L}, 3, 1')
    A(f'v_add_u32 v{T0}, v{T0}, v{T1}')
    A(f'v_lshlrev_b32 v{T0}, 12, v{T0}')
    A(f'v_lshl_add_u32 v{V_PST}, v{I_}, 4, v{T0}')
    A(f's_lshl_b32 s{S_KSEL}, s{S_T}, 2')
    A(f's_add_u32 s{S_KSEL}, s{S_KSEL}, s{S_WV}')
    A(f's_mov_b32 s{S_ONE}, 0x3f803f80')
    A(f's_mov_b32 s{S_ONE + 1}, 0x3f803f80')
    A(f's_mov_b32 s{S_HALF}, 0x3f003f00')
    A(f's_mov_b32 s{S_HALF + 1}, 0x3f003f00')
    A(f's_mov_b32 s{S_PAR}, 0')
    A(f's_mul_i32 s{S_W1280}, s{S_WV}, 1280')
    A(f's_add_u32 s{S_P1B}, s{S_W1280}, {MEMB + 1024}')
    A(f's_lshl_b32 s{S_W512}, s{S_WV}, 9')

    def rebuild():
        A(f'v_add_u32 v{V_P4}, s{S_W1280}, v{V_KX}')
        A(f'v_lshl_add_u32 v{V_P1}, v{L}, 2, s{S_P1B}')

    def rebuild_pub():
        A(f'v_and_b32 v{T0}, 7, v{L}')
        A(f'v_bfe_u32 v{T1}, v{L}, 4, 1')
        A(f'v_lshlrev_b32 v{T1}, 3, v{T1}')
        A(f'v_lshl_add_u32 v{V_PUB}, v{T0}, 4, v{T1}')

    A(f's_mov_b32 s{S_MLO}, -1')
    A(f's_mov_b32 s{S_MLO + 1}, 0')
    A(f's_mov_b32 s{S_MPUB}, 0x00ff00ff')
    A(f's_mov_b32 s{S_MPUB + 1}, 0x00ff00ff')
    A(f's_mov_b32 s{S_NOT1}, 0xfffffffe')
    A(f's_mov_b32 s{S_C}, {f32bits((128 ** -0.5) * math.log2(math.e)):#x}')
    A(f's_mul_i32 s{S_TMP2}, s{S_WV}, {VREG}')
    A(f's_mul_i32 s{S_TMP}, s{S_T}, 5120')
    A(f's_add_u32 s{S_PLOC}, s{S_TMP}, {WS_MEML - MEMB:#x}')
    A(f's_xor_b32 s{S_TMP}, s{S_T}, 1')
    A(f's_lshl_b32 s{S_TMP}, s{S_TMP}, 14')
    A(f's_add_u32 s{S_PREM}, s{S_TMP}, {WS_MEMR - MEMB:#x}')
    A(f's_mul_i32 s{S_TMP}, s{S_T}, 163840')
    A(f's_add_u32 s{S_TMP}, s{S_TMP}, {WS_PART:#x}')
    A(f's_mul_i32 s{S_TMP + 1}, s{S_WV}, {10 * 4096}')
    A(f's_add_u32 s{S_PS0}, s{S_TMP}, s{S_TMP + 1}')
    A(f's_lshl_b32 s{S_TMP + 1}, s{S_H}, 7')
    A(f's_add_u32 s{S_PS0}, s{S_PS0}, s{S_TMP + 1}')
    A(f's_add_u32 s{S_PS1}, s{S_PS0}, 32768')
    A(f's_lshl_b32 s{S_RED}, s{S_WV}, 5')
    A(f's_add_u32 s{S_RED}, s{S_RED}, s{S_H}')
    A(f's_min_u32 s{S_TMP + 2}, s{S_RED}, 39')
    A(f's_lshl_b32 s{S_TMP + 1}, s{S_TMP + 2}, 12')
    A(f's_add_u32 s{S_PA}, s{S_TMP}, s{S_TMP + 1}')
    A(f's_sub_u32 s{S_PA}, s{S_PA}, s{S_TMP2}')
    A(f's_lshl_b32 s{S_TMP + 1}, s{S_TMP + 2}, 7')
    A(f's_lshl_b32 s{S_TMP}, s{S_T}, 14')
    A(f's_add_u32 s{S_PUBR}, s{S_TMP}, s{S_TMP + 1}')
    A(f's_add_u32 s{S_PUBR}, s{S_PUBR}, {WS_MEMR + 32768:#x}')
    A(f's_mul_i32 s{S_TMP}, s{S_T}, 5120')
    A(f's_add_u32 s{S_PUBL}, s{S_TMP}, s{S_TMP + 1}')
    A(f's_add_u32 s{S_PUBL}, s{S_PUBL}, {WS_MEML + 10240:#x}')
    A(f's_lshl_b32 s{S_TMP}, s{S_H}, 13')
    A(f's_lshl_b32 s{S_TMP + 1}, s{S_WV}, 11')
    A(f's_add_u32 s{S_TMP}, s{S_TMP}, s{S_TMP + 1}')
    A(f's_sub_u32 s{S_TMP}, s{S_TMP}, s{S_TMP2}')
    A(f's_add_u32 s{S_KX}, s{S_TMP}, {WS_KX:#x}')
    A(f's_add_u32 s{S_VX}, s{S_TMP}, {WS_VX:#x}')
    A(f's_lshl_b32 s{S_TMP}, s{S_H}, 12')
    A(f's_lshl_b32 s{S_TMP + 1}, s{S_WV}, 10')
    A(f's_add_u32 s{S_TMP}, s{S_TMP}, s{S_TMP + 1}')
    A(f's_sub_u32 s{S_TMP}, s{S_TMP}, s{S_TMP2}')
    A(f's_add_u32 s{S_KM}, s{S_TMP}, {WS_KM:#x}')
    A(f's_mul_i32 s{S_TMP}, s{S_T}, {WS_KM - WS_VM:#x}')
    A(f's_sub_u32 s{S_KM}, s{S_KM}, s{S_TMP}')
    A(f's_sub_u32 s{S_TMASK}, 0, s{S_T}')
    A(f's_mov_b32 s{S_TMASK + 1}, s{S_TMASK}')

    lskip = A.newlabel('L_ann'); lnc = A.newlabel('L_nocal')
    A(f's_cmp_lg_u32 s{S_WV}, 0')
    A.branch(f's_cbranch_scc1 {lskip}')
    A(f's_mov_b32 s{S_ST + 6}, 0')
    A(f's_or_b32 s{S_TMP}, s{S_T}, s{S_H}')
    A(f's_cmp_lg_u32 s{S_TMP}, 0' if not mega else 's_cmp_lg_u32 1, 0')
    A.branch(f's_cbranch_scc1 {lnc}')
    A(f'v_mov_b32 v{T0}, {WS_MEMR:#x}')
    A(f'v_mov_b32 v{T1}, {WS_MEMR + 8192:#x}')
    A('s_mov_b64 exec, 1')
    A(f's_mov_b32 s{S_ST + 8}, -1')
    A(f's_mov_b32 s{S_ST + 9}, -1')
    for rep in range(3):
        for c in range(2):
            A(f's_memtime s[{S_ST}:{S_ST + 1}]')
            A('s_waitcnt lgkmcnt(0)')
            A(f'buffer_store_dword v{T0}, v{(T0, T1)[c]}, s[{S_WS}:{S_WS + 3}], 0 offen sc1')
            A.wait_vm0()
            A(f's_memtime s[{S_ST + 2}:{S_ST + 3}]')
            A('s_waitcnt lgkmcnt(0)')
            A(f's_sub_u32 s{S_ST + 4}, s{S_ST + 2}, s{S_ST}')
            A(f's_min_u32 s{S_ST + 8 + c}, s{S_ST + 8 + c}, s{S_ST + 4}')
    A('s_mov_b64 exec, -1')
    A(f's_cmp_lt_u32 s{S_ST + 9}, s{S_ST + 8}')
    A(f's_cselect_b32 s{S_ST + 6}, 0x40000000, 0')
    A.label(lnc)
    A(f's_getreg_b32 s{S_TMP}, hwreg(HW_REG_XCC_ID)')
    A(f's_and_b32 s{S_TMP}, s{S_TMP}, 15')
    A(f's_mul_i32 s{S_TMP + 1}, s{S_TMP}, s{S_TMP}')
    A(f's_lshl_b32 s{S_TMP + 1}, s{S_TMP + 1}, 16')
    A(f's_lshl_b32 s{S_TMP}, s{S_TMP}, 6')
    A(f's_add_u32 s{S_TMP}, s{S_TMP}, s{S_TMP + 1}')
    A(f's_add_u32 s{S_TMP}, s{S_TMP}, 1')
    A(f's_add_u32 s{S_TMP}, s{S_TMP}, s{S_ST + 6}')
    A(f'v_mov_b32 v{T0}, s{S_TMP}')
    A(f's_lshl_b32 s{S_TMP + 1}, s{S_T}, 2')
    A('s_mov_b64 exec, 1')
    A(f'buffer_atomic_add v{T0}, off, s[{S_DBG}:{S_DBG + 3}], s{S_TMP + 1} offset:128 sc1')
    A('s_mov_b64 exec, -1')
    A.flush_hazards()
    A.label(lskip)

    VSRC, VB, VBO = 24, 25, 26
    VOS = 27
    TB = 32
    VS4, VB4 = 12, 16
    for n in range(4):
        A(f'v_and_b32 v{T0}, 1, v{G}')
        A(f'v_or_b32 v{T0}, {2 * n}, v{T0}')
        A(f'v_lshlrev_b32 v{T0}, 1, v{T0}')
        A(f'v_and_b32 v{T1}, 15, v{L}')
        A(f'v_xor_b32 v{T0}, v{T0}, v{T1}')
        A(f'v_lshlrev_b32 v{T0}, 4, v{T0}')
        A(f'v_lshl_add_u32 v{VS4 + n}, v{G}, 13, v{T0}')
    A(f'v_and_b32 v{T0}, 1, v{R_}')
    A(f'v_and_b32 v{T1}, 1, v{G}')
    A(f'v_lshl_add_u32 v{VSRC}, v{T1}, 1, v{T0}')
    A(f'v_lshl_add_u32 v{T0}, v{T1}, 2, v{T0}')
    A(f'v_lshrrev_b32 v{T1}, 1, v{R_}')
    A(f'v_lshl_add_u32 v{VSRC}, v{T1}, 2, v{VSRC}')
    A(f'v_lshl_add_u32 v{T0}, v{T1}, 3, v{T0}')
    A(f'v_lshlrev_b32 v{T0}, 8, v{T0}')
    A(f'v_lshrrev_b32 v{T1}, 1, v{G}')
    A(f'v_mul_u32_u24 v{T1}, {VREG}, v{T1}')
    A(f'v_add_u32 v{T0}, v{T0}, v{T1}')
    A(f'v_and_b32 v{T1}, 1, v{C_}')
    A(f'v_lshl_add_u32 v{T0}, v{T1}, 3, v{T0}')
    A(f'v_lshlrev_b32 v{VSRC}, 1, v{VSRC}')
    A(f'v_lshrrev_b32 v{T1}, 1, v{C_}')
    A(f's_lshl_b32 s{S_TMP}, s{S_WV}, 2')
    A(f'v_or_b32 v{T1}, s{S_TMP}, v{T1}')
    A(f'v_xor_b32 v{T1}, v{T1}, v{VSRC}')
    A(f'v_lshl_add_u32 v{VB4}, v{T1}, 4, v{T0}')
    A(f'v_xor_b32 v{VB4 + 1}, 32, v{VB4}')
    A(f'v_add_u32 v{VB4 + 2}, {2 * VREG}, v{VB4}')
    A(f'v_add_u32 v{VB4 + 3}, {2 * VREG}, v{VB4 + 1}')
    A(f'v_lshrrev_b32 v{T0}, 1, v{G}')
    A(f'v_lshlrev_b32 v{T0}, 4, v{T0}')
    A(f'v_and_b32 v{T1}, 1, v{G}')
    A(f'v_lshl_add_u32 v{T0}, v{T1}, 2, v{T0}')
    A(f'v_lshrrev_b32 v{T1}, 1, v{R_}')
    A(f'v_lshl_add_u32 v{T0}, v{T1}, 3, v{T0}')
    A(f'v_and_b32 v{T1}, 1, v{R_}')
    A(f'v_add_u32 v{T0}, v{T1}, v{T0}')
    A(f'v_lshlrev_b32 v{T1}, 6, v{T0}')
    A(f'v_lshl_add_u32 v{T1}, v{C_}, 3, v{T1}')
    A(f'v_add_u32 v{VB}, s{S_TMP2}, v{T1}')
    A(f'v_mul_u32_u24 v{T0}, 160, v{T0}')
    A(f'v_lshl_add_u32 v{T0}, v{C_}, 3, v{T0}')
    A(f'v_add_u32 v{VBO}, s{S_TMP2}, v{T0}')
    for n in range(5):
        A(f'v_add_u32 v{T0}, {64 * n}, v{L}')
        A(f'v_mul_u32_u24 v{T1}, 6554, v{T0}')
        A(f'v_lshrrev_b32 v{T1}, 16, v{T1}')
        A(f'v_mul_u32_u24 v{VOS + n}, 10, v{T1}')
        A(f'v_sub_u32 v{T0}, v{T0}, v{VOS + n}')
        A(f'v_mul_u32_u24 v{T1}, 1280, v{T1}')
        A(f'v_lshl_add_u32 v{VOS + n}, v{T0}, 4, v{T1}')

    S_CB, S_R0 = S_ST + 10, S_ST + 11
    S_SO = S_ST + 12
    S_PQ, S_PK, S_PV, S_PO = S_ST + 14, S_ST + 16, S_ST + 18, S_ST + 20
    A(f's_load_dwordx2 s[{S_PQ}:{S_PQ + 1}], s[0:1], {KA_WQ}')
    A(f's_load_dwordx2 s[{S_PK}:{S_PK + 1}], s[0:1], {KA_WK}')
    A(f's_load_dwordx2 s[{S_PV}:{S_PV + 1}], s[0:1], {KA_WV}')
    A(f's_load_dwordx2 s[{S_PO}:{S_PO + 1}], s[0:1], {KA_WO}')
    A(f's_lshl_b32 s{S_CB}, s{S_H}, 8')
    A(f's_lshl_b32 s{S_TMP}, s{S_WV}, 17')
    A(f's_add_u32 s{S_CB}, s{S_CB}, s{S_TMP}')
    A('s_waitcnt lgkmcnt(0)')
    WBYTES = 640 * 8192
    cur = [None]

    def use(ptr):
        if cur[0] != ptr:
            A.srd(S_W, ptr, ptr + 1, WBYTES)
            cur[0] = ptr

    def dma_slot(ptr, sig, pos):
        use(ptr)
        A(f's_cmp_eq_u32 s{S_T}, 0')
        A(f's_cselect_b32 s{S_SO}, {sig}, {(sig + 5) % 10}')
        A(f's_lshl_b32 s{S_SO}, s{S_SO}, 19')
        A(f's_add_u32 s{S_SO}, s{S_SO}, s{S_CB}')
        tok = None
        for n in range(4):
            A(f's_add_u32 m0, s{S_TMP2}, {pos * 4096 + n * 1024}')
            tok = A(f'buffer_load_dwordx4 v{VS4 + n}, s[{S_W}:{S_W + 3}], s{S_SO} offen lds')
            if n < 3:
                A(f's_add_u32 s{S_SO}, s{S_SO}, {4 * 8192}')
        return tok

    def read_slot(tok, pos, dests):
        A.wait(tok)
        A('s_barrier')
        for tau in range(2):
            for u in range(4):
                off = pos * 4096 + 2 * (u & 1) * 256
                A(f'ds_read_b64_tr_b16 {wr(dests[tau] + 2 * u, 2)}, v{VB4 + 2 * (u >> 1) + tau} offset:{off}')
        A.wait_lg0()
        A('s_barrier')

    WOS = 0

    def dma_wo():
        use(S_PO)
        A(f's_mul_i32 s{S_SO}, s{S_H}, 163840')
        A(f's_mul_i32 s{S_TMP}, s{S_T}, 640')
        A(f's_add_u32 s{S_SO}, s{S_SO}, s{S_TMP}')
        A(f's_mul_i32 s{S_TMP}, s{S_WV}, 160')
        A(f's_add_u32 s{S_SO}, s{S_SO}, s{S_TMP}')
        tok = []
        for blk in range(4):
            for n in range(5):
                A(f's_add_u32 m0, s{S_TMP2}, {WOS + (blk * 5 + n) * 1024}')
                t = A(f'buffer_load_dwordx4 v{VOS + n}, s[{S_W}:{S_W + 3}], s{S_SO} offen lds')
            tok.append(t)
            if blk < 3:
                A(f's_add_u32 s{S_SO}, s{S_SO}, {32 * 1280}')
        return tok

    def put_block(reg, blk):
        for hf in range(2):
            A(f'ds_write_b128 v{V_L16}, v[{reg + 4 * hf}:{reg + 4 * hf + 3}] offset:{blk * 2048 + hf * 1024}')

    park = {b: TB + 8 * (BLK_OF[b] - 10) for b in LDS_BLOCKS[10:]}

    def dest_of(b):
        return REG_OF[b] if b in REG_OF else park[b]

    A(f's_load_dwordx2 s[{S_SO}:{S_SO + 1}], s[0:1], {KA_MEM0}')
    A('s_waitcnt lgkmcnt(0)')
    A.srd(S_W, S_SO, S_SO + 1, 8 * 1280)
    m0t = []
    for j in range(3):
        A(f'v_add_u32 v{T0}, {64 * j}, v{L}')
        A(f'v_min_u32 v{T0}, 159, v{T0}')
        A(f's_mul_i32 s{S_TMP}, s{S_WV}, 160')
        A(f'v_add_u32 v{T0}, s{S_TMP}, v{T0}')
        A(f'v_lshrrev_b32 v{T1}, 3, v{T0}')
        A(f's_mul_i32 s{S_TMP + 1}, s{S_T}, 40')
        A(f'v_add_u32 v{T1}, s{S_TMP + 1}, v{T1}')
        A(f'v_subrev_u32 v25, 80, v{T1}')
        A(f'v_min_u32 v{T1}, v{T1}, v25')
        A(f'v_lshlrev_b32 v{T1}, 4, v{T1}')
        A(f'v_and_b32 v25, 7, v{T0}')
        A(f'v_mul_u32_u24 v25, 1280, v25')
        A(f'v_add_u32 v{T1}, v{T1}, v25')
        A(f'v_lshlrev_b32 v{T0}, 4, v{T0}')
        A(f'v_add_u32 v{72 + j}, {MEMB}, v{T0}')
        m0t.append(A(f'buffer_load_dwordx4 v[{76 + 4 * j}:{79 + 4 * j}], v{T1}, s[{S_W}:{S_W + 3}], 0 offen'))

    ptrs = {'q': S_PQ, 'k': S_PK, 'v': S_PV}
    stream = [('q', x) for x in range(10)] + [('k', x) for x in range(10)] + [('v', x) for x in range(5, 10)]
    tk = {}
    for i in range(8):
        tk[i] = dma_slot(ptrs[stream[i][0]], stream[i][1], i % 8)
    A.wait(m0t[-1])
    for j in range(3):
        A(f'ds_write_b128 v{72 + j}, v[{76 + 4 * j}:{79 + 4 * j}]')
    pos_of = {i: i % 8 for i in range(24)}
    pos_of[24] = 5
    tko = None
    for i in range(25):
        m, sig = stream[i]
        read_slot(tk[i], pos_of[i], [dest_of((m, sig, 0)), dest_of((m, sig, 1))])
        A.wait_lg0()
        if i + 8 < 24:
            tk[i + 8] = dma_slot(ptrs[stream[i + 8][0]], stream[i + 8][1], i % 8)
        if i == 20:
            tko = dma_wo()
        if i == 21:
            tk[24] = dma_slot(S_PV, stream[24][1], 5)
    for k2 in range(2):
        A.wait(tko[2 * k2 + 1])
        for tau in range(5):
            d = dest_of(('o', k2, tau))
            for u in range(4):
                off = WOS + (64 * k2 + 32 * (u >> 1) + 2 * (u & 1)) * 160 + tau * 32
                A(f'ds_read_b64_tr_b16 {wr(d + 2 * u, 2)}, v{VBO} offset:{off}')
    A.wait_lg0()
    tv = {sig: dma_slot(S_PV, sig, sig) for sig in range(5)}
    for b in LDS_BLOCKS[10:]:
        put_block(park[b], BLK_OF[b])
    A.wait_lg0()
    for sig in range(5):
        read_slot(tv[sig], sig, [TB, TB + 8])
        A.wait_lg0()
        put_block(TB, 2 * sig); put_block(TB + 8, 2 * sig + 1)
        A.wait_lg0()

    if coarse:
        A('s_memrealtime s[82:83]')
        A('s_waitcnt lgkmcnt(0)')
        A('s_mov_b32 s85, s82')
    rebuild()
    lp = A.newlabel('L_mode')
    ld = A.newlabel('L_mode_done')
    A(f'v_lshlrev_b32 v{T0}, 2, v{L}')
    A.flush_hazards()
    A.label(lp)
    A(f'buffer_load_dword v24, v{T0}, s[{S_DBG}:{S_DBG + 3}], 0 offen sc1')
    A.wait_vm0()
    A(f'v_readlane_b32 s{S_ST}, v24, 32')
    A(f'v_readlane_b32 s{S_ST + 1}, v24, 33')
    A(f's_and_b32 s{S_TMP}, s{S_ST}, s{S_ST + 1}')
    A(f's_bfe_u32 s{S_TMP}, s{S_TMP}, 0x10005')
    if mega:
        A(f'v_readlane_b32 s{S_TMP + 1}, v24, 7')
        A(f's_lshr_b32 s{S_TMP + 1}, s{S_TMP + 1}, 7')
        A(f's_and_b32 s{S_TMP}, s{S_TMP}, s{S_TMP + 1}')
        A(f'v_readlane_b32 s{S_TMP + 1}, v24, 40')
        A(f's_lshr_b32 s{S_TMP + 1}, s{S_TMP + 1}, 6')
        A(f's_and_b32 s{S_TMP}, s{S_TMP}, s{S_TMP + 1}')
    A(f's_cmp_eq_u32 s{S_TMP}, 1')
    A.branch(f's_cbranch_scc1 {ld}')
    A('s_sleep 4')
    A(f's_add_u32 s{S_SPIN}, s{S_SPIN}, 1')
    A(f's_cmp_lt_u32 s{S_SPIN}, {SPIN_LIMIT}')
    A.branch(f's_cbranch_scc1 {lp}')
    A.branch(f's_branch {abort_label}')
    A.label(ld)
    A(f's_mov_b32 s{S_FAST}, {0 if force_safe else 1}')
    for t_ in range(2):
        A(f's_bfe_u32 s{S_TMP}, s{S_ST + t_}, 0xa0006')
        A(f's_mul_i32 s{S_TMP}, s{S_TMP}, s{S_TMP}')
        A(f's_bfe_u32 s{S_TMP + 1}, s{S_ST + t_}, 0xe0010')
        A(f's_lshl_b32 s{S_TMP + 1}, s{S_TMP + 1}, 5')
        A(f's_cmp_eq_u32 s{S_TMP}, s{S_TMP + 1}')
        A(f's_cselect_b32 s{S_FAST}, s{S_FAST}, 0')
    A(f's_bfe_u32 s{S_TMP}, s{S_ST}, 0x1001e')
    A(f's_lshl_b32 s{S_TMP}, s{S_TMP}, 13')
    A(f's_add_u32 s{S_PREM}, s{S_PREM}, s{S_TMP}')
    A(f's_add_u32 s{S_PUBR}, s{S_PUBR}, s{S_TMP}')
    if mega:
        for i_ in range(4):
            A(f'v_readlane_b32 s{S_ST + i_}, v24, {36 + i_}')
        A(f's_cmp_eq_u32 s{S_T}, 0')
        A(f's_cselect_b64 s[{S_TABW}:{S_TABW + 1}], s[{S_ST}:{S_ST + 1}], s[{S_ST + 2}:{S_ST + 3}]')
        A(f's_cselect_b64 s[{S_TABR}:{S_TABR + 1}], s[{S_ST + 2}:{S_ST + 3}], s[{S_ST}:{S_ST + 1}]')
    else:
        A(f's_mov_b64 s[{S_TABW}:{S_TABW + 1}], 0')
        A(f's_mov_b64 s[{S_TABR}:{S_TABR + 1}], 0')
    A(f's_mov_b32 s{S_PREM0}, s{S_PREM}')
    A(f's_mov_b32 s{S_PUBR0}, s{S_PUBR}')

    def next_pages():
        A(f's_lshr_b64 s[{S_TABW}:{S_TABW + 1}], s[{S_TABW}:{S_TABW + 1}], 1')
        A(f's_lshr_b64 s[{S_TABR}:{S_TABR + 1}], s[{S_TABR}:{S_TABR + 1}], 1')
        A(f's_add_u32 s{S_PREM0}, s{S_PREM0}, 32768')
        A(f's_and_b32 s{S_TMP}, s{S_TABR}, 1')
        A(f's_lshl_b32 s{S_TMP}, s{S_TMP}, 13')
        A(f's_add_u32 s{S_PREM}, s{S_PREM0}, s{S_TMP}')
        A(f's_and_b32 s{S_TMP}, s{S_TABW}, 1')
        A(f's_lshl_b32 s{S_TMP}, s{S_TMP}, 13')
        A(f's_add_u32 s{S_PUBR}, s{S_PUBR0}, s{S_TMP}')
        A(f's_add_u32 s{S_PUBR0}, s{S_PUBR0}, 32768')

    WS = f's[{S_WS}:{S_WS + 3}]'

    def issue_kx_vx():
        A(f's_lshl_b32 s{S_TMP}, s{S_WV}, 11')
        A(f's_add_u32 m0, s{S_TMP}, {KXB}')
        for n in range(2):
            A(f'buffer_load_dwordx4 v{V_L16}, {WS}, s{S_KX} offen offset:{n * 1024} sc1 lds')
        if 'nokvt' not in dbg:
            A(f's_add_u32 s{S_KX}, s{S_KX}, {32 * 8192}')

    deferred = []

    def kv_wait(need_plus):
        if not mega:
            return
        lp = A.newlabel('L_kv'); ls = A.newlabel('L_kvs')
        A.label(lp)
        A(f's_add_u32 s{S_TMP}, s{S_STEP}, {need_plus}')
        A(f's_cmp_ge_u32 s{S_TMP}, s{S_RDY}')
        A(f's_cbranch_scc1 {ls}')

        def slow():
            A.label(ls)
            A(f'v_lshlrev_b32 v{T0}, 9, v{L}')
            A(f'buffer_load_dwordx2 v[{T1}:{T0}], v{T0}, {WS}, s{S_FKV} offen sc1')
            A('s_waitcnt vmcnt(0)')
            A(f'v_and_b32 v{T1}, v{T1}, v{T0}')
            A(f'v_cmp_eq_u32 vcc, 1, v{T1}')
            A(f's_ff0_i32_b64 s{S_RDY}, vcc')
            A(f's_min_u32 s{S_RDY}, s{S_RDY}, 65')
            A(f's_add_u32 s{S_SPIN}, s{S_SPIN}, 1')
            A(f's_cmp_lt_u32 s{S_SPIN}, {SPIN_LIMIT}')
            A(f's_cbranch_scc1 {lp}')
            A(f's_branch {abort_label}')
        deferred.append(slow)

    def m_flag():
        if not mega:
            return
        le = A.newlabel('L_mf')
        A(f's_cmp_lg_u32 s{S_WV}, 3')
        A(f's_cbranch_scc1 {le}')
        A(f'v_mov_b32 v{T0}, 1')
        A('s_mov_b64 exec, 1')
        A(f'buffer_store_dword v{T0}, off, {WS}, s{S_FL} sc1')
        A('s_mov_b64 exec, -1')
        A.label(le)
        A(f's_add_u32 s{S_FL}, s{S_FL}, 1024')

    if mega:
        A(f's_lshl_b32 s{S_TMP}, s{S_H}, 4')
        A(f's_add_u32 s{S_FKV}, s{S_TMP}, {F_P:#x}')
        A(f's_mov_b32 s{S_RDY}, 0')
        A(f's_lshl_b32 s{S_TMP}, s{S_H}, 5')
        A(f's_lshl_b32 s{S_TMP + 1}, s{S_T}, 2')
        A(f's_add_u32 s{S_FL}, s{S_TMP}, s{S_TMP + 1}')
        A(f's_add_u32 s{S_FL}, s{S_FL}, {F_M - 1024:#x}')
    A(f's_mov_b32 s{S_STEP}, 0')

    def touch_prep():
        A(f's_add_u32 s{S_TA}, s{S_PLOC}, {MEMB + 10240}')
        A(f's_bfe_u32 s{S_TMP}, s{S_TABR}, 0x10001')
        A(f's_lshl_b32 s{S_TMP}, s{S_TMP}, 13')
        A(f's_add_u32 s{S_TMP}, s{S_TMP}, s{S_PREM0}')
        A(f's_add_u32 s{S_TMP}, s{S_TMP}, {MEMB + 32768}')
        A(f's_cmp_eq_u32 s{S_WV}, 1')
        A(f's_cselect_b32 s{S_TA}, s{S_TMP}, s{S_TA}')
        A(f's_add_u32 s{S_TMP}, s{S_KX}, {2 * VREG - 2 * 2048}')
        A(f's_cmp_eq_u32 s{S_WV}, 2')
        A(f's_cselect_b32 s{S_TA}, s{S_TMP}, s{S_TA}')
        A(f's_add_u32 s{S_TMP}, s{S_KX}, {3 * VREG - 3 * 2048 + WS_VX - WS_KX:#x}')
        A(f's_cmp_eq_u32 s{S_WV}, 3')
        A(f's_cselect_b32 s{S_TA}, s{S_TMP}, s{S_TA}')
        A(f's_cmp_lt_u32 s{S_WV}, 2')
        A(f's_cselect_b32 s{S_TMP}, 39, 63')
        A(f'v_min_u32 v{V_T2}, s{S_TMP}, v{L}')
        A(f'v_lshlrev_b32 v{V_T2}, 7, v{V_T2}')

    def touch():
        A(f'buffer_load_dword v{V_T2}, v{V_T2}, {WS}, s{S_TA} offen sc1')

    def kv_refresh(after):
        if not mega:
            return
        le = A.newlabel('L_kr')
        A(f's_add_u32 s{S_TMP}, s{S_STEP}, 6')
        A(f's_min_u32 s{S_TMP}, s{S_TMP}, 65')
        A(f's_cmp_ge_u32 s{S_RDY}, s{S_TMP}')
        A(f's_cbranch_scc1 {le}')
        A(f'v_lshlrev_b32 v{T0}, 9, v{L}')
        A(f'buffer_load_dwordx2 v[{T1}:{T0}], v{T0}, {WS}, s{S_FKV} offen sc1')
        A('s_waitcnt vmcnt(0)')
        A(f'v_and_b32 v{T1}, v{T1}, v{T0}')
        A(f'v_cmp_eq_u32 vcc, 1, v{T1}')
        A(f's_ff0_i32_b64 s{S_RDY}, vcc')
        A(f's_min_u32 s{S_RDY}, s{S_RDY}, 65')
        A(f's_branch {after}')
        A.label(le)

    kv_wait(0)
    if mega:
        assert kxlate
        A(f's_cmp_eq_u32 s{S_WV}, 2')
        A(f's_cselect_b32 s{S_RDY}, s{S_RDY}, 65')
    issue_kx_vx()
    touch_prep()
    A(f's_mov_b32 s{S_STEP}, 0')
    A.wait_all()
    if stamps:
        A(f's_lshl_b32 s{S_TMP}, s{S_H}, 3')
        A(f's_lshl_b32 s{S_TMP + 1}, s{S_T}, 2')
        A(f's_add_u32 s{S_TMP}, s{S_TMP}, s{S_TMP + 1}')
        A(f's_add_u32 s{S_TMP}, s{S_TMP}, s{S_WV}')
        A(f's_mul_i32 s{S_STO}, s{S_TMP}, {64 * 64}')
        A(f's_add_u32 s{S_STO}, s{S_STO}, {WS_STAMP:#x}')
    if coarse:
        A('s_memrealtime s[88:89]')
        A('s_memtime s[90:91]')
        A('s_waitcnt lgkmcnt(0)')
    top = A.newlabel('L_step')
    done = A.newlabel('L_rec_done')
    A.flush_hazards()
    if align is not None:
        A.raw('.p2align 6')
        for _ in range(align):
            A('s_nop 0')
    A.label(top)
    A.forget()

    def fifth(base):
        return 15 if base == 16 else base + 4

    def poll_issue(soff, base):
        A(f'buffer_load_dwordx4 v[{base}:{base + 3}], v{V_P4}, {WS}, s{soff} offen sc1')
        A(f'buffer_load_dword v{fifth(base)}, v{V_P1}, {WS}, s{soff} offen sc1')

    def poll_loop(soff, bases, half, preissued, gap=0):
        k = len(bases)
        lp = A.newlabel('L_poll'); ld = A.newlabel('L_polld')
        if not preissued:
            for j, b in enumerate(bases):
                poll_issue(soff, b)
                if gap and j < k - 1:
                    A(f's_nop {gap}')
        A.label(lp)
        wins = []
        for j, base in enumerate(bases):
            A(f's_waitcnt vmcnt({2 * (k - 1)})')
            A(f'v_max3_u32 v{T0}, v{base}, v{base + 1}, v{base + 2}')
            A(f'v_max3_u32 v{T0}, v{T0}, v{base + 3}, v{fifth(base)}')
            A(f'v_cmp_eq_u32 vcc, -1, v{T0}')
            lw = A.newlabel('L_pollw'); wins.append(lw)
            A(f's_cbranch_vccz {lw}')
            poll_issue(soff, base)
        A(f's_add_u32 s{S_SPIN}, s{S_SPIN}, 1')
        A(f's_cmp_lt_u32 s{S_SPIN}, {SPIN_LIMIT}')
        A(f's_cbranch_scc1 {lp}')
        A(f's_branch {abort_label}')
        for j, base in enumerate(bases):
            A.label(wins[j])
            A(f'ds_write_b128 v{V_P4}, v[{base}:{base + 3}] offset:{half * 5120}')
            A(f'ds_write_b32 v{V_P1}, v{fifth(base)} offset:{half * 5120}')
            if j < k - 1:
                A(f's_branch {ld}')
        A.label(ld)

    def a_read(sig, slot):
        return A(f'ds_read_b128 v[{AR + 4 * slot}:{AR + 4 * slot + 3}], v{V_KX} offset:{sig * 1024}')

    def smf(d, a, b):
        A(f'v_smfmac_f32_16x16x64_bf16 v[{d}:{d + 3}], v[{a}:{a + 3}], {wr(b, 8)}, v{V_IDX}')

    def SL(i):
        return 20 + 4 * i

    def blk_load(blk, b):
        A(f'ds_read_b128 v[{b}:{b + 3}], v{V_L16} offset:{blk * 2048}')
        return A(f'ds_read_b128 v[{b + 4}:{b + 7}], v{V_L16} offset:{blk * 2048 + 1024}')

    def zero(base, n):
        for r in range(base, base + n, 2):
            A(f'v_mov_b64 v[{r}:{r + 1}], 0')

    def poll_check(base, lwin):
        A(f'v_max3_u32 v{T0}, v{base}, v{base + 1}, v{base + 2}')
        A(f'v_max3_u32 v{T0}, v{T0}, v{base + 3}, v{fifth(base)}')
        A(f'v_cmp_eq_u32 vcc, -1, v{T0}')
        A(f's_cbranch_vccz {lwin}')

    def poll_put(base, half):
        A(f'ds_write_b128 v{V_P4}, v[{base}:{base + 3}] offset:{half * 5120}')
        A(f'ds_write_b32 v{V_P1}, v{fifth(base)} offset:{half * 5120}')

    stamp(0)
    zero(Q0, 24)
    lseq = [(m, sig, tau) for sig in range(5) for (m, tau) in (('v', 0), ('q', 0), ('k', 1), ('q', 1), ('v', 1), ('k', 0))]
    lfed = [b for b in lseq if b in BLK_OF]
    LR = [64, 72, 56]
    wt = {}; wreg_ = {}
    nl = [0]

    def lnext(reg):
        if nl[0] < len(lfed):
            b = lfed[nl[0]]; nl[0] += 1
            wt[b] = blk_load(BLK_OF[b], reg); wreg_[b] = reg

    lnext(LR[0]); lnext(LR[1])
    l_s0a = A.newlabel('L_s0a')
    A(f's_cmp_eq_u32 s{S_STEP}, 0' if cut is None else 's_cmp_eq_u32 0, 0')
    A(f's_cbranch_scc1 {l_s0a}')
    poll_loop(S_PLOC, [PL, VXR, 16][:kb], 0, False, gap=bgap)
    A.label(l_s0a)
    A.wait_lg0()
    A('s_barrier')
    stamp(1)
    at = {}

    ACC = {'q': Q0, 'k': K0, 'v': VV0}

    def local_slot(sig):
        a = AR + 4 * (sig % 3)
        A.wait(at[sig])
        for b in lseq[6 * sig:6 * sig + 6]:
            m, _, tau = b
            if b in BLK_OF:
                A.wait(wt[b])
                smf(ACC[m] + 4 * tau, a, wreg_[b])
                lnext(wreg_[b])
            else:
                smf(ACC[m] + 4 * tau, a, REG_OF[b])
        if sig + 3 < 5:
            at[sig + 3] = a_read(sig + 3, sig % 3)

    RS = [80, 56, 16][:kb]
    for j in range(3):
        at[j] = a_read(j, j)
    for sig in range(4):
        if sig == rp[0]:
            poll_issue(S_PREM, RS[0])
        if sig == rp[1]:
            poll_issue(S_PREM, RS[1])
        local_slot(sig)
        if sig == 2 and early:
            hs_ = [h_ for h_ in A.hist if h_.kind in ('mfma', 'valu')]
            lne = A.newlabel('L_ne')
            A(f's_mov_b32 s{S_EARLY}, s{S_STEP}')
            A('s_waitcnt vmcnt(2)')
            base = RS[0]
            A(f'v_max3_u32 v{T0}, v{base}, v{base + 1}, v{base + 2}')
            A(f'v_max3_u32 v{T0}, v{T0}, v{base + 3}, v{fifth(base)}')
            A(f'v_cmp_eq_u32 vcc, -1, v{T0}')
            A(f's_cbranch_vccnz {lne}')
            A(f's_cmp_eq_u32 s{S_STEP}, 0')
            A(f's_cbranch_scc1 {lne}')
            li, ld_ = A.lg_issued, A.lg_done
            poll_put(base, 1)
            A.lg_issued, A.lg_done = li, ld_
            A(f's_mov_b32 s{S_EARLY}, 0')
            A.label(lne)
            A.hist = hs_
    stamp(2)
    rslot = [0, 2, 3, 4, 1]
    l_s0 = A.newlabel('L_rs0')
    A(f's_cmp_eq_u32 s{S_EARLY if early else S_STEP}, 0' if cut is None else 's_cmp_eq_u32 0, 0')
    A(f's_cbranch_scc1 {l_s0}')
    hs_ = [h_ for h_ in A.hist if h_.kind in ('mfma', 'valu')]
    for b_ in RS[2:]:
        poll_issue(S_PREM, b_)
    poll_loop(S_PREM, RS, 1, True)
    A.label(l_s0)
    A.hist = hs_
    A.wait_lg0()
    A('s_barrier')
    for j in range(2):
        at[5 + j] = a_read(5 + j, rslot[j])
    local_slot(4)
    at[9] = a_read(9, rslot[4])
    A.wait_vm0()
    hs_ = [h_ for h_ in A.hist if h_.kind in ('mfma', 'valu')]
    m_flag()
    A.hist = hs_
    for j in range(2, 4):
        at[5 + j] = a_read(5 + j, rslot[j])
    stamp(3)
    A(f's_add_u32 s{S_PLOC}, s{S_PLOC}, 10240')
    RA = [AR + 4 * rslot[j] for j in range(5)]

    def halfsum_ops(x, y, off):
        ops = []
        for r in range(4):
            ops.append(f'v_permlane32_swap_b32 v{x + r}, v{y + r}')
        for r in range(0, 4, 2):
            ops.append(f'v_pk_add_f32 v[{x + r}:{x + r + 1}], v[{x + r}:{x + r + 1}], v[{y + r}:{y + r + 1}]')
        ops.append(f'v_cvt_pk_bf16_f32 v{y}, v{x}, v{x + 1}')
        ops.append(f'v_cvt_pk_bf16_f32 v{y + 1}, v{x + 2}, v{x + 3}')
        if off is not None:
            ops.append(f'ds_write_b64 v{V_QKW}, v[{y}:{y + 1}] offset:{off}')
        return ops

    VM, VMA, VMB = VV1, VV0, VV0 + 2
    def pub_read(tmp):
        t = None
        A(f'v_add_u32 v{tmp + 3}, s{S_W512}, v{V_QKR}')
        for rho in range(2):
            t = A(f'ds_read_b64_tr_b16 v[{tmp + 2 * rho}:{tmp + 2 * rho + 1}], v{tmp + 3} offset:{2048 + rho * 256}')
        return t

    def pub_sel(tmp):
        return [f'v_cndmask_b32 v{tmp + r}, v{tmp + r}, v{VM + r}, s[{S_TMASK}:{S_TMASK + 1}]' for r in range(2)]

    def pub_store(tmp):
        if 'nopub' not in dbg:
            A(f'buffer_store_dwordx4 v[{tmp}:{tmp + 3}], v{V_L16}, {WS}, s{S_KM} offen sc1' + (' nt' if 'pubnt' in dbg else ''))
            A(f's_add_u32 s{S_KM}, s{S_KM}, {32 * 4096}')

    QFR = [SL(0), SL(1), SL(11), SL(12)]
    S0, S1 = SL(15), SL(16)
    qt = {}; xt = {}; xreg = {}; last = [None]

    def xread(i, b):
        kap, kt_ = i >> 1, i & 1
        xt[i] = A(f'ds_read_b128 v[{b}:{b + 3}], v{V_KX} offset:{KXB - MEMB + (kt_ * 4 + kap) * 1024}')
        xreg[i] = b

    def trread(b, off):
        t = None
        for rho in range(2):
            t = A(f'ds_read_b64_tr_b16 v[{b + 2 * rho}:{b + 2 * rho + 1}], v{V_QKR} offset:{off + rho * 256}')
        return t

    def take(fl, n):
        for _ in range(n):
            if fl:
                t = A(fl.pop(0))
                if t:
                    last[0] = t

    kfed = [b for b in LDS_BLOCKS if b[0] == 'k' and b[1] >= 5]
    kft = {}; kfr = {}

    def kf_load(reg):
        if kfed:
            b = kfed.pop(0)
            kft[b] = blk_load(BLK_OF[b], reg); kfr[b] = reg

    def ksm(i):
        b = ('k', 5 + (i >> 1), i & 1)
        if b in BLK_OF:
            A.wait(kft[b])
            smf(K0 + 4 * (i & 1), RA[i >> 1], kfr[b])
            kf_load(kfr[b])
        else:
            smf(K0 + 4 * (i & 1), RA[i >> 1], REG_OF[b])

    def vsm(n):
        smf(VV0 + 4 * (n & 1), RA[(n - 10) // 2], REG_OF['v', n >> 1, n & 1])

    def xsm(i):
        kap, kt_ = i >> 1, i & 1
        acc = (S0, S1)[kt_]
        A.wait(qt[kap], xt[i])
        c = '0' if kap == 0 else f'v[{acc}:{acc + 3}]'
        A(f'v_mfma_f32_16x16x32_bf16 v[{acc}:{acc + 3}], v[{xreg[i]}:{xreg[i] + 3}], v[{QFR[kap]}:{QFR[kap] + 3}], {c}')

    for n_, j in enumerate((0, 1, 4, 2, 3)):
        A.wait(at[5 + j])
        smf(Q0, RA[j], REG_OF['q', 5 + j, 0])
        if n_ == 1:
            xread(0, SL(13))
        if n_ == 0:
            A(f'buffer_load_dwordx4 v[{VX0}:{VX0 + 3}], v{V_L16}, {WS}, s{S_VX} offen sc1')
        if n_ == 2:
            touch()
        if n_ == 3:
            kf_load(SL(11))
        if n_ == 4:
            kf_load(SL(15))
        smf(Q1, RA[j], REG_OF['q', 5 + j, 1])
        if n_ == 0:
            A(f'buffer_load_dwordx4 v[{VX1}:{VX1 + 3}], v{V_L16}, {WS}, s{S_VX} offen offset:1024 sc1')
        if n_ == 1:
            xread(1, SL(14))
    fill = halfsum_ops(Q0, Q1, 0)
    ksm(0); ksm(1); ksm(2); ksm(3)
    for i in range(4, 8):
        take(fill, 1); ksm(i)
    take(fill, 3); ksm(8); take(fill, 2); assert not fill
    qw = last[0]
    ksm(9)
    stamp(4)
    vsm(10); vsm(11)
    xread(2, RA[0])
    vsm(12)
    A.wait(qw)
    A('s_barrier')
    qt[0] = trread(QFR[0], 0)
    fill = halfsum_ops(K0, K1, 2048)
    vsm(13); take(fill, 2)
    xread(3, RA[1])
    vsm(14); take(fill, 2)
    vsm(15); take(fill, 3)
    xsm(0); take(fill, 2); assert not fill
    kw = last[0]
    qt[1] = trread(QFR[1], 512)
    xsm(1); xread(4, xreg[0])
    vsm(16); xread(5, xreg[1])
    qt[2] = trread(QFR[2], 1024)
    vsm(17)
    qt[3] = trread(QFR[3], 1536)
    xsm(2); xread(6, xreg[2])
    xsm(3); xread(7, xreg[3])
    xsm(4)
    if kxlate:
        A.wait(kw)
    else:
        A.wait_lg0()
    A('s_barrier')
    stamp(5)
    KF = [SL(2), SL(3), RA[2], RA[3]]
    kt = {}
    kt[0] = trread(KF[0], 2048)
    kt[1] = trread(KF[1], 2048 + 512)
    xsm(5)
    kt[2] = trread(KF[2], 2048 + 1024)
    xsm(6)
    kt[3] = trread(KF[3], 2048 + 1536)
    xsm(7)
    PUBT = xreg[4]
    pbt = pub_read(PUBT)
    vsm(18)
    hs_ = [h_ for h_ in A.hist if h_.kind in ('mfma', 'valu')]
    kv_wait(1)
    A.hist = hs_
    if not kxlate:
        issue_kx_vx()
    vsm(19)
    Sm = xreg[6]
    stamp(6)
    VM, VMA, VMB = VV1, VV0, VV0 + 2
    M_, M2 = T1, T0

    def msm(kap):
        b = KF[kap]
        A.wait(qt[kap], kt[kap])
        c = '0' if kap == 0 else f'v[{Sm}:{Sm + 3}]'
        A(f'v_mfma_f32_16x16x32_bf16 v[{Sm}:{Sm + 3}], v[{b}:{b + 3}], v[{QFR[kap]}:{QFR[kap] + 3}], {c}')

    fx = [f'v_max3_f32 v{M_}, v{S0}, v{S0 + 1}, v{S0 + 2}',
          f'v_max3_f32 v{M2}, v{S0 + 3}, v{S1}, v{S1 + 1}',
          f'v_max3_f32 v{M_}, v{M_}, v{S1 + 2}, v{S1 + 3}',
          f'v_max_f32 v{M_}, v{M_}, v{M2}',
          f'v_mov_b32 v{M2}, v{M_}']
    fv = halfsum_ops(VV0, VV1, None)
    for r in range(2):
        fv.append(f'v_cndmask_b32 v{VMA + r}, 0, v{VM + r}, s[{S_MLO}:{S_MLO + 1}]')
        fv.append(f'v_cndmask_b32 v{VMB + r}, v{VM + r}, 0, s[{S_MLO}:{S_MLO + 1}]')
    msm(0); take(fx, 2)
    A('s_waitcnt vmcnt(1)')
    msm(1)
    take(fx, 3); msm(2); take(fv, 1)
    if 'nokvt' not in dbg:
        A(f's_add_u32 s{S_VX}, s{S_VX}, {32 * 8192}')
    msm(3)
    A(f'v_permlane32_swap_b32 v{M_}, v{M2}')
    A(f'v_max_f32 v{M_}, v{M_}, v{M2}')
    A.wait(pbt)
    take(fv, 7)
    take(pub_sel(PUBT), 2)
    if cut is None:
        A(f's_cmp_eq_u32 s{S_STEP}, {nsteps - 1}')
        A(f's_cbranch_scc1 {done}')
    stamp(7)

    used = {Sm, S0, S1, VV0, VV1}
    free = [SL(i) for i in range(17) if SL(i) not in used]
    P01, PM, O0, O1 = SL(2), SL(3), SL(0), SL(1)
    for x in (P01, PM, O0, O1):
        free.remove(x)
    free.remove(PUBT)
    ONES, LS = free[0], free[1]
    OAS = free[2:7]
    zf = [f'v_mov_b64 v[{r}:{r + 1}], 0' for x in OAS for r in (x, x + 2)]
    A(f'v_max3_f32 v{M_}, v{M_}, v{Sm}, v{Sm + 1}')
    A(f'v_max3_f32 v{M_}, v{M_}, v{Sm + 2}, v{Sm + 3}')
    A(f'v_mov_b32 v{M2}, v{M_}')
    take(fv, 2)
    A(f'v_permlane16_swap_b32 v{M_}, v{M2}')
    A(f'v_max_f32 v{M_}, v{M_}, v{M2}')
    A(f'v_mul_f32 v{M_}, s{S_C}, v{M_}')

    def pkf(x):
        A(f'v_pk_fma_f32 v[{x}:{x + 1}], v[{x}:{x + 1}], s[{S_C - 1}:{S_C}], v[{M_}:{M_ + 1}] op_sel:[0,1,0] op_sel_hi:[1,1,0] neg_lo:[0,0,1] neg_hi:[0,0,1]')
    assert S_C % 2 == 1 and M_ % 2 == 0
    xs = [S0 + r for r in range(4)] + [S1 + r for r in range(4)]
    for j in range(4):
        pkf(xs[2 * j])
    for x in xs:
        A(f'v_exp_f32 v{x}, v{x}')
    pkf(Sm); pkf(Sm + 2)
    for j in range(4):
        A(f'v_cvt_pk_bf16_f32 v{P01 + j}, v{xs[2 * j]}, v{xs[2 * j + 1]}')
    A(f'v_exp_f32 v{Sm}, v{Sm}')
    A(f'v_exp_f32 v{Sm + 1}, v{Sm + 1}')
    A(f'v_mfma_f32_16x16x32_bf16 v[{O0}:{O0 + 3}], v[{VX0}:{VX0 + 3}], v[{P01}:{P01 + 3}], 0')
    pub_store(PUBT)
    A(f'v_exp_f32 v{Sm + 2}, v{Sm + 2}')
    A(f'v_mov_b64 v[{ONES}:{ONES + 1}], s[{S_ONE}:{S_ONE + 1}]')
    A(f'v_mfma_f32_16x16x32_bf16 v[{O1}:{O1 + 3}], v[{VX1}:{VX1 + 3}], v[{P01}:{P01 + 3}], 0')
    A(f'v_exp_f32 v{Sm + 3}, v{Sm + 3}')
    A(f'v_mov_b64 v[{ONES + 2}:{ONES + 3}], s[{S_ONE}:{S_ONE + 1}]')
    A(f'v_cvt_pk_bf16_f32 v{PM}, v{Sm}, v{Sm + 1}')
    A(f'v_cvt_pk_bf16_f32 v{PM + 1}, v{Sm + 2}, v{Sm + 3}')
    A(f'v_mfma_f32_16x16x32_bf16 v[{LS}:{LS + 3}], v[{ONES}:{ONES + 3}], v[{P01}:{P01 + 3}], 0')
    take(fv, 9)
    A(f'v_mov_b64 v[{PM + 2}:{PM + 3}], s[{S_HALF}:{S_HALF + 1}]')
    A(f'v_xor_b32 v{M2}, 32, v{V_OW0}')
    A(f'v_mfma_f32_16x16x16_bf16 v[{LS}:{LS + 3}], v[{PM + 2}:{PM + 3}], v[{PM}:{PM + 1}], v[{LS}:{LS + 3}]')
    take(zf, 2)
    A(f'v_mfma_f32_16x16x16_bf16 v[{O0}:{O0 + 3}], v[{VMA}:{VMA + 1}], v[{PM}:{PM + 1}], v[{O0}:{O0 + 3}]')
    take(zf, 2)
    A(f'v_mfma_f32_16x16x16_bf16 v[{O1}:{O1 + 3}], v[{VMB}:{VMB + 1}], v[{PM}:{PM + 1}], v[{O1}:{O1 + 3}]')
    take(zf, 2)
    A(f'v_rcp_f32 v{M_}, v{LS}')
    take(zf, 9)
    for tau in range(2):
        o = O0 + 4 * tau
        for r in (0, 2):
            A(f'v_pk_mul_f32 v[{o + r}:{o + r + 1}], v[{o + r}:{o + r + 1}], v[{M_}:{M_ + 1}] op_sel_hi:[1,0]')
        A(f'v_cvt_pk_bf16_f32 v{o}, v{o}, v{o + 1}')
        A(f'v_cvt_pk_bf16_f32 v{o + 1}, v{o + 2}, v{o + 3}')
        owt = A(f'ds_write_b64 v{V_OW0 if tau == 0 else M2}, v[{o}:{o + 1}]')
    A.wait(owt)
    A('s_barrier')
    stamp(8)
    OF = [O0, O1]
    G0, G1, X4 = P01, PM, ONES

    def post(n):
        x, y = OAS[2 * n], OAS[2 * n + 1]
        ops = [f'v_permlane32_swap_b32 v{x + r}, v{y + r}' for r in range(4)]
        ops += [f'v_pk_add_f32 v[{x + r}:{x + r + 1}], v[{x + r}:{x + r + 1}], v[{y + r}:{y + r + 1}]' for r in (0, 2)]
        ops += [f'v_cvt_pk_bf16_f32 v{G0 + 2 * n}, v{x}, v{x + 1}', f'v_cvt_pk_bf16_f32 v{G0 + 2 * n + 1}, v{x + 2}, v{x + 3}']
        return ops

    lsafe = A.newlabel('L_psafe'); lpe = A.newlabel('L_pend')

    def outproj(sc):
        x, y = OAS[4], X4
        p4 = [f'v_mov_b64 v[{y}:{y + 1}], v[{x}:{x + 1}]', f'v_mov_b64 v[{y + 2}:{y + 3}], v[{x + 2}:{x + 3}]']
        p4 += [f'v_permlane32_swap_b32 v{x + r}, v{y + r}' for r in range(4)]
        p4 += [f'v_pk_add_f32 v[{x + r}:{x + r + 1}], v[{x + r}:{x + r + 1}], v[{y + r}:{y + r + 1}]' for r in (0, 2)]
        p4 += [f'v_cvt_pk_bf16_f32 v{G1}, v{x}, v{x + 1}', f'v_cvt_pk_bf16_f32 v{G1 + 1}, v{x + 2}, v{x + 3}',
               f'v_mov_b64 v[{G1 + 2}:{G1 + 3}], v[{G1}:{G1 + 1}]']
        worder = [(0, 4), (1, 4), (0, 0), (0, 1), (1, 0), (1, 1), (0, 2), (0, 3), (1, 2), (1, 3)]
        nfill = [0, 0, 0, 0, 0, 0, 2, 1, 1, 2]
        pre = [f'v_and_b32 v{T0}, 0x1fff, v{V_PST}',
               f'v_add_u32 v{V_P4}, s{S_W1280}, v{V_KX}', f'v_lshl_add_u32 v{V_P1}, v{L}, 2, s{S_P1B}']
        for i, (k2, tau) in enumerate(worder):
            if i < 2:
                A(f's_waitcnt lgkmcnt({1 - i})')
            smf(OAS[tau], OF[k2], REG_OF['o', k2, tau])
            if i >= 2:
                take(pre, 1)
            take(p4, nfill[i])
        take(p4, 20)
        take(post(0), 9)
        A(f'v_permlane16_swap_b32 v{G1}, v{G1 + 2}')
        A(f'v_permlane16_swap_b32 v{G1 + 1}, v{G1 + 3}')
        A(f'v_and_or_b32 v{G1}, v{G1}, -2, s{S_PAR}')
        pp = post(1)
        take(pp, 1)
        A(f'buffer_store_dwordx4 v[{G1}:{G1 + 3}], v{T0}, {WS}, s{S_PS1} offen{sc}')
        take(pp, 9)
        A(f'v_permlane16_swap_b32 v{G0}, v{G0 + 2}')
        A(f'v_permlane16_swap_b32 v{G0 + 1}, v{G0 + 3}')
        A(f'v_and_or_b32 v{G0}, v{G0}, -2, s{S_PAR}')
        A(f'buffer_store_dwordx4 v[{G0}:{G0 + 3}], v{V_PST}, {WS}, s{S_PS0} offen{sc}')

    for k2 in range(2):
        A(f'ds_read_b128 v[{OF[k2]}:{OF[k2] + 3}], v{V_OR} offset:{128 * k2}')
    if kxlate:
        issue_kx_vx()
    A(f's_cmp_eq_u32 s{S_FAST}, 0')
    A(f's_cbranch_scc1 {lsafe}')
    saved = list(A.hist)

    def safe_variant():
        A.label(lsafe)
        A.hist = list(saved)
        outproj(' sc1')
        A.branch(f's_branch {lpe}')
    deferred.append(safe_variant)
    outproj('')
    A.lg_done = A.lg_issued
    A.flush_hazards()
    A.label(lpe)
    stamp(9)
    A('s_waitcnt vmcnt(5)')
    next_pages()
    touch_prep()
    lnr = A.newlabel('L_nored'); lnr2 = A.newlabel('L_nored2')
    A(f's_cmp_ge_u32 s{S_RED}, 40')
    A(f's_cbranch_scc1 {lnr2}')
    RBS = [20, 44, 60][:ka]
    SEL = 36
    DD = 80
    lp = A.newlabel('L_pa'); lw = A.newlabel('L_paw')

    def pa_issue(RB):
        for j in range(4):
            A(f'buffer_load_dwordx4 v[{RB + 4 * j}:{RB + 4 * j + 3}], v{V_L16}, {WS}, s{S_PA} offen offset:{1024 * j} sc1')
    rebuild_pub()
    A(f'v_and_b32 v{T0}, 1, v{L}')
    A(f'v_lshlrev_b32 v{T0}, 4, v{T0}')
    A(f'v_mov_b32 v{T1}, 0x3f80')
    A(f'v_lshlrev_b32 v{T0}, v{T0}, v{T1}')
    A(f'v_bfe_u32 v{T1}, v{L}, 1, 2')
    for d in range(4):
        A(f'v_cmp_eq_u32 vcc, {d}, v{T1}')
        A(f'v_cndmask_b32 v{SEL + d}, 0, v{T0}, vcc')
    for j, RB in enumerate(RBS):
        if adelay[j]:
            for _ in range(adelay[j]):
                A('s_nop 15')
        pa_issue(RB)

    def tt(f):
        t = 0
        for a_ in range(2):
            for b_ in range(2):
                for c_ in range(2):
                    if f(a_, b_, c_):
                        t |= 1 << ((a_ << 2) | (b_ << 1) | c_)
        return t
    t1 = tt(lambda a, b, c: (a ^ c) | (b ^ c))
    t2 = tt(lambda a, b, c: (a | b) & c)
    A.flush_hazards()
    A.label(lp)
    for RB in RBS:
        A(f's_waitcnt vmcnt({4 * (ka - 1)})')
        chk = [f'v_bitop3_b32 v{T0}, v{RB}, v{RB + 4}, s{S_PAR} bitop3:{t1:#x}',
               f'v_bitop3_b32 v{T1}, v{RB + 8}, v{RB + 12}, s{S_PAR} bitop3:{t1:#x}',
               f'v_bitop3_b32 v{T0}, v{T0}, v{T1}, 1 bitop3:{t2:#x}',
               f'v_cmp_ne_u32 vcc, 0, v{T0}']
        if spec:
            for j in range(4):
                c = '0' if j == 0 else f'v[{DD}:{DD + 3}]'
                A(f'v_mfma_f32_16x16x32_bf16 v[{DD}:{DD + 3}], v[{RB + 4 * j}:{RB + 4 * j + 3}], v[{SEL}:{SEL + 3}], {c}')
                A(chk[j])
            A(f's_cbranch_vccz {lw}')
        else:
            for j in range(4):
                A(chk[j])
            A(f's_cbranch_vccz {lw}_{RB}')
        pa_issue(RB)
    A(f's_add_u32 s{S_SPIN}, s{S_SPIN}, 1')
    A(f's_cmp_lt_u32 s{S_SPIN}, {SPIN_LIMIT}')
    A(f's_cbranch_scc1 {lp}')
    A(f's_branch {abort_label}')
    if not spec:
        for RB in RBS:
            A.label(f'{lw}_{RB}')
            for j in range(4):
                c = '0' if j == 0 else f'v[{DD}:{DD + 3}]'
                A(f'v_mfma_f32_16x16x32_bf16 v[{DD}:{DD + 3}], v[{RB + 4 * j}:{RB + 4 * j + 3}], v[{SEL}:{SEL + 3}], {c}')
            A(f's_branch {lw}')
    A.label(lw)
    A('s_nop 6')
    stamp(10)
    RB = 76
    A(f'v_mov_b64 v[{RB}:{RB + 1}], v[{DD}:{DD + 1}]')
    A(f'v_mov_b64 v[{RB + 2}:{RB + 3}], v[{DD + 2}:{DD + 3}]')
    for r in range(4):
        A(f'v_permlane32_swap_b32 v{RB + r}, v{DD + r}')
    for r in (0, 2):
        A(f'v_pk_add_f32 v[{RB + r}:{RB + r + 1}], v[{RB + r}:{RB + r + 1}], v[{DD + r}:{DD + r + 1}]')
    a0 = RB
    A(f'v_cvt_pk_bf16_f32 v{a0}, v{RB}, v{RB + 1}')
    A(f'v_cvt_pk_bf16_f32 v{a0 + 1}, v{RB + 2}, v{RB + 3}')
    A(f'v_min_u32 v{a0}, -2, v{a0}')
    A(f'v_min_u32 v{a0 + 1}, -2, v{a0 + 1}')
    A('s_mov_b64 exec, 0x00ff00ff')
    A(f'buffer_store_dwordx2 v[{a0}:{a0 + 1}], v{V_PUB}, {WS}, s{S_PUBR} offen sc1')
    lps = A.newlabel('L_pubs'); lpd = A.newlabel('L_pubd')
    A(f's_cmp_eq_u32 s{S_FAST}, 0')
    A(f's_cbranch_scc1 {lps}')
    A(f'buffer_store_dwordx2 v[{a0}:{a0 + 1}], v{V_PUB}, {WS}, s{S_PUBL} offen')
    A(f's_branch {lpd}')
    A.label(lps)
    A(f'buffer_store_dwordx2 v[{a0}:{a0 + 1}], v{V_PUB}, {WS}, s{S_PUBL} offen sc1')
    A.label(lpd)
    A('s_mov_b64 exec, -1')
    A('s_waitcnt vmcnt(2)')
    A.branch(f's_branch {lnr}')
    A.label(lnr2)
    kv_refresh(lnr)
    if backoff:
        A(f's_sleep {backoff}')
    A.label(lnr)
    stamp(11)
    if stamps:
        A('s_waitcnt lgkmcnt(0)')
        for i in range(12):
            A(f'v_writelane_b32 v{T0}, s{S_ST + 2 * i}, {i}')
        A(f'v_lshlrev_b32 v{T1}, 2, v{L}')
        A('s_mov_b64 exec, 0xfff')
        A(f'buffer_store_dword v{T0}, v{T1}, {WS}, s{S_STO} offen')
        A('s_mov_b64 exec, -1')
        A(f's_add_u32 s{S_STO}, s{S_STO}, 64')
    if cut is not None:
        A.label('L_cut')
        A.wait_all()
        rebuild()
        A.wait_all()
        A('s_sleep 8')
        A(f's_cmp_eq_u32 s{S_STEP}, {nsteps - 1}')
        A(f's_cbranch_scc1 {done}')
    A(f's_add_u32 s{S_PUBL}, s{S_PUBL}, 10240')
    A(f's_xor_b32 s{S_PAR}, s{S_PAR}, 1')
    A(f's_add_u32 s{S_STEP}, s{S_STEP}, 1')
    A.branch(f's_branch {top}')
    for f_ in deferred:
        f_()
    A.label(done)
    pub_store(PUBT)
    A.wait_all()
    A('s_barrier')
    m_flag()
    if coarse:
        A('s_memrealtime s[92:93]')
        A('s_memtime s[94:95]')
        A('s_waitcnt lgkmcnt(0)')
        A(f's_lshl_b32 s{S_TMP}, s{S_H}, 3')
        A(f's_lshl_b32 s{S_TMP + 1}, s{S_T}, 2')
        A(f's_add_u32 s{S_TMP}, s{S_TMP}, s{S_TMP + 1}')
        A(f's_add_u32 s{S_TMP}, s{S_TMP}, s{S_WV}')
        A(f's_lshl_b32 s{S_TMP}, s{S_TMP}, 6')
        A(f's_add_u32 s{S_TMP}, s{S_TMP}, {WS_STAMP + 0x200000:#x}')
        A('s_mov_b64 exec, 1')
        A(f'v_mov_b32 v{T1}, s{S_TMP}')
        for i in range(6):
            A(f'v_mov_b32 v{T0}, s{84 + 2 * i}')
            A(f'buffer_store_dword v{T0}, v{T1}, {WS}, 0 offen offset:{4 * i}')
        A(f'v_mov_b32 v{T0}, s{S_SPIN}')
        A(f'buffer_store_dword v{T0}, v{T1}, {WS}, 0 offen offset:24')
        A(f'v_mov_b32 v{T0}, s85')
        A(f'buffer_store_dword v{T0}, v{T1}, {WS}, 0 offen offset:28')
        A.wait_all()
```

```python
import math
import struct
from asmlib import *
from layout import *

SPIN_LIMIT = 1 << 17

F_H = WS_FLAG + 0x0
F_KV = WS_FLAG + 0x1000
F_M = WS_FLAG + 0x4000
F_O = WS_FLAG + 0x20000
F_P = WS_FLAG + 0x18000
F_OP = WS_FLAG + 0x24000
F_H2 = WS_FLAG + 0x28000
F_ACT = WS_FLAG + 0x2C000
F_END = WS_FLAG + 0x30000

S_WS, S_W, S_DBG = 4, 8, 12
S_P0, S_P1 = 16, 17
S_WV, S_SEG = 18, 19
S_TMP = 41
S_PTR = 44
S_SPIN = 46
S_STG = 47
WS = f's[{S_WS}:{S_WS + 3}]'
WW = f's[{S_W}:{S_W + 3}]'
DBG = f's[{S_DBG}:{S_DBG + 3}]'

V_L, V_G, V_I, V_L16, V_T0, V_T1, V_T2, V_T3 = range(8)


def f32bits(x):
    return struct.unpack('<I', struct.pack('<f', x))[0]


DEBUG_STAMPS = [False]


def tstamp(A, idx):
    if not DEBUG_STAMPS[0]:
        return
    A('s_memrealtime s[92:93]')
    A('s_waitcnt lgkmcnt(0)')
    A('s_lshl_b32 s93, s99, 3')
    A('s_or_b32 s93, s93, s98')
    A('s_lshl_b32 s93, s93, 6')
    A(f's_add_u32 s93, s93, {WS_STAMP + 0x380000 + 4 * idx:#x}')
    A(f'v_mov_b32 v250, s92')
    A('s_mov_b64 exec, 1')
    A(f'buffer_store_dword v250, off, {WS}, s93')
    A('s_mov_b64 exec, -1')


def tstamp63(A, idx, sreg, val=63):
    if not DEBUG_STAMPS[0]:
        return
    lx = A.newlabel('L_ts')
    A(f's_cmp_lt_u32 s{sreg}, {val}')
    A(f's_cbranch_scc1 {lx}')
    tstamp(A, idx)
    A.label(lx)
    A('s_nop 7')


def common_setup(A):
    A(f's_load_dwordx2 s[{S_PTR}:{S_PTR + 1}], s[0:1], {KA_WS}')
    A(f's_load_dwordx2 s[{S_TMP + 1}:{S_TMP + 2}], s[0:1], {KA_DBG}')
    A('v_lshrrev_b32 v1, 6, v0')
    A(f'v_readfirstlane_b32 s{S_WV}, v1')
    A(f'v_and_b32 v{V_L}, 63, v0')
    A('s_waitcnt lgkmcnt(0)')
    A.srd(S_WS, S_PTR, S_PTR + 1, WS_BYTES)
    A.srd(S_DBG, S_TMP + 1, S_TMP + 2, 256)
    A(f's_mov_b32 s{S_SPIN}, 0')
    A(f'v_lshrrev_b32 v{V_G}, 4, v{V_L}')
    A(f'v_and_b32 v{V_I}, 15, v{V_L}')
    A(f'v_lshlrev_b32 v{V_L16}, 4, v{V_L}')
    A(f's_mul_i32 s{S_STG}, s{S_WV}, 40960')


def load_ptr_srd(A, ka, nbytes):
    A(f's_load_dwordx2 s[{S_PTR}:{S_PTR + 1}], s[0:1], {ka}')
    A('s_waitcnt lgkmcnt(0)')
    A.lg_done = A.lg_issued
    A.srd(S_W, S_PTR, S_PTR + 1, nbytes)


def wait_flags(A, abort, soff, n, srd=WS, value=1, sleep=2, ge=False):
    lp = A.newlabel('L_wf'); ld = A.newlabel('L_wfd')
    A(f'v_min_u32 v{V_T0}, {n - 1}, v{V_L}')
    A(f'v_lshlrev_b32 v{V_T0}, 2, v{V_T0}')
    A.label(lp)
    A(f'buffer_load_dword v{V_T1}, v{V_T0}, {srd}, s{soff} offen sc1')
    A.wait_vm0()
    if ge:
        A(f'v_cmp_gt_u32 vcc, {value}, v{V_T1}')
    else:
        A(f'v_cmp_ne_u32 vcc, {value}, v{V_T1}')
    A(f's_cbranch_vccz {ld}')
    if sleep:
        A(f's_sleep {sleep}')
    A(f's_add_u32 s{S_SPIN}, s{S_SPIN}, 1')
    A(f's_cmp_lt_u32 s{S_SPIN}, {SPIN_LIMIT}')
    A(f's_cbranch_scc1 {lp}')
    A(f's_branch {abort}')
    A.label(ld)


def signal(A, soff):
    A.wait_all()
    A('s_barrier')
    ls = A.newlabel('L_sig')
    A(f's_cmp_lg_u32 s{S_WV}, 0')
    A(f's_cbranch_scc1 {ls}')
    A(f'v_mov_b32 v{V_T0}, 0')
    A(f'v_mov_b32 v{V_T1}, 1')
    A('s_mov_b64 exec, 1')
    A(f'buffer_store_dword v{V_T1}, v{V_T0}, {WS}, s{soff} offen sc1')
    A('s_mov_b64 exec, -1')
    A.label(ls)


def round_bf16(A, dst, src, tmp=None):
    A(f'v_cvt_pk_bf16_f32 v{dst}, v{src}, v{src}')
    A(f'v_and_b32 v{dst}, 0xffff0000, v{dst}')


def round2(A, a, b, t):
    A(f'v_cvt_pk_bf16_f32 v{t}, v{a}, v{b}')
    A(f'v_lshlrev_b32 v{a}, 16, v{t}')
    A(f'v_and_b32 v{b}, 0xffff0000, v{t}')


def unpack2(A, lo, hi, src):
    A(f'v_lshlrev_b32 v{lo}, 16, v{src}')
    A(f'v_and_b32 v{hi}, 0xffff0000, v{src}')


def xlane_allreduce_g(A, op, x, t):
    for sw in ('v_permlane16_swap_b32', 'v_permlane32_swap_b32'):
        A(f'v_mov_b32 v{t}, v{x}')
        A(f'{sw} v{x}, v{t}')
        A(f'{op} v{x}, v{x}, v{t}')


def arrive(A, dbg_off):
    A.wait_all()
    A('s_barrier')
    ls = A.newlabel('L_arr')
    A(f's_cmp_lg_u32 s{S_WV}, 0')
    A(f's_cbranch_scc1 {ls}')
    A(f'v_mov_b32 v{V_T1}, 1')
    A('s_mov_b64 exec, 1')
    A(f'buffer_atomic_add v{V_T1}, off, {DBG}, 0 offset:{dbg_off} sc1')
    A('s_mov_b64 exec, -1')
    A.label(ls)


def emit_init(A, abort, part=1):
    A.comment('---- init: sentinels / flags ----')
    T0, T1 = V_T0, V_T1
    A(f's_lshl_b32 s{S_TMP}, s{S_WV}, 6')
    A(f'v_add_u32 v19, s{S_TMP}, v{V_L}')
    A(f'v_lshlrev_b32 v{V_T2}, 4, v19')
    A('v_mov_b32 v20, -1'); A('v_mov_b32 v21, -1'); A('v_mov_b32 v22, -1'); A('v_mov_b32 v23, -1')
    A('v_mov_b32 v24, 0'); A('v_mov_b32 v25, 0'); A('v_mov_b32 v26, 0'); A('v_mov_b32 v27, 0')
    def fill(base, units, reg):
        n = (units + 127) // 128
        for i in range(n):
            A(f's_add_u32 s{S_TMP}, s{S_P0}, {128 * i}')
            l = A.newlabel('L_fill')
            A(f's_cmp_ge_u32 s{S_TMP}, {units}')
            A(f's_cbranch_scc1 {l}')
            A(f's_lshl_b32 s{S_TMP}, s{S_TMP}, 12')
            A(f's_add_u32 s{S_TMP}, s{S_TMP}, {base:#x}')
            A(f'buffer_store_dwordx4 v[{reg}:{reg + 3}], v{V_T2}, {WS}, s{S_TMP} offen sc1')
            A.label(l)
    if part == 2:
        fill(WS_MEML, 160, 20)
        fill(WS_MEMR + 32768, 504, 20)
        fill(WS_PART, 80, 20)
        arrive(A, 28)
        return
    fill(WS_FLAG, 48, 24)

    lskip = A.newlabel('L_nomod')
    A(f's_cmp_ge_u32 s{S_P0}, 120')
    A(f's_cbranch_scc1 {lskip}')
    load_ptr_srd(A, KA_C, 1280)
    A(f'v_lshrrev_b32 v{T0}, 2, v19')
    A(f'v_lshlrev_b32 v{T1}, 1, v{T0}')
    ct = []
    for i in range(10):
        ct.append(A(f'buffer_load_ushort v{30 + i}, v{T1}, {WW}, 0 offen offset:{128 * i}'))
    load_ptr_srd(A, KA_WMOD, 640 * 7680)
    A(f'v_mul_u32_u24 v{T1}, 7680, v{T0}')
    A(f'v_and_b32 v{T0}, 3, v19')
    A(f'v_lshl_add_u32 v{T1}, v{T0}, 4, v{T1}')
    A(f's_lshl_b32 s{S_TMP}, s{S_P0}, 6')
    wt = []
    for i in range(10):
        wt.append(A(f'buffer_load_dwordx4 v[{40 + 4 * i}:{43 + 4 * i}], v{T1}, {WW}, s{S_TMP} offen'))
        A(f's_add_u32 s{S_TMP}, s{S_TMP}, {64 * 7680}')
    A(f's_mov_b32 s{S_TMP}, {f32bits(-math.log2(math.e)):#x}')
    for i in range(10):
        A.wait(ct[i])
        c = 30 + i
        A(f'v_lshlrev_b32 v{c}, 16, v{c}')
        A(f'v_mul_f32 v{T0}, s{S_TMP}, v{c}')
        A(f'v_exp_f32 v{T0}, v{T0}')
        A(f'v_add_f32 v{T0}, 1.0, v{T0}')
        A(f'v_rcp_f32 v{T0}, v{T0}')
        A(f'v_mul_f32 v{c}, v{c}, v{T0}')
        round_bf16(A, c, c)
    for j in range(8):
        A(f'v_mov_b32 v{20 + j}, 0')
    for i in range(10):
        A.wait(wt[i])
        for d in range(4):
            unpack2(A, T0, T1, 40 + 4 * i + d)
            A(f'v_fmac_f32 v{20 + 2 * d}, v{30 + i}, v{T0}')
            A(f'v_fmac_f32 v{21 + 2 * d}, v{30 + i}, v{T1}')
    A(f'v_lshlrev_b32 v{T0}, 5, v19')
    A(f'ds_write_b128 v{T0}, v[20:23]')
    A(f'ds_write_b128 v{T0}, v[24:27] offset:16')
    A.wait_lg0()
    A('s_barrier')
    A(f'v_and_b32 v{T0}, 31, v19')
    A(f'v_lshlrev_b32 v{T0}, 2, v{T0}')
    A(f'v_lshrrev_b32 v{T1}, 5, v19')
    A(f'v_lshl_add_u32 v{T0}, v{T1}, 10, v{T0}')
    tk = [A(f'ds_read_b32 v{20 + j}, v{T0} offset:{128 * j}') for j in range(8)]
    A.wait(tk[-1])
    for j in range(1, 8):
        A(f'v_add_f32 v20, v20, v{20 + j}')
    A(f'v_lshlrev_b32 v{T0}, 2, v19')
    A(f'ds_write_b32 v{T0}, v20 offset:8192')
    A.wait_lg0()
    A('s_barrier')
    A(f'v_and_b32 v{T0}, 31, v19')
    A(f'v_lshlrev_b32 v{T0}, 2, v{T0}')
    tk = [A(f'ds_read_b32 v{20 + j}, v{T0} offset:{8192 + 128 * j}') for j in range(8)]
    A.wait(tk[-1])
    for j in range(1, 8):
        A(f'v_add_f32 v20, v20, v{20 + j}')
    round_bf16(A, 20, 20)
    A(f's_lshl_b32 s{S_TMP}, s{S_P0}, 7')
    A(f's_add_u32 s{S_TMP}, s{S_TMP}, {WS_MOD:#x}')
    A(f'buffer_store_dword v20, v{T0}, {WS}, s{S_TMP} offen sc1')
    A.flush_hazards()
    A.label(lskip)
    arrive(A, 16)


def wait_init(A, abort):
    l = A.newlabel('L_wi')
    A(f's_cmp_lg_u32 s{S_WV}, 0')
    A(f's_cbranch_scc1 {l}')
    A(f's_mov_b32 s{S_TMP}, 16')
    wait_flags(A, abort, S_TMP, 1, srd=DBG, value=128, sleep=6, ge=True)
    A.label(l)
    A('s_barrier')


def emit_ln(A, which, s_tile, mid=None):
    T0, T1, T2, T3 = V_T0, V_T1, V_T2, V_T3
    X = 20
    XR = 60
    MB = 80
    PB = 120
    load_ptr_srd(A, KA_X, 2048 * 1280)
    A(f'v_mul_u32_u24 v{T2}, 1280, v{V_I}')
    A(f'v_lshl_add_u32 v{T2}, v{V_G}, 3, v{T2}')
    A(f's_mul_i32 s{S_TMP}, s{s_tile}, {16 * 1280}')
    A(f's_mul_i32 s{S_TMP + 1}, s{S_WV}, 320')
    A(f's_add_u32 s{S_TMP}, s{S_TMP}, s{S_TMP + 1}')
    xt = []
    for k in range(5):
        for hf in range(2):
            b = XR + 4 * k + 2 * hf
            xt.append(A(f'buffer_load_dwordx2 v[{b}:{b + 1}], v{T2}, {WW}, s{S_TMP} offen offset:{64 * k + 32 * hf}'))
    A(f'v_lshlrev_b32 v{T3}, 4, v{V_G}')
    A(f's_mul_i32 s{S_TMP + 1}, s{S_WV}, 640')

    def load_mod(idx, base):
        A(f's_add_u32 s{S_TMP + 2}, s{S_TMP + 1}, {WS_MOD + idx * 2560:#x}')
        t = None
        for t_ in range(10):
            t = A(f'buffer_load_dwordx4 v[{base + 4 * t_}:{base + 4 * t_ + 3}], v{T3}, {WS}, s{S_TMP + 2} offen offset:{64 * t_} sc1')
        return t

    if which == 2:
        gt = load_mod(2, MB)
        A(f's_lshr_b32 s{S_TMP}, s{s_tile}, 1')
        A(f's_mul_i32 s{S_TMP}, s{S_TMP}, {4 * 81920}')
        A(f's_and_b32 s{S_TMP + 2}, s{s_tile}, 1')
        A(f's_lshl_b32 s{S_TMP + 2}, s{S_TMP + 2}, 10')
        A(f's_add_u32 s{S_TMP}, s{S_TMP}, s{S_TMP + 2}')
        A(f's_mul_i32 s{S_TMP + 2}, s{S_WV}, {10 * 2048}')
        A(f's_add_u32 s{S_TMP}, s{S_TMP}, s{S_TMP + 2}')
        A(f's_add_u32 s{S_TMP}, s{S_TMP}, {WS_OPART:#x}')
        pt = {}
        for kg in range(4):
            for t_ in range(10):
                dst = X + 4 * t_ if kg == 0 else PB + 40 * (kg - 1) + 4 * t_
                A(f's_add_u32 s{S_TMP + 2}, s{S_TMP}, {kg * 81920 + t_ * 2048}')
                pt[kg, t_] = A(f'buffer_load_dwordx4 v[{dst}:{dst + 3}], v{V_L16}, {WS}, s{S_TMP + 2} offen sc1')
        for t_ in range(10):
            A.wait(pt[3, t_], gt, xt[-1])
            for r in range(0, 4, 2):
                x = X + 4 * t_ + r
                for kg in range(1, 4):
                    p = PB + 40 * (kg - 1) + 4 * t_ + r
                    A(f'v_pk_add_f32 v[{x}:{x + 1}], v[{x}:{x + 1}], v[{p}:{p + 1}]')
                round2(A, x, x + 1, T0)
                A(f'v_pk_mul_f32 v[{x}:{x + 1}], v[{x}:{x + 1}], v[{MB + 4 * t_ + r}:{MB + 4 * t_ + r + 1}]')
                round2(A, x, x + 1, T0)
                unpack2(A, T0, T1, XR + 2 * t_ + r // 2)
                A(f'v_pk_add_f32 v[{x}:{x + 1}], v[{x}:{x + 1}], v[{T0}:{T1}]')
                A(f'v_cvt_pk_bf16_f32 v{XR + 2 * t_ + r // 2}, v{x}, v{x + 1}')
                unpack2(A, x, x + 1, XR + 2 * t_ + r // 2)
        frag_base(A, s_tile, WS_X1, S_TMP)
        for k in range(5):
            A(f's_add_u32 s{S_TMP + 2}, s{S_TMP}, {k * 2048}')
            A(f'buffer_store_dwordx4 v[{XR + 4 * k}:{XR + 4 * k + 3}], v{V_L16}, {WS}, s{S_TMP + 2} offen sc1')
        A(f's_mul_i32 s{S_TMP + 1}, s{S_WV}, 640')
    else:
        A.wait(xt[-1])
        for j in range(20):
            unpack2(A, X + 2 * j, X + 2 * j + 1, XR + j)
    A(f'v_mov_b32 v{T0}, 0')
    A(f'v_mov_b32 v{T1}, 0')
    for j in range(0, 40, 2):
        A(f'v_pk_add_f32 v[{T0}:{T1}], v[{T0}:{T1}], v[{X + j}:{X + j + 1}]')
    A(f'v_add_f32 v{T0}, v{T0}, v{T1}')
    xlane_allreduce_g(A, 'v_add_f32', T0, T1)
    A(f's_lshl_b32 s{S_TMP}, s{S_WV}, 6')
    A(f'v_lshlrev_b32 v{T2}, 2, v{V_I}')
    A(f'v_add_u32 v{T3}, s{S_TMP}, v{T2}')
    A('s_barrier')
    A(f'ds_write_b32 v{T3}, v{T0}')
    A.wait_lg0()
    A('s_barrier')
    tk = [A(f'ds_read_b32 v{8 + j}, v{T2} offset:{64 * j}') for j in range(4)]
    A.wait(tk[-1])
    A('v_add_f32 v8, v8, v9'); A('v_add_f32 v10, v10, v11'); A('v_add_f32 v8, v8, v10')
    A(f'v_mul_f32 v8, {f32bits(1.0 / 640):#x}, v8')
    A(f'v_mov_b32 v{T0}, 0')
    for j in range(40):
        A(f'v_sub_f32 v{T1}, v{X + j}, v8')
        A(f'v_fmac_f32 v{T0}, v{T1}, v{T1}')
    xlane_allreduce_g(A, 'v_add_f32', T0, T1)
    A(f'ds_write_b32 v{T3}, v{T0} offset:256')
    A.wait_lg0()
    A('s_barrier')
    tk = [A(f'ds_read_b32 v{9 + j}, v{T2} offset:{256 + 64 * j}') for j in range(4)]
    A.wait(tk[-1])
    A('v_add_f32 v9, v9, v10'); A('v_add_f32 v11, v11, v12'); A('v_add_f32 v9, v9, v11')
    A(f'v_mul_f32 v9, {f32bits(1.0 / 640):#x}, v9')
    round2(A, 8, 9, T0)
    A(f'v_add_f32 v9, {f32bits(1e-5):#x}, v9')
    round_bf16(A, 9, 9)
    A('v_sqrt_f32 v9, v9')
    round_bf16(A, 9, 9)
    A('v_rcp_f32 v10, v9')
    for j in range(0, 40, 2):
        x = X + j
        A(f'v_sub_f32 v{x}, v{x}, v8')
        A(f'v_sub_f32 v{x + 1}, v{x + 1}, v8')
        round2(A, x, x + 1, T0)
        for y in (x, x + 1):
            A(f'v_mul_f32 v{T1}, v{y}, v10')
            A(f'v_fma_f32 v{y}, -v{T1}, v9, v{y}')
            A(f'v_fma_f32 v{y}, v{y}, v10, v{T1}')
        round2(A, x, x + 1, T0)
    if mid:
        mid()
    A(f'v_lshlrev_b32 v{T3}, 4, v{V_G}')
    A(f's_mul_i32 s{S_TMP + 1}, s{S_WV}, 640')
    ct = load_mod(1 if which == 1 else 4, MB)
    st = load_mod(0 if which == 1 else 3, PB)
    A.wait(ct, st)
    for j in range(0, 40, 2):
        x = X + j
        A(f'v_add_f32 v{MB + j}, 1.0, v{MB + j}')
        A(f'v_add_f32 v{MB + j + 1}, 1.0, v{MB + j + 1}')
        round2(A, MB + j, MB + j + 1, T0)
        A(f'v_pk_mul_f32 v[{x}:{x + 1}], v[{x}:{x + 1}], v[{MB + j}:{MB + j + 1}]')
        round2(A, x, x + 1, T0)
        A(f'v_pk_add_f32 v[{x}:{x + 1}], v[{x}:{x + 1}], v[{PB + j}:{PB + j + 1}]')
        A(f'v_cvt_pk_bf16_f32 v{160 + j // 2}, v{x}, v{x + 1}')
    frag_base(A, s_tile, WS_H if which == 1 else WS_H2, S_TMP)
    for k in range(5):
        A(f's_add_u32 s{S_TMP + 2}, s{S_TMP}, {k * 2048}')
        A(f'buffer_store_dwordx4 v[{160 + 4 * k}:{160 + 4 * k + 3}], v{V_L16}, {WS}, s{S_TMP + 2} offen sc1')


def frag_base(A, s_tile, region, dst):
    A(f's_lshr_b32 s{dst}, s{s_tile}, 1')
    A(f's_mul_i32 s{dst}, s{dst}, 40960')
    A(f's_and_b32 s{dst + 2}, s{s_tile}, 1')
    A(f's_lshl_b32 s{dst + 2}, s{dst + 2}, 10')
    A(f's_add_u32 s{dst}, s{dst}, s{dst + 2}')
    A(f's_mul_i32 s{dst + 2}, s{S_WV}, {5 * 2048}')
    A(f's_add_u32 s{dst}, s{dst}, s{dst + 2}')
    A(f's_add_u32 s{dst}, s{dst}, {region:#x}')


V_WSRC2, V_WSRC1, V_WRD2, V_WRD1 = 8, 9, 10, 11


def weight_addr_setup(A, pitch):
    T0, T1 = V_T0, V_T1
    A(f's_mov_b32 s{S_TMP}, {pitch}')
    A(f'v_lshrrev_b32 v{T0}, 2, v{V_L}')
    A(f'v_mul_lo_u32 v{T0}, v{T0}, s{S_TMP}')
    A(f'v_and_b32 v{T1}, 3, v{V_L}')
    A(f'v_lshl_add_u32 v{V_WSRC2}, v{T1}, 4, v{T0}')
    A(f'v_lshrrev_b32 v{T0}, 1, v{V_L}')
    A(f'v_mul_lo_u32 v{T0}, v{T0}, s{S_TMP}')
    A(f'v_and_b32 v{T1}, 1, v{V_L}')
    A(f'v_lshl_add_u32 v{V_WSRC1}, v{T1}, 4, v{T0}')
    A(f'v_lshrrev_b32 v{T0}, 2, v{V_L}')
    A(f'v_and_b32 v{T1}, 3, v{V_L}')
    A(f'v_lshlrev_b32 v{T1}, 3, v{T1}')
    A(f'v_lshl_add_u32 v{V_WRD2}, v{T0}, 6, v{T1}')
    A(f'v_add_u32 v{V_WRD2}, s{S_STG}, v{V_WRD2}')
    A(f'v_lshl_add_u32 v{V_WRD1}, v{T0}, 5, v{T1}')
    A(f'v_add_u32 v{V_WRD1}, s{S_STG}, v{V_WRD1}')


def load_weights(A, s_off, pitch, nk, width, dest):
    kb = 32 * 32 * width
    per = 40960 // kb
    src = V_WSRC2 if width == 2 else V_WSRC1
    rd = V_WRD2 if width == 2 else V_WRD1
    rows_per_instr = 16 if width == 2 else 32
    for k0 in range(0, nk, per):
        ks = list(range(k0, min(nk, k0 + per)))
        tok = {}
        A.wait_lg0()
        for k in ks:
            for n in range(32 // rows_per_instr):
                A(f's_add_u32 m0, s{S_STG}, {(k - k0) * kb + n * 1024}')
                tok[k] = A(f'buffer_load_dwordx4 v{src}, {WW}, s{s_off} offen lds')
                A(f's_add_u32 s{s_off}, s{s_off}, {rows_per_instr * pitch}')
        for k in ks:
            A.wait(tok[k])
            for t in range(width):
                for rho in range(2):
                    off = (k - k0) * kb + 16 * rho * 32 * width + t * 32
                    A(f'ds_read_b64_tr_b16 {wr(dest(k, t) + 2 * rho, 2)}, v{rd} offset:{off}')
    A.wait_lg0()


def load_weights_coop(A, s_off, pitch, nk, dest):
    T0, T1 = V_T0, V_T1
    VS, VR = 8, 10
    A(f's_mov_b32 s{S_TMP}, {pitch}')
    for p in range(2):
        A(f'v_or_b32 v{T0}, {4 * p}, v{V_G}')
        A(f'v_lshlrev_b32 v{T0}, 1, v{T0}')
        A(f'v_xor_b32 v{T0}, v{T0}, v{V_I}')
        A(f'v_mul_lo_u32 v{T1}, v{V_G}, s{S_TMP}')
        A(f'v_lshl_add_u32 v{VS + p}, v{T0}, 4, v{T1}')
    A(f'v_bfe_u32 v{T0}, v{V_L}, 2, 3')
    A(f'v_lshlrev_b32 v{T0}, 1, v{T0}')
    A(f'v_bfe_u32 v{T1}, v{V_L}, 1, 1')
    A(f's_lshl_b32 s{S_TMP}, s{S_WV}, 2')
    A(f'v_or_b32 v{T1}, s{S_TMP}, v{T1}')
    A(f'v_xor_b32 v{T0}, v{T0}, v{T1}')
    A(f'v_lshlrev_b32 v{T0}, 4, v{T0}')
    A(f'v_lshrrev_b32 v{T1}, 2, v{V_L}')
    A(f'v_lshl_add_u32 v{T0}, v{T1}, 8, v{T0}')
    A(f'v_and_b32 v{T1}, 1, v{V_L}')
    A(f'v_lshl_add_u32 v{V_T2}, v{T1}, 3, v{T0}')
    A(f's_mul_i32 s{S_TMP}, s{S_WV}, {16 * pitch}')
    A(f's_add_u32 s{s_off}, s{s_off}, s{S_TMP}')
    A(f's_lshl_b32 s{S_TMP + 1}, s{S_WV}, 12')
    nslot = nk // 2
    for s0 in range(0, nslot, 10):
        sl = list(range(s0, min(nslot, s0 + 10)))
        tok = {}
        A.wait_lg0()
        A('s_barrier')
        for s_ in sl:
            for n in range(4):
                A(f's_add_u32 m0, s{S_TMP + 1}, {(s_ - s0) * 16384 + n * 1024}')
                tok[s_] = A(f'buffer_load_dwordx4 v{VS + (n & 1)}, {WW}, s{s_off} offen lds')
                A(f's_add_u32 s{s_off}, s{s_off}, {(4 if n < 3 else 52) * pitch}')
        for s_ in sl:
            j = s_ - s0
            if j % 4 == 0:
                A(f'v_add_u32 v{VR}, {j * 16384}, v{V_T2}')
                A(f'v_xor_b32 v{VR + 1}, 32, v{VR}')
            A.wait(tok[s_])
            A('s_barrier')
            for kk in range(2):
                for t in range(2):
                    for rho in range(2):
                        off = (j % 4) * 16384 + (2 * kk + rho) * 4096
                        A(f'ds_read_b64_tr_b16 {wr(dest(2 * s_ + kk, t) + 2 * rho, 2)}, v{VR + t} offset:{off}')
    A.wait_lg0()
    A('s_barrier')


S_SRC, S_FIN, S_FOUT, S_DST, S_PRE, S_BUF, S_DST2 = 20, 21, 22, 23, 24, 25, 26
S_LAST = 27
S_LIM = 40


def gemm_loop(A, abort, nk, ntt, tiles, src_stride, fin_n, fin_stride, fout_stride, seg_step, epilogue,
              acc0=12, frag0=None, pre_compute=None, tt_stride=1024, k_stride=2048, adv=(), dual=0):
    T = len(tiles)
    nfr = nk * ntt
    bufsz = nfr * 1024
    assert 2 * bufsz <= 163840 - 4096
    DEC = 2 * bufsz
    FR = frag0 if frag0 is not None else acc0 + 4 * T * ntt
    NR = 3
    V_RD, V_RD2, V_FA, V_FS = 8, 9, 10, 11
    S_PEND, S_DL, S_DG = 37, 38, 39
    n_it = (nfr + 3) // 4
    step = 4096 if ntt == 2 else 4 * k_stride

    def dma_setup():
        A(f's_lshl_b32 s{S_DL}, s{S_WV}, 10')
        A(f's_add_u32 s{S_DL}, s{S_DL}, s{S_BUF}')
        if ntt == 2:
            assert tt_stride == 1024 and k_stride == 2048
            A(f's_lshl_b32 s{S_DG}, s{S_WV}, 10')
        else:
            A(f's_mul_i32 s{S_DG}, s{S_WV}, {k_stride}')
        A(f's_add_u32 s{S_DG}, s{S_DG}, s{S_SRC}')
        A(f's_add_u32 s{S_SRC}, s{S_SRC}, {src_stride}')
        A(f's_add_u32 s{S_FIN}, s{S_FIN}, {fin_stride}')

    def dma_one(i):
        l = None
        if 4 * i + 3 >= nfr:
            l = A.newlabel('L_dm')
            A(f's_cmp_ge_u32 s{S_WV}, {nfr - 4 * i}')
            A(f's_cbranch_scc1 {l}')
        A(f's_add_u32 m0, s{S_DL}, {4096 * i}')
        A(f'buffer_load_dwordx4 v{V_L16}, {WS}, s{S_DG} offen sc1 lds')
        if l:
            A.label(l)
        A(f's_add_u32 s{S_DG}, s{S_DG}, {step}')

    def sample():
        A(f'buffer_load_dword v{V_FS}, v{V_FA}, {WS}, s{S_FIN} offen sc1')

    def send_flag():
        ls = A.newlabel('L_sig')
        A(f's_cmp_lg_u32 s{S_WV}, 0')
        A(f's_cbranch_scc1 {ls}')
        A(f'v_mov_b32 v{V_T1}, 1')
        A('s_mov_b64 exec, 1')
        A(f'buffer_store_dword v{V_T1}, off, {WS}, s{S_FOUT} sc1')
        if dual:
            A(f's_add_u32 s{S_TMP}, s{S_FOUT}, {dual}')
            A(f'buffer_store_dword v{V_T1}, off, {WS}, s{S_TMP} sc1')
        A('s_mov_b64 exec, -1')
        A.label(ls)
        A(f's_add_u32 s{S_FOUT}, s{S_FOUT}, {fout_stride}')

    A(f'v_min_u32 v{V_FA}, {fin_n - 1}, v{V_L}')
    A(f'v_lshlrev_b32 v{V_FA}, 2, v{V_FA}')
    A(f's_mov_b32 s{S_BUF}, 0')
    for reg, stride in [(S_SRC, src_stride), (S_FIN, fin_stride), (S_FOUT, fout_stride)] + list(adv):
        if stride:
            A(f's_mul_i32 s{S_TMP}, s{S_SEG}, {stride}')
            A(f's_add_u32 s{reg}, s{reg}, s{S_TMP}')
    top = A.newlabel('L_gtop'); end = A.newlabel('L_gend'); load = A.newlabel('L_gload'); go = A.newlabel('L_ggo')
    A.flush_hazards()
    A.label(load)
    A.forget()
    wait_flags(A, abort, S_FIN, fin_n, sleep=1)
    if DEBUG_STAMPS[0]:
        lx = A.newlabel('L_ts')
        A(f's_cmp_ge_u32 s{S_SEG}, 2')
        A(f's_cbranch_scc1 {lx}')
        tstamp(A, 2)
        A.label(lx)
    tstamp63(A, 8, S_SEG)
    dma_setup()
    for i in range(n_it):
        dma_one(i)
    sample()
    A(f's_mov_b32 s{S_PEND}, 0')
    A.wait_all()
    A.branch(f's_branch {go}')
    A.label(top)
    A.forget()
    marker = len(A.lines)
    A.raw('WAITMARK')
    A.label(go)
    A('s_barrier')
    tstamp63(A, 9, S_SEG)
    A(f'v_add_u32 v{V_RD}, s{S_BUF}, v{V_L16}')
    if bufsz > 65536 - 1024:
        A(f'v_add_u32 v{V_RD2}, 0x10000, v{V_RD}')
    A(f's_add_u32 s{S_LAST}, s{S_SEG}, {seg_step}')
    A(f's_sub_u32 s{S_BUF}, {bufsz}, s{S_BUF}')
    ft = {}

    def rd(k):
        for tt in range(ntt):
            f = k * ntt + tt
            b = FR + 4 * ((k % NR) * ntt + tt)
            off = f * 1024
            base = V_RD
            if off >= 65536:
                off -= 65536; base = V_RD2
            ft[k] = A(f'ds_read_b128 v[{b}:{b + 3}], v{base} offset:{off}')

    kB = max(2, nk // 4)
    slots = list(range(kB + 1, nk))
    per = -(-n_it // len(slots))
    nd = 0
    for k in range(min(NR, nk)):
        rd(k)
    for k in range(nk):
        A.wait(ft[k])
        for t, (wreg, tr) in enumerate(tiles):
            for tt in range(ntt):
                acc = acc0 + 4 * (t * ntt + tt)
                fr = f'v[{FR + 4 * ((k % NR) * ntt + tt)}:{FR + 4 * ((k % NR) * ntt + tt) + 3}]'
                w = wr(wreg(k), 4)
                c = '0' if k == 0 else f'v[{acc}:{acc + 3}]'
                a_, b_ = (w, fr) if tr else (fr, w)
                A(f'v_mfma_f32_16x16x32_bf16 v[{acc}:{acc + 3}], {a_}, {b_}, {c}')
        if k + NR < nk:
            rd(k + NR)
        if k == kB:
            hs = [h_ for h_ in A.hist if h_.kind in ('mfma', 'valu')]
            A.wait_vm0()
            A(f'v_cmp_ne_u32 vcc, 1, v{V_FS}')
            A('s_cmp_eq_u64 vcc, 0')
            A(f's_cselect_b32 s{S_PRE}, 1, 0')
            A(f's_cmp_ge_u32 s{S_LAST}, s{S_LIM}')
            A(f's_cselect_b32 s{S_PRE}, 0, s{S_PRE}')
            A(f'v_mov_b32 v{V_T0}, {DEC}')
            lw = A.newlabel('L_dec')
            A(f's_cmp_lg_u32 s{S_WV}, 0')
            A(f's_cbranch_scc1 {lw}')
            A(f'v_mov_b32 v{V_T1}, s{S_PRE}')
            A(f'ds_write_b32 v{V_T0}, v{V_T1}')
            A.label(lw)
            A.wait_lg0()
            A('s_barrier')
            A(f'ds_read_b32 v{V_T1}, v{V_T0}')
            lp = A.newlabel('L_pend')
            A(f's_cmp_eq_u32 s{S_PEND}, 0')
            A(f's_cbranch_scc1 {lp}')
            A(f'v_mov_b32 v{V_T2}, 1')
            ls = A.newlabel('L_sig')
            A(f's_cmp_lg_u32 s{S_WV}, 0')
            A(f's_cbranch_scc1 {ls}')
            A('s_mov_b64 exec, 1')
            A(f'buffer_store_dword v{V_T2}, off, {WS}, s{S_FOUT} sc1')
            if dual:
                A(f's_add_u32 s{S_TMP}, s{S_FOUT}, {dual}')
                A(f'buffer_store_dword v{V_T2}, off, {WS}, s{S_TMP} sc1')
            A('s_mov_b64 exec, -1')
            A.label(ls)
            A(f's_add_u32 s{S_FOUT}, s{S_FOUT}, {fout_stride}')
            A.label(lp)
            A.wait_lg0()
            A(f'v_readfirstlane_b32 s{S_PRE}, v{V_T1}')
            ln = A.newlabel('L_nos')
            A(f's_cmp_eq_u32 s{S_PRE}, 0')
            A(f's_cbranch_scc1 {ln}')
            dma_setup()
            A.label(ln)
            if pre_compute:
                pre_compute(A)
            A.hist = hs
        if k > kB and nd < n_it:
            hs = [h_ for h_ in A.hist if h_.kind in ('mfma', 'valu')]
            ln = A.newlabel('L_nod')
            A(f's_cmp_eq_u32 s{S_PRE}, 0')
            A(f's_cbranch_scc1 {ln}')
            for _ in range(per):
                if nd < n_it:
                    dma_one(nd); nd += 1
            A.label(ln)
            A.hist = hs
    assert nd == n_it
    if DEBUG_STAMPS[0]:
        lx = A.newlabel('L_ts')
        A(f's_cmp_ge_u32 s{S_SEG}, 2')
        A(f's_cbranch_scc1 {lx}')
        tstamp(A, 3)
        A.label(lx)
        A('s_nop 7')
    tstamp63(A, 10, S_SEG)
    v0 = A.vm_issued
    epilogue(A)
    sample()
    nvm = A.vm_issued - v0
    A.lines[marker] = f'    s_waitcnt vmcnt({nvm})'
    A(f's_mov_b32 s{S_SEG}, s{S_LAST}')
    A(f's_mov_b32 s{S_PEND}, 1')
    A(f's_cmp_eq_u32 s{S_PRE}, 1')
    A.branch(f's_cbranch_scc1 {top}')
    A.wait_all()
    A('s_barrier')
    send_flag()
    tstamp63(A, 11, S_SEG, 64)
    A(f's_cmp_lt_u32 s{S_SEG}, s{S_LIM}')
    A.branch(f's_cbranch_scc1 {load}')
    A.label(end)


def wlin(i, vb=96):
    return 256 + 4 * i if i < 64 else vb + 4 * (i - 64)


def pack4(A, dst, src):
    A(f'v_cvt_pk_bf16_f32 v{dst}, v{src}, v{src + 1}')
    A(f'v_cvt_pk_bf16_f32 v{dst + 1}, v{src + 2}, v{src + 3}')


S_P2 = 29


def emit_op_weights(A):
    A.comment('==== role OP ====')
    load_ptr_srd(A, KA_WO, 4096 * 1280)
    A(f's_mul_i32 s{S_SRC}, s{S_P0}, {1024 * 1280}')
    A(f's_lshl_b32 s{S_TMP}, s{S_P1}, 8')
    A(f's_add_u32 s{S_SRC}, s{S_SRC}, s{S_TMP}')
    load_weights_coop(A, S_SRC, 1280, 32, lambda k, t: wlin(2 * k + t))


def emit_op(A, abort, split=False):
    A(f's_lshl_b32 s{S_SRC}, s{S_P0}, 16')
    A(f's_add_u32 s{S_SRC}, s{S_SRC}, {WS_O:#x}')
    A(f's_lshl_b32 s{S_FIN}, s{S_P0}, 6')
    A(f's_add_u32 s{S_FIN}, s{S_FIN}, {F_O:#x}')
    A(f's_mul_i32 s{S_FOUT}, s{S_P0}, 5')
    A(f's_add_u32 s{S_FOUT}, s{S_FOUT}, s{S_P1}')
    A(f's_lshl_b32 s{S_FOUT}, s{S_FOUT}, 2')
    A(f's_add_u32 s{S_FOUT}, s{S_FOUT}, {F_OP:#x}')
    A(f's_mul_i32 s{S_DST}, s{S_P0}, 81920')
    A(f's_lshl_b32 s{S_TMP}, s{S_P1}, 14')
    A(f's_add_u32 s{S_DST}, s{S_DST}, s{S_TMP}')
    A(f's_lshl_b32 s{S_TMP}, s{S_WV}, 12')
    A(f's_add_u32 s{S_DST}, s{S_DST}, s{S_TMP}')
    A(f's_add_u32 s{S_DST}, s{S_DST}, {WS_OPART:#x}')
    if split:
        A(f's_lshl_b32 s{S_TMP}, s{S_P2}, 10')
        A(f's_add_u32 s{S_SRC}, s{S_SRC}, s{S_TMP}')
        A(f's_add_u32 s{S_DST}, s{S_DST}, s{S_TMP}')
        A(f's_lshl_b32 s{S_TMP}, s{S_P2}, 13')
        A(f's_add_u32 s{S_FOUT}, s{S_FOUT}, s{S_TMP}')

    def epi(A):
        if split:
            for j in range(2):
                A(f'buffer_store_dwordx4 v[{12 + 4 * j}:{15 + 4 * j}], v{V_L16}, {WS}, s{S_DST} offen offset:{j * 2048} sc1')
        else:
            for j in range(4):
                A(f'buffer_store_dwordx4 v[{12 + 4 * j}:{15 + 4 * j}], v{V_L16}, {WS}, s{S_DST} offen offset:{j * 1024} sc1')
        A(f's_add_u32 s{S_DST}, s{S_DST}, {4 * 81920}')

    tiles = [(lambda k: wlin(2 * k), True), (lambda k: wlin(2 * k + 1), True)]
    gemm_loop(A, abort, 32, 1 if split else 2, tiles, 262144, 16, 256, 128, 1, epi, adv=[(S_DST, 4 * 81920)])


def emit_ff1_weights(A):
    A.comment('==== role FF1 ====')
    weight_addr_setup(A, 3456)
    for m, ka in enumerate((KA_WG, KA_WU)):
        load_ptr_srd(A, ka, 640 * 3456)
        A(f's_lshl_b32 s{S_SRC}, s{S_P0}, 7')
        A(f's_lshl_b32 s{S_TMP}, s{S_WV}, 5')
        A(f's_add_u32 s{S_SRC}, s{S_SRC}, s{S_TMP}')
        load_weights(A, S_SRC, 3456, 20, 1, lambda k, t, m=m: wlin(m * 20 + k))


FF1_SPLIT = [False]


def emit_ff1(A, abort, split=False):
    A(f's_mov_b32 s{S_SRC}, {WS_H2:#x}')
    A(f's_mov_b32 s{S_FIN}, {F_H2:#x}')
    A(f's_lshl_b32 s{S_FOUT}, s{S_P0}, 2')
    A(f's_add_u32 s{S_FOUT}, s{S_FOUT}, {F_ACT:#x}')
    A(f's_lshl_b32 s{S_DST}, s{S_P0}, 12')
    A(f's_lshr_b32 s{S_TMP}, s{S_WV}, 1')
    A(f's_lshl_b32 s{S_TMP}, s{S_TMP}, 11')
    A(f's_add_u32 s{S_DST}, s{S_DST}, s{S_TMP}')
    A(f's_and_b32 s{S_TMP}, s{S_WV}, 1')
    A(f's_lshl_b32 s{S_TMP}, s{S_TMP}, 3')
    A(f's_add_u32 s{S_DST}, s{S_DST}, s{S_TMP}')
    A(f's_add_u32 s{S_DST}, s{S_DST}, {WS_ACT:#x}')
    A(f's_mov_b32 s{S_DST2}, {f32bits(-math.log2(math.e)):#x}')
    if split:
        A(f's_lshl_b32 s{S_TMP}, s{S_P2}, 10')
        A(f's_add_u32 s{S_SRC}, s{S_SRC}, s{S_TMP}')
        A(f's_add_u32 s{S_DST}, s{S_DST}, s{S_TMP}')
        A(f's_lshl_b32 s{S_TMP}, s{S_P2}, 3')
        A(f's_add_u32 s{S_FIN}, s{S_FIN}, s{S_TMP}')
        A(f's_lshl_b32 s{S_TMP}, s{S_P2}, 13')
        A(f's_add_u32 s{S_FOUT}, s{S_FOUT}, s{S_TMP}')
    T0, T1 = V_T0, V_T1
    ntt = 1 if split else 2

    def epi(A):
        for tt in range(ntt):
            g = 12 + 4 * tt; u = 12 + 4 * ntt + 4 * tt
            for r in (0, 2):
                round2(A, g + r, g + r + 1, T0)
                round2(A, u + r, u + r + 1, T0)
                for y in (g + r, g + r + 1):
                    A(f'v_mul_f32 v{T1}, s{S_DST2}, v{y}')
                    A(f'v_exp_f32 v{T1}, v{T1}')
                    A(f'v_add_f32 v{T1}, 1.0, v{T1}')
                    A(f'v_rcp_f32 v{T1}, v{T1}')
                    A(f'v_mul_f32 v{y}, v{y}, v{T1}')
                round2(A, g + r, g + r + 1, T0)
                A(f'v_pk_mul_f32 v[{g + r}:{g + r + 1}], v[{g + r}:{g + r + 1}], v[{u + r}:{u + r + 1}]')
            pack4(A, u, g)
            A(f'buffer_store_dwordx2 v[{u}:{u + 1}], v{V_L16}, {WS}, s{S_DST} offen offset:{tt * 1024} sc1')
        A(f's_add_u32 s{S_DST}, s{S_DST}, {54 * 2048}')

    tiles = [(lambda k: wlin(k), True), (lambda k: wlin(20 + k), True)]
    gemm_loop(A, abort, 20, ntt, tiles, 40960, 2 * ntt, 128, 128, 1, epi, adv=[(S_DST, 54 * 2048)], dual=0x2000 if (FF1_SPLIT[0] and not split) else 0)


def emit_ff2(A, abort):
    A.comment('==== role FF2 ====')
    weight_addr_setup(A, 1280)
    load_ptr_srd(A, KA_WD, 1728 * 1280)
    A(f's_lshl_b32 s{S_SRC}, s{S_P1}, 7')
    A(f's_lshl_b32 s{S_TMP}, s{S_WV}, 5')
    A(f's_add_u32 s{S_SRC}, s{S_SRC}, s{S_TMP}')
    load_weights(A, S_SRC, 1280, 54, 1, lambda k, t: wlin(k))
    A(f's_lshl_b32 s{S_SRC}, s{S_P0}, 10')
    A(f's_add_u32 s{S_SRC}, s{S_SRC}, {WS_ACT:#x}')
    A(f's_lshl_b32 s{S_FIN}, s{S_P0}, 13' if FF1_SPLIT[0] else f's_mov_b32 s{S_FIN}, 0')
    A(f's_add_u32 s{S_FIN}, s{S_FIN}, {F_ACT:#x}')
    A(f's_mov_b32 s{S_FOUT}, {F_END:#x}')
    S_TILE = 28
    A(f's_lshl_b32 s{S_TILE}, s{S_P1}, 2')
    A(f's_add_u32 s{S_TILE}, s{S_TILE}, s{S_WV}')
    GB, XX, VO = 40, 44, 46
    A(f'v_lshlrev_b32 v{V_T0}, 4, v{V_G}')
    A(f's_lshl_b32 s{S_TMP}, s{S_TILE}, 6')
    A(f's_add_u32 s{S_TMP}, s{S_TMP}, {WS_MOD + 5 * 2560:#x}')
    A(f'buffer_load_dwordx4 v[{GB}:{GB + 3}], v{V_T0}, {WS}, s{S_TMP} offen sc1')
    A(f's_lshr_b32 s{S_DST2}, s{S_TILE}, 1')
    A(f's_lshl_b32 s{S_DST2}, s{S_DST2}, 11')
    A(f's_lshl_b32 s{S_TMP}, s{S_P0}, 10')
    A(f's_add_u32 s{S_DST2}, s{S_DST2}, s{S_TMP}')
    A(f's_and_b32 s{S_TMP}, s{S_TILE}, 1')
    A(f's_lshl_b32 s{S_TMP}, s{S_TMP}, 3')
    A(f's_add_u32 s{S_DST2}, s{S_DST2}, s{S_TMP}')
    A(f's_add_u32 s{S_DST2}, s{S_DST2}, {WS_X1:#x}')
    A(f'v_mul_u32_u24 v{VO}, 1280, v{V_I}')
    A(f'v_lshl_add_u32 v{VO}, v{V_G}, 3, v{VO}')
    A(f's_mul_i32 s{S_DST}, s{S_P0}, {16 * 1280}')
    A(f's_lshl_b32 s{S_TMP}, s{S_TILE}, 5')
    A(f's_add_u32 s{S_DST}, s{S_DST}, s{S_TMP}')
    load_ptr_srd(A, KA_OUT, 2048 * 1280)
    T0, T1 = V_T0, V_T1

    def pre(A):
        A(f'buffer_load_dwordx2 v[{XX}:{XX + 1}], v{V_L16}, {WS}, s{S_DST2} offen sc1')
        A(f's_add_u32 s{S_DST2}, s{S_DST2}, 40960')

    def epi(A):
        A.wait_vm0()
        for r in (0, 2):
            f = 12 + r
            round2(A, f, f + 1, T0)
            A(f'v_pk_mul_f32 v[{f}:{f + 1}], v[{f}:{f + 1}], v[{GB + r}:{GB + r + 1}]')
            round2(A, f, f + 1, T0)
            unpack2(A, T0, T1, XX + r // 2)
            A(f'v_pk_add_f32 v[{f}:{f + 1}], v[{f}:{f + 1}], v[{T0}:{T1}]')
        pack4(A, XX, 12)
        A(f'buffer_store_dwordx2 v[{XX}:{XX + 1}], v{VO}, {WW}, s{S_DST} offen')
        A(f's_add_u32 s{S_DST}, s{S_DST}, {32 * 1280}')

    gemm_loop(A, abort, 54, 1, [(lambda k: wlin(k), True)], 54 * 2048, 27, 128, 0, 1, epi, pre_compute=pre, adv=[(S_DST, 32 * 1280), (S_DST2, 40960)])


def emit_ln2(A, abort, n, repl=False):
    A.comment('==== role LN2 ====')
    T0, T1, T2, T3 = V_T0, V_T1, V_T2, V_T3
    S_TASK, S_A, S_B, S_C = 28, 29, 30, 31
    GA, SC, SH = 20, 40, 60
    X, P1, XR, HO = 80, 100, 160, 170
    V_OP, V_X, V_O, V_LW, V_LR = 180, 181, 182, 187, 188
    MEAN, RD = 190, 192
    HB, TK = 8, 9
    A(f'v_bfe_u32 v{HB}, v{V_L}, 3, 1')
    A(f'v_and_b32 v{TK}, 7, v{V_L}')
    A(f'v_lshl_add_u32 v{T2}, v{V_G}, 4, v{TK}')
    A(f'v_lshlrev_b32 v{T2}, 4, v{T2}')
    A(f'v_mul_u32_u24 v{T0}, {5 * 2048}, v{HB}')
    A(f'v_add_u32 v{V_OP}, v{T0}, v{T2}')
    A(f'v_mul_u32_u24 v{T0}, 1280, v{TK}')
    A(f'v_mul_u32_u24 v{T1}, 160, v{HB}')
    A(f'v_add_u32 v{T0}, v{T0}, v{T1}')
    A(f'v_lshl_add_u32 v{V_X}, v{V_G}, 3, v{T0}')
    for j in range(5):
        A(f'v_mul_u32_u24 v{T0}, 5, v{HB}')
        A(f'v_add_u32 v{T0}, {j}, v{T0}')
        A(f'v_lshrrev_b32 v{T1}, 1, v{T0}')
        A(f'v_lshlrev_b32 v{T1}, 11, v{T1}')
        A(f'v_and_b32 v{T0}, 1, v{T0}')
        A(f'v_lshl_add_u32 v{T0}, v{T0}, 3, v{T1}')
        A(f'v_add_u32 v{V_O + j}, v{T0}, v{T2}')
    A(f's_lshl_b32 s{S_TMP}, s{S_WV}, 5')
    A(f'v_lshlrev_b32 v{V_LR}, 2, v{TK}')
    A(f'v_add_u32 v{V_LW}, s{S_TMP}, v{V_LR}')
    A(f'v_mul_u32_u24 v{T0}, 320, v{HB}')
    A(f'v_lshl_add_u32 v{T0}, v{V_G}, 4, v{T0}')
    A(f's_mul_i32 s{S_TMP}, s{S_WV}, 640')
    for idx, base in ((2, GA), (4, SC), (3, SH)):
        A(f's_add_u32 s{S_TMP + 1}, s{S_TMP}, {WS_MOD + idx * 2560:#x}')
        for j in range(5):
            A(f'buffer_load_dwordx4 v[{base + 4 * j}:{base + 4 * j + 3}], v{T0}, {WS}, s{S_TMP + 1} offen offset:{64 * j} sc1')
    A.wait_vm0()
    for j in range(0, 20, 2):
        A(f'v_add_f32 v{SC + j}, 1.0, v{SC + j}')
        A(f'v_add_f32 v{SC + j + 1}, 1.0, v{SC + j + 1}')
        round2(A, SC + j, SC + j + 1, T0)
    load_ptr_srd(A, KA_X, 2048 * 1280)
    top = A.newlabel('L_ln2')
    A.flush_hazards()
    A.label(top)
    A.forget()
    lq = A.newlabel('L_lq')
    A(f'v_mov_b32 v{T0}, 1024')
    A(f's_cmp_lg_u32 s{S_WV}, 0')
    A(f's_cbranch_scc1 {lq}')
    A(f'v_mov_b32 v{T1}, 1')
    A('s_mov_b64 exec, 1')
    A(f'buffer_atomic_add v{T1}, off, {DBG}, 0 offset:24 sc0 sc1')
    A.wait_vm0()
    A(f'ds_write_b32 v{T0}, v{T1}')
    A('s_mov_b64 exec, -1')
    A.wait_lg0()
    A.label(lq)
    A('s_barrier')
    A(f'ds_read_b32 v{T1}, v{T0}')
    A.wait_lg0()
    A(f'v_readfirstlane_b32 s{S_TASK}, v{T1}')
    A(f's_cmp_ge_u32 s{S_TASK}, 256')
    A(f's_cbranch_scc1 {abort}')
    A(f's_lshr_b32 s{S_A}, s{S_TASK}, 2')
    A(f's_lshl_b32 s{S_FIN}, s{S_A}, 7')
    A(f's_and_b32 s{S_FOUT}, s{S_TASK}, 3')
    A(f's_lshl_b32 s{S_FOUT}, s{S_FOUT}, 2')
    A(f's_add_u32 s{S_FOUT}, s{S_FOUT}, s{S_FIN}')
    A(f's_add_u32 s{S_FOUT}, s{S_FOUT}, {F_H2:#x}')
    A(f's_add_u32 s{S_FIN}, s{S_FIN}, {F_OP:#x}')
    if repl:
        A(f's_bfe_u32 s{S_TMP}, s{S_TASK}, 0x10001')
        A(f's_lshl_b32 s{S_TMP}, s{S_TMP}, 13')
        A(f's_cmp_ge_u32 s{S_TASK}, {4 * repl}')
        A(f's_cselect_b32 s{S_TMP}, s{S_TMP}, 0')
        A(f's_add_u32 s{S_FIN}, s{S_FIN}, s{S_TMP}')
    A(f's_mul_i32 s{S_B}, s{S_TASK}, {8 * 1280}')
    A(f's_mul_i32 s{S_TMP}, s{S_WV}, 320')
    A(f's_add_u32 s{S_B}, s{S_B}, s{S_TMP}')
    for j in range(5):
        A(f'buffer_load_dwordx2 v[{XR + 2 * j}:{XR + 2 * j + 1}], v{V_X}, {WW}, s{S_B} offen offset:{32 * j}')
    A(f's_bfe_u32 s{S_C}, s{S_TASK}, 0x10001')
    A(f's_lshl_b32 s{S_C}, s{S_C}, 10')
    A(f's_and_b32 s{S_TMP}, s{S_TASK}, 1')
    A(f's_lshl_b32 s{S_TMP}, s{S_TMP}, 7')
    A(f's_add_u32 s{S_C}, s{S_C}, s{S_TMP}')
    A(f's_mul_i32 s{S_B}, s{S_A}, {4 * 81920}')
    A(f's_add_u32 s{S_B}, s{S_B}, s{S_C}')
    A(f's_mul_i32 s{S_TMP}, s{S_WV}, {10 * 2048}')
    A(f's_add_u32 s{S_B}, s{S_B}, s{S_TMP}')
    A(f's_add_u32 s{S_B}, s{S_B}, {WS_OPART:#x}')
    wait_flags(A, abort, S_FIN, 20, sleep=2)
    tstamp63(A, 8, S_TASK, 252)
    pt = {}
    for j in range(5):
        for kg in range(4):
            dst = X + 4 * j if kg == 0 else P1 + 20 * (kg - 1) + 4 * j
            A(f's_add_u32 s{S_TMP}, s{S_B}, {kg * 81920 + j * 2048}')
            pt[j] = A(f'buffer_load_dwordx4 v[{dst}:{dst + 3}], v{V_OP}, {WS}, s{S_TMP} offen sc1')
    A(f's_mul_i32 s{S_B}, s{S_A}, 40960')
    A(f's_add_u32 s{S_B}, s{S_B}, s{S_C}')
    A(f's_mul_i32 s{S_TMP}, s{S_WV}, {5 * 2048}')
    A(f's_add_u32 s{S_B}, s{S_B}, s{S_TMP}')
    A(f's_add_u32 s{S_C}, s{S_B}, {WS_X1:#x}')
    A(f's_add_u32 s{S_B}, s{S_B}, {WS_H2:#x}')
    A(f'v_mov_b64 v[{T2}:{T3}], 0')
    for j in range(5):
        A.wait(pt[j])
        for r in (0, 2):
            x = X + 4 * j + r
            p = P1 + 4 * j + r
            A(f'v_pk_add_f32 v[{x}:{x + 1}], v[{x}:{x + 1}], v[{p}:{p + 1}]')
            A(f'v_pk_add_f32 v[{p + 20}:{p + 21}], v[{p + 20}:{p + 21}], v[{p + 40}:{p + 41}]')
            A(f'v_pk_add_f32 v[{x}:{x + 1}], v[{x}:{x + 1}], v[{p + 20}:{p + 21}]')
            round2(A, x, x + 1, T0)
            A(f'v_pk_mul_f32 v[{x}:{x + 1}], v[{x}:{x + 1}], v[{GA + 4 * j + r}:{GA + 4 * j + r + 1}]')
            round2(A, x, x + 1, T0)
            xr = XR + 2 * j + r // 2
            unpack2(A, T0, T1, xr)
            A(f'v_pk_add_f32 v[{x}:{x + 1}], v[{x}:{x + 1}], v[{T0}:{T1}]')
            A(f'v_cvt_pk_bf16_f32 v{xr}, v{x}, v{x + 1}')
            unpack2(A, x, x + 1, xr)
            A(f'v_pk_add_f32 v[{T2}:{T3}], v[{T2}:{T3}], v[{x}:{x + 1}]')
        A(f'buffer_store_dwordx2 v[{XR + 2 * j}:{XR + 2 * j + 1}], v{V_O + j}, {WS}, s{S_C} offen sc1')

    def allred(off, dst):
        A(f'v_add_f32 v{T0}, v{T2}, v{T3}')
        xlane_allreduce_g(A, 'v_add_f32', T0, T1)
        A(f'v_add_f32_dpp v{T1}, v{T0}, v{T0} row_ror:8 row_mask:0xf bank_mask:0xf')
        A(f'ds_write_b32 v{V_LW}, v{T1} offset:{off}')
        A.wait_lg0()
        A('s_barrier')
        tk = [A(f'ds_read_b32 v{12 + j}, v{V_LR} offset:{off + 32 * j}') for j in range(4)]
        A.wait(tk[-1])
        A('v_add_f32 v12, v12, v13'); A('v_add_f32 v14, v14, v15'); A('v_add_f32 v12, v12, v14')
        A(f'v_mul_f32 v{dst}, {f32bits(1.0 / 640):#x}, v12')

    tstamp63(A, 9, S_TASK, 252)
    allred(0, MEAN)
    A(f'v_sub_f32 v{MEAN}, 0, v{MEAN}')
    A(f'v_mov_b32 v{MEAN + 1}, v{MEAN}')
    A(f'v_mov_b64 v[{T2}:{T3}], 0')
    for j in range(0, 20, 2):
        A(f'v_pk_add_f32 v[{T0}:{T1}], v[{X + j}:{X + j + 1}], v[{MEAN}:{MEAN + 1}]')
        A(f'v_pk_fma_f32 v[{T2}:{T3}], v[{T0}:{T1}], v[{T0}:{T1}], v[{T2}:{T3}]')
    allred(256, RD)
    round2(A, MEAN, RD, T0)
    A(f'v_mov_b32 v{MEAN + 1}, v{MEAN}')
    A(f'v_add_f32 v{RD}, {f32bits(1e-5):#x}, v{RD}')
    round_bf16(A, RD, RD)
    A(f'v_sqrt_f32 v{RD}, v{RD}')
    round_bf16(A, RD, RD)
    A(f'v_rcp_f32 v{RD}, v{RD}')
    A(f'v_mov_b32 v{RD + 1}, v{RD}')
    for j in range(5):
        for r in (0, 2):
            x = X + 4 * j + r
            A(f'v_pk_add_f32 v[{x}:{x + 1}], v[{x}:{x + 1}], v[{MEAN}:{MEAN + 1}]')
            round2(A, x, x + 1, T0)
            A(f'v_pk_mul_f32 v[{x}:{x + 1}], v[{x}:{x + 1}], v[{RD}:{RD + 1}]')
            round2(A, x, x + 1, T0)
            A(f'v_pk_mul_f32 v[{x}:{x + 1}], v[{x}:{x + 1}], v[{SC + 4 * j + r}:{SC + 4 * j + r + 1}]')
            round2(A, x, x + 1, T0)
            A(f'v_pk_add_f32 v[{x}:{x + 1}], v[{x}:{x + 1}], v[{SH + 4 * j + r}:{SH + 4 * j + r + 1}]')
            A(f'v_cvt_pk_bf16_f32 v{HO + 2 * j + r // 2}, v{x}, v{x + 1}')
        A(f'buffer_store_dwordx2 v[{HO + 2 * j}:{HO + 2 * j + 1}], v{V_O + j}, {WS}, s{S_B} offen sc1')
    tstamp63(A, 10, S_TASK, 252)
    signal(A, S_FOUT)
    tstamp63(A, 11, S_TASK, 252)
    A.branch(f's_branch {top}')


def emit_proj(A, abort, m, need_init):
    A.comment(f'==== role projection {m} ====')
    weight_addr_setup(A, 8192)
    load_ptr_srd(A, {'q': KA_WQ, 'k': KA_WK, 'v': KA_WV}[m], 640 * 8192)
    A(f's_lshl_b32 s{S_SRC}, s{S_P0}, 8')
    load_weights_coop(A, S_SRC, 8192, 20, lambda k, t: wlin(2 * k + t))
    tstamp(A, 0)
    if need_init:
        A(f's_add_u32 s{S_DST}, s{S_P0}, {0 if m == "k" else 32}')
        emit_calib(A, S_DST)
        wait_init(A, abort)
    tstamp(A, 1)
    A(f's_mov_b32 s{S_SEG}, 0')
    A(f's_mov_b32 s{S_LIM}, 64')
    A(f's_mov_b32 s{S_SRC}, {WS_H:#x}')
    A(f's_mov_b32 s{S_FIN}, {F_H:#x}')
    A(f's_lshl_b32 s{S_FOUT}, s{S_P0}, 4')
    A(f's_add_u32 s{S_FOUT}, s{S_FOUT}, {F_P + 4 * "kvq".index(m):#x}')
    if m != 'q':
        A(f's_lshl_b32 s{S_DST2}, s{S_P0}, 12')
        A(f's_lshl_b32 s{S_TMP}, s{S_WV}, 10')
        A(f's_add_u32 s{S_DST2}, s{S_DST2}, s{S_TMP}')
        A(f's_add_u32 s{S_DST2}, s{S_DST2}, {dict(k=WS_KM, v=WS_VM)[m]:#x}')
    A(f's_lshl_b32 s{S_DST}, s{S_P0}, 13')
    A(f's_lshl_b32 s{S_TMP}, s{S_WV}, {11 if m == "v" else 10}')
    A(f's_add_u32 s{S_DST}, s{S_DST}, s{S_TMP}')
    A(f's_add_u32 s{S_DST}, s{S_DST}, {dict(q=WS_Q, k=WS_KX, v=WS_VX)[m]:#x}')
    acc = lambda t, tt: 12 + 4 * (t * 2 + tt)
    O = 68

    def epi(A):
        for j in range(2):
            o = O + 4 * j
            if m == 'v':
                pack4(A, o, acc(j, 0)); pack4(A, o + 2, acc(j, 1))
                A(f'buffer_store_dwordx4 v[{o}:{o + 3}], v{V_L16}, {WS}, s{S_DST} offen offset:{j * 1024} sc1')
            else:
                pack4(A, o, acc(0, j)); pack4(A, o + 2, acc(1, j))
                A(f's_add_u32 s{S_TMP}, s{S_DST}, {j * 4096}')
                A(f'buffer_store_dwordx4 v[{o}:{o + 3}], v{V_L16}, {WS}, s{S_TMP} offen sc1')
        A(f's_add_u32 s{S_DST}, s{S_DST}, {32 * 8192}')
        if m != 'q':
            A(f'buffer_store_dwordx4 v[{O}:{O + 3}], v{V_L16}, {WS}, s{S_DST2} offen sc1')
            A(f's_add_u32 s{S_DST2}, s{S_DST2}, {32 * 4096}')

    tr = m != 'v'
    tiles = [(lambda k: wlin(2 * k), tr), (lambda k: wlin(2 * k + 1), tr)]
    gemm_loop(A, abort, 20, 2, tiles, 40960, 2, 8, 512, 1, epi)


def emit_att(A, abort, ncu, done_label, attsleep=3):
    A.comment('==== role ATT ====')
    S_TASK, S_SH, S_TT, S_SC, S_L2E, S_A, S_B = range(28, 35)
    KX, VX, KM, VM, QF, SS, OO = 12, 44, 76, 92, 108, 124, 136
    V_KMA, V_VMA, V_DIFF, V_D0 = 168, 169, 170, 171
    PP = 172
    T0, T1, T2 = V_T0, V_T1, V_T2
    A(f's_lshl_b32 s{S_TASK}, s{S_P0}, 2')
    A(f's_add_u32 s{S_TASK}, s{S_TASK}, s{S_WV}')
    A(f's_mov_b32 s{S_SC}, {f32bits(128 ** -0.5):#x}')
    A(f's_mov_b32 s{S_L2E}, {f32bits(math.log2(math.e)):#x}')
    A(f'v_and_b32 v{T0}, 7, v{V_I}')
    A(f'v_lshl_add_u32 v{T0}, v{V_G}, 3, v{T0}')
    A(f'v_lshlrev_b32 v{V_KMA}, 4, v{T0}')
    A(f'v_and_b32 v{T0}, 31, v{V_L}')
    A(f'v_lshlrev_b32 v{V_VMA}, 4, v{T0}')
    A(f'v_lshlrev_b32 v{T0}, 2, v{V_G}')
    A(f'v_sub_u32 v{V_D0}, v{V_I}, v{T0}')
    top = A.newlabel('L_att')
    A.flush_hazards()
    A.label(top)
    A.forget()
    A(f'v_mov_b32 v{T1}, 1')
    A('s_mov_b64 exec, 1')
    A(f'buffer_atomic_add v{T1}, off, {DBG}, 0 offset:20 sc0 sc1')
    A('s_mov_b64 exec, -1')
    A.wait_vm0()
    A(f'v_readfirstlane_b32 s{S_TASK}, v{T1}')
    A(f's_cmp_ge_u32 s{S_TASK}, 4096')
    A(f's_cbranch_scc1 {done_label}')
    A(f's_lshr_b32 s{S_SH}, s{S_TASK}, 1')
    A(f's_and_b32 s{S_TT}, s{S_TASK}, 1')
    A(f's_lshl_b32 s{S_TMP}, s{S_TT}, 4')
    A(f'v_add_u32 v{V_DIFF}, s{S_TMP}, v{V_D0}')
    A(f's_lshl_b32 s{S_A}, s{S_SH}, 4')
    A(f's_add_u32 s{S_B}, s{S_A}, {F_P:#x}')
    wait_flags(A, abort, S_B, 3)
    A(f's_lshl_b32 s{S_A}, s{S_SH}, 13')
    A(f's_lshl_b32 s{S_TMP}, s{S_TT}, 12')
    A(f's_add_u32 s{S_B}, s{S_A}, s{S_TMP}')
    A(f's_add_u32 s{S_B}, s{S_B}, {WS_Q:#x}')
    qt = [A(f'buffer_load_dwordx4 v[{QF + 4 * k}:{QF + 4 * k + 3}], v{V_L16}, {WS}, s{S_B} offen offset:{k * 1024} sc1') for k in range(4)]
    kt = {}
    for f in range(8):
        A(f's_add_u32 s{S_B}, s{S_A}, {WS_KX + (f >> 2) * 4096:#x}')
        kt[f] = A(f'buffer_load_dwordx4 v[{KX + 4 * f}:{KX + 4 * f + 3}], v{V_L16}, {WS}, s{S_B} offen offset:{(f & 3) * 1024} sc1')
    for f in range(8):
        A(f's_add_u32 s{S_B}, s{S_A}, {WS_VX + (f >> 2) * 4096:#x}')
        A(f'buffer_load_dwordx4 v[{VX + 4 * f}:{VX + 4 * f + 3}], v{V_L16}, {WS}, s{S_B} offen offset:{(f & 3) * 1024} sc1')
    Sm, S0, S1 = SS, SS + 4, SS + 8
    for kt_i, s_ in ((0, S0), (1, S1)):
        for k in range(4):
            A.wait(qt[k], kt[kt_i * 4 + k])
            c = '0' if k == 0 else f'v[{s_}:{s_ + 3}]'
            b = KX + 4 * (kt_i * 4 + k)
            A(f'v_mfma_f32_16x16x32_bf16 v[{s_}:{s_ + 3}], v[{b}:{b + 3}], v[{QF + 4 * k}:{QF + 4 * k + 3}], {c}')

    def fix(base):
        for r in (0, 2):
            round2(A, base + r, base + r + 1, T0)
            A(f'v_mul_f32 v{base + r}, s{S_SC}, v{base + r}')
            A(f'v_mul_f32 v{base + r + 1}, s{S_SC}, v{base + r + 1}')
            round2(A, base + r, base + r + 1, T0)
    A(f'v_mov_b32 v{T2}, 0xce6e6b28')
    for kt_i, s_ in ((0, S0), (1, S1)):
        fix(s_)
        for r in range(4):
            A(f'v_cmp_le_i32 vcc, {16 * kt_i + r}, v{V_DIFF}')
            A(f'v_cndmask_b32 v{s_ + r}, v{T2}, v{s_ + r}, vcc')
    MX = V_T3
    A(f'v_max3_f32 v{MX}, v{S0}, v{S0 + 1}, v{S0 + 2}')
    A(f'v_max3_f32 v{MX}, v{MX}, v{S0 + 3}, v{S1}')
    A(f'v_max3_f32 v{MX}, v{MX}, v{S1 + 1}, v{S1 + 2}')
    A(f'v_max_f32 v{MX}, v{MX}, v{S1 + 3}')
    A(f's_lshl_b32 s{S_B}, s{S_SH}, 5')
    A(f's_add_u32 s{S_B}, s{S_B}, {F_M:#x}')
    wait_flags(A, abort, S_B, 2, sleep=attsleep)
    A(f's_lshl_b32 s{S_A}, s{S_SH}, 11')
    A(f's_lshl_b32 s{S_B}, s{S_SH}, 12')
    A(f's_add_u32 s{S_B}, s{S_B}, {WS_KM:#x}')
    km = [A(f'buffer_load_dwordx4 v[{KM + 4 * k}:{KM + 4 * k + 3}], v{V_L16}, {WS}, s{S_B} offen offset:{k * 1024} sc1') for k in range(4)]
    A(f's_sub_u32 s{S_B}, s{S_B}, {WS_KM - WS_VM:#x}')
    vm = [A(f'buffer_load_dwordx2 v[{VM + 2 * j}:{VM + 2 * j + 1}], v{V_VMA}, {WS}, s{S_B} offen offset:{j * 512} sc1') for j in range(8)]
    for k in range(4):
        A.wait(km[k])
        c = '0' if k == 0 else f'v[{Sm}:{Sm + 3}]'
        A(f'v_mfma_f32_16x16x32_bf16 v[{Sm}:{Sm + 3}], v[{KM + 4 * k}:{KM + 4 * k + 3}], v[{QF + 4 * k}:{QF + 4 * k + 3}], {c}')
    A(f'v_cmp_gt_u32 vcc, 2, v{V_G}')
    fix(Sm)
    for r in range(4):
        A(f'v_cndmask_b32 v{Sm + r}, v{T2}, v{Sm + r}, vcc')
    A(f'v_max3_f32 v{T0}, v{MX}, v{Sm}, v{Sm + 1}')
    A(f'v_max3_f32 v{T0}, v{T0}, v{Sm + 2}, v{Sm + 3}')
    xlane_allreduce_g(A, 'v_max_f32', T0, T1)
    for j in range(12):
        A(f'v_sub_f32 v{SS + j}, v{SS + j}, v{T0}')
    for j in range(12):
        A(f'v_mul_f32 v{SS + j}, s{S_L2E}, v{SS + j}')
    for j in range(12):
        A(f'v_exp_f32 v{SS + j}, v{SS + j}')
    A(f'v_add_f32 v{T0}, v{SS}, v{SS + 1}')
    A(f'v_add_f32 v{T1}, v{SS + 2}, v{SS + 3}')
    for j in range(4, 12, 2):
        A(f'v_add_f32 v{T0}, v{T0}, v{SS + j}')
        A(f'v_add_f32 v{T1}, v{T1}, v{SS + j + 1}')
    A(f'v_add_f32 v{T0}, v{T0}, v{T1}')
    xlane_allreduce_g(A, 'v_add_f32', T0, T1)
    A(f'v_rcp_f32 v{T0}, v{T0}')
    for j in range(12):
        A(f'v_mul_f32 v{SS + j}, v{SS + j}, v{T0}')
    pack4(A, PP, S0); pack4(A, PP + 2, S1); pack4(A, PP + 4, Sm)
    A.wait(vm[-1])
    for j in range(8):
        o = OO + 4 * j
        A(f'v_mfma_f32_16x16x32_bf16 v[{o}:{o + 3}], v[{VX + 4 * j}:{VX + 4 * j + 3}], v[{PP}:{PP + 3}], 0')
    for j in range(8):
        o = OO + 4 * j
        A(f'v_mfma_f32_16x16x16_bf16 v[{o}:{o + 3}], v[{VM + 2 * j}:{VM + 2 * j + 1}], v[{PP + 4}:{PP + 5}], v[{o}:{o + 3}]')
    A(f's_lshl_b32 s{S_A}, s{S_SH}, 13')
    A(f's_lshl_b32 s{S_TMP}, s{S_TT}, 10')
    A(f's_add_u32 s{S_A}, s{S_A}, s{S_TMP}')
    A(f's_add_u32 s{S_A}, s{S_A}, {WS_O:#x}')
    for j in range(4):
        d = QF + 4 * j
        pack4(A, d, OO + 8 * j); pack4(A, d + 2, OO + 8 * j + 4)
        A(f's_add_u32 s{S_B}, s{S_A}, {j * 2048}')
        A(f'buffer_store_dwordx4 v[{d}:{d + 3}], v{V_L16}, {WS}, s{S_B} offen sc1')
    A.wait_vm0()
    A(f's_lshl_b32 s{S_B}, s{S_TASK}, 2')
    A(f's_add_u32 s{S_B}, s{S_B}, {F_O:#x}')
    A(f'v_mov_b32 v{T1}, 1')
    A('s_mov_b64 exec, 1')
    A(f'buffer_store_dword v{T1}, off, {WS}, s{S_B} sc1')
    A('s_mov_b64 exec, -1')
    A.branch(f's_branch {top}')


def emit_warm(A, s_j, first_seg):
    A.comment('==== late warm-up ====')
    T0 = V_T0
    A(f's_lshl_b32 s{S_TMP}, s{S_WV}, 6')
    A(f'v_add_u32 v{T0}, s{S_TMP}, v{V_L}')
    A(f'v_lshlrev_b32 v{T0}, 7, v{T0}')
    load_ptr_srd(A, KA_OUT, 2048 * 1280)
    regions = [(WS_O, 262144, WS), (WS_OPART, 327680, WS), (WS_X1, 40960, WS), (WS_H2, 40960, WS), (WS_ACT, 110592, WS), (0, 40960, WW)]
    n = 0
    for base, per, srd in regions:
        lo = base + first_seg * per
        units = ((64 - first_seg) * per + 32767) // 32768
        for i in range((units + 63) // 64):
            A(f's_add_u32 s{S_TMP}, s{s_j}, {64 * i}')
            A(f's_min_u32 s{S_TMP}, s{S_TMP}, {units - 1}')
            A(f's_lshl_b32 s{S_TMP}, s{S_TMP}, 15')
            A(f's_add_u32 s{S_TMP}, s{S_TMP}, {lo:#x}')
            A(f'buffer_load_dword v{12 + n % 8}, v{T0}, {srd}, s{S_TMP} offen sc1')
            n += 1
            if n % 4 == 0:
                A('s_waitcnt vmcnt(4)')
    A.wait_vm0()


def emit_calib(A, s_j):
    A.comment('==== page calibration ====')
    le = A.newlabel('L_cal')
    A(f's_cmp_lg_u32 s{S_WV}, 0')
    A(f's_cbranch_scc1 {le}')
    A(f'v_mov_b32 v{V_T0}, -1')
    A('s_mov_b64 exec, 1')
    A.wait_vm0()
    for d in range(2):
        A('s_mov_b32 s60, -1')
        A('s_mov_b32 s61, -1')
        for rep in range(3):
            for c in range(2):
                A(f's_lshl_b32 s{S_TMP}, s{s_j}, 15')
                A(f's_add_u32 s{S_TMP}, s{S_TMP}, {WS_MEMR + d * 16384 + c * 8192 + 6144:#x}')
                A('s_memtime s[56:57]')
                A('s_waitcnt lgkmcnt(0)')
                A(f'buffer_store_dword v{V_T0}, off, {WS}, s{S_TMP} sc1')
                A.wait_vm0()
                A('s_memtime s[58:59]')
                A('s_waitcnt lgkmcnt(0)')
                A('s_sub_u32 s58, s58, s56')
                A(f's_min_u32 s{60 + c}, s{60 + c}, s58')
        A('s_cmp_lt_u32 s61, s60')
        A(f's_cselect_b32 s{62 + d}, 1, 0')
    for d in range(2):
        A(f's_and_b32 s{S_TMP}, s{s_j}, 31')
        A(f's_lshl_b32 s{62 + d}, s{62 + d}, s{S_TMP}')
        A(f'v_mov_b32 v{V_T1}, s{62 + d}')
        A(f's_lshr_b32 s{S_TMP}, s{s_j}, 5')
        A(f's_lshl_b32 s{S_TMP}, s{S_TMP}, 2')
        A(f'buffer_atomic_or v{V_T1}, off, {DBG}, s{S_TMP} offset:{144 + 8 * d} sc1')
    A.wait_vm0()
    A(f'v_mov_b32 v{V_T1}, 1')
    A(f'buffer_atomic_add v{V_T1}, off, {DBG}, 0 offset:160 sc1')
    A('s_mov_b64 exec, -1')
    A.label(le)
```

```python
import sys
from asmlib import *
from layout import *
import rec, roles
from roles import *

KNAME = "adaLN_cond__memory_aug_recurrent_mem_tr__swiglu_ffn__prompt_kernel"
HEADER = open('adaLN_cond__memory_aug_recurrent_mem_tr__swiglu_ffn__prompt.s.ref').read().split('; Override launch')[0]

def gen(path, coarse=False, stamps=False, dbg='', gate=0, join='q', attsleep=3, warm=32, repl=42, repl1=0, scramble=False, lnjoin=24, **kw):
    A = Asm()
    roles.DEBUG_STAMPS[0] = stamps
    roles.FF1_SPLIT[0] = bool(repl1)
    A.raw(HEADER.rstrip('\n'))
    A.raw('; @launch grid=(256,1,1) block=(256,1,1) lds=163840')
    A.raw('.amdgcn_target "amdgcn-amd-amdhsa--gfx950"')
    A.raw(kernel_header(KNAME))
    END = 'L_end'
    A('s_cmp_ge_u32 s2, 256')
    A('s_cbranch_scc1 L_end0')
    S_X, S_IDX = 98, 99
    if coarse:
        A('s_memrealtime s[100:101]')
    A(f's_load_dwordx2 s[4:5], s[0:1], {KA_DBG}')
    A(f's_getreg_b32 s{S_X}, hwreg(HW_REG_XCC_ID)')
    if scramble:
        A('s_lshr_b32 s6, s2, 3')
        A(f's_add_u32 s{S_X}, s{S_X}, s6')
    A(f's_and_b32 s{S_X}, s{S_X}, 7')
    A('v_lshrrev_b32 v1, 6, v0')
    A('v_readfirstlane_b32 s3, v1')
    A('s_waitcnt lgkmcnt(0)')
    A.srd(8, 4, 5, 256)
    A('s_cmp_lg_u32 s3, 0')
    A('s_cbranch_scc1 L_claimed')
    A('s_mov_b32 s6, 0')
    A('s_mov_b64 exec, 1')
    A.label('L_claim')
    A(f's_lshl_b32 s7, s{S_X}, 2')
    A(f's_cmp_lt_u32 s{S_X}, 2')
    A('s_cselect_b32 s12, 0xc0, 32')
    A('s_add_u32 s7, s7, s12')
    A('v_mov_b32 v1, 1')
    A('buffer_atomic_add v1, off, s[8:11], s7 sc0 sc1')
    A('s_waitcnt vmcnt(0)')
    A(f'v_readfirstlane_b32 s{S_IDX}, v1')
    A(f's_cmp_lt_u32 s{S_IDX}, 32')
    A('s_cbranch_scc1 L_claim_ok')
    A(f's_add_u32 s{S_X}, s{S_X}, 1')
    A(f's_and_b32 s{S_X}, s{S_X}, 7')
    A('s_add_u32 s6, s6, 1')
    A('s_cmp_lt_u32 s6, 8')
    A('s_cbranch_scc1 L_claim')
    A(f's_mov_b32 s{S_IDX}, 255')
    A.label('L_claim_ok')
    A(f's_lshl_b32 s7, s{S_IDX}, 3')
    A(f's_or_b32 s7, s7, s{S_X}')
    A('v_mov_b32 v1, s7')
    A('v_mov_b32 v2, 0')
    A('ds_write_b32 v2, v1')
    A('s_waitcnt lgkmcnt(0)')
    A('s_mov_b64 exec, -1')
    A.label('L_claimed')
    A('s_barrier')
    A('v_mov_b32 v2, 0')
    A('ds_read_b32 v1, v2')
    A('s_waitcnt lgkmcnt(0)')
    A('v_readfirstlane_b32 s7, v1')
    A('s_barrier')
    A(f's_and_b32 s{S_X}, s7, 7')
    A(f's_lshr_b32 s{S_IDX}, s7, 3')
    A('s_mov_b32 s3, s7')
    A(f's_cmp_ge_u32 s{S_IDX}, 32')
    A('s_cbranch_scc1 L_end0')
    A(f's_cmp_lt_u32 s{S_X}, 2')
    A('s_cbranch_scc1 L_rec')
    common_setup(A)
    A(f's_cmp_lt_u32 s{S_X}, 4')
    A('s_cbranch_scc1 L_kv')
    A(f's_sub_u32 s{S_P0}, s{S_X}, 4')
    A(f's_lshl_b32 s{S_P0}, s{S_P0}, 5')
    A(f's_add_u32 s{S_P0}, s{S_P0}, s{S_IDX}')
    emit_init(A, END)
    tstamp(A, 4)
    emit_ln(A, 1, S_P0, mid=lambda: (wait_init(A, END), tstamp(A, 5)))
    tstamp(A, 6)
    A(f's_lshl_b32 s{S_FOUT}, s{S_P0}, 2')
    A(f's_add_u32 s{S_FOUT}, s{S_FOUT}, {F_H:#x}')
    signal(A, S_FOUT)
    emit_init(A, END, part=2)
    if gate:
        A(f's_cmp_lg_u32 s{S_WV}, 0')
        A('s_cbranch_scc1 L_gate')
        A(f's_mov_b32 s{S_TMP}, {WS_FLAG + 0x3800:#x}')
        wait_flags(A, 'L_gate', S_TMP, 1, value=gate, sleep=32, ge=True)
        A.label('L_gate')
    A('s_barrier')
    A(f's_mov_b32 s{S_SEG}, 0')
    A(f's_mov_b32 s{S_LIM}, 64')
    A(f's_cmp_eq_u32 s{S_X}, 4')
    A.branch('s_cbranch_scc1 L_q')
    A(f's_cmp_eq_u32 s{S_X}, 5')
    A.branch('s_cbranch_scc1 L_x5')
    A(f's_cmp_eq_u32 s{S_X}, 6')
    A.branch('s_cbranch_scc1 L_x6')
    A(f's_sub_u32 s{S_P0}, s{S_IDX}, 11')
    A(f's_cmp_ge_u32 s{S_IDX}, 20')
    A('s_cbranch_scc1 L_att')
    A.label('L_ff2'); A.forget()
    A(f's_and_b32 s{S_P0}, s{S_IDX}, 1')
    A(f's_lshr_b32 s{S_P1}, s{S_IDX}, 1')
    emit_ff2(A, END)
    A.branch(f's_branch {END}')
    A.label('L_x6'); A.forget()
    A(f's_sub_u32 s{S_P0}, s{S_IDX}, 23')
    A(f's_cmp_ge_u32 s{S_IDX}, 27')
    A('s_cbranch_scc1 L_att')
    A.label('L_ff1'); A.forget()
    A(f's_mov_b32 s{S_P0}, s{S_IDX}')
    emit_ff1_weights(A)
    if repl1:
        A(f's_mov_b32 s{S_LIM}, {repl1}')
    emit_ff1(A, END)
    if repl1:
        A(f's_mov_b32 s{S_P2}, 0')
        A.label('L_ff1s'); A.forget()
        A('s_barrier')
        A(f's_mov_b32 s{S_SEG}, {repl1}')
        A(f's_mov_b32 s{S_LIM}, 64')
        emit_ff1(A, END, split=True)
    A.branch(f's_branch {END}')
    A.label('L_x5'); A.forget()
    A(f's_sub_u32 s{S_P0}, s{S_IDX}, 28')
    A(f's_cmp_ge_u32 s{S_IDX}, 28')
    A('s_cbranch_scc1 L_att')
    A(f's_cmp_ge_u32 s{S_IDX}, 20')
    A('s_cbranch_scc1 L_ln2r')
    A(f's_mul_i32 s{S_P0}, s{S_IDX}, 52')
    A(f's_lshr_b32 s{S_P0}, s{S_P0}, 8')
    A(f's_mul_i32 s{S_P1}, s{S_P0}, 5')
    A(f's_sub_u32 s{S_P1}, s{S_IDX}, s{S_P1}')
    emit_op_weights(A)
    if repl:
        A(f's_mov_b32 s{S_LIM}, {repl}')
    emit_op(A, END)
    if repl:
        A(f's_mov_b32 s{S_P2}, 0')
        A.label('L_ops'); A.forget()
        A('s_barrier')
        A(f's_mov_b32 s{S_SEG}, {repl}')
        A(f's_mov_b32 s{S_LIM}, 64')
        emit_op(A, END, split=True)
    A.branch(f's_branch {END}')
    A.label('L_ln2r'); A.forget()
    A(f's_sub_u32 s{S_P0}, s{S_IDX}, 20')
    emit_ln2(A, END, 8, repl)
    A.branch(f's_branch {END}')
    A.label('L_q'); A.forget()
    A(f's_mov_b32 s{S_P0}, s{S_IDX}')
    emit_proj(A, END, 'q', False)
    if repl1:
        A(f's_cmp_ge_u32 s{S_IDX}, 27')
        A.branch('s_cbranch_scc1 L_att')
        A('s_barrier')
        emit_ff1_weights(A)
        A(f's_mov_b32 s{S_P2}, 1')
        A.branch('s_branch L_ff1s')
    A.branch('s_branch L_att' if 'q' in join else f's_branch {END}')
    A.label('L_att'); A.forget()
    emit_att(A, END, 21, END, attsleep)
    A.branch(f's_branch {END}')
    A.label('L_kv'); A.forget()
    A(f's_mov_b32 s{S_P0}, s{S_IDX}')
    A(f's_sub_u32 s{S_P1}, s{S_X}, 2')
    A(f's_cmp_eq_u32 s{S_X}, 3')
    A('s_cbranch_scc1 L_vp')
    emit_proj(A, END, 'k', True)
    A.branch('s_branch L_kvd')
    A.label('L_vp'); A.forget()
    emit_proj(A, END, 'v', True)
    A.label('L_kvd'); A.forget()
    A(f's_lshl_b32 s{S_P1}, s{S_P1}, 5')
    A(f's_add_u32 s{S_P1}, s{S_P1}, s{S_P0}')
    if warm:
        emit_warm(A, S_P1, warm)
    A('s_barrier')
    A(f's_cmp_lt_u32 s{S_P1}, {lnjoin}')
    A.branch('s_cbranch_scc1 L_ln2r')
    if repl:
        A(f's_sub_u32 s{S_TMP}, s{S_P1}, 32')
        A(f's_cmp_ge_u32 s{S_TMP}, 20')
        A.branch('s_cbranch_scc1 L_att' if repl1 else f's_cbranch_scc1 {END}')
        A(f's_mul_i32 s{S_P0}, s{S_TMP}, 52')
        A(f's_lshr_b32 s{S_P0}, s{S_P0}, 8')
        A(f's_mul_i32 s{S_P1}, s{S_P0}, 5')
        A(f's_sub_u32 s{S_P1}, s{S_TMP}, s{S_P1}')
        emit_op_weights(A)
        A(f's_mov_b32 s{S_P2}, 1')
        A.branch('s_branch L_ops')
    else:
        A.branch(f's_branch {END}')
    A.label('L_rec'); A.forget()
    A(f's_mov_b32 s{rec.S_T}, s{S_X}')
    A(f's_mov_b32 s{rec.S_H}, s{S_IDX}')
    rec.emit_rec(A, END, mega=True, coarse=coarse, stamps=stamps, dbg=dbg, **kw)
    A.label(END)
    if coarse:
        A('s_memrealtime s[92:93]')
        A('s_waitcnt lgkmcnt(0)')
        A('s_lshl_b32 s41, s3, 4')
        A(f's_add_u32 s41, s41, {WS_STAMP + 0x300000:#x}')
        A('s_mov_b64 exec, 1')
        A('v_mov_b32 v2, s100')
        A('v_mov_b32 v3, s92')
        A('buffer_store_dwordx2 v[2:3], off, s[4:7], s41')
    A.label('L_end0')
    A('s_endpgm')
    A.raw(kernel_desc(KNAME))
    open(path, 'w').write(A.text())
    print('instructions:', A.ninstr, 'bytes of text:', len(A.text()))

if __name__ == '__main__':
    out = 'mega.s'
    gen(out, coarse='--coarse' in sys.argv, stamps='--stamps' in sys.argv)
    for d in ('nokmt', 'nokmt,pubnt'):
        if '--dbg' in sys.argv:
            gen(f'mega_{d.replace(",", "_")}.s', coarse=True, stamps=True, dbg=d)
    if '--install' in sys.argv:
        import shutil
        shutil.copy(out, 'adaLN_cond__memory_aug_recurrent_mem_tr__swiglu_ffn__prompt.s')
```

```python
import math
import struct
from asmlib import *
from layout import *
from roles import F_P, F_M

VREG = 34816
MEMB = 4 * VREG
QKB = MEMB + 10240
OB = QKB + 4096
KXB = OB + 2048
assert KXB + 8192 == 163840

SPIN_LIMIT = 1 << 17


def f32bits(x):
    return struct.unpack('<I', struct.pack('<f', x))[0]


LDS_BLOCKS = [('v', s_, t_) for s_ in range(5) for t_ in range(2)] + [('k', s_, 1) for s_ in range(3)] + \
             [('k', 5, 0), ('k', 6, 0), ('k', 7, 1), ('k', 9, 0)]
assert len(LDS_BLOCKS) == 17
_all = [(m, s_, t_) for m in 'qkv' for s_ in range(10) for t_ in range(2)] + [('o', k_, t_) for k_ in range(2) for t_ in range(5)]
_regb = [b for b in _all if b not in LDS_BLOCKS]
assert len(_regb) == 53
REG_OF = {b: (256 + 8 * i if i < 32 else 88 + 8 * (i - 32)) for i, b in enumerate(_regb)}
BLK_OF = {b: i for i, b in enumerate(LDS_BLOCKS)}


V_LANE, V_IDX, V_L16, V_KX, V_QKW, V_QKR, V_OW0, V_OR, V_PST, V_T2, V_T1, V_T0 = range(12)
VX0, VX1 = 12, 16
V_P4, V_P1, V_PUB = 12, 13, 14
Q0, Q1, K0, K1, VV0, VV1 = 20, 24, 28, 32, 36, 40
AR = 44
PL = 56
VW = 64
SS = 64
VXR = 80

S_WS, S_W, S_DBG = 4, 8, 12
S_T, S_H, S_WV, S_STEP, S_FAST = 16, 17, 18, 19, 20
S_PLOC, S_PREM, S_PS0, S_PS1, S_PS2, S_PA, S_PUBR, S_PUBL, S_KX, S_VX, S_RED, S_NOT1, S_C = range(21, 34)
S_MLO = 34
S_MPUB = 36
S_KM, S_VM, S_FL = 38, 39, 40
S_TMP = 41
S_PTR = 44
S_SPIN = 46
S_TMP2 = 47
S_ST = 48
S_STO = 80
S_KSEL = 96
S_FKV = 97
S_EARLY = 81
S_TA = 32
S_TABW, S_TABR = 36, 82
S_PREM0, S_PUBR0 = 39, 96
S_TMASK = 94
S_PAR, S_W1280, S_P1B, S_W512 = 72, 73, 74, 75
S_ONE = 76
S_HALF = 78
S_RDY = 25


def emit_rec(A, abort_label, nsteps=64, stamps=False, force_safe=False, coarse=False, backoff=13, ka=2, adelay=(1, 2), mega=False, rp=(0, 2), cut=None, dbg='', kb=2, bgap=15, spec=True, kmahead=2, align=None, kxlate=True, tlate=False, early=False, s4=0):
    def stamp(i):
        if stamps:
            A(f'{"s_memrealtime" if stamps == "rt" else "s_memtime"} s[{S_ST + 2 * i}:{S_ST + 2 * i + 1}]')
        if cut == i:
            A.branch('s_branch L_cut')

    if coarse:
        A('s_memrealtime s[84:85]')
        A('s_memtime s[86:87]')
    A(f's_load_dwordx2 s[{S_PTR}:{S_PTR + 1}], s[0:1], {KA_WS}')
    A(f's_load_dwordx2 s[{S_TMP + 1}:{S_TMP + 2}], s[0:1], {KA_DBG}')
    A(f'v_lshrrev_b32 v1, 6, v0')
    A(f'v_readfirstlane_b32 s{S_WV}, v1')
    A(f'v_and_b32 v{V_LANE}, 63, v0')
    A('s_waitcnt lgkmcnt(0)')
    A.srd(S_WS, S_PTR, S_PTR + 1, WS_BYTES)
    A.srd(S_DBG, S_TMP + 1, S_TMP + 2, 256)
    A(f's_mov_b32 s{S_SPIN}, 0')
    L = V_LANE
    T0, T1 = V_T0, V_T1
    G, R_, C_ = 20, 21, 22
    A(f'v_lshrrev_b32 v{G}, 4, v{L}')
    A(f'v_bfe_u32 v{R_}, v{L}, 2, 2')
    A(f'v_and_b32 v{C_}, 3, v{L}')
    A(f'v_and_b32 v{T0}, 8, v{L}')
    A(f'v_cmp_eq_u32 vcc, 0, v{T0}')
    A(f'v_mov_b32 v{T0}, 0xeeee')
    A(f'v_mov_b32 v{T1}, 0x4444')
    A(f'v_cndmask_b32 v{V_IDX}, v{T0}, v{T1}, vcc')
    A(f's_mul_i32 s{S_TMP}, s{S_WV}, {VREG}')
    A(f'v_lshlrev_b32 v{T0}, 4, v{L}')
    A(f'v_add_u32 v{V_L16}, s{S_TMP}, v{T0}')
    A(f'v_add_u32 v{V_KX}, {MEMB}, v{T0}')
    A(f'v_lshrrev_b32 v{T0}, 5, v{L}')
    A(f'v_lshlrev_b32 v{T0}, 8, v{T0}')
    A(f'v_and_b32 v{T1}, 15, v{L}')
    A(f'v_lshl_add_u32 v{T0}, v{T1}, 4, v{T0}')
    A(f'v_and_b32 v{T1}, 1, v{G}')
    A(f'v_lshl_add_u32 v{T0}, v{T1}, 3, v{T0}')
    A(f's_lshl_b32 s{S_TMP}, s{S_WV}, 9')
    A(f's_add_u32 s{S_TMP}, s{S_TMP}, {QKB}')
    A(f'v_add_u32 v{V_QKW}, s{S_TMP}, v{T0}')
    A(f'v_lshlrev_b32 v{T0}, 6, v{G}')
    A(f'v_lshl_add_u32 v{T0}, v{R_}, 4, v{T0}')
    A(f'v_and_b32 v{T1}, 1, v{C_}')
    A(f'v_lshl_add_u32 v{T0}, v{T1}, 3, v{T0}')
    A(f'v_add_u32 v{V_QKR}, {QKB}, v{T0}')
    I_ = 23
    A(f'v_and_b32 v{I_}, 7, v{L}')
    A(f'v_lshrrev_b32 v{T0}, 1, v{G}')
    A(f's_lshl_b32 s{S_TMP}, s{S_WV}, 2')
    A(f'v_add_u32 v{T0}, s{S_TMP}, v{T0}')
    A(f'v_xor_b32 v{T0}, v{T0}, v{I_}')
    A(f'v_lshlrev_b32 v{T0}, 4, v{T0}')
    A(f'v_lshl_add_u32 v{T0}, v{I_}, 8, v{T0}')
    A(f'v_and_b32 v{T1}, 1, v{G}')
    A(f'v_lshl_add_u32 v{T0}, v{T1}, 3, v{T0}')
    A(f'v_add_u32 v{V_OW0}, {OB}, v{T0}')
    A(f'v_bfe_u32 v{T0}, v{L}, 3, 1')
    A(f'v_lshl_add_u32 v{T0}, v{G}, 1, v{T0}')
    A(f'v_xor_b32 v{T0}, v{T0}, v{I_}')
    A(f'v_lshlrev_b32 v{T0}, 4, v{T0}')
    A(f'v_lshl_add_u32 v{T0}, v{I_}, 8, v{T0}')
    A(f'v_add_u32 v{V_OR}, {OB}, v{T0}')
    A(f'v_and_b32 v{T0}, 1, v{G}')
    A(f'v_lshlrev_b32 v{T0}, 1, v{T0}')
    A(f'v_lshrrev_b32 v{T1}, 1, v{G}')
    A(f'v_add_u32 v{T0}, v{T0}, v{T1}')
    A(f'v_lshlrev_b32 v{T0}, 1, v{T0}')
    A(f'v_bfe_u32 v{T1}, v{L}, 3, 1')
    A(f'v_add_u32 v{T0}, v{T0}, v{T1}')
    A(f'v_lshlrev_b32 v{T0}, 12, v{T0}')
    A(f'v_lshl_add_u32 v{V_PST}, v{I_}, 4, v{T0}')
    A(f's_lshl_b32 s{S_KSEL}, s{S_T}, 2')
    A(f's_add_u32 s{S_KSEL}, s{S_KSEL}, s{S_WV}')
    A(f's_mov_b32 s{S_ONE}, 0x3f803f80')
    A(f's_mov_b32 s{S_ONE + 1}, 0x3f803f80')
    A(f's_mov_b32 s{S_HALF}, 0x3f003f00')
    A(f's_mov_b32 s{S_HALF + 1}, 0x3f003f00')
    A(f's_mov_b32 s{S_PAR}, 0')
    A(f's_mul_i32 s{S_W1280}, s{S_WV}, 1280')
    A(f's_add_u32 s{S_P1B}, s{S_W1280}, {MEMB + 1024}')
    A(f's_lshl_b32 s{S_W512}, s{S_WV}, 9')

    def rebuild():
        A(f'v_add_u32 v{V_P4}, s{S_W1280}, v{V_KX}')
        A(f'v_lshl_add_u32 v{V_P1}, v{L}, 2, s{S_P1B}')

    def rebuild_pub():
        A(f'v_and_b32 v{T0}, 7, v{L}')
        A(f'v_bfe_u32 v{T1}, v{L}, 4, 1')
        A(f'v_lshlrev_b32 v{T1}, 3, v{T1}')
        A(f'v_lshl_add_u32 v{V_PUB}, v{T0}, 4, v{T1}')

    A(f's_mov_b32 s{S_MLO}, -1')
    A(f's_mov_b32 s{S_MLO + 1}, 0')
    A(f's_mov_b32 s{S_MPUB}, 0x00ff00ff')
    A(f's_mov_b32 s{S_MPUB + 1}, 0x00ff00ff')
    A(f's_mov_b32 s{S_NOT1}, 0xfffffffe')
    A(f's_mov_b32 s{S_C}, {f32bits((128 ** -0.5) * math.log2(math.e)):#x}')
    A(f's_mul_i32 s{S_TMP2}, s{S_WV}, {VREG}')
    A(f's_mul_i32 s{S_TMP}, s{S_T}, 5120')
    A(f's_add_u32 s{S_PLOC}, s{S_TMP}, {WS_MEML - MEMB:#x}')
    A(f's_xor_b32 s{S_TMP}, s{S_T}, 1')
    A(f's_lshl_b32 s{S_TMP}, s{S_TMP}, 14')
    A(f's_add_u32 s{S_PREM}, s{S_TMP}, {WS_MEMR - MEMB:#x}')
    A(f's_mul_i32 s{S_TMP}, s{S_T}, 163840')
    A(f's_add_u32 s{S_TMP}, s{S_TMP}, {WS_PART:#x}')
    A(f's_mul_i32 s{S_TMP + 1}, s{S_WV}, {10 * 4096}')
    A(f's_add_u32 s{S_PS0}, s{S_TMP}, s{S_TMP + 1}')
    A(f's_lshl_b32 s{S_TMP + 1}, s{S_H}, 7')
    A(f's_add_u32 s{S_PS0}, s{S_PS0}, s{S_TMP + 1}')
    A(f's_add_u32 s{S_PS1}, s{S_PS0}, 32768')
    A(f's_lshl_b32 s{S_RED}, s{S_WV}, 5')
    A(f's_add_u32 s{S_RED}, s{S_RED}, s{S_H}')
    A(f's_min_u32 s{S_TMP + 2}, s{S_RED}, 39')
    A(f's_lshl_b32 s{S_TMP + 1}, s{S_TMP + 2}, 12')
    A(f's_add_u32 s{S_PA}, s{S_TMP}, s{S_TMP + 1}')
    A(f's_sub_u32 s{S_PA}, s{S_PA}, s{S_TMP2}')
    A(f's_lshl_b32 s{S_TMP + 1}, s{S_TMP + 2}, 7')
    A(f's_lshl_b32 s{S_TMP}, s{S_T}, 14')
    A(f's_add_u32 s{S_PUBR}, s{S_TMP}, s{S_TMP + 1}')
    A(f's_add_u32 s{S_PUBR}, s{S_PUBR}, {WS_MEMR + 32768:#x}')
    A(f's_mul_i32 s{S_TMP}, s{S_T}, 5120')
    A(f's_add_u32 s{S_PUBL}, s{S_TMP}, s{S_TMP + 1}')
    A(f's_add_u32 s{S_PUBL}, s{S_PUBL}, {WS_MEML + 10240:#x}')
    A(f's_lshl_b32 s{S_TMP}, s{S_H}, 13')
    A(f's_lshl_b32 s{S_TMP + 1}, s{S_WV}, 11')
    A(f's_add_u32 s{S_TMP}, s{S_TMP}, s{S_TMP + 1}')
    A(f's_sub_u32 s{S_TMP}, s{S_TMP}, s{S_TMP2}')
    A(f's_add_u32 s{S_KX}, s{S_TMP}, {WS_KX:#x}')
    A(f's_add_u32 s{S_VX}, s{S_TMP}, {WS_VX:#x}')
    A(f's_lshl_b32 s{S_TMP}, s{S_H}, 12')
    A(f's_lshl_b32 s{S_TMP + 1}, s{S_WV}, 10')
    A(f's_add_u32 s{S_TMP}, s{S_TMP}, s{S_TMP + 1}')
    A(f's_sub_u32 s{S_TMP}, s{S_TMP}, s{S_TMP2}')
    A(f's_add_u32 s{S_KM}, s{S_TMP}, {WS_KM:#x}')
    A(f's_mul_i32 s{S_TMP}, s{S_T}, {WS_KM - WS_VM:#x}')
    A(f's_sub_u32 s{S_KM}, s{S_KM}, s{S_TMP}')
    A(f's_sub_u32 s{S_TMASK}, 0, s{S_T}')
    A(f's_mov_b32 s{S_TMASK + 1}, s{S_TMASK}')

    lskip = A.newlabel('L_ann'); lnc = A.newlabel('L_nocal')
    A(f's_cmp_lg_u32 s{S_WV}, 0')
    A.branch(f's_cbranch_scc1 {lskip}')
    A(f's_mov_b32 s{S_ST + 6}, 0')
    A(f's_or_b32 s{S_TMP}, s{S_T}, s{S_H}')
    A(f's_cmp_lg_u32 s{S_TMP}, 0' if not mega else 's_cmp_lg_u32 1, 0')
    A.branch(f's_cbranch_scc1 {lnc}')
    A(f'v_mov_b32 v{T0}, {WS_MEMR:#x}')
    A(f'v_mov_b32 v{T1}, {WS_MEMR + 8192:#x}')
    A('s_mov_b64 exec, 1')
    A(f's_mov_b32 s{S_ST + 8}, -1')
    A(f's_mov_b32 s{S_ST + 9}, -1')
    for rep in range(3):
        for c in range(2):
            A(f's_memtime s[{S_ST}:{S_ST + 1}]')
            A('s_waitcnt lgkmcnt(0)')
            A(f'buffer_store_dword v{T0}, v{(T0, T1)[c]}, s[{S_WS}:{S_WS + 3}], 0 offen sc1')
            A.wait_vm0()
            A(f's_memtime s[{S_ST + 2}:{S_ST + 3}]')
            A('s_waitcnt lgkmcnt(0)')
            A(f's_sub_u32 s{S_ST + 4}, s{S_ST + 2}, s{S_ST}')
            A(f's_min_u32 s{S_ST + 8 + c}, s{S_ST + 8 + c}, s{S_ST + 4}')
    A('s_mov_b64 exec, -1')
    A(f's_cmp_lt_u32 s{S_ST + 9}, s{S_ST + 8}')
    A(f's_cselect_b32 s{S_ST + 6}, 0x40000000, 0')
    A.label(lnc)
    A(f's_getreg_b32 s{S_TMP}, hwreg(HW_REG_XCC_ID)')
    A(f's_and_b32 s{S_TMP}, s{S_TMP}, 15')
    A(f's_mul_i32 s{S_TMP + 1}, s{S_TMP}, s{S_TMP}')
    A(f's_lshl_b32 s{S_TMP + 1}, s{S_TMP + 1}, 16')
    A(f's_lshl_b32 s{S_TMP}, s{S_TMP}, 6')
    A(f's_add_u32 s{S_TMP}, s{S_TMP}, s{S_TMP + 1}')
    A(f's_add_u32 s{S_TMP}, s{S_TMP}, 1')
    A(f's_add_u32 s{S_TMP}, s{S_TMP}, s{S_ST + 6}')
    A(f'v_mov_b32 v{T0}, s{S_TMP}')
    A(f's_lshl_b32 s{S_TMP + 1}, s{S_T}, 2')
    A('s_mov_b64 exec, 1')
    A(f'buffer_atomic_add v{T0}, off, s[{S_DBG}:{S_DBG + 3}], s{S_TMP + 1} offset:128 sc1')
    A('s_mov_b64 exec, -1')
    A.flush_hazards()
    A.label(lskip)

    VSRC, VB, VBO = 24, 25, 26
    VOS = 27
    TB = 32
    VS4, VB4 = 12, 16
    for n in range(4):
        A(f'v_and_b32 v{T0}, 1, v{G}')
        A(f'v_or_b32 v{T0}, {2 * n}, v{T0}')
        A(f'v_lshlrev_b32 v{T0}, 1, v{T0}')
        A(f'v_and_b32 v{T1}, 15, v{L}')
        A(f'v_xor_b32 v{T0}, v{T0}, v{T1}')
        A(f'v_lshlrev_b32 v{T0}, 4, v{T0}')
        A(f'v_lshl_add_u32 v{VS4 + n}, v{G}, 13, v{T0}')
    A(f'v_and_b32 v{T0}, 1, v{R_}')
    A(f'v_and_b32 v{T1}, 1, v{G}')
    A(f'v_lshl_add_u32 v{VSRC}, v{T1}, 1, v{T0}')
    A(f'v_lshl_add_u32 v{T0}, v{T1}, 2, v{T0}')
    A(f'v_lshrrev_b32 v{T1}, 1, v{R_}')
    A(f'v_lshl_add_u32 v{VSRC}, v{T1}, 2, v{VSRC}')
    A(f'v_lshl_add_u32 v{T0}, v{T1}, 3, v{T0}')
    A(f'v_lshlrev_b32 v{T0}, 8, v{T0}')
    A(f'v_lshrrev_b32 v{T1}, 1, v{G}')
    A(f'v_mul_u32_u24 v{T1}, {VREG}, v{T1}')
    A(f'v_add_u32 v{T0}, v{T0}, v{T1}')
    A(f'v_and_b32 v{T1}, 1, v{C_}')
    A(f'v_lshl_add_u32 v{T0}, v{T1}, 3, v{T0}')
    A(f'v_lshlrev_b32 v{VSRC}, 1, v{VSRC}')
    A(f'v_lshrrev_b32 v{T1}, 1, v{C_}')
    A(f's_lshl_b32 s{S_TMP}, s{S_WV}, 2')
    A(f'v_or_b32 v{T1}, s{S_TMP}, v{T1}')
    A(f'v_xor_b32 v{T1}, v{T1}, v{VSRC}')
    A(f'v_lshl_add_u32 v{VB4}, v{T1}, 4, v{T0}')
    A(f'v_xor_b32 v{VB4 + 1}, 32, v{VB4}')
    A(f'v_add_u32 v{VB4 + 2}, {2 * VREG}, v{VB4}')
    A(f'v_add_u32 v{VB4 + 3}, {2 * VREG}, v{VB4 + 1}')
    A(f'v_lshrrev_b32 v{T0}, 1, v{G}')
    A(f'v_lshlrev_b32 v{T0}, 4, v{T0}')
    A(f'v_and_b32 v{T1}, 1, v{G}')
    A(f'v_lshl_add_u32 v{T0}, v{T1}, 2, v{T0}')
    A(f'v_lshrrev_b32 v{T1}, 1, v{R_}')
    A(f'v_lshl_add_u32 v{T0}, v{T1}, 3, v{T0}')
    A(f'v_and_b32 v{T1}, 1, v{R_}')
    A(f'v_add_u32 v{T0}, v{T1}, v{T0}')
    A(f'v_lshlrev_b32 v{T1}, 6, v{T0}')
    A(f'v_lshl_add_u32 v{T1}, v{C_}, 3, v{T1}')
    A(f'v_add_u32 v{VB}, s{S_TMP2}, v{T1}')
    A(f'v_mul_u32_u24 v{T0}, 160, v{T0}')
    A(f'v_lshl_add_u32 v{T0}, v{C_}, 3, v{T0}')
    A(f'v_add_u32 v{VBO}, s{S_TMP2}, v{T0}')
    for n in range(5):
        A(f'v_add_u32 v{T0}, {64 * n}, v{L}')
        A(f'v_mul_u32_u24 v{T1}, 6554, v{T0}')
        A(f'v_lshrrev_b32 v{T1}, 16, v{T1}')
        A(f'v_mul_u32_u24 v{VOS + n}, 10, v{T1}')
        A(f'v_sub_u32 v{T0}, v{T0}, v{VOS + n}')
        A(f'v_mul_u32_u24 v{T1}, 1280, v{T1}')
        A(f'v_lshl_add_u32 v{VOS + n}, v{T0}, 4, v{T1}')

    S_CB, S_R0 = S_ST + 10, S_ST + 11
    S_SO = S_ST + 12
    S_PQ, S_PK, S_PV, S_PO = S_ST + 14, S_ST + 16, S_ST + 18, S_ST + 20
    A(f's_load_dwordx2 s[{S_PQ}:{S_PQ + 1}], s[0:1], {KA_WQ}')
    A(f's_load_dwordx2 s[{S_PK}:{S_PK + 1}], s[0:1], {KA_WK}')
    A(f's_load_dwordx2 s[{S_PV}:{S_PV + 1}], s[0:1], {KA_WV}')
    A(f's_load_dwordx2 s[{S_PO}:{S_PO + 1}], s[0:1], {KA_WO}')
    A(f's_lshl_b32 s{S_CB}, s{S_H}, 8')
    A(f's_lshl_b32 s{S_TMP}, s{S_WV}, 17')
    A(f's_add_u32 s{S_CB}, s{S_CB}, s{S_TMP}')
    A('s_waitcnt lgkmcnt(0)')
    WBYTES = 640 * 8192
    cur = [None]

    def use(ptr):
        if cur[0] != ptr:
            A.srd(S_W, ptr, ptr + 1, WBYTES)
            cur[0] = ptr

    def dma_slot(ptr, sig, pos):
        use(ptr)
        A(f's_cmp_eq_u32 s{S_T}, 0')
        A(f's_cselect_b32 s{S_SO}, {sig}, {(sig + 5) % 10}')
        A(f's_lshl_b32 s{S_SO}, s{S_SO}, 19')
        A(f's_add_u32 s{S_SO}, s{S_SO}, s{S_CB}')
        tok = None
        for n in range(4):
            A(f's_add_u32 m0, s{S_TMP2}, {pos * 4096 + n * 1024}')
            tok = A(f'buffer_load_dwordx4 v{VS4 + n}, s[{S_W}:{S_W + 3}], s{S_SO} offen lds')
            if n < 3:
                A(f's_add_u32 s{S_SO}, s{S_SO}, {4 * 8192}')
        return tok

    def read_slot(tok, pos, dests):
        A.wait(tok)
        A('s_barrier')
        for tau in range(2):
            for u in range(4):
                off = pos * 4096 + 2 * (u & 1) * 256
                A(f'ds_read_b64_tr_b16 {wr(dests[tau] + 2 * u, 2)}, v{VB4 + 2 * (u >> 1) + tau} offset:{off}')
        A.wait_lg0()
        A('s_barrier')

    WOS = 0

    def dma_wo():
        use(S_PO)
        A(f's_mul_i32 s{S_SO}, s{S_H}, 163840')
        A(f's_mul_i32 s{S_TMP}, s{S_T}, 640')
        A(f's_add_u32 s{S_SO}, s{S_SO}, s{S_TMP}')
        A(f's_mul_i32 s{S_TMP}, s{S_WV}, 160')
        A(f's_add_u32 s{S_SO}, s{S_SO}, s{S_TMP}')
        tok = []
        for blk in range(4):
            for n in range(5):
                A(f's_add_u32 m0, s{S_TMP2}, {WOS + (blk * 5 + n) * 1024}')
                t = A(f'buffer_load_dwordx4 v{VOS + n}, s[{S_W}:{S_W + 3}], s{S_SO} offen lds')
            tok.append(t)
            if blk < 3:
                A(f's_add_u32 s{S_SO}, s{S_SO}, {32 * 1280}')
        return tok

    def put_block(reg, blk):
        for hf in range(2):
            A(f'ds_write_b128 v{V_L16}, v[{reg + 4 * hf}:{reg + 4 * hf + 3}] offset:{blk * 2048 + hf * 1024}')

    park = {b: TB + 8 * (BLK_OF[b] - 10) for b in LDS_BLOCKS[10:]}

    def dest_of(b):
        return REG_OF[b] if b in REG_OF else park[b]

    A(f's_load_dwordx2 s[{S_SO}:{S_SO + 1}], s[0:1], {KA_MEM0}')
    A('s_waitcnt lgkmcnt(0)')
    A.srd(S_W, S_SO, S_SO + 1, 8 * 1280)
    m0t = []
    for j in range(3):
        A(f'v_add_u32 v{T0}, {64 * j}, v{L}')
        A(f'v_min_u32 v{T0}, 159, v{T0}')
        A(f's_mul_i32 s{S_TMP}, s{S_WV}, 160')
        A(f'v_add_u32 v{T0}, s{S_TMP}, v{T0}')
        A(f'v_lshrrev_b32 v{T1}, 3, v{T0}')
        A(f's_mul_i32 s{S_TMP + 1}, s{S_T}, 40')
        A(f'v_add_u32 v{T1}, s{S_TMP + 1}, v{T1}')
        A(f'v_subrev_u32 v25, 80, v{T1}')
        A(f'v_min_u32 v{T1}, v{T1}, v25')
        A(f'v_lshlrev_b32 v{T1}, 4, v{T1}')
        A(f'v_and_b32 v25, 7, v{T0}')
        A(f'v_mul_u32_u24 v25, 1280, v25')
        A(f'v_add_u32 v{T1}, v{T1}, v25')
        A(f'v_lshlrev_b32 v{T0}, 4, v{T0}')
        A(f'v_add_u32 v{72 + j}, {MEMB}, v{T0}')
        m0t.append(A(f'buffer_load_dwordx4 v[{76 + 4 * j}:{79 + 4 * j}], v{T1}, s[{S_W}:{S_W + 3}], 0 offen'))

    ptrs = {'q': S_PQ, 'k': S_PK, 'v': S_PV}
    stream = [('q', x) for x in range(10)] + [('k', x) for x in range(10)] + [('v', x) for x in range(5, 10)]
    tk = {}
    for i in range(8):
        tk[i] = dma_slot(ptrs[stream[i][0]], stream[i][1], i % 8)
    A.wait(m0t[-1])
    for j in range(3):
        A(f'ds_write_b128 v{72 + j}, v[{76 + 4 * j}:{79 + 4 * j}]')
    pos_of = {i: i % 8 for i in range(24)}
    pos_of[24] = 5
    tko = None
    for i in range(25):
        m, sig = stream[i]
        read_slot(tk[i], pos_of[i], [dest_of((m, sig, 0)), dest_of((m, sig, 1))])
        A.wait_lg0()
        if i + 8 < 24:
            tk[i + 8] = dma_slot(ptrs[stream[i + 8][0]], stream[i + 8][1], i % 8)
        if i == 20:
            tko = dma_wo()
        if i == 21:
            tk[24] = dma_slot(S_PV, stream[24][1], 5)
    for k2 in range(2):
        A.wait(tko[2 * k2 + 1])
        for tau in range(5):
            d = dest_of(('o', k2, tau))
            for u in range(4):
                off = WOS + (64 * k2 + 32 * (u >> 1) + 2 * (u & 1)) * 160 + tau * 32
                A(f'ds_read_b64_tr_b16 {wr(d + 2 * u, 2)}, v{VBO} offset:{off}')
    A.wait_lg0()
    tv = {sig: dma_slot(S_PV, sig, sig) for sig in range(5)}
    for b in LDS_BLOCKS[10:]:
        put_block(park[b], BLK_OF[b])
    A.wait_lg0()
    for sig in range(5):
        read_slot(tv[sig], sig, [TB, TB + 8])
        A.wait_lg0()
        put_block(TB, 2 * sig); put_block(TB + 8, 2 * sig + 1)
        A.wait_lg0()

    if coarse:
        A('s_memrealtime s[82:83]')
        A('s_waitcnt lgkmcnt(0)')
        A('s_mov_b32 s85, s82')
    rebuild()
    lp = A.newlabel('L_mode')
    ld = A.newlabel('L_mode_done')
    A(f'v_lshlrev_b32 v{T0}, 2, v{L}')
    A.flush_hazards()
    A.label(lp)
    A(f'buffer_load_dword v24, v{T0}, s[{S_DBG}:{S_DBG + 3}], 0 offen sc1')
    A.wait_vm0()
    A(f'v_readlane_b32 s{S_ST}, v24, 32')
    A(f'v_readlane_b32 s{S_ST + 1}, v24, 33')
    A(f's_and_b32 s{S_TMP}, s{S_ST}, s{S_ST + 1}')
    A(f's_bfe_u32 s{S_TMP}, s{S_TMP}, 0x10005')
    if mega:
        A(f'v_readlane_b32 s{S_TMP + 1}, v24, 7')
        A(f's_lshr_b32 s{S_TMP + 1}, s{S_TMP + 1}, 7')
        A(f's_and_b32 s{S_TMP}, s{S_TMP}, s{S_TMP + 1}')
        A(f'v_readlane_b32 s{S_TMP + 1}, v24, 40')
        A(f's_lshr_b32 s{S_TMP + 1}, s{S_TMP + 1}, 6')
        A(f's_and_b32 s{S_TMP}, s{S_TMP}, s{S_TMP + 1}')
    A(f's_cmp_eq_u32 s{S_TMP}, 1')
    A.branch(f's_cbranch_scc1 {ld}')
    A('s_sleep 4')
    A(f's_add_u32 s{S_SPIN}, s{S_SPIN}, 1')
    A(f's_cmp_lt_u32 s{S_SPIN}, {SPIN_LIMIT}')
    A.branch(f's_cbranch_scc1 {lp}')
    A.branch(f's_branch {abort_label}')
    A.label(ld)
    A(f's_mov_b32 s{S_FAST}, {0 if force_safe else 1}')
    for t_ in range(2):
        A(f's_bfe_u32 s{S_TMP}, s{S_ST + t_}, 0xa0006')
        A(f's_mul_i32 s{S_TMP}, s{S_TMP}, s{S_TMP}')
        A(f's_bfe_u32 s{S_TMP + 1}, s{S_ST + t_}, 0xe0010')
        A(f's_lshl_b32 s{S_TMP + 1}, s{S_TMP + 1}, 5')
        A(f's_cmp_eq_u32 s{S_TMP}, s{S_TMP + 1}')
        A(f's_cselect_b32 s{S_FAST}, s{S_FAST}, 0')
    A(f's_bfe_u32 s{S_TMP}, s{S_ST}, 0x1001e')
    A(f's_lshl_b32 s{S_TMP}, s{S_TMP}, 13')
    A(f's_add_u32 s{S_PREM}, s{S_PREM}, s{S_TMP}')
    A(f's_add_u32 s{S_PUBR}, s{S_PUBR}, s{S_TMP}')
    if mega:
        for i_ in range(4):
            A(f'v_readlane_b32 s{S_ST + i_}, v24, {36 + i_}')
        A(f's_cmp_eq_u32 s{S_T}, 0')
        A(f's_cselect_b64 s[{S_TABW}:{S_TABW + 1}], s[{S_ST}:{S_ST + 1}], s[{S_ST + 2}:{S_ST + 3}]')
        A(f's_cselect_b64 s[{S_TABR}:{S_TABR + 1}], s[{S_ST + 2}:{S_ST + 3}], s[{S_ST}:{S_ST + 1}]')
    else:
        A(f's_mov_b64 s[{S_TABW}:{S_TABW + 1}], 0')
        A(f's_mov_b64 s[{S_TABR}:{S_TABR + 1}], 0')
    A(f's_mov_b32 s{S_PREM0}, s{S_PREM}')
    A(f's_mov_b32 s{S_PUBR0}, s{S_PUBR}')

    def next_pages():
        A(f's_lshr_b64 s[{S_TABW}:{S_TABW + 1}], s[{S_TABW}:{S_TABW + 1}], 1')
        A(f's_lshr_b64 s[{S_TABR}:{S_TABR + 1}], s[{S_TABR}:{S_TABR + 1}], 1')
        A(f's_add_u32 s{S_PREM0}, s{S_PREM0}, 32768')
        A(f's_and_b32 s{S_TMP}, s{S_TABR}, 1')
        A(f's_lshl_b32 s{S_TMP}, s{S_TMP}, 13')
        A(f's_add_u32 s{S_PREM}, s{S_PREM0}, s{S_TMP}')
        A(f's_and_b32 s{S_TMP}, s{S_TABW}, 1')
        A(f's_lshl_b32 s{S_TMP}, s{S_TMP}, 13')
        A(f's_add_u32 s{S_PUBR}, s{S_PUBR0}, s{S_TMP}')
        A(f's_add_u32 s{S_PUBR0}, s{S_PUBR0}, 32768')

    WS = f's[{S_WS}:{S_WS + 3}]'

    def issue_kx_vx():
        A(f's_lshl_b32 s{S_TMP}, s{S_WV}, 11')
        A(f's_add_u32 m0, s{S_TMP}, {KXB}')
        for n in range(2):
            A(f'buffer_load_dwordx4 v{V_L16}, {WS}, s{S_KX} offen offset:{n * 1024} sc1 lds')
        if 'nokvt' not in dbg:
            A(f's_add_u32 s{S_KX}, s{S_KX}, {32 * 8192}')

    deferred = []

    def kv_wait(need_plus):
        if not mega:
            return
        lp = A.newlabel('L_kv'); ls = A.newlabel('L_kvs')
        A.label(lp)
        A(f's_add_u32 s{S_TMP}, s{S_STEP}, {need_plus}')
        A(f's_cmp_ge_u32 s{S_TMP}, s{S_RDY}')
        A(f's_cbranch_scc1 {ls}')

        def slow():
            A.label(ls)
            A(f'v_lshlrev_b32 v{T0}, 9, v{L}')
            A(f'buffer_load_dwordx2 v[{T1}:{T0}], v{T0}, {WS}, s{S_FKV} offen sc1')
            A('s_waitcnt vmcnt(0)')
            A(f'v_and_b32 v{T1}, v{T1}, v{T0}')
            A(f'v_cmp_eq_u32 vcc, 1, v{T1}')
            A(f's_ff0_i32_b64 s{S_RDY}, vcc')
            A(f's_min_u32 s{S_RDY}, s{S_RDY}, 65')
            A(f's_add_u32 s{S_SPIN}, s{S_SPIN}, 1')
            A(f's_cmp_lt_u32 s{S_SPIN}, {SPIN_LIMIT}')
            A(f's_cbranch_scc1 {lp}')
            A(f's_branch {abort_label}')
        deferred.append(slow)

    def m_flag(tmp=None):
        if not mega or 'noflag' in dbg:
            return
        le = A.newlabel('L_mf')
        A(f's_cmp_lg_u32 s{S_WV}, 3')
        A(f's_cbranch_scc1 {le}')
        A(f'v_mov_b32 v{tmp or T0}, 1')
        A('s_mov_b64 exec, 1')
        A(f'buffer_store_dword v{tmp or T0}, off, {WS}, s{S_FL} sc1')
        A('s_mov_b64 exec, -1')
        A.label(le)
        A(f's_add_u32 s{S_FL}, s{S_FL}, 1024')

    if mega:
        A(f's_lshl_b32 s{S_TMP}, s{S_H}, 4')
        A(f's_add_u32 s{S_FKV}, s{S_TMP}, {F_P:#x}')
        A(f's_mov_b32 s{S_RDY}, 0')
        A(f's_lshl_b32 s{S_TMP}, s{S_H}, 5')
        A(f's_lshl_b32 s{S_TMP + 1}, s{S_T}, 2')
        A(f's_add_u32 s{S_FL}, s{S_TMP}, s{S_TMP + 1}')
        A(f's_add_u32 s{S_FL}, s{S_FL}, {F_M - 1024:#x}')
    A(f's_mov_b32 s{S_STEP}, 0')

    def touch_prep():
        A(f's_add_u32 s{S_TA}, s{S_PLOC}, {MEMB + 10240}')
        A(f's_bfe_u32 s{S_TMP}, s{S_TABR}, 0x10001')
        A(f's_lshl_b32 s{S_TMP}, s{S_TMP}, 13')
        A(f's_add_u32 s{S_TMP}, s{S_TMP}, s{S_PREM0}')
        A(f's_add_u32 s{S_TMP}, s{S_TMP}, {MEMB + 32768}')
        A(f's_cmp_eq_u32 s{S_WV}, 1')
        A(f's_cselect_b32 s{S_TA}, s{S_TMP}, s{S_TA}')
        A(f's_add_u32 s{S_TMP}, s{S_KX}, {2 * VREG - 2 * 2048}')
        A(f's_cmp_eq_u32 s{S_WV}, 2')
        A(f's_cselect_b32 s{S_TA}, s{S_TMP}, s{S_TA}')
        A(f's_add_u32 s{S_TMP}, s{S_KX}, {3 * VREG - 3 * 2048 + WS_VX - WS_KX:#x}')
        A(f's_cmp_eq_u32 s{S_WV}, 3')
        A(f's_cselect_b32 s{S_TA}, s{S_TMP}, s{S_TA}')
        A(f's_cmp_lt_u32 s{S_WV}, 2')
        A(f's_cselect_b32 s{S_TMP}, 39, 63')
        A(f'v_min_u32 v{V_T2}, s{S_TMP}, v{L}')
        A(f'v_lshlrev_b32 v{V_T2}, 7, v{V_T2}')

    def touch():
        A(f'buffer_load_dword v{V_T2}, v{V_T2}, {WS}, s{S_TA} offen sc1')

    def kv_refresh(after):
        if not mega:
            return
        le = A.newlabel('L_kr')
        A(f's_add_u32 s{S_TMP}, s{S_STEP}, 6')
        A(f's_min_u32 s{S_TMP}, s{S_TMP}, 65')
        A(f's_cmp_ge_u32 s{S_RDY}, s{S_TMP}')
        A(f's_cbranch_scc1 {le}')
        A(f'v_lshlrev_b32 v{T0}, 9, v{L}')
        A(f'buffer_load_dwordx2 v[{T1}:{T0}], v{T0}, {WS}, s{S_FKV} offen sc1')
        A('s_waitcnt vmcnt(0)')
        A(f'v_and_b32 v{T1}, v{T1}, v{T0}')
        A(f'v_cmp_eq_u32 vcc, 1, v{T1}')
        A(f's_ff0_i32_b64 s{S_RDY}, vcc')
        A(f's_min_u32 s{S_RDY}, s{S_RDY}, 65')
        A(f's_branch {after}')
        A.label(le)

    kv_wait(0)
    if mega:
        assert kxlate
        A(f's_cmp_eq_u32 s{S_WV}, 2')
        A(f's_cselect_b32 s{S_RDY}, s{S_RDY}, 65')
    issue_kx_vx()
    touch_prep()
    A(f's_mov_b32 s{S_STEP}, 0')
    A.wait_all()
    if stamps:
        A(f's_lshl_b32 s{S_TMP}, s{S_H}, 3')
        A(f's_lshl_b32 s{S_TMP + 1}, s{S_T}, 2')
        A(f's_add_u32 s{S_TMP}, s{S_TMP}, s{S_TMP + 1}')
        A(f's_add_u32 s{S_TMP}, s{S_TMP}, s{S_WV}')
        A(f's_mul_i32 s{S_STO}, s{S_TMP}, {64 * 64}')
        A(f's_add_u32 s{S_STO}, s{S_STO}, {WS_STAMP:#x}')
    if coarse:
        A('s_memrealtime s[88:89]')
        A('s_memtime s[90:91]')
        A('s_waitcnt lgkmcnt(0)')
    top = A.newlabel('L_step')
    done = A.newlabel('L_rec_done')
    A.flush_hazards()
    if align is not None:
        A.raw('.p2align 6')
        for _ in range(align):
            A('s_nop 0')
    A.label(top)
    A.forget()

    def fifth(base):
        return 15 if base == 16 else base + 4

    def poll_issue(soff, base):
        A(f'buffer_load_dwordx4 v[{base}:{base + 3}], v{V_P4}, {WS}, s{soff} offen sc1')
        A(f'buffer_load_dword v{fifth(base)}, v{V_P1}, {WS}, s{soff} offen sc1')

    def poll_loop(soff, bases, half, preissued, gap=0):
        k = len(bases)
        lp = A.newlabel('L_poll'); ld = A.newlabel('L_polld')
        if not preissued:
            for j, b in enumerate(bases):
                poll_issue(soff, b)
                if gap and j < k - 1:
                    A(f's_nop {gap}')
        A.label(lp)
        wins = []
        for j, base in enumerate(bases):
            A(f's_waitcnt vmcnt({2 * (k - 1)})')
            A(f'v_max3_u32 v{T0}, v{base}, v{base + 1}, v{base + 2}')
            A(f'v_max3_u32 v{T0}, v{T0}, v{base + 3}, v{fifth(base)}')
            A(f'v_cmp_eq_u32 vcc, -1, v{T0}')
            lw = A.newlabel('L_pollw'); wins.append(lw)
            A(f's_cbranch_vccz {lw}')
            poll_issue(soff, base)
        A(f's_add_u32 s{S_SPIN}, s{S_SPIN}, 1')
        A(f's_cmp_lt_u32 s{S_SPIN}, {SPIN_LIMIT}')
        A(f's_cbranch_scc1 {lp}')
        A(f's_branch {abort_label}')
        for j, base in enumerate(bases):
            A.label(wins[j])
            A(f'ds_write_b128 v{V_P4}, v[{base}:{base + 3}] offset:{half * 5120}')
            A(f'ds_write_b32 v{V_P1}, v{fifth(base)} offset:{half * 5120}')
            if j < k - 1:
                A(f's_branch {ld}')
        A.label(ld)

    def a_read(sig, slot):
        return A(f'ds_read_b128 v[{AR + 4 * slot}:{AR + 4 * slot + 3}], v{V_KX} offset:{sig * 1024}')

    def smf(d, a, b):
        A(f'v_smfmac_f32_16x16x64_bf16 v[{d}:{d + 3}], v[{a}:{a + 3}], {wr(b, 8)}, v{V_IDX}')

    def SL(i):
        return 20 + 4 * i

    def blk_load(blk, b):
        A(f'ds_read_b128 v[{b}:{b + 3}], v{V_L16} offset:{blk * 2048}')
        return A(f'ds_read_b128 v[{b + 4}:{b + 7}], v{V_L16} offset:{blk * 2048 + 1024}')

    def zero(base, n):
        for r in range(base, base + n, 2):
            A(f'v_mov_b64 v[{r}:{r + 1}], 0')

    def poll_check(base, lwin):
        A(f'v_max3_u32 v{T0}, v{base}, v{base + 1}, v{base + 2}')
        A(f'v_max3_u32 v{T0}, v{T0}, v{base + 3}, v{fifth(base)}')
        A(f'v_cmp_eq_u32 vcc, -1, v{T0}')
        A(f's_cbranch_vccz {lwin}')

    def poll_put(base, half):
        A(f'ds_write_b128 v{V_P4}, v[{base}:{base + 3}] offset:{half * 5120}')
        A(f'ds_write_b32 v{V_P1}, v{fifth(base)} offset:{half * 5120}')

    stamp(0)
    zero(Q0, 24)
    lseq = [(m, sig, tau) for sig in range(5) for (m, tau) in (('v', 0), ('q', 0), ('k', 1), ('q', 1), ('v', 1), ('k', 0))]
    lfed = [b for b in lseq if b in BLK_OF]
    LR = [64, 72, 56]
    wt = {}; wreg_ = {}
    nl = [0]
    pend = []

    def half(blk, reg, hf):
        return A(f'ds_read_b128 v[{reg + 4 * hf}:{reg + 4 * hf + 3}], v{V_L16} offset:{blk * 2048 + hf * 1024}')

    def flush_pend():
        while pend:
            tab, b, reg = pend.pop(0)
            tab[b] = half(BLK_OF[b], reg, 1)

    def lnext(reg, now=False):
        if nl[0] < len(lfed):
            if reg == LR[2] and nl[0] >= len(lfed) - 3:
                return
            b = lfed[nl[0]]; nl[0] += 1
            half(BLK_OF[b], reg, 0); wreg_[b] = reg
            pend.append((wt, b, reg))
            if now:
                flush_pend()

    for r_ in LR:
        lnext(r_, True)
    l_s0a = A.newlabel('L_s0a')
    A(f's_cmp_eq_u32 s{S_STEP}, 0' if cut is None else 's_cmp_eq_u32 0, 0')
    A(f's_cbranch_scc1 {l_s0a}')
    poll_loop(S_PLOC, [16, VXR], 0, False, gap=bgap)
    A.label(l_s0a)
    if rp[0] < 0:
        poll_issue(S_PREM, 80)
    A.wait_lg0()
    A('s_barrier')
    stamp(1)
    at = {}

    ACC = {'q': Q0, 'k': K0, 'v': VV0}

    def local_slot(sig, extra=(), lo=0, hi=6):
        a = AR + 4 * (sig % 3)
        extra = list(extra)
        first = lseq[6 * sig + lo]
        A.wait(at[sig], wt.get(first))
        for b in lseq[6 * sig + lo:6 * sig + hi]:
            m, _, tau = b
            if extra and b != first:
                extra.pop(0)()
            if b in BLK_OF:
                A.wait(wt[b])
                smf(ACC[m] + 4 * tau, a, wreg_[b])
                flush_pend()
                lnext(wreg_[b])
            else:
                smf(ACC[m] + 4 * tau, a, REG_OF[b])
                flush_pend()
        for f_ in extra:
            f_()
        if sig + 3 < 5:
            at[sig + 3] = a_read(sig + 3, sig % 3)

    RS = [80, 16]
    for j in range(3):
        at[j] = a_read(j, j)
    for sig in range(4):
        if sig == rp[0]:
            poll_issue(S_PREM, RS[0])
        if sig == rp[1]:
            poll_issue(S_PREM, RS[1])
        local_slot(sig)
        if sig == 2 and early:
            hs_ = [h_ for h_ in A.hist if h_.kind in ('mfma', 'valu')]
            lne = A.newlabel('L_ne')
            A(f's_mov_b32 s{S_EARLY}, s{S_STEP}')
            A('s_waitcnt vmcnt(2)')
            base = RS[0]
            A(f'v_max3_u32 v{T0}, v{base}, v{base + 1}, v{base + 2}')
            A(f'v_max3_u32 v{T0}, v{T0}, v{base + 3}, v{fifth(base)}')
            A(f'v_cmp_eq_u32 vcc, -1, v{T0}')
            lre = A.newlabel('L_re')
            A(f's_cbranch_vccnz {lre}')
            A(f's_cmp_eq_u32 s{S_STEP}, 0')
            A(f's_cbranch_scc1 {lne}')
            li, ld_ = A.lg_issued, A.lg_done
            poll_put(base, 1)
            A.lg_issued, A.lg_done = li, ld_
            A(f's_mov_b32 s{S_EARLY}, 0')
            A.label(lne)

            def reissue(lre=lre, lne=lne, base=base):
                A.label(lre)
                poll_issue(S_PREM, base)
                A(f's_branch {lne}')
            deferred.append(reissue)
            A.hist = hs_
    if s4:
        local_slot(4, hi=s4)
    stamp(2)
    rslot = [0, 2, 3, 4, 1]
    l_s0 = A.newlabel('L_rs0')
    A(f's_cmp_eq_u32 s{S_EARLY if early else S_STEP}, 0' if cut is None else 's_cmp_eq_u32 0, 0')
    A(f's_cbranch_scc1 {l_s0}')
    hs_ = [h_ for h_ in A.hist if h_.kind in ('mfma', 'valu')]
    for b_ in RS[2:]:
        poll_issue(S_PREM, b_)
    poll_loop(S_PREM, RS[::-1] if early else RS, 1, True)
    A.label(l_s0)
    A.hist = hs_
    A.wait_lg0()
    A('s_barrier')
    def ar_(j):
        def f():
            at[5 + j] = a_read(5 + j, rslot[j])
        return f
    ar_(0)()
    local_slot(4, [ar_(1), ar_(2), ar_(3),
                   lambda: A(f'buffer_load_dwordx4 v[{VX0}:{VX0 + 3}], v{V_L16}, {WS}, s{S_VX} offen sc1'),
                   lambda: A(f'buffer_load_dwordx4 v[{VX1}:{VX1 + 3}], v{V_L16}, {WS}, s{S_VX} offen offset:1024 sc1')], lo=s4)
    assert nl[0] == len(lfed) and not pend
    at[9] = a_read(9, rslot[4])
    stamp(3)
    RA = [AR + 4 * rslot[j] for j in range(5)]

    def halfsum_ops(x, y, off):
        ops = []
        for r in range(4):
            ops.append(f'v_permlane32_swap_b32 v{x + r}, v{y + r}')
        for r in range(0, 4, 2):
            ops.append(f'v_pk_add_f32 v[{x + r}:{x + r + 1}], v[{x + r}:{x + r + 1}], v[{y + r}:{y + r + 1}]')
        ops.append(f'v_cvt_pk_bf16_f32 v{y}, v{x}, v{x + 1}')
        ops.append(f'v_cvt_pk_bf16_f32 v{y + 1}, v{x + 2}, v{x + 3}')
        if off is not None:
            ops.append(f'ds_write_b64 v{V_QKW}, v[{y}:{y + 1}] offset:{off}')
        return ops

    VM, VMA, VMB = VV1, VV0, VV0 + 2
    def pub_read(tmp):
        t = None
        A(f'v_add_u32 v{tmp + 3}, s{S_W512}, v{V_QKR}')
        for rho in range(2):
            t = A(f'ds_read_b64_tr_b16 v[{tmp + 2 * rho}:{tmp + 2 * rho + 1}], v{tmp + 3} offset:{2048 + rho * 256}')
        return t

    def pub_sel(tmp):
        return [f'v_cndmask_b32 v{tmp + r}, v{tmp + r}, v{VM + r}, s[{S_TMASK}:{S_TMASK + 1}]' for r in range(2)]

    def pub_store(tmp):
        if 'nopub' not in dbg:
            A(f'buffer_store_dwordx4 v[{tmp}:{tmp + 3}], v{V_L16}, {WS}, s{S_KM} offen sc1' + (' nt' if 'pubnt' in dbg else ''))

    QFR = [SL(0), SL(1), SL(11), SL(12)]
    S0, S1 = SL(15), SL(16)
    qt = {}; xt = {}; xreg = {}; last = [None]

    def xread(i, b):
        kap, kt_ = i >> 1, i & 1
        xt[i] = A(f'ds_read_b128 v[{b}:{b + 3}], v{V_KX} offset:{KXB - MEMB + (kt_ * 4 + kap) * 1024}')
        xreg[i] = b

    def trread(b, off):
        t = None
        for rho in range(2):
            t = A(f'ds_read_b64_tr_b16 v[{b + 2 * rho}:{b + 2 * rho + 1}], v{V_QKR} offset:{off + rho * 256}')
        return t

    def take(fl, n):
        for _ in range(n):
            if fl:
                t = A(fl.pop(0))
                if t:
                    last[0] = t

    kfed = [b for b in LDS_BLOCKS if b[0] == 'k' and b[1] >= 5]
    kft = {}; kfr = {}

    def kf_load(reg):
        if kfed:
            b = kfed.pop(0)
            half(BLK_OF[b], reg, 0); kfr[b] = reg
            pend.append((kft, b, reg))

    def ksm(i):
        b = ('k', 5 + (i >> 1), i & 1)
        if b in BLK_OF:
            A.wait(kft[b])
            smf(K0 + 4 * (i & 1), RA[i >> 1], kfr[b])
            flush_pend()
            kf_load(kfr[b])
        else:
            smf(K0 + 4 * (i & 1), RA[i >> 1], REG_OF[b])
            flush_pend()

    def vsm(n):
        smf(VV0 + 4 * (n & 1), RA[(n - 10) // 2], REG_OF['v', n >> 1, n & 1])

    def xsm(i):
        kap, kt_ = i >> 1, i & 1
        acc = (S0, S1)[kt_]
        A.wait(qt[kap], xt[i])
        c = '0' if kap == 0 else f'v[{acc}:{acc + 3}]'
        A(f'v_mfma_f32_16x16x32_bf16 v[{acc}:{acc + 3}], v[{xreg[i]}:{xreg[i] + 3}], v[{QFR[kap]}:{QFR[kap] + 3}], {c}')

    for n_, j in enumerate((0, 1, 2, 3, 4)):
        A.wait(at[8] if j == 0 else at[5 + j])
        smf(Q0, RA[j], REG_OF['q', 5 + j, 0])
        if n_ == 0:
            xread(0, SL(13))
        if n_ == 1:
            touch()
        if n_ == 2:
            kf_load(SL(11))
        if n_ == 3:
            A('s_waitcnt vmcnt(3)')
            kf_load(SL(15))
        smf(Q1, RA[j], REG_OF['q', 5 + j, 1])
        flush_pend()
        if n_ == 0:
            xread(1, SL(14))
    fill = halfsum_ops(Q0, Q1, 0)
    ksm(0); ksm(1); ksm(2); ksm(3)
    for i in range(4, 8):
        take(fill, 1); ksm(i)
    take(fill, 3); ksm(8); take(fill, 2); assert not fill
    qw = last[0]
    ksm(9)
    stamp(4)
    vsm(10); vsm(11)
    xread(2, RA[0])
    vsm(12)
    A.wait(qw)
    A('s_barrier')
    qt[0] = trread(QFR[0], 0)
    fill = halfsum_ops(K0, K1, 2048)
    vsm(13); take(fill, 2)
    xread(3, RA[1])
    vsm(14); take(fill, 2)
    vsm(15); take(fill, 3)
    xsm(0); take(fill, 2); assert not fill
    kw = last[0]
    qt[1] = trread(QFR[1], 512)
    xsm(1); xread(4, xreg[0])
    vsm(16); xread(5, xreg[1])
    qt[2] = trread(QFR[2], 1024)
    vsm(17)
    qt[3] = trread(QFR[3], 1536)
    xsm(2); xread(6, xreg[2])
    xsm(3); xread(7, xreg[3])
    xsm(4)
    if kxlate:
        A.wait(kw)
    else:
        A.wait_lg0()
    A('s_barrier')
    stamp(5)
    KF = [SL(2), SL(3), RA[2], RA[3]]
    kt = {}
    kt[0] = trread(KF[0], 2048)
    kt[1] = trread(KF[1], 2048 + 512)
    xsm(5)
    kt[2] = trread(KF[2], 2048 + 1024)
    xsm(6)
    kt[3] = trread(KF[3], 2048 + 1536)
    xsm(7)
    PUBT = xreg[4]
    pbt = pub_read(PUBT)
    vsm(18)
    hs_ = [h_ for h_ in A.hist if h_.kind in ('mfma', 'valu')]
    kv_wait(1)
    A.hist = hs_
    if not kxlate:
        issue_kx_vx()
    vsm(19)
    Sm = xreg[6]
    stamp(6)
    VM, VMA, VMB = VV1, VV0, VV0 + 2
    M_, M2 = T1, T0

    def msm(kap):
        b = KF[kap]
        A.wait(qt[kap], kt[kap])
        c = '0' if kap == 0 else f'v[{Sm}:{Sm + 3}]'
        A(f'v_mfma_f32_16x16x32_bf16 v[{Sm}:{Sm + 3}], v[{b}:{b + 3}], v[{QFR[kap]}:{QFR[kap] + 3}], {c}')

    fx = [f'v_max3_f32 v{M_}, v{S0}, v{S0 + 1}, v{S0 + 2}',
          f'v_max3_f32 v{M2}, v{S0 + 3}, v{S1}, v{S1 + 1}',
          f'v_max3_f32 v{M_}, v{M_}, v{S1 + 2}, v{S1 + 3}',
          f'v_max_f32 v{M_}, v{M_}, v{M2}',
          f'v_mov_b32 v{M2}, v{M_}']
    fv = halfsum_ops(VV0, VV1, None)
    for r in range(2):
        fv.append(f'v_cndmask_b32 v{VMA + r}, 0, v{VM + r}, s[{S_MLO}:{S_MLO + 1}]')
        fv.append(f'v_cndmask_b32 v{VMB + r}, v{VM + r}, 0, s[{S_MLO}:{S_MLO + 1}]')
    msm(0); take(fx, 2)
    A('s_waitcnt vmcnt(1)')
    msm(1)
    take(fx, 3); msm(2); take(fv, 1)
    msm(3)
    A(f'v_permlane32_swap_b32 v{M_}, v{M2}')
    A(f'v_max_f32 v{M_}, v{M_}, v{M2}')
    A.wait(pbt)
    take(fv, 7)
    take(pub_sel(PUBT), 2)
    if cut is None:
        A(f's_cmp_eq_u32 s{S_STEP}, {nsteps - 1}')
        A(f's_cbranch_scc1 {done}')
    stamp(7)

    used = {Sm, S0, S1, VV0, VV1}
    free = [SL(i) for i in range(17) if SL(i) not in used]
    P01, PM, O0, O1 = SL(2), SL(3), SL(0), SL(1)
    for x in (P01, PM, O0, O1):
        free.remove(x)
    free.remove(PUBT)
    ONES, LS = free[0], free[1]
    OAS = free[2:7]
    zf = [f'v_mov_b64 v[{r}:{r + 1}], 0' for x in OAS for r in (x, x + 2)]
    A(f'v_max3_f32 v{M_}, v{M_}, v{Sm}, v{Sm + 1}')
    A(f'v_max3_f32 v{M_}, v{M_}, v{Sm + 2}, v{Sm + 3}')
    A(f'v_mov_b32 v{M2}, v{M_}')
    take(fv, 2)
    A(f'v_permlane16_swap_b32 v{M_}, v{M2}')
    A(f'v_max_f32 v{M_}, v{M_}, v{M2}')
    A(f'v_mul_f32 v{M_}, s{S_C}, v{M_}')

    def pkf(x):
        A(f'v_pk_fma_f32 v[{x}:{x + 1}], v[{x}:{x + 1}], s[{S_C - 1}:{S_C}], v[{M_}:{M_ + 1}] op_sel:[0,1,0] op_sel_hi:[1,1,0] neg_lo:[0,0,1] neg_hi:[0,0,1]')
    assert S_C % 2 == 1 and M_ % 2 == 0
    xs = [S0 + r for r in range(4)] + [S1 + r for r in range(4)]
    for j in range(4):
        pkf(xs[2 * j])
    for x in xs:
        A(f'v_exp_f32 v{x}, v{x}')
    pkf(Sm); pkf(Sm + 2)
    for j in range(4):
        A(f'v_cvt_pk_bf16_f32 v{P01 + j}, v{xs[2 * j]}, v{xs[2 * j + 1]}')
    A(f'v_exp_f32 v{Sm}, v{Sm}')
    A(f'v_exp_f32 v{Sm + 1}, v{Sm + 1}')
    A(f'v_mfma_f32_16x16x32_bf16 v[{O0}:{O0 + 3}], v[{VX0}:{VX0 + 3}], v[{P01}:{P01 + 3}], 0')
    pub_store(PUBT)
    A(f'v_exp_f32 v{Sm + 2}, v{Sm + 2}')
    A(f'v_mov_b64 v[{ONES}:{ONES + 1}], s[{S_ONE}:{S_ONE + 1}]')
    A(f'v_mfma_f32_16x16x32_bf16 v[{O1}:{O1 + 3}], v[{VX1}:{VX1 + 3}], v[{P01}:{P01 + 3}], 0')
    A(f'v_exp_f32 v{Sm + 3}, v{Sm + 3}')
    A(f'v_mov_b64 v[{ONES + 2}:{ONES + 3}], s[{S_ONE}:{S_ONE + 1}]')
    A(f'v_cvt_pk_bf16_f32 v{PM}, v{Sm}, v{Sm + 1}')
    A(f'v_cvt_pk_bf16_f32 v{PM + 1}, v{Sm + 2}, v{Sm + 3}')
    A(f'v_mfma_f32_16x16x32_bf16 v[{LS}:{LS + 3}], v[{ONES}:{ONES + 3}], v[{P01}:{P01 + 3}], 0')
    take(fv, 9)
    A(f'v_mov_b64 v[{PM + 2}:{PM + 3}], s[{S_HALF}:{S_HALF + 1}]')
    A(f'v_xor_b32 v{M2}, 32, v{V_OW0}')
    A(f'v_mfma_f32_16x16x16_bf16 v[{LS}:{LS + 3}], v[{PM + 2}:{PM + 3}], v[{PM}:{PM + 1}], v[{LS}:{LS + 3}]')
    take(zf, 2)
    A(f'v_mfma_f32_16x16x16_bf16 v[{O0}:{O0 + 3}], v[{VMA}:{VMA + 1}], v[{PM}:{PM + 1}], v[{O0}:{O0 + 3}]')
    take(zf, 2)
    A(f'v_mfma_f32_16x16x16_bf16 v[{O1}:{O1 + 3}], v[{VMB}:{VMB + 1}], v[{PM}:{PM + 1}], v[{O1}:{O1 + 3}]')
    take(zf, 2)
    A(f'v_rcp_f32 v{M_}, v{LS}')
    take(zf, 9)
    for tau in range(2):
        o = O0 + 4 * tau
        for r in (0, 2):
            A(f'v_pk_mul_f32 v[{o + r}:{o + r + 1}], v[{o + r}:{o + r + 1}], v[{M_}:{M_ + 1}] op_sel_hi:[1,0]')
        A(f'v_cvt_pk_bf16_f32 v{o}, v{o}, v{o + 1}')
        A(f'v_cvt_pk_bf16_f32 v{o + 1}, v{o + 2}, v{o + 3}')
        owt = A(f'ds_write_b64 v{V_OW0 if tau == 0 else M2}, v[{o}:{o + 1}]')
    hs_ = [h_ for h_ in A.hist if h_.kind in ('mfma', 'valu')]
    m_flag(LS)
    A.hist = hs_
    A.wait(owt)
    A('s_barrier')
    stamp(8)
    OF = [O0, O1]
    G0, G1, X4 = P01, PM, ONES

    def post(n):
        x, y = OAS[2 * n], OAS[2 * n + 1]
        ops = [f'v_permlane32_swap_b32 v{x + r}, v{y + r}' for r in range(4)]
        ops += [f'v_pk_add_f32 v[{x + r}:{x + r + 1}], v[{x + r}:{x + r + 1}], v[{y + r}:{y + r + 1}]' for r in (0, 2)]
        ops += [f'v_cvt_pk_bf16_f32 v{G0 + 2 * n}, v{x}, v{x + 1}', f'v_cvt_pk_bf16_f32 v{G0 + 2 * n + 1}, v{x + 2}, v{x + 3}']
        return ops

    lsafe = A.newlabel('L_psafe'); lpe = A.newlabel('L_pend')

    def outproj(sc):
        x, y = OAS[4], X4
        p4 = [f'v_mov_b64 v[{y}:{y + 1}], v[{x}:{x + 1}]', f'v_mov_b64 v[{y + 2}:{y + 3}], v[{x + 2}:{x + 3}]']
        p4 += [f'v_permlane32_swap_b32 v{x + r}, v{y + r}' for r in range(4)]
        p4 += [f'v_pk_add_f32 v[{x + r}:{x + r + 1}], v[{x + r}:{x + r + 1}], v[{y + r}:{y + r + 1}]' for r in (0, 2)]
        p4 += [f'v_cvt_pk_bf16_f32 v{G1}, v{x}, v{x + 1}', f'v_cvt_pk_bf16_f32 v{G1 + 1}, v{x + 2}, v{x + 3}',
               f'v_mov_b64 v[{G1 + 2}:{G1 + 3}], v[{G1}:{G1 + 1}]']
        worder = [(0, 4), (1, 4), (0, 0), (0, 1), (1, 0), (1, 1), (0, 2), (0, 3), (1, 2), (1, 3)]
        nfill = [0, 0, 0, 0, 0, 0, 2, 1, 1, 2]
        pre = [f'v_and_b32 v{T0}, 0x1fff, v{V_PST}',
               f'v_add_u32 v{V_P4}, s{S_W1280}, v{V_KX}', f'v_lshl_add_u32 v{V_P1}, v{L}, 2, s{S_P1B}']
        for i, (k2, tau) in enumerate(worder):
            if i < 2:
                A(f's_waitcnt lgkmcnt({1 - i})')
            smf(OAS[tau], OF[k2], REG_OF['o', k2, tau])
            if i in (1, 5):
                A(f'buffer_load_dwordx4 v{V_L16}, {WS}, s{S_KX} offen offset:{(i // 5) * 1024} sc1 lds')
            elif i >= 2:
                take(pre, 1)
            take(p4, nfill[i])
        take(p4, 20)
        take(post(0), 9)
        A(f'v_permlane16_swap_b32 v{G1}, v{G1 + 2}')
        A(f'v_permlane16_swap_b32 v{G1 + 1}, v{G1 + 3}')
        A(f'v_and_or_b32 v{G1}, v{G1}, -2, s{S_PAR}')
        pp = post(1)
        take(pp, 1)
        A(f'buffer_store_dwordx4 v[{G1}:{G1 + 3}], v{T0}, {WS}, s{S_PS1} offen{sc}')
        take(pp, 9)
        A(f'v_permlane16_swap_b32 v{G0}, v{G0 + 2}')
        A(f'v_permlane16_swap_b32 v{G0 + 1}, v{G0 + 3}')
        A(f'v_and_or_b32 v{G0}, v{G0}, -2, s{S_PAR}')
        A(f'buffer_store_dwordx4 v[{G0}:{G0 + 3}], v{V_PST}, {WS}, s{S_PS0} offen{sc}')

    for k2 in range(2):
        A(f'ds_read_b128 v[{OF[k2]}:{OF[k2] + 3}], v{V_OR} offset:{128 * k2}')
    A(f's_cmp_eq_u32 s{S_FAST}, 0')
    A(f's_cbranch_scc1 {lsafe}')
    saved = list(A.hist)

    def safe_variant():
        A.label(lsafe)
        A.hist = list(saved)
        outproj(' sc1')
        A.branch(f's_branch {lpe}')
    deferred.append(safe_variant)
    outproj('')
    A.lg_done = A.lg_issued
    A.flush_hazards()
    A.label(lpe)
    stamp(9)
    A('s_waitcnt vmcnt(5)')
    A(f's_add_u32 s{S_PLOC}, s{S_PLOC}, 10240')
    A(f's_add_u32 s{S_VX}, s{S_VX}, {32 * 8192}')
    A(f's_add_u32 s{S_KX}, s{S_KX}, {32 * 8192}')
    A(f's_add_u32 s{S_KM}, s{S_KM}, {32 * 4096}')
    next_pages()
    touch_prep()
    lnr = A.newlabel('L_nored'); lnr2 = A.newlabel('L_nored2')
    A(f's_cmp_ge_u32 s{S_RED}, 40')
    A(f's_cbranch_scc1 {lnr2}')
    RBS = [20, 44, 60][:ka]
    SEL = 36
    DD = 80
    lp = A.newlabel('L_pa'); lw = A.newlabel('L_paw')

    def pa_issue(RB):
        for j in range(4):
            A(f'buffer_load_dwordx4 v[{RB + 4 * j}:{RB + 4 * j + 3}], v{V_L16}, {WS}, s{S_PA} offen offset:{1024 * j} sc1')
    rebuild_pub()
    A(f'v_and_b32 v{T0}, 1, v{L}')
    A(f'v_lshlrev_b32 v{T0}, 4, v{T0}')
    A(f'v_mov_b32 v{T1}, 0x3f80')
    A(f'v_lshlrev_b32 v{T0}, v{T0}, v{T1}')
    A(f'v_bfe_u32 v{T1}, v{L}, 1, 2')
    for d in range(4):
        A(f'v_cmp_eq_u32 vcc, {d}, v{T1}')
        A(f'v_cndmask_b32 v{SEL + d}, 0, v{T0}, vcc')
    for j, RB in enumerate(RBS):
        if adelay[j]:
            for _ in range(adelay[j]):
                A('s_nop 15')
        pa_issue(RB)

    def tt(f):
        t = 0
        for a_ in range(2):
            for b_ in range(2):
                for c_ in range(2):
                    if f(a_, b_, c_):
                        t |= 1 << ((a_ << 2) | (b_ << 1) | c_)
        return t
    t1 = tt(lambda a, b, c: (a ^ c) | (b ^ c))
    t2 = tt(lambda a, b, c: (a | b) & c)
    A.flush_hazards()
    A.label(lp)
    for RB in RBS:
        A(f's_waitcnt vmcnt({4 * (ka - 1)})')
        chk = [f'v_bitop3_b32 v{T0}, v{RB}, v{RB + 4}, s{S_PAR} bitop3:{t1:#x}',
               f'v_bitop3_b32 v{T1}, v{RB + 8}, v{RB + 12}, s{S_PAR} bitop3:{t1:#x}',
               f'v_bitop3_b32 v{T0}, v{T0}, v{T1}, 1 bitop3:{t2:#x}',
               f'v_cmp_ne_u32 vcc, 0, v{T0}']
        if spec:
            for j in range(4):
                c = '0' if j == 0 else f'v[{DD}:{DD + 3}]'
                A(f'v_mfma_f32_16x16x32_bf16 v[{DD}:{DD + 3}], v[{RB + 4 * j}:{RB + 4 * j + 3}], v[{SEL}:{SEL + 3}], {c}')
                A(chk[j])
            A(f's_cbranch_vccz {lw}')
        else:
            for j in range(4):
                A(chk[j])
            A(f's_cbranch_vccz {lw}_{RB}')
        pa_issue(RB)
    A(f's_add_u32 s{S_SPIN}, s{S_SPIN}, 1')
    A(f's_cmp_lt_u32 s{S_SPIN}, {SPIN_LIMIT}')
    A(f's_cbranch_scc1 {lp}')
    A(f's_branch {abort_label}')
    if not spec:
        for RB in RBS:
            A.label(f'{lw}_{RB}')
            for j in range(4):
                c = '0' if j == 0 else f'v[{DD}:{DD + 3}]'
                A(f'v_mfma_f32_16x16x32_bf16 v[{DD}:{DD + 3}], v[{RB + 4 * j}:{RB + 4 * j + 3}], v[{SEL}:{SEL + 3}], {c}')
            A(f's_branch {lw}')
    A.label(lw)
    A('s_nop 6')
    stamp(10)
    RB = 76
    A(f'v_mov_b64 v[{RB}:{RB + 1}], v[{DD}:{DD + 1}]')
    A(f'v_mov_b64 v[{RB + 2}:{RB + 3}], v[{DD + 2}:{DD + 3}]')
    for r in range(4):
        A(f'v_permlane32_swap_b32 v{RB + r}, v{DD + r}')
    for r in (0, 2):
        A(f'v_pk_add_f32 v[{RB + r}:{RB + r + 1}], v[{RB + r}:{RB + r + 1}], v[{DD + r}:{DD + r + 1}]')
    a0 = RB
    A(f'v_cvt_pk_bf16_f32 v{a0}, v{RB}, v{RB + 1}')
    A(f'v_cvt_pk_bf16_f32 v{a0 + 1}, v{RB + 2}, v{RB + 3}')
    A(f'v_min_u32 v{a0}, -2, v{a0}')
    A(f'v_min_u32 v{a0 + 1}, -2, v{a0 + 1}')
    A('s_mov_b64 exec, 0x00ff00ff')
    A(f'buffer_store_dwordx2 v[{a0}:{a0 + 1}], v{V_PUB}, {WS}, s{S_PUBR} offen sc1')
    lps = A.newlabel('L_pubs'); lpd = A.newlabel('L_pubd')
    A(f's_cmp_eq_u32 s{S_FAST}, 0')
    A(f's_cbranch_scc1 {lps}')
    A(f'buffer_store_dwordx2 v[{a0}:{a0 + 1}], v{V_PUB}, {WS}, s{S_PUBL} offen')
    A(f's_branch {lpd}')
    A.label(lps)
    A(f'buffer_store_dwordx2 v[{a0}:{a0 + 1}], v{V_PUB}, {WS}, s{S_PUBL} offen sc1')
    A.label(lpd)
    A('s_mov_b64 exec, -1')
    A('s_waitcnt vmcnt(2)')
    A.branch(f's_branch {lnr}')
    A.label(lnr2)
    kv_refresh(lnr)
    if backoff:
        A(f's_sleep {backoff}')
    A.label(lnr)
    stamp(11)
    if stamps:
        A('s_waitcnt lgkmcnt(0)')
        for i in range(12):
            A(f'v_writelane_b32 v{T0}, s{S_ST + 2 * i}, {i}')
        A(f'v_lshlrev_b32 v{T1}, 2, v{L}')
        A('s_mov_b64 exec, 0xfff')
        A(f'buffer_store_dword v{T0}, v{T1}, {WS}, s{S_STO} offen')
        A('s_mov_b64 exec, -1')
        A(f's_add_u32 s{S_STO}, s{S_STO}, 64')
    if cut is not None:
        A.label('L_cut')
        A.wait_all()
        rebuild()
        A.wait_all()
        A('s_sleep 8')
        A(f's_cmp_eq_u32 s{S_STEP}, {nsteps - 1}')
        A(f's_cbranch_scc1 {done}')
    A(f's_add_u32 s{S_PUBL}, s{S_PUBL}, 10240')
    A(f's_xor_b32 s{S_PAR}, s{S_PAR}, 1')
    A(f's_add_u32 s{S_STEP}, s{S_STEP}, 1')
    A.branch(f's_branch {top}')
    for f_ in deferred:
        f_()
    A.label(done)
    m_flag()
    pub_store(PUBT)
    A.wait_all()
    A('s_barrier')
    m_flag()
    if coarse:
        A('s_memrealtime s[92:93]')
        A('s_memtime s[94:95]')
        A('s_waitcnt lgkmcnt(0)')
        A(f's_lshl_b32 s{S_TMP}, s{S_H}, 3')
        A(f's_lshl_b32 s{S_TMP + 1}, s{S_T}, 2')
        A(f's_add_u32 s{S_TMP}, s{S_TMP}, s{S_TMP + 1}')
        A(f's_add_u32 s{S_TMP}, s{S_TMP}, s{S_WV}')
        A(f's_lshl_b32 s{S_TMP}, s{S_TMP}, 6')
        A(f's_add_u32 s{S_TMP}, s{S_TMP}, {WS_STAMP + 0x200000:#x}')
        A('s_mov_b64 exec, 1')
        A(f'v_mov_b32 v{T1}, s{S_TMP}')
        for i in range(6):
            A(f'v_mov_b32 v{T0}, s{84 + 2 * i}')
            A(f'buffer_store_dword v{T0}, v{T1}, {WS}, 0 offen offset:{4 * i}')
        A(f'v_mov_b32 v{T0}, s{S_SPIN}')
        A(f'buffer_store_dword v{T0}, v{T1}, {WS}, 0 offen offset:24')
        A(f'v_mov_b32 v{T0}, s85')
        A(f'buffer_store_dword v{T0}, v{T1}, {WS}, 0 offen offset:28')
        A.wait_all()
```

```python
import math
import struct
from asmlib import *
from layout import *
from roles import F_P, F_M

VREG = 34816
MEMB = 4 * VREG
QKB = MEMB + 10240
OB = QKB + 4096
KXB = OB + 2048
assert KXB + 8192 == 163840

SPIN_LIMIT = 1 << 17


def f32bits(x):
    return struct.unpack('<I', struct.pack('<f', x))[0]


LDS_BLOCKS = [('v', s_, t_) for s_ in range(5) for t_ in range(2)] + [('k', s_, 1) for s_ in range(3)] + \
             [('k', 5, 0), ('k', 6, 0), ('k', 7, 1), ('k', 9, 0)]
assert len(LDS_BLOCKS) == 17
_all = [(m, s_, t_) for m in 'qkv' for s_ in range(10) for t_ in range(2)] + [('o', k_, t_) for k_ in range(2) for t_ in range(5)]
_regb = [b for b in _all if b not in LDS_BLOCKS]
assert len(_regb) == 53
REG_OF = {b: (256 + 8 * i if i < 32 else 88 + 8 * (i - 32)) for i, b in enumerate(_regb)}
BLK_OF = {b: i for i, b in enumerate(LDS_BLOCKS)}


V_LANE, V_IDX, V_L16, V_KX, V_QKW, V_QKR, V_OW0, V_OR, V_PST, V_T2, V_T1, V_T0 = range(12)
VX0, VX1 = 12, 16
V_P4, V_P1, V_PUB = 12, 13, 14
Q0, Q1, K0, K1, VV0, VV1 = 20, 24, 28, 32, 36, 40
AR = 44
PL = 56
VW = 64
SS = 64
VXR = 80

S_WS, S_W, S_DBG = 4, 8, 12
S_T, S_H, S_WV, S_STEP, S_FAST = 16, 17, 18, 19, 20
S_PLOC, S_PREM, S_PS0, S_PS1, S_PS2, S_PA, S_PUBR, S_PUBL, S_KX, S_VX, S_RED, S_NOT1, S_C = range(21, 34)
S_MLO = 34
S_MPUB = 36
S_KM, S_VM, S_FL = 38, 39, 40
S_TMP = 41
S_PTR = 44
S_SPIN = 46
S_TMP2 = 47
S_ST = 48
S_STO = 80
S_KSEL = 96
S_FKV = 97
S_EARLY = 81
S_TA = 32
S_TABW, S_TABR = 36, 82
S_PREM0, S_PUBR0 = 39, 96
S_TMASK = 94
S_PAR, S_W1280, S_P1B, S_W512 = 72, 73, 74, 75
S_ONE = 76
S_HALF = 78
S_RDY = 25


def emit_rec(A, abort_label, nsteps=64, stamps=False, force_safe=False, coarse=False, backoff=13, ka=2, adelay=(1, 2), mega=False, rp=(0, 2), cut=None, dbg='', kb=2, bgap=15, spec=True, kmahead=2, align=None, kxlate=True, tlate=False, early=False, s4=0):
    def stamp(i):
        if stamps:
            A(f'{"s_memrealtime" if stamps == "rt" else "s_memtime"} s[{S_ST + 2 * i}:{S_ST + 2 * i + 1}]')
        if cut == i:
            A.branch('s_branch L_cut')

    if coarse:
        A('s_memrealtime s[84:85]')
        A('s_memtime s[86:87]')
    A(f's_load_dwordx2 s[{S_PTR}:{S_PTR + 1}], s[0:1], {KA_WS}')
    A(f's_load_dwordx2 s[{S_TMP + 1}:{S_TMP + 2}], s[0:1], {KA_DBG}')
    A(f'v_lshrrev_b32 v1, 6, v0')
    A(f'v_readfirstlane_b32 s{S_WV}, v1')
    A(f'v_and_b32 v{V_LANE}, 63, v0')
    A('s_waitcnt lgkmcnt(0)')
    A.srd(S_WS, S_PTR, S_PTR + 1, WS_BYTES)
    A.srd(S_DBG, S_TMP + 1, S_TMP + 2, 256)
    A(f's_mov_b32 s{S_SPIN}, 0')
    L = V_LANE
    T0, T1 = V_T0, V_T1
    G, R_, C_ = 20, 21, 22
    A(f'v_lshrrev_b32 v{G}, 4, v{L}')
    A(f'v_bfe_u32 v{R_}, v{L}, 2, 2')
    A(f'v_and_b32 v{C_}, 3, v{L}')
    A(f'v_and_b32 v{T0}, 8, v{L}')
    A(f'v_cmp_eq_u32 vcc, 0, v{T0}')
    A(f'v_mov_b32 v{T0}, 0xeeee')
    A(f'v_mov_b32 v{T1}, 0x4444')
    A(f'v_cndmask_b32 v{V_IDX}, v{T0}, v{T1}, vcc')
    A(f's_mul_i32 s{S_TMP}, s{S_WV}, {VREG}')
    A(f'v_lshlrev_b32 v{T0}, 4, v{L}')
    A(f'v_add_u32 v{V_L16}, s{S_TMP}, v{T0}')
    A(f'v_add_u32 v{V_KX}, {MEMB}, v{T0}')
    A(f'v_lshrrev_b32 v{T0}, 5, v{L}')
    A(f'v_lshlrev_b32 v{T0}, 8, v{T0}')
    A(f'v_and_b32 v{T1}, 15, v{L}')
    A(f'v_lshl_add_u32 v{T0}, v{T1}, 4, v{T0}')
    A(f'v_and_b32 v{T1}, 1, v{G}')
    A(f'v_lshl_add_u32 v{T0}, v{T1}, 3, v{T0}')
    A(f's_lshl_b32 s{S_TMP}, s{S_WV}, 9')
    A(f's_add_u32 s{S_TMP}, s{S_TMP}, {QKB}')
    A(f'v_add_u32 v{V_QKW}, s{S_TMP}, v{T0}')
    A(f'v_lshlrev_b32 v{T0}, 6, v{G}')
    A(f'v_lshl_add_u32 v{T0}, v{R_}, 4, v{T0}')
    A(f'v_and_b32 v{T1}, 1, v{C_}')
    A(f'v_lshl_add_u32 v{T0}, v{T1}, 3, v{T0}')
    A(f'v_add_u32 v{V_QKR}, {QKB}, v{T0}')
    I_ = 23
    A(f'v_and_b32 v{I_}, 7, v{L}')
    A(f'v_lshrrev_b32 v{T0}, 1, v{G}')
    A(f's_lshl_b32 s{S_TMP}, s{S_WV}, 2')
    A(f'v_add_u32 v{T0}, s{S_TMP}, v{T0}')
    A(f'v_xor_b32 v{T0}, v{T0}, v{I_}')
    A(f'v_lshlrev_b32 v{T0}, 4, v{T0}')
    A(f'v_lshl_add_u32 v{T0}, v{I_}, 8, v{T0}')
    A(f'v_and_b32 v{T1}, 1, v{G}')
    A(f'v_lshl_add_u32 v{T0}, v{T1}, 3, v{T0}')
    A(f'v_add_u32 v{V_OW0}, {OB}, v{T0}')
    A(f'v_bfe_u32 v{T0}, v{L}, 3, 1')
    A(f'v_lshl_add_u32 v{T0}, v{G}, 1, v{T0}')
    A(f'v_xor_b32 v{T0}, v{T0}, v{I_}')
    A(f'v_lshlrev_b32 v{T0}, 4, v{T0}')
    A(f'v_lshl_add_u32 v{T0}, v{I_}, 8, v{T0}')
    A(f'v_add_u32 v{V_OR}, {OB}, v{T0}')
    A(f'v_and_b32 v{T0}, 1, v{G}')
    A(f'v_lshlrev_b32 v{T0}, 1, v{T0}')
    A(f'v_lshrrev_b32 v{T1}, 1, v{G}')
    A(f'v_add_u32 v{T0}, v{T0}, v{T1}')
    A(f'v_lshlrev_b32 v{T0}, 1, v{T0}')
    A(f'v_bfe_u32 v{T1}, v{L}, 3, 1')
    A(f'v_add_u32 v{T0}, v{T0}, v{T1}')
    A(f'v_lshlrev_b32 v{T0}, 12, v{T0}')
    A(f'v_lshl_add_u32 v{V_PST}, v{I_}, 4, v{T0}')
    A(f's_lshl_b32 s{S_KSEL}, s{S_T}, 2')
    A(f's_add_u32 s{S_KSEL}, s{S_KSEL}, s{S_WV}')
    A(f's_mov_b32 s{S_ONE}, 0x3f803f80')
    A(f's_mov_b32 s{S_ONE + 1}, 0x3f803f80')
    A(f's_mov_b32 s{S_HALF}, 0x3f003f00')
    A(f's_mov_b32 s{S_HALF + 1}, 0x3f003f00')
    A(f's_mov_b32 s{S_PAR}, 0')
    A(f's_mul_i32 s{S_W1280}, s{S_WV}, 1280')
    A(f's_add_u32 s{S_P1B}, s{S_W1280}, {MEMB + 1024}')
    A(f's_lshl_b32 s{S_W512}, s{S_WV}, 9')

    def rebuild():
        A(f'v_add_u32 v{V_P4}, s{S_W1280}, v{V_KX}')
        A(f'v_lshl_add_u32 v{V_P1}, v{L}, 2, s{S_P1B}')

    def rebuild_pub():
        A(f'v_and_b32 v{T0}, 7, v{L}')
        A(f'v_bfe_u32 v{T1}, v{L}, 4, 1')
        A(f'v_lshlrev_b32 v{T1}, 3, v{T1}')
        A(f'v_lshl_add_u32 v{V_PUB}, v{T0}, 4, v{T1}')

    A(f's_mov_b32 s{S_MLO}, -1')
    A(f's_mov_b32 s{S_MLO + 1}, 0')
    A(f's_mov_b32 s{S_MPUB}, 0x00ff00ff')
    A(f's_mov_b32 s{S_MPUB + 1}, 0x00ff00ff')
    A(f's_mov_b32 s{S_NOT1}, 0xfffffffe')
    A(f's_mov_b32 s{S_C}, {f32bits((128 ** -0.5) * math.log2(math.e)):#x}')
    A(f's_mul_i32 s{S_TMP2}, s{S_WV}, {VREG}')
    A(f's_mul_i32 s{S_TMP}, s{S_T}, 5120')
    A(f's_add_u32 s{S_PLOC}, s{S_TMP}, {WS_MEML - MEMB:#x}')
    A(f's_xor_b32 s{S_TMP}, s{S_T}, 1')
    A(f's_lshl_b32 s{S_TMP}, s{S_TMP}, 14')
    A(f's_add_u32 s{S_PREM}, s{S_TMP}, {WS_MEMR - MEMB:#x}')
    A(f's_mul_i32 s{S_TMP}, s{S_T}, 163840')
    A(f's_add_u32 s{S_TMP}, s{S_TMP}, {WS_PART:#x}')
    A(f's_mul_i32 s{S_TMP + 1}, s{S_WV}, {10 * 4096}')
    A(f's_add_u32 s{S_PS0}, s{S_TMP}, s{S_TMP + 1}')
    A(f's_lshl_b32 s{S_TMP + 1}, s{S_H}, 7')
    A(f's_add_u32 s{S_PS0}, s{S_PS0}, s{S_TMP + 1}')
    A(f's_add_u32 s{S_PS1}, s{S_PS0}, 32768')
    A(f's_lshl_b32 s{S_RED}, s{S_WV}, 5')
    A(f's_add_u32 s{S_RED}, s{S_RED}, s{S_H}')
    A(f's_min_u32 s{S_TMP + 2}, s{S_RED}, 39')
    A(f's_lshl_b32 s{S_TMP + 1}, s{S_TMP + 2}, 12')
    A(f's_add_u32 s{S_PA}, s{S_TMP}, s{S_TMP + 1}')
    A(f's_sub_u32 s{S_PA}, s{S_PA}, s{S_TMP2}')
    A(f's_lshl_b32 s{S_TMP + 1}, s{S_TMP + 2}, 7')
    A(f's_lshl_b32 s{S_TMP}, s{S_T}, 14')
    A(f's_add_u32 s{S_PUBR}, s{S_TMP}, s{S_TMP + 1}')
    A(f's_add_u32 s{S_PUBR}, s{S_PUBR}, {WS_MEMR + 32768:#x}')
    A(f's_mul_i32 s{S_TMP}, s{S_T}, 5120')
    A(f's_add_u32 s{S_PUBL}, s{S_TMP}, s{S_TMP + 1}')
    A(f's_add_u32 s{S_PUBL}, s{S_PUBL}, {WS_MEML + 10240:#x}')
    A(f's_lshl_b32 s{S_TMP}, s{S_H}, 13')
    A(f's_lshl_b32 s{S_TMP + 1}, s{S_WV}, 11')
    A(f's_add_u32 s{S_TMP}, s{S_TMP}, s{S_TMP + 1}')
    A(f's_sub_u32 s{S_TMP}, s{S_TMP}, s{S_TMP2}')
    A(f's_add_u32 s{S_KX}, s{S_TMP}, {WS_KX:#x}')
    A(f's_add_u32 s{S_VX}, s{S_TMP}, {WS_VX:#x}')
    A(f's_lshl_b32 s{S_TMP}, s{S_H}, 12')
    A(f's_lshl_b32 s{S_TMP + 1}, s{S_WV}, 10')
    A(f's_add_u32 s{S_TMP}, s{S_TMP}, s{S_TMP + 1}')
    A(f's_sub_u32 s{S_TMP}, s{S_TMP}, s{S_TMP2}')
    A(f's_add_u32 s{S_KM}, s{S_TMP}, {WS_KM:#x}')
    A(f's_mul_i32 s{S_TMP}, s{S_T}, {WS_KM - WS_VM:#x}')
    A(f's_sub_u32 s{S_KM}, s{S_KM}, s{S_TMP}')
    A(f's_sub_u32 s{S_TMASK}, 0, s{S_T}')
    A(f's_mov_b32 s{S_TMASK + 1}, s{S_TMASK}')

    lskip = A.newlabel('L_ann'); lnc = A.newlabel('L_nocal')
    A(f's_cmp_lg_u32 s{S_WV}, 0')
    A.branch(f's_cbranch_scc1 {lskip}')
    A(f's_mov_b32 s{S_ST + 6}, 0')
    if not mega:
        A(f's_or_b32 s{S_TMP}, s{S_T}, s{S_H}')
        A(f's_cmp_lg_u32 s{S_TMP}, 0')
        A.branch(f's_cbranch_scc1 {lnc}')
        A(f'v_mov_b32 v{T0}, {WS_MEMR:#x}')
        A(f'v_mov_b32 v{T1}, {WS_MEMR + 8192:#x}')
        A('s_mov_b64 exec, 1')
        A(f's_mov_b32 s{S_ST + 8}, -1')
        A(f's_mov_b32 s{S_ST + 9}, -1')
        for rep in range(3):
            for c in range(2):
                A(f's_memtime s[{S_ST}:{S_ST + 1}]')
                A('s_waitcnt lgkmcnt(0)')
                A(f'buffer_store_dword v{T0}, v{(T0, T1)[c]}, s[{S_WS}:{S_WS + 3}], 0 offen sc1')
                A.wait_vm0()
                A(f's_memtime s[{S_ST + 2}:{S_ST + 3}]')
                A('s_waitcnt lgkmcnt(0)')
                A(f's_sub_u32 s{S_ST + 4}, s{S_ST + 2}, s{S_ST}')
                A(f's_min_u32 s{S_ST + 8 + c}, s{S_ST + 8 + c}, s{S_ST + 4}')
        A('s_mov_b64 exec, -1')
        A(f's_cmp_lt_u32 s{S_ST + 9}, s{S_ST + 8}')
        A(f's_cselect_b32 s{S_ST + 6}, 0x40000000, 0')
    A.label(lnc)
    A(f's_getreg_b32 s{S_TMP}, hwreg(HW_REG_XCC_ID)')
    A(f's_and_b32 s{S_TMP}, s{S_TMP}, 15')
    A(f's_mul_i32 s{S_TMP + 1}, s{S_TMP}, s{S_TMP}')
    A(f's_lshl_b32 s{S_TMP + 1}, s{S_TMP + 1}, 16')
    A(f's_lshl_b32 s{S_TMP}, s{S_TMP}, 6')
    A(f's_add_u32 s{S_TMP}, s{S_TMP}, s{S_TMP + 1}')
    A(f's_add_u32 s{S_TMP}, s{S_TMP}, 1')
    A(f's_add_u32 s{S_TMP}, s{S_TMP}, s{S_ST + 6}')
    A(f'v_mov_b32 v{T0}, s{S_TMP}')
    A(f's_lshl_b32 s{S_TMP + 1}, s{S_T}, 2')
    A('s_mov_b64 exec, 1')
    A(f'buffer_atomic_add v{T0}, off, s[{S_DBG}:{S_DBG + 3}], s{S_TMP + 1} offset:128 sc1')
    A('s_mov_b64 exec, -1')
    A.flush_hazards()
    A.label(lskip)

    VSRC, VB, VBO = 24, 25, 26
    VOS = 27
    TB = 32
    VS4, VB4 = 12, 16
    for n in range(4):
        A(f'v_and_b32 v{T0}, 1, v{G}')
        A(f'v_or_b32 v{T0}, {2 * n}, v{T0}')
        A(f'v_lshlrev_b32 v{T0}, 1, v{T0}')
        A(f'v_and_b32 v{T1}, 15, v{L}')
        A(f'v_xor_b32 v{T0}, v{T0}, v{T1}')
        A(f'v_lshlrev_b32 v{T0}, 4, v{T0}')
        A(f'v_lshl_add_u32 v{VS4 + n}, v{G}, 13, v{T0}')
    A(f'v_and_b32 v{T0}, 1, v{R_}')
    A(f'v_and_b32 v{T1}, 1, v{G}')
    A(f'v_lshl_add_u32 v{VSRC}, v{T1}, 1, v{T0}')
    A(f'v_lshl_add_u32 v{T0}, v{T1}, 2, v{T0}')
    A(f'v_lshrrev_b32 v{T1}, 1, v{R_}')
    A(f'v_lshl_add_u32 v{VSRC}, v{T1}, 2, v{VSRC}')
    A(f'v_lshl_add_u32 v{T0}, v{T1}, 3, v{T0}')
    A(f'v_lshlrev_b32 v{T0}, 8, v{T0}')
    A(f'v_lshrrev_b32 v{T1}, 1, v{G}')
    A(f'v_mul_u32_u24 v{T1}, {VREG}, v{T1}')
    A(f'v_add_u32 v{T0}, v{T0}, v{T1}')
    A(f'v_and_b32 v{T1}, 1, v{C_}')
    A(f'v_lshl_add_u32 v{T0}, v{T1}, 3, v{T0}')
    A(f'v_lshlrev_b32 v{VSRC}, 1, v{VSRC}')
    A(f'v_lshrrev_b32 v{T1}, 1, v{C_}')
    A(f's_lshl_b32 s{S_TMP}, s{S_WV}, 2')
    A(f'v_or_b32 v{T1}, s{S_TMP}, v{T1}')
    A(f'v_xor_b32 v{T1}, v{T1}, v{VSRC}')
    A(f'v_lshl_add_u32 v{VB4}, v{T1}, 4, v{T0}')
    A(f'v_xor_b32 v{VB4 + 1}, 32, v{VB4}')
    A(f'v_add_u32 v{VB4 + 2}, {2 * VREG}, v{VB4}')
    A(f'v_add_u32 v{VB4 + 3}, {2 * VREG}, v{VB4 + 1}')
    A(f'v_lshrrev_b32 v{T0}, 1, v{G}')
    A(f'v_lshlrev_b32 v{T0}, 4, v{T0}')
    A(f'v_and_b32 v{T1}, 1, v{G}')
    A(f'v_lshl_add_u32 v{T0}, v{T1}, 2, v{T0}')
    A(f'v_lshrrev_b32 v{T1}, 1, v{R_}')
    A(f'v_lshl_add_u32 v{T0}, v{T1}, 3, v{T0}')
    A(f'v_and_b32 v{T1}, 1, v{R_}')
    A(f'v_add_u32 v{T0}, v{T1}, v{T0}')
    A(f'v_lshlrev_b32 v{T1}, 6, v{T0}')
    A(f'v_lshl_add_u32 v{T1}, v{C_}, 3, v{T1}')
    A(f'v_add_u32 v{VB}, s{S_TMP2}, v{T1}')
    A(f'v_mul_u32_u24 v{T0}, 160, v{T0}')
    A(f'v_lshl_add_u32 v{T0}, v{C_}, 3, v{T0}')
    A(f'v_add_u32 v{VBO}, s{S_TMP2}, v{T0}')
    for n in range(5):
        A(f'v_add_u32 v{T0}, {64 * n}, v{L}')
        A(f'v_mul_u32_u24 v{T1}, 6554, v{T0}')
        A(f'v_lshrrev_b32 v{T1}, 16, v{T1}')
        A(f'v_mul_u32_u24 v{VOS + n}, 10, v{T1}')
        A(f'v_sub_u32 v{T0}, v{T0}, v{VOS + n}')
        A(f'v_mul_u32_u24 v{T1}, 1280, v{T1}')
        A(f'v_lshl_add_u32 v{VOS + n}, v{T0}, 4, v{T1}')

    S_CB, S_R0 = S_ST + 10, S_ST + 11
    S_SO = S_ST + 12
    S_PQ, S_PK, S_PV, S_PO = S_ST + 14, S_ST + 16, S_ST + 18, S_ST + 20
    A(f's_load_dwordx2 s[{S_PQ}:{S_PQ + 1}], s[0:1], {KA_WQ}')
    A(f's_load_dwordx2 s[{S_PK}:{S_PK + 1}], s[0:1], {KA_WK}')
    A(f's_load_dwordx2 s[{S_PV}:{S_PV + 1}], s[0:1], {KA_WV}')
    A(f's_load_dwordx2 s[{S_PO}:{S_PO + 1}], s[0:1], {KA_WO}')
    A(f's_lshl_b32 s{S_CB}, s{S_H}, 8')
    A(f's_lshl_b32 s{S_TMP}, s{S_WV}, 17')
    A(f's_add_u32 s{S_CB}, s{S_CB}, s{S_TMP}')
    A('s_waitcnt lgkmcnt(0)')
    WBYTES = 640 * 8192
    cur = [None]

    def use(ptr):
        if cur[0] != ptr:
            A.srd(S_W, ptr, ptr + 1, WBYTES)
            cur[0] = ptr

    def dma_slot(ptr, sig, pos):
        use(ptr)
        A(f's_cmp_eq_u32 s{S_T}, 0')
        A(f's_cselect_b32 s{S_SO}, {sig}, {(sig + 5) % 10}')
        A(f's_lshl_b32 s{S_SO}, s{S_SO}, 19')
        A(f's_add_u32 s{S_SO}, s{S_SO}, s{S_CB}')
        tok = None
        for n in range(4):
            A(f's_add_u32 m0, s{S_TMP2}, {pos * 4096 + n * 1024}')
            tok = A(f'buffer_load_dwordx4 v{VS4 + n}, s[{S_W}:{S_W + 3}], s{S_SO} offen lds')
            if n < 3:
                A(f's_add_u32 s{S_SO}, s{S_SO}, {4 * 8192}')
        return tok

    def read_slot(tok, pos, dests):
        A.wait(tok)
        A('s_barrier')
        for tau in range(2):
            for u in range(4):
                off = pos * 4096 + 2 * (u & 1) * 256
                A(f'ds_read_b64_tr_b16 {wr(dests[tau] + 2 * u, 2)}, v{VB4 + 2 * (u >> 1) + tau} offset:{off}')
        A.wait_lg0()
        A('s_barrier')

    WOS = 0

    def dma_wo():
        use(S_PO)
        A(f's_mul_i32 s{S_SO}, s{S_H}, 163840')
        A(f's_mul_i32 s{S_TMP}, s{S_T}, 640')
        A(f's_add_u32 s{S_SO}, s{S_SO}, s{S_TMP}')
        A(f's_mul_i32 s{S_TMP}, s{S_WV}, 160')
        A(f's_add_u32 s{S_SO}, s{S_SO}, s{S_TMP}')
        tok = []
        for blk in range(4):
            for n in range(5):
                A(f's_add_u32 m0, s{S_TMP2}, {WOS + (blk * 5 + n) * 1024}')
                t = A(f'buffer_load_dwordx4 v{VOS + n}, s[{S_W}:{S_W + 3}], s{S_SO} offen lds')
            tok.append(t)
            if blk < 3:
                A(f's_add_u32 s{S_SO}, s{S_SO}, {32 * 1280}')
        return tok

    def put_block(reg, blk):
        for hf in range(2):
            A(f'ds_write_b128 v{V_L16}, v[{reg + 4 * hf}:{reg + 4 * hf + 3}] offset:{blk * 2048 + hf * 1024}')

    park = {b: TB + 8 * (BLK_OF[b] - 10) for b in LDS_BLOCKS[10:]}

    def dest_of(b):
        return REG_OF[b] if b in REG_OF else park[b]

    A(f's_load_dwordx2 s[{S_SO}:{S_SO + 1}], s[0:1], {KA_MEM0}')
    A('s_waitcnt lgkmcnt(0)')
    A.srd(S_W, S_SO, S_SO + 1, 8 * 1280)
    m0t = []
    for j in range(3):
        A(f'v_add_u32 v{T0}, {64 * j}, v{L}')
        A(f'v_min_u32 v{T0}, 159, v{T0}')
        A(f's_mul_i32 s{S_TMP}, s{S_WV}, 160')
        A(f'v_add_u32 v{T0}, s{S_TMP}, v{T0}')
        A(f'v_lshrrev_b32 v{T1}, 3, v{T0}')
        A(f's_mul_i32 s{S_TMP + 1}, s{S_T}, 40')
        A(f'v_add_u32 v{T1}, s{S_TMP + 1}, v{T1}')
        A(f'v_subrev_u32 v25, 80, v{T1}')
        A(f'v_min_u32 v{T1}, v{T1}, v25')
        A(f'v_lshlrev_b32 v{T1}, 4, v{T1}')
        A(f'v_and_b32 v25, 7, v{T0}')
        A(f'v_mul_u32_u24 v25, 1280, v25')
        A(f'v_add_u32 v{T1}, v{T1}, v25')
        A(f'v_lshlrev_b32 v{T0}, 4, v{T0}')
        A(f'v_add_u32 v{72 + j}, {MEMB}, v{T0}')
        m0t.append(A(f'buffer_load_dwordx4 v[{76 + 4 * j}:{79 + 4 * j}], v{T1}, s[{S_W}:{S_W + 3}], 0 offen'))

    ptrs = {'q': S_PQ, 'k': S_PK, 'v': S_PV}
    stream = [('q', x) for x in range(10)] + [('k', x) for x in range(10)] + [('v', x) for x in range(5, 10)]
    tk = {}
    for i in range(8):
        tk[i] = dma_slot(ptrs[stream[i][0]], stream[i][1], i % 8)
    A.wait(m0t[-1])
    for j in range(3):
        A(f'ds_write_b128 v{72 + j}, v[{76 + 4 * j}:{79 + 4 * j}]')
    pos_of = {i: i % 8 for i in range(24)}
    pos_of[24] = 5
    tko = None
    for i in range(25):
        m, sig = stream[i]
        read_slot(tk[i], pos_of[i], [dest_of((m, sig, 0)), dest_of((m, sig, 1))])
        A.wait_lg0()
        if i + 8 < 24:
            tk[i + 8] = dma_slot(ptrs[stream[i + 8][0]], stream[i + 8][1], i % 8)
        if i == 20:
            tko = dma_wo()
        if i == 21:
            tk[24] = dma_slot(S_PV, stream[24][1], 5)
    for k2 in range(2):
        A.wait(tko[2 * k2 + 1])
        for tau in range(5):
            d = dest_of(('o', k2, tau))
            for u in range(4):
                off = WOS + (64 * k2 + 32 * (u >> 1) + 2 * (u & 1)) * 160 + tau * 32
                A(f'ds_read_b64_tr_b16 {wr(d + 2 * u, 2)}, v{VBO} offset:{off}')
    A.wait_lg0()
    tv = {sig: dma_slot(S_PV, sig, sig) for sig in range(5)}
    for b in LDS_BLOCKS[10:]:
        put_block(park[b], BLK_OF[b])
    A.wait_lg0()
    for sig in range(5):
        read_slot(tv[sig], sig, [TB, TB + 8])
        A.wait_lg0()
        put_block(TB, 2 * sig); put_block(TB + 8, 2 * sig + 1)
        A.wait_lg0()

    if coarse:
        A('s_memrealtime s[82:83]')
        A('s_waitcnt lgkmcnt(0)')
        A('s_mov_b32 s85, s82')
    rebuild()
    lp = A.newlabel('L_mode')
    ld = A.newlabel('L_mode_done')
    A(f'v_lshlrev_b32 v{T0}, 2, v{L}')
    A.flush_hazards()
    A.label(lp)
    A(f'buffer_load_dword v24, v{T0}, s[{S_DBG}:{S_DBG + 3}], 0 offen sc1')
    A.wait_vm0()
    A(f'v_readlane_b32 s{S_ST}, v24, 32')
    A(f'v_readlane_b32 s{S_ST + 1}, v24, 33')
    A(f's_and_b32 s{S_TMP}, s{S_ST}, s{S_ST + 1}')
    A(f's_bfe_u32 s{S_TMP}, s{S_TMP}, 0x10005')
    if mega:
        A(f'v_readlane_b32 s{S_TMP + 1}, v24, 7')
        A(f's_lshr_b32 s{S_TMP + 1}, s{S_TMP + 1}, 7')
        A(f's_and_b32 s{S_TMP}, s{S_TMP}, s{S_TMP + 1}')
        A(f'v_readlane_b32 s{S_TMP + 1}, v24, 40')
        A(f's_lshr_b32 s{S_TMP + 1}, s{S_TMP + 1}, 6')
        A(f's_and_b32 s{S_TMP}, s{S_TMP}, s{S_TMP + 1}')
    A(f's_cmp_eq_u32 s{S_TMP}, 1')
    A.branch(f's_cbranch_scc1 {ld}')
    A('s_sleep 4')
    A(f's_add_u32 s{S_SPIN}, s{S_SPIN}, 1')
    A(f's_cmp_lt_u32 s{S_SPIN}, {SPIN_LIMIT}')
    A.branch(f's_cbranch_scc1 {lp}')
    A.branch(f's_branch {abort_label}')
    A.label(ld)
    A(f's_mov_b32 s{S_FAST}, {0 if force_safe else 1}')
    for t_ in range(2):
        A(f's_bfe_u32 s{S_TMP}, s{S_ST + t_}, 0xa0006')
        A(f's_mul_i32 s{S_TMP}, s{S_TMP}, s{S_TMP}')
        A(f's_bfe_u32 s{S_TMP + 1}, s{S_ST + t_}, 0xe0010')
        A(f's_lshl_b32 s{S_TMP + 1}, s{S_TMP + 1}, 5')
        A(f's_cmp_eq_u32 s{S_TMP}, s{S_TMP + 1}')
        A(f's_cselect_b32 s{S_FAST}, s{S_FAST}, 0')
    A(f's_bfe_u32 s{S_TMP}, s{S_ST}, 0x1001e')
    A(f's_lshl_b32 s{S_TMP}, s{S_TMP}, 13')
    A(f's_add_u32 s{S_PREM}, s{S_PREM}, s{S_TMP}')
    A(f's_add_u32 s{S_PUBR}, s{S_PUBR}, s{S_TMP}')
    if mega:
        for i_ in range(4):
            A(f'v_readlane_b32 s{S_ST + i_}, v24, {36 + i_}')
        A(f's_cmp_eq_u32 s{S_T}, 0')
        A(f's_cselect_b64 s[{S_TABW}:{S_TABW + 1}], s[{S_ST}:{S_ST + 1}], s[{S_ST + 2}:{S_ST + 3}]')
        A(f's_cselect_b64 s[{S_TABR}:{S_TABR + 1}], s[{S_ST + 2}:{S_ST + 3}], s[{S_ST}:{S_ST + 1}]')
    else:
        A(f's_mov_b64 s[{S_TABW}:{S_TABW + 1}], 0')
        A(f's_mov_b64 s[{S_TABR}:{S_TABR + 1}], 0')
    A(f's_mov_b32 s{S_PREM0}, s{S_PREM}')
    A(f's_mov_b32 s{S_PUBR0}, s{S_PUBR}')

    def next_pages():
        A(f's_lshr_b64 s[{S_TABW}:{S_TABW + 1}], s[{S_TABW}:{S_TABW + 1}], 1')
        A(f's_lshr_b64 s[{S_TABR}:{S_TABR + 1}], s[{S_TABR}:{S_TABR + 1}], 1')
        A(f's_add_u32 s{S_PREM0}, s{S_PREM0}, 32768')
        A(f's_and_b32 s{S_TMP}, s{S_TABR}, 1')
        A(f's_lshl_b32 s{S_TMP}, s{S_TMP}, 13')
        A(f's_add_u32 s{S_PREM}, s{S_PREM0}, s{S_TMP}')
        A(f's_and_b32 s{S_TMP}, s{S_TABW}, 1')
        A(f's_lshl_b32 s{S_TMP}, s{S_TMP}, 13')
        A(f's_add_u32 s{S_PUBR}, s{S_PUBR0}, s{S_TMP}')
        A(f's_add_u32 s{S_PUBR0}, s{S_PUBR0}, 32768')

    WS = f's[{S_WS}:{S_WS + 3}]'

    def issue_kx_vx():
        A(f's_lshl_b32 s{S_TMP}, s{S_WV}, 11')
        A(f's_add_u32 m0, s{S_TMP}, {KXB}')
        for n in range(2):
            A(f'buffer_load_dwordx4 v{V_L16}, {WS}, s{S_KX} offen offset:{n * 1024} sc1 lds')
        if 'nokvt' not in dbg:
            A(f's_add_u32 s{S_KX}, s{S_KX}, {32 * 8192}')

    deferred = []

    def kv_wait(need_plus):
        if not mega:
            return
        lp = A.newlabel('L_kv'); ls = A.newlabel('L_kvs')
        A.label(lp)
        A(f's_add_u32 s{S_TMP}, s{S_STEP}, {need_plus}')
        A(f's_cmp_ge_u32 s{S_TMP}, s{S_RDY}')
        A(f's_cbranch_scc1 {ls}')

        def slow():
            A.label(ls)
            A(f'v_lshlrev_b32 v{T0}, 9, v{L}')
            A(f'buffer_load_dwordx2 v[{T1}:{T0}], v{T0}, {WS}, s{S_FKV} offen sc1')
            A('s_waitcnt vmcnt(0)')
            A(f'v_and_b32 v{T1}, v{T1}, v{T0}')
            A(f'v_cmp_eq_u32 vcc, 1, v{T1}')
            A(f's_ff0_i32_b64 s{S_RDY}, vcc')
            A(f's_min_u32 s{S_RDY}, s{S_RDY}, 65')
            A(f's_add_u32 s{S_SPIN}, s{S_SPIN}, 1')
            A(f's_cmp_lt_u32 s{S_SPIN}, {SPIN_LIMIT}')
            A(f's_cbranch_scc1 {lp}')
            A(f's_branch {abort_label}')
        deferred.append(slow)

    def m_flag(tmp=None):
        if not mega or 'noflag' in dbg:
            return
        le = A.newlabel('L_mf')
        A(f's_cmp_lg_u32 s{S_WV}, 3')
        A(f's_cbranch_scc1 {le}')
        A(f'v_mov_b32 v{tmp or T0}, 1')
        A('s_mov_b64 exec, 1')
        A(f'buffer_store_dword v{tmp or T0}, off, {WS}, s{S_FL} sc1')
        A('s_mov_b64 exec, -1')
        A.label(le)
        A(f's_add_u32 s{S_FL}, s{S_FL}, 1024')

    if mega:
        A(f's_lshl_b32 s{S_TMP}, s{S_H}, 4')
        A(f's_add_u32 s{S_FKV}, s{S_TMP}, {F_P:#x}')
        A(f's_mov_b32 s{S_RDY}, 0')
        A(f's_lshl_b32 s{S_TMP}, s{S_H}, 5')
        A(f's_lshl_b32 s{S_TMP + 1}, s{S_T}, 2')
        A(f's_add_u32 s{S_FL}, s{S_TMP}, s{S_TMP + 1}')
        A(f's_add_u32 s{S_FL}, s{S_FL}, {F_M - 1024:#x}')
    A(f's_mov_b32 s{S_STEP}, 0')

    def touch_prep():
        A(f's_add_u32 s{S_TA}, s{S_PLOC}, {MEMB + 10240}')
        A(f's_bfe_u32 s{S_TMP}, s{S_TABR}, 0x10001')
        A(f's_lshl_b32 s{S_TMP}, s{S_TMP}, 13')
        A(f's_add_u32 s{S_TMP}, s{S_TMP}, s{S_PREM0}')
        A(f's_add_u32 s{S_TMP}, s{S_TMP}, {MEMB + 32768}')
        A(f's_cmp_eq_u32 s{S_WV}, 1')
        A(f's_cselect_b32 s{S_TA}, s{S_TMP}, s{S_TA}')
        A(f's_add_u32 s{S_TMP}, s{S_KX}, {2 * VREG - 2 * 2048}')
        A(f's_cmp_eq_u32 s{S_WV}, 2')
        A(f's_cselect_b32 s{S_TA}, s{S_TMP}, s{S_TA}')
        A(f's_add_u32 s{S_TMP}, s{S_KX}, {3 * VREG - 3 * 2048 + WS_VX - WS_KX:#x}')
        A(f's_cmp_eq_u32 s{S_WV}, 3')
        A(f's_cselect_b32 s{S_TA}, s{S_TMP}, s{S_TA}')
        A(f's_cmp_lt_u32 s{S_WV}, 2')
        A(f's_cselect_b32 s{S_TMP}, 39, 63')
        A(f'v_min_u32 v{V_T2}, s{S_TMP}, v{L}')
        A(f'v_lshlrev_b32 v{V_T2}, 7, v{V_T2}')

    def touch():
        A(f'buffer_load_dword v{V_T2}, v{V_T2}, {WS}, s{S_TA} offen sc1')

    def kv_refresh(after):
        if not mega:
            return
        le = A.newlabel('L_kr')
        A(f's_add_u32 s{S_TMP}, s{S_STEP}, 6')
        A(f's_min_u32 s{S_TMP}, s{S_TMP}, 65')
        A(f's_cmp_ge_u32 s{S_RDY}, s{S_TMP}')
        A(f's_cbranch_scc1 {le}')
        A(f'v_lshlrev_b32 v{T0}, 9, v{L}')
        A(f'buffer_load_dwordx2 v[{T1}:{T0}], v{T0}, {WS}, s{S_FKV} offen sc1')
        A('s_waitcnt vmcnt(0)')
        A(f'v_and_b32 v{T1}, v{T1}, v{T0}')
        A(f'v_cmp_eq_u32 vcc, 1, v{T1}')
        A(f's_ff0_i32_b64 s{S_RDY}, vcc')
        A(f's_min_u32 s{S_RDY}, s{S_RDY}, 65')
        A(f's_branch {after}')
        A.label(le)

    kv_wait(0)
    if mega:
        assert kxlate
        A(f's_cmp_eq_u32 s{S_WV}, 2')
        A(f's_cselect_b32 s{S_RDY}, s{S_RDY}, 65')
    issue_kx_vx()
    touch_prep()
    A(f's_mov_b32 s{S_STEP}, 0')
    A.wait_all()
    if stamps:
        A(f's_lshl_b32 s{S_TMP}, s{S_H}, 3')
        A(f's_lshl_b32 s{S_TMP + 1}, s{S_T}, 2')
        A(f's_add_u32 s{S_TMP}, s{S_TMP}, s{S_TMP + 1}')
        A(f's_add_u32 s{S_TMP}, s{S_TMP}, s{S_WV}')
        A(f's_mul_i32 s{S_STO}, s{S_TMP}, {64 * 64}')
        A(f's_add_u32 s{S_STO}, s{S_STO}, {WS_STAMP:#x}')
    if coarse:
        A('s_memrealtime s[88:89]')
        A('s_memtime s[90:91]')
        A('s_waitcnt lgkmcnt(0)')
    top = A.newlabel('L_step')
    done = A.newlabel('L_rec_done')
    A.flush_hazards()
    if align is not None:
        A.raw('.p2align 6')
        for _ in range(align):
            A('s_nop 0')
    A.label(top)
    A.forget()

    def fifth(base):
        return 15 if base == 16 else base + 4

    def poll_issue(soff, base):
        A(f'buffer_load_dwordx4 v[{base}:{base + 3}], v{V_P4}, {WS}, s{soff} offen sc1')
        A(f'buffer_load_dword v{fifth(base)}, v{V_P1}, {WS}, s{soff} offen sc1')

    def poll_loop(soff, bases, half, preissued, gap=0):
        k = len(bases)
        lp = A.newlabel('L_poll'); ld = A.newlabel('L_polld')
        if not preissued:
            for j, b in enumerate(bases):
                poll_issue(soff, b)
                if gap and j < k - 1:
                    A(f's_nop {gap}')
        A.label(lp)
        wins = []
        for j, base in enumerate(bases):
            A(f's_waitcnt vmcnt({2 * (k - 1)})')
            A(f'v_max3_u32 v{T0}, v{base}, v{base + 1}, v{base + 2}')
            A(f'v_max3_u32 v{T0}, v{T0}, v{base + 3}, v{fifth(base)}')
            A(f'v_cmp_eq_u32 vcc, -1, v{T0}')
            lw = A.newlabel('L_pollw'); wins.append(lw)
            A(f's_cbranch_vccz {lw}')
            poll_issue(soff, base)
        A(f's_add_u32 s{S_SPIN}, s{S_SPIN}, 1')
        A(f's_cmp_lt_u32 s{S_SPIN}, {SPIN_LIMIT}')
        A(f's_cbranch_scc1 {lp}')
        A(f's_branch {abort_label}')
        for j, base in enumerate(bases):
            A.label(wins[j])
            A(f'ds_write_b128 v{V_P4}, v[{base}:{base + 3}] offset:{half * 5120}')
            A(f'ds_write_b32 v{V_P1}, v{fifth(base)} offset:{half * 5120}')
            if j < k - 1:
                A(f's_branch {ld}')
        A.label(ld)

    def a_read(sig, slot):
        return A(f'ds_read_b128 v[{AR + 4 * slot}:{AR + 4 * slot + 3}], v{V_KX} offset:{sig * 1024}')

    def smf(d, a, b):
        A(f'v_smfmac_f32_16x16x64_bf16 v[{d}:{d + 3}], v[{a}:{a + 3}], {wr(b, 8)}, v{V_IDX}')

    def SL(i):
        return 20 + 4 * i

    def blk_load(blk, b):
        A(f'ds_read_b128 v[{b}:{b + 3}], v{V_L16} offset:{blk * 2048}')
        return A(f'ds_read_b128 v[{b + 4}:{b + 7}], v{V_L16} offset:{blk * 2048 + 1024}')

    def zero(base, n):
        for r in range(base, base + n, 2):
            A(f'v_mov_b64 v[{r}:{r + 1}], 0')

    def poll_check(base, lwin):
        A(f'v_max3_u32 v{T0}, v{base}, v{base + 1}, v{base + 2}')
        A(f'v_max3_u32 v{T0}, v{T0}, v{base + 3}, v{fifth(base)}')
        A(f'v_cmp_eq_u32 vcc, -1, v{T0}')
        A(f's_cbranch_vccz {lwin}')

    def poll_put(base, half):
        A(f'ds_write_b128 v{V_P4}, v[{base}:{base + 3}] offset:{half * 5120}')
        A(f'ds_write_b32 v{V_P1}, v{fifth(base)} offset:{half * 5120}')

    stamp(0)
    zero(Q0, 24)
    lseq = [(m, sig, tau) for sig in range(5) for (m, tau) in (('v', 0), ('q', 0), ('k', 1), ('q', 1), ('v', 1), ('k', 0))]
    lfed = [b for b in lseq if b in BLK_OF]
    LR = [64, 72, 56]
    wt = {}; wreg_ = {}
    nl = [0]
    pend = []

    def half(blk, reg, hf):
        return A(f'ds_read_b128 v[{reg + 4 * hf}:{reg + 4 * hf + 3}], v{V_L16} offset:{blk * 2048 + hf * 1024}')

    def flush_pend():
        while pend:
            tab, b, reg = pend.pop(0)
            tab[b] = half(BLK_OF[b], reg, 1)

    def lnext(reg, now=False):
        if nl[0] < len(lfed):
            if reg == LR[2] and nl[0] >= len(lfed) - 3:
                return
            b = lfed[nl[0]]; nl[0] += 1
            half(BLK_OF[b], reg, 0); wreg_[b] = reg
            pend.append((wt, b, reg))
            if now:
                flush_pend()

    for r_ in LR:
        lnext(r_, True)
    l_s0a = A.newlabel('L_s0a')
    A(f's_cmp_eq_u32 s{S_STEP}, 0' if cut is None else 's_cmp_eq_u32 0, 0')
    A(f's_cbranch_scc1 {l_s0a}')
    poll_loop(S_PLOC, [16, VXR], 0, False, gap=bgap)
    A.label(l_s0a)
    if rp[0] < 0:
        poll_issue(S_PREM, 80)
    A.wait_lg0()
    A('s_barrier')
    stamp(1)
    if mega:
        lf = A.newlabel('L_lastf'); lb = A.newlabel('L_lastb')
        A(f's_cmp_eq_u32 s{S_STEP}, {nsteps - 1}')
        A(f's_cbranch_scc1 {lf}')
        A.label(lb)

        def lastflag():
            A.label(lf)
            m_flag()
            A(f's_branch {lb}')
        deferred.append(lastflag)
    at = {}

    ACC = {'q': Q0, 'k': K0, 'v': VV0}

    def local_slot(sig, extra=(), lo=0, hi=6):
        a = AR + 4 * (sig % 3)
        extra = list(extra)
        first = lseq[6 * sig + lo]
        A.wait(at[sig], wt.get(first))
        for b in lseq[6 * sig + lo:6 * sig + hi]:
            m, _, tau = b
            if extra and b != first:
                extra.pop(0)()
            if b in BLK_OF:
                A.wait(wt[b])
                smf(ACC[m] + 4 * tau, a, wreg_[b])
                flush_pend()
                lnext(wreg_[b])
            else:
                smf(ACC[m] + 4 * tau, a, REG_OF[b])
                flush_pend()
        for f_ in extra:
            f_()
        if sig + 3 < 5:
            at[sig + 3] = a_read(sig + 3, sig % 3)

    RS = [80, 16]
    for j in range(3):
        at[j] = a_read(j, j)
    for sig in range(4):
        if sig == rp[0]:
            poll_issue(S_PREM, RS[0])
        if sig == rp[1]:
            poll_issue(S_PREM, RS[1])
        local_slot(sig)
        if sig == 2 and early:
            hs_ = [h_ for h_ in A.hist if h_.kind in ('mfma', 'valu')]
            lne = A.newlabel('L_ne')
            A(f's_mov_b32 s{S_EARLY}, s{S_STEP}')
            A('s_waitcnt vmcnt(2)')
            base = RS[0]
            A(f'v_max3_u32 v{T0}, v{base}, v{base + 1}, v{base + 2}')
            A(f'v_max3_u32 v{T0}, v{T0}, v{base + 3}, v{fifth(base)}')
            A(f'v_cmp_eq_u32 vcc, -1, v{T0}')
            lre = A.newlabel('L_re')
            A(f's_cbranch_vccnz {lre}')
            A(f's_cmp_eq_u32 s{S_STEP}, 0')
            A(f's_cbranch_scc1 {lne}')
            li, ld_ = A.lg_issued, A.lg_done
            poll_put(base, 1)
            A.lg_issued, A.lg_done = li, ld_
            A(f's_mov_b32 s{S_EARLY}, 0')
            A.label(lne)

            def reissue(lre=lre, lne=lne, base=base):
                A.label(lre)
                poll_issue(S_PREM, base)
                A(f's_branch {lne}')
            deferred.append(reissue)
            A.hist = hs_
    if s4:
        local_slot(4, hi=s4)
    stamp(2)
    rslot = [0, 2, 3, 4, 1]
    l_s0 = A.newlabel('L_rs0')
    A(f's_cmp_eq_u32 s{S_EARLY if early else S_STEP}, 0' if cut is None else 's_cmp_eq_u32 0, 0')
    A(f's_cbranch_scc1 {l_s0}')
    hs_ = [h_ for h_ in A.hist if h_.kind in ('mfma', 'valu')]
    for b_ in RS[2:]:
        poll_issue(S_PREM, b_)
    poll_loop(S_PREM, RS[::-1] if early else RS, 1, True)
    A.label(l_s0)
    A.hist = hs_
    A.wait_lg0()
    A('s_barrier')
    def ar_(j):
        def f():
            at[5 + j] = a_read(5 + j, rslot[j])
        return f
    ar_(0)()
    local_slot(4, [ar_(1), ar_(2), ar_(3),
                   lambda: A(f'buffer_load_dwordx4 v[{VX0}:{VX0 + 3}], v{V_L16}, {WS}, s{S_VX} offen sc1'),
                   lambda: A(f'buffer_load_dwordx4 v[{VX1}:{VX1 + 3}], v{V_L16}, {WS}, s{S_VX} offen offset:1024 sc1')], lo=s4)
    assert nl[0] == len(lfed) and not pend
    at[9] = a_read(9, rslot[4])
    stamp(3)
    RA = [AR + 4 * rslot[j] for j in range(5)]

    def halfsum_ops(x, y, off):
        ops = []
        for r in range(4):
            ops.append(f'v_permlane32_swap_b32 v{x + r}, v{y + r}')
        for r in range(0, 4, 2):
            ops.append(f'v_pk_add_f32 v[{x + r}:{x + r + 1}], v[{x + r}:{x + r + 1}], v[{y + r}:{y + r + 1}]')
        ops.append(f'v_cvt_pk_bf16_f32 v{y}, v{x}, v{x + 1}')
        ops.append(f'v_cvt_pk_bf16_f32 v{y + 1}, v{x + 2}, v{x + 3}')
        if off is not None:
            ops.append(f'ds_write_b64 v{V_QKW}, v[{y}:{y + 1}] offset:{off}')
        return ops

    VM, VMA, VMB = VV1, VV0, VV0 + 2
    def pub_read(tmp):
        t = None
        A(f'v_add_u32 v{tmp + 3}, s{S_W512}, v{V_QKR}')
        for rho in range(2):
            t = A(f'ds_read_b64_tr_b16 v[{tmp + 2 * rho}:{tmp + 2 * rho + 1}], v{tmp + 3} offset:{2048 + rho * 256}')
        return t

    def pub_sel(tmp):
        return [f'v_cndmask_b32 v{tmp + r}, v{tmp + r}, v{VM + r}, s[{S_TMASK}:{S_TMASK + 1}]' for r in range(2)]

    def pub_store(tmp):
        if 'nopub' not in dbg:
            A(f'buffer_store_dwordx4 v[{tmp}:{tmp + 3}], v{V_L16}, {WS}, s{S_KM} offen sc1' + (' nt' if 'pubnt' in dbg else ''))

    QFR = [SL(0), SL(1), SL(11), SL(12)]
    S0, S1 = SL(15), SL(16)
    qt = {}; xt = {}; xreg = {}; last = [None]

    def xread(i, b):
        kap, kt_ = i >> 1, i & 1
        xt[i] = A(f'ds_read_b128 v[{b}:{b + 3}], v{V_KX} offset:{KXB - MEMB + (kt_ * 4 + kap) * 1024}')
        xreg[i] = b

    def trread(b, off):
        t = None
        for rho in range(2):
            t = A(f'ds_read_b64_tr_b16 v[{b + 2 * rho}:{b + 2 * rho + 1}], v{V_QKR} offset:{off + rho * 256}')
        return t

    def take(fl, n):
        for _ in range(n):
            if fl:
                t = A(fl.pop(0))
                if t:
                    last[0] = t

    kfed = [b for b in LDS_BLOCKS if b[0] == 'k' and b[1] >= 5]
    kft = {}; kfr = {}

    def kf_load(reg):
        if kfed:
            b = kfed.pop(0)
            half(BLK_OF[b], reg, 0); kfr[b] = reg
            pend.append((kft, b, reg))

    def ksm(i):
        b = ('k', 5 + (i >> 1), i & 1)
        if b in BLK_OF:
            A.wait(kft[b])
            smf(K0 + 4 * (i & 1), RA[i >> 1], kfr[b])
            flush_pend()
            kf_load(kfr[b])
        else:
            smf(K0 + 4 * (i & 1), RA[i >> 1], REG_OF[b])
            flush_pend()

    def vsm(n):
        smf(VV0 + 4 * (n & 1), RA[(n - 10) // 2], REG_OF['v', n >> 1, n & 1])

    def xsm(i):
        kap, kt_ = i >> 1, i & 1
        acc = (S0, S1)[kt_]
        A.wait(qt[kap], xt[i])
        c = '0' if kap == 0 else f'v[{acc}:{acc + 3}]'
        A(f'v_mfma_f32_16x16x32_bf16 v[{acc}:{acc + 3}], v[{xreg[i]}:{xreg[i] + 3}], v[{QFR[kap]}:{QFR[kap] + 3}], {c}')

    for n_, j in enumerate((0, 1, 2, 3, 4)):
        A.wait(at[8] if j == 0 else at[5 + j])
        smf(Q0, RA[j], REG_OF['q', 5 + j, 0])
        if n_ == 0:
            xread(0, SL(13))
        if n_ == 1:
            touch()
        if n_ == 2:
            kf_load(SL(11))
        if n_ == 3:
            A('s_waitcnt vmcnt(3)')
            kf_load(SL(15))
        smf(Q1, RA[j], REG_OF['q', 5 + j, 1])
        flush_pend()
        if n_ == 0:
            xread(1, SL(14))
    fill = halfsum_ops(Q0, Q1, 0)
    ksm(0); ksm(1); ksm(2); ksm(3)
    for i in range(4, 8):
        take(fill, 1); ksm(i)
    take(fill, 3); ksm(8); take(fill, 2); assert not fill
    qw = last[0]
    ksm(9)
    stamp(4)
    vsm(10); vsm(11)
    xread(2, RA[0])
    vsm(12)
    A.wait(qw)
    A('s_barrier')
    qt[0] = trread(QFR[0], 0)
    fill = halfsum_ops(K0, K1, 2048)
    vsm(13); take(fill, 2)
    xread(3, RA[1])
    vsm(14); take(fill, 2)
    vsm(15); take(fill, 3)
    xsm(0); take(fill, 2); assert not fill
    kw = last[0]
    qt[1] = trread(QFR[1], 512)
    xsm(1); xread(4, xreg[0])
    vsm(16); xread(5, xreg[1])
    qt[2] = trread(QFR[2], 1024)
    vsm(17)
    qt[3] = trread(QFR[3], 1536)
    xsm(2); xread(6, xreg[2])
    xsm(3); xread(7, xreg[3])
    xsm(4)
    if kxlate:
        A.wait(kw)
    else:
        A.wait_lg0()
    A('s_barrier')
    stamp(5)
    KF = [SL(2), SL(3), RA[2], RA[3]]
    kt = {}
    kt[0] = trread(KF[0], 2048)
    kt[1] = trread(KF[1], 2048 + 512)
    xsm(5)
    kt[2] = trread(KF[2], 2048 + 1024)
    xsm(6)
    kt[3] = trread(KF[3], 2048 + 1536)
    xsm(7)
    PUBT = xreg[4]
    pbt = pub_read(PUBT)
    vsm(18)
    hs_ = [h_ for h_ in A.hist if h_.kind in ('mfma', 'valu')]
    kv_wait(1)
    A.hist = hs_
    if not kxlate:
        issue_kx_vx()
    vsm(19)
    Sm = xreg[6]
    stamp(6)
    VM, VMA, VMB = VV1, VV0, VV0 + 2
    M_, M2 = T1, T0

    def msm(kap):
        b = KF[kap]
        A.wait(qt[kap], kt[kap])
        c = '0' if kap == 0 else f'v[{Sm}:{Sm + 3}]'
        A(f'v_mfma_f32_16x16x32_bf16 v[{Sm}:{Sm + 3}], v[{b}:{b + 3}], v[{QFR[kap]}:{QFR[kap] + 3}], {c}')

    fx = [f'v_max3_f32 v{M_}, v{S0}, v{S0 + 1}, v{S0 + 2}',
          f'v_max3_f32 v{M2}, v{S0 + 3}, v{S1}, v{S1 + 1}',
          f'v_max3_f32 v{M_}, v{M_}, v{S1 + 2}, v{S1 + 3}',
          f'v_max_f32 v{M_}, v{M_}, v{M2}',
          f'v_mov_b32 v{M2}, v{M_}']
    fv = halfsum_ops(VV0, VV1, None)
    for r in range(2):
        fv.append(f'v_cndmask_b32 v{VMA + r}, 0, v{VM + r}, s[{S_MLO}:{S_MLO + 1}]')
        fv.append(f'v_cndmask_b32 v{VMB + r}, v{VM + r}, 0, s[{S_MLO}:{S_MLO + 1}]')
    msm(0); take(fx, 2)
    A('s_waitcnt vmcnt(1)')
    msm(1)
    take(fx, 3); msm(2); take(fv, 1)
    msm(3)
    A(f'v_permlane32_swap_b32 v{M_}, v{M2}')
    A(f'v_max_f32 v{M_}, v{M_}, v{M2}')
    A.wait(pbt)
    take(fv, 7)
    take(pub_sel(PUBT), 2)
    if cut is None:
        A(f's_cmp_eq_u32 s{S_STEP}, {nsteps - 1}')
        A(f's_cbranch_scc1 {done}')
    stamp(7)

    used = {Sm, S0, S1, VV0, VV1}
    free = [SL(i) for i in range(17) if SL(i) not in used]
    P01, PM, O0, O1 = SL(2), SL(3), SL(0), SL(1)
    for x in (P01, PM, O0, O1):
        free.remove(x)
    free.remove(PUBT)
    ONES, LS = free[0], free[1]
    OAS = free[2:7]
    zf = [f'v_mov_b64 v[{r}:{r + 1}], 0' for x in OAS for r in (x, x + 2)]
    A(f'v_max3_f32 v{M_}, v{M_}, v{Sm}, v{Sm + 1}')
    A(f'v_max3_f32 v{M_}, v{M_}, v{Sm + 2}, v{Sm + 3}')
    A(f'v_mov_b32 v{M2}, v{M_}')
    take(fv, 2)
    A(f'v_permlane16_swap_b32 v{M_}, v{M2}')
    A(f'v_max_f32 v{M_}, v{M_}, v{M2}')
    A(f'v_mul_f32 v{M_}, s{S_C}, v{M_}')

    def pkf(x):
        A(f'v_pk_fma_f32 v[{x}:{x + 1}], v[{x}:{x + 1}], s[{S_C - 1}:{S_C}], v[{M_}:{M_ + 1}] op_sel:[0,1,0] op_sel_hi:[1,1,0] neg_lo:[0,0,1] neg_hi:[0,0,1]')
    assert S_C % 2 == 1 and M_ % 2 == 0
    xs = [S0 + r for r in range(4)] + [S1 + r for r in range(4)]
    for j in range(4):
        pkf(xs[2 * j])
    for x in xs:
        A(f'v_exp_f32 v{x}, v{x}')
    pkf(Sm); pkf(Sm + 2)
    for j in range(4):
        A(f'v_cvt_pk_bf16_f32 v{P01 + j}, v{xs[2 * j]}, v{xs[2 * j + 1]}')
    A(f'v_exp_f32 v{Sm}, v{Sm}')
    A(f'v_exp_f32 v{Sm + 1}, v{Sm + 1}')
    A(f'v_mfma_f32_16x16x32_bf16 v[{O0}:{O0 + 3}], v[{VX0}:{VX0 + 3}], v[{P01}:{P01 + 3}], 0')
    pub_store(PUBT)
    A(f'v_exp_f32 v{Sm + 2}, v{Sm + 2}')
    A(f'v_mov_b64 v[{ONES}:{ONES + 1}], s[{S_ONE}:{S_ONE + 1}]')
    A(f'v_mfma_f32_16x16x32_bf16 v[{O1}:{O1 + 3}], v[{VX1}:{VX1 + 3}], v[{P01}:{P01 + 3}], 0')
    A(f'v_exp_f32 v{Sm + 3}, v{Sm + 3}')
    A(f'v_mov_b64 v[{ONES + 2}:{ONES + 3}], s[{S_ONE}:{S_ONE + 1}]')
    A(f'v_cvt_pk_bf16_f32 v{PM}, v{Sm}, v{Sm + 1}')
    A(f'v_cvt_pk_bf16_f32 v{PM + 1}, v{Sm + 2}, v{Sm + 3}')
    A(f'v_mfma_f32_16x16x32_bf16 v[{LS}:{LS + 3}], v[{ONES}:{ONES + 3}], v[{P01}:{P01 + 3}], 0')
    take(fv, 9)
    A(f'v_mov_b64 v[{PM + 2}:{PM + 3}], s[{S_HALF}:{S_HALF + 1}]')
    A(f'v_xor_b32 v{M2}, 32, v{V_OW0}')
    A(f'v_mfma_f32_16x16x16_bf16 v[{LS}:{LS + 3}], v[{PM + 2}:{PM + 3}], v[{PM}:{PM + 1}], v[{LS}:{LS + 3}]')
    take(zf, 2)
    A(f'v_mfma_f32_16x16x16_bf16 v[{O0}:{O0 + 3}], v[{VMA}:{VMA + 1}], v[{PM}:{PM + 1}], v[{O0}:{O0 + 3}]')
    take(zf, 2)
    A(f'v_mfma_f32_16x16x16_bf16 v[{O1}:{O1 + 3}], v[{VMB}:{VMB + 1}], v[{PM}:{PM + 1}], v[{O1}:{O1 + 3}]')
    take(zf, 2)
    A(f'v_rcp_f32 v{M_}, v{LS}')
    take(zf, 9)
    for tau in range(2):
        o = O0 + 4 * tau
        for r in (0, 2):
            A(f'v_pk_mul_f32 v[{o + r}:{o + r + 1}], v[{o + r}:{o + r + 1}], v[{M_}:{M_ + 1}] op_sel_hi:[1,0]')
        A(f'v_cvt_pk_bf16_f32 v{o}, v{o}, v{o + 1}')
        A(f'v_cvt_pk_bf16_f32 v{o + 1}, v{o + 2}, v{o + 3}')
        owt = A(f'ds_write_b64 v{V_OW0 if tau == 0 else M2}, v[{o}:{o + 1}]')
    hs_ = [h_ for h_ in A.hist if h_.kind in ('mfma', 'valu')]
    m_flag(LS)
    A.hist = hs_
    A.wait(owt)
    A('s_barrier')
    stamp(8)
    OF = [O0, O1]
    G0, G1, X4 = P01, PM, ONES

    def post(n):
        x, y = OAS[2 * n], OAS[2 * n + 1]
        ops = [f'v_permlane32_swap_b32 v{x + r}, v{y + r}' for r in range(4)]
        ops += [f'v_pk_add_f32 v[{x + r}:{x + r + 1}], v[{x + r}:{x + r + 1}], v[{y + r}:{y + r + 1}]' for r in (0, 2)]
        ops += [f'v_cvt_pk_bf16_f32 v{G0 + 2 * n}, v{x}, v{x + 1}', f'v_cvt_pk_bf16_f32 v{G0 + 2 * n + 1}, v{x + 2}, v{x + 3}']
        return ops

    lsafe = A.newlabel('L_psafe'); lpe = A.newlabel('L_pend')

    def outproj(sc):
        x, y = OAS[4], X4
        p4 = [f'v_mov_b64 v[{y}:{y + 1}], v[{x}:{x + 1}]', f'v_mov_b64 v[{y + 2}:{y + 3}], v[{x + 2}:{x + 3}]']
        p4 += [f'v_permlane32_swap_b32 v{x + r}, v{y + r}' for r in range(4)]
        p4 += [f'v_pk_add_f32 v[{x + r}:{x + r + 1}], v[{x + r}:{x + r + 1}], v[{y + r}:{y + r + 1}]' for r in (0, 2)]
        p4 += [f'v_cvt_pk_bf16_f32 v{G1}, v{x}, v{x + 1}', f'v_cvt_pk_bf16_f32 v{G1 + 1}, v{x + 2}, v{x + 3}',
               f'v_mov_b64 v[{G1 + 2}:{G1 + 3}], v[{G1}:{G1 + 1}]']
        worder = [(0, 4), (1, 4), (0, 0), (0, 1), (1, 0), (1, 1), (0, 2), (0, 3), (1, 2), (1, 3)]
        nfill = [0, 0, 0, 0, 0, 0, 2, 1, 1, 2]
        pre = [f'v_and_b32 v{T0}, 0x1fff, v{V_PST}',
               f'v_add_u32 v{V_P4}, s{S_W1280}, v{V_KX}', f'v_lshl_add_u32 v{V_P1}, v{L}, 2, s{S_P1B}']
        for i, (k2, tau) in enumerate(worder):
            if i < 2:
                A(f's_waitcnt lgkmcnt({1 - i})')
            smf(OAS[tau], OF[k2], REG_OF['o', k2, tau])
            if i in (1, 5):
                A(f'buffer_load_dwordx4 v{V_L16}, {WS}, s{S_KX} offen offset:{(i // 5) * 1024} sc1 lds')
            elif i >= 2:
                take(pre, 1)
            take(p4, nfill[i])
        take(p4, 20)
        take(post(0), 9)
        A(f'v_permlane16_swap_b32 v{G1}, v{G1 + 2}')
        A(f'v_permlane16_swap_b32 v{G1 + 1}, v{G1 + 3}')
        A(f'v_and_or_b32 v{G1}, v{G1}, -2, s{S_PAR}')
        pp = post(1)
        take(pp, 1)
        A(f'buffer_store_dwordx4 v[{G1}:{G1 + 3}], v{T0}, {WS}, s{S_PS1} offen{sc}')
        take(pp, 9)
        A(f'v_permlane16_swap_b32 v{G0}, v{G0 + 2}')
        A(f'v_permlane16_swap_b32 v{G0 + 1}, v{G0 + 3}')
        A(f'v_and_or_b32 v{G0}, v{G0}, -2, s{S_PAR}')
        A(f'buffer_store_dwordx4 v[{G0}:{G0 + 3}], v{V_PST}, {WS}, s{S_PS0} offen{sc}')

    for k2 in range(2):
        A(f'ds_read_b128 v[{OF[k2]}:{OF[k2] + 3}], v{V_OR} offset:{128 * k2}')
    A(f's_cmp_eq_u32 s{S_FAST}, 0')
    A(f's_cbranch_scc1 {lsafe}')
    saved = list(A.hist)

    def safe_variant():
        A.label(lsafe)
        A.hist = list(saved)
        outproj(' sc1')
        A.branch(f's_branch {lpe}')
    deferred.append(safe_variant)
    outproj('')
    A.lg_done = A.lg_issued
    A.flush_hazards()
    A.label(lpe)
    stamp(9)
    A('s_waitcnt vmcnt(5)')
    A(f's_add_u32 s{S_PLOC}, s{S_PLOC}, 10240')
    A(f's_add_u32 s{S_VX}, s{S_VX}, {32 * 8192}')
    A(f's_add_u32 s{S_KX}, s{S_KX}, {32 * 8192}')
    A(f's_add_u32 s{S_KM}, s{S_KM}, {32 * 4096}')
    next_pages()
    touch_prep()
    lnr = A.newlabel('L_nored'); lnr2 = A.newlabel('L_nored2')
    A(f's_cmp_ge_u32 s{S_RED}, 40')
    A(f's_cbranch_scc1 {lnr2}')
    RBS = [20, 44, 60][:ka]
    SEL = 36
    DD = 80
    lp = A.newlabel('L_pa'); lw = A.newlabel('L_paw')

    def pa_issue(RB):
        for j in range(4):
            A(f'buffer_load_dwordx4 v[{RB + 4 * j}:{RB + 4 * j + 3}], v{V_L16}, {WS}, s{S_PA} offen offset:{1024 * j} sc1')
    rebuild_pub()
    A(f'v_and_b32 v{T0}, 1, v{L}')
    A(f'v_lshlrev_b32 v{T0}, 4, v{T0}')
    A(f'v_mov_b32 v{T1}, 0x3f80')
    A(f'v_lshlrev_b32 v{T0}, v{T0}, v{T1}')
    A(f'v_bfe_u32 v{T1}, v{L}, 1, 2')
    for d in range(4):
        A(f'v_cmp_eq_u32 vcc, {d}, v{T1}')
        A(f'v_cndmask_b32 v{SEL + d}, 0, v{T0}, vcc')
    for j, RB in enumerate(RBS):
        if adelay[j]:
            for _ in range(adelay[j]):
                A('s_nop 15')
        pa_issue(RB)

    def tt(f):
        t = 0
        for a_ in range(2):
            for b_ in range(2):
                for c_ in range(2):
                    if f(a_, b_, c_):
                        t |= 1 << ((a_ << 2) | (b_ << 1) | c_)
        return t
    t1 = tt(lambda a, b, c: (a ^ c) | (b ^ c))
    t2 = tt(lambda a, b, c: (a | b) & c)
    A.flush_hazards()
    A.label(lp)
    for RB in RBS:
        A(f's_waitcnt vmcnt({4 * (ka - 1)})')
        chk = [f'v_bitop3_b32 v{T0}, v{RB}, v{RB + 4}, s{S_PAR} bitop3:{t1:#x}',
               f'v_bitop3_b32 v{T1}, v{RB + 8}, v{RB + 12}, s{S_PAR} bitop3:{t1:#x}',
               f'v_bitop3_b32 v{T0}, v{T0}, v{T1}, 1 bitop3:{t2:#x}',
               f'v_cmp_ne_u32 vcc, 0, v{T0}']
        if spec:
            for j in range(4):
                c = '0' if j == 0 else f'v[{DD}:{DD + 3}]'
                A(f'v_mfma_f32_16x16x32_bf16 v[{DD}:{DD + 3}], v[{RB + 4 * j}:{RB + 4 * j + 3}], v[{SEL}:{SEL + 3}], {c}')
                A(chk[j])
            A(f's_cbranch_vccz {lw}')
        else:
            for j in range(4):
                A(chk[j])
            A(f's_cbranch_vccz {lw}_{RB}')
        pa_issue(RB)
    A(f's_add_u32 s{S_SPIN}, s{S_SPIN}, 1')
    A(f's_cmp_lt_u32 s{S_SPIN}, {SPIN_LIMIT}')
    A(f's_cbranch_scc1 {lp}')
    A(f's_branch {abort_label}')
    if not spec:
        for RB in RBS:
            A.label(f'{lw}_{RB}')
            for j in range(4):
                c = '0' if j == 0 else f'v[{DD}:{DD + 3}]'
                A(f'v_mfma_f32_16x16x32_bf16 v[{DD}:{DD + 3}], v[{RB + 4 * j}:{RB + 4 * j + 3}], v[{SEL}:{SEL + 3}], {c}')
            A(f's_branch {lw}')
    A.label(lw)
    A('s_nop 6')
    stamp(10)
    RB = 76
    A(f'v_mov_b64 v[{RB}:{RB + 1}], v[{DD}:{DD + 1}]')
    A(f'v_mov_b64 v[{RB + 2}:{RB + 3}], v[{DD + 2}:{DD + 3}]')
    for r in range(4):
        A(f'v_permlane32_swap_b32 v{RB + r}, v{DD + r}')
    for r in (0, 2):
        A(f'v_pk_add_f32 v[{RB + r}:{RB + r + 1}], v[{RB + r}:{RB + r + 1}], v[{DD + r}:{DD + r + 1}]')
    a0 = RB
    A(f'v_cvt_pk_bf16_f32 v{a0}, v{RB}, v{RB + 1}')
    A(f'v_cvt_pk_bf16_f32 v{a0 + 1}, v{RB + 2}, v{RB + 3}')
    A(f'v_min_u32 v{a0}, -2, v{a0}')
    A(f'v_min_u32 v{a0 + 1}, -2, v{a0 + 1}')
    A('s_mov_b64 exec, 0x00ff00ff')
    A(f'buffer_store_dwordx2 v[{a0}:{a0 + 1}], v{V_PUB}, {WS}, s{S_PUBR} offen sc1')
    lps = A.newlabel('L_pubs'); lpd = A.newlabel('L_pubd')
    A(f's_cmp_eq_u32 s{S_FAST}, 0')
    A(f's_cbranch_scc1 {lps}')
    A(f'buffer_store_dwordx2 v[{a0}:{a0 + 1}], v{V_PUB}, {WS}, s{S_PUBL} offen')
    A(f's_branch {lpd}')
    A.label(lps)
    A(f'buffer_store_dwordx2 v[{a0}:{a0 + 1}], v{V_PUB}, {WS}, s{S_PUBL} offen sc1')
    A.label(lpd)
    A('s_mov_b64 exec, -1')
    A('s_waitcnt vmcnt(2)')
    A.branch(f's_branch {lnr}')
    A.label(lnr2)
    kv_refresh(lnr)
    if backoff:
        A(f's_sleep {backoff}')
    A.label(lnr)
    stamp(11)
    if stamps:
        A('s_waitcnt lgkmcnt(0)')
        for i in range(12):
            A(f'v_writelane_b32 v{T0}, s{S_ST + 2 * i}, {i}')
        A(f'v_lshlrev_b32 v{T1}, 2, v{L}')
        A('s_mov_b64 exec, 0xfff')
        A(f'buffer_store_dword v{T0}, v{T1}, {WS}, s{S_STO} offen')
        A('s_mov_b64 exec, -1')
        A(f's_add_u32 s{S_STO}, s{S_STO}, 64')
    if cut is not None:
        A.label('L_cut')
        A.wait_all()
        rebuild()
        A.wait_all()
        A('s_sleep 8')
        A(f's_cmp_eq_u32 s{S_STEP}, {nsteps - 1}')
        A(f's_cbranch_scc1 {done}')
    A(f's_add_u32 s{S_PUBL}, s{S_PUBL}, 10240')
    A(f's_xor_b32 s{S_PAR}, s{S_PAR}, 1')
    A(f's_add_u32 s{S_STEP}, s{S_STEP}, 1')
    A.branch(f's_branch {top}')
    for f_ in deferred:
        f_()
    A.label(done)
    pub_store(PUBT)
    A.wait_all()
    A('s_barrier')
    m_flag()
    if coarse:
        A('s_memrealtime s[92:93]')
        A('s_memtime s[94:95]')
        A('s_waitcnt lgkmcnt(0)')
        A(f's_lshl_b32 s{S_TMP}, s{S_H}, 3')
        A(f's_lshl_b32 s{S_TMP + 1}, s{S_T}, 2')
        A(f's_add_u32 s{S_TMP}, s{S_TMP}, s{S_TMP + 1}')
        A(f's_add_u32 s{S_TMP}, s{S_TMP}, s{S_WV}')
        A(f's_lshl_b32 s{S_TMP}, s{S_TMP}, 6')
        A(f's_add_u32 s{S_TMP}, s{S_TMP}, {WS_STAMP + 0x200000:#x}')
        A('s_mov_b64 exec, 1')
        A(f'v_mov_b32 v{T1}, s{S_TMP}')
        for i in range(6):
            A(f'v_mov_b32 v{T0}, s{84 + 2 * i}')
            A(f'buffer_store_dword v{T0}, v{T1}, {WS}, 0 offen offset:{4 * i}')
        A(f'v_mov_b32 v{T0}, s{S_SPIN}')
        A(f'buffer_store_dword v{T0}, v{T1}, {WS}, 0 offen offset:24')
        A(f'v_mov_b32 v{T0}, s85')
        A(f'buffer_store_dword v{T0}, v{T1}, {WS}, 0 offen offset:28')
        A.wait_all()
```

```python
import math
import struct
from asmlib import *
from layout import *

SPIN_LIMIT = 1 << 17

F_H = WS_FLAG + 0x0
F_KV = WS_FLAG + 0x1000
F_M = WS_FLAG + 0x4000
F_O = WS_FLAG + 0x20000
F_P = WS_FLAG + 0x18000
F_OP = WS_FLAG + 0x24000
F_H2 = WS_FLAG + 0x28000
F_ACT = WS_FLAG + 0x2C000
F_END = WS_FLAG + 0x30000

S_WS, S_W, S_DBG = 4, 8, 12
S_P0, S_P1 = 16, 17
S_WV, S_SEG = 18, 19
S_TMP = 41
S_PTR = 44
S_SPIN = 46
S_STG = 47
WS = f's[{S_WS}:{S_WS + 3}]'
WW = f's[{S_W}:{S_W + 3}]'
DBG = f's[{S_DBG}:{S_DBG + 3}]'

V_L, V_G, V_I, V_L16, V_T0, V_T1, V_T2, V_T3 = range(8)


def f32bits(x):
    return struct.unpack('<I', struct.pack('<f', x))[0]


DEBUG_STAMPS = [False]
CAL_INV = [False]


def tstamp(A, idx):
    if not DEBUG_STAMPS[0]:
        return
    A('s_memrealtime s[92:93]')
    A('s_waitcnt lgkmcnt(0)')
    A('s_lshl_b32 s93, s99, 3')
    A('s_or_b32 s93, s93, s98')
    A('s_lshl_b32 s93, s93, 6')
    A(f's_add_u32 s93, s93, {WS_STAMP + 0x380000 + 4 * idx:#x}')
    A(f'v_mov_b32 v250, s92')
    A('s_mov_b64 exec, 1')
    A(f'buffer_store_dword v250, off, {WS}, s93')
    A('s_mov_b64 exec, -1')


def tstamp63(A, idx, sreg, val=63):
    if not DEBUG_STAMPS[0]:
        return
    lx = A.newlabel('L_ts')
    A(f's_cmp_lt_u32 s{sreg}, {val}')
    A(f's_cbranch_scc1 {lx}')
    tstamp(A, idx)
    A.label(lx)
    A('s_nop 7')


def common_setup(A):
    A(f's_load_dwordx2 s[{S_PTR}:{S_PTR + 1}], s[0:1], {KA_WS}')
    A(f's_load_dwordx2 s[{S_TMP + 1}:{S_TMP + 2}], s[0:1], {KA_DBG}')
    A('v_lshrrev_b32 v1, 6, v0')
    A(f'v_readfirstlane_b32 s{S_WV}, v1')
    A(f'v_and_b32 v{V_L}, 63, v0')
    A('s_waitcnt lgkmcnt(0)')
    A.srd(S_WS, S_PTR, S_PTR + 1, WS_BYTES)
    A.srd(S_DBG, S_TMP + 1, S_TMP + 2, 256)
    A(f's_mov_b32 s{S_SPIN}, 0')
    A(f'v_lshrrev_b32 v{V_G}, 4, v{V_L}')
    A(f'v_and_b32 v{V_I}, 15, v{V_L}')
    A(f'v_lshlrev_b32 v{V_L16}, 4, v{V_L}')
    A(f's_mul_i32 s{S_STG}, s{S_WV}, 40960')


def load_ptr_srd(A, ka, nbytes):
    A(f's_load_dwordx2 s[{S_PTR}:{S_PTR + 1}], s[0:1], {ka}')
    A('s_waitcnt lgkmcnt(0)')
    A.lg_done = A.lg_issued
    A.srd(S_W, S_PTR, S_PTR + 1, nbytes)


def wait_flags(A, abort, soff, n, srd=WS, value=1, sleep=2, ge=False):
    lp = A.newlabel('L_wf'); ld = A.newlabel('L_wfd')
    A(f'v_min_u32 v{V_T0}, {n - 1}, v{V_L}')
    A(f'v_lshlrev_b32 v{V_T0}, 2, v{V_T0}')
    A.label(lp)
    A(f'buffer_load_dword v{V_T1}, v{V_T0}, {srd}, s{soff} offen sc1')
    A.wait_vm0()
    if ge:
        A(f'v_cmp_gt_u32 vcc, {value}, v{V_T1}')
    else:
        A(f'v_cmp_ne_u32 vcc, {value}, v{V_T1}')
    A(f's_cbranch_vccz {ld}')
    if sleep:
        A(f's_sleep {sleep}')
    A(f's_add_u32 s{S_SPIN}, s{S_SPIN}, 1')
    A(f's_cmp_lt_u32 s{S_SPIN}, {SPIN_LIMIT}')
    A(f's_cbranch_scc1 {lp}')
    A(f's_branch {abort}')
    A.label(ld)


def signal(A, soff):
    A.wait_all()
    A('s_barrier')
    ls = A.newlabel('L_sig')
    A(f's_cmp_lg_u32 s{S_WV}, 0')
    A(f's_cbranch_scc1 {ls}')
    A(f'v_mov_b32 v{V_T0}, 0')
    A(f'v_mov_b32 v{V_T1}, 1')
    A('s_mov_b64 exec, 1')
    A(f'buffer_store_dword v{V_T1}, v{V_T0}, {WS}, s{soff} offen sc1')
    A('s_mov_b64 exec, -1')
    A.label(ls)


def round_bf16(A, dst, src, tmp=None):
    A(f'v_cvt_pk_bf16_f32 v{dst}, v{src}, v{src}')
    A(f'v_and_b32 v{dst}, 0xffff0000, v{dst}')


def round2(A, a, b, t):
    A(f'v_cvt_pk_bf16_f32 v{t}, v{a}, v{b}')
    A(f'v_lshlrev_b32 v{a}, 16, v{t}')
    A(f'v_and_b32 v{b}, 0xffff0000, v{t}')


def unpack2(A, lo, hi, src):
    A(f'v_lshlrev_b32 v{lo}, 16, v{src}')
    A(f'v_and_b32 v{hi}, 0xffff0000, v{src}')


def xlane_allreduce_g(A, op, x, t):
    for sw in ('v_permlane16_swap_b32', 'v_permlane32_swap_b32'):
        A(f'v_mov_b32 v{t}, v{x}')
        A(f'{sw} v{x}, v{t}')
        A(f'{op} v{x}, v{x}, v{t}')


def arrive(A, dbg_off):
    A.wait_all()
    A('s_barrier')
    ls = A.newlabel('L_arr')
    A(f's_cmp_lg_u32 s{S_WV}, 0')
    A(f's_cbranch_scc1 {ls}')
    A(f'v_mov_b32 v{V_T1}, 1')
    A('s_mov_b64 exec, 1')
    A(f'buffer_atomic_add v{V_T1}, off, {DBG}, 0 offset:{dbg_off} sc1')
    A('s_mov_b64 exec, -1')
    A.label(ls)


def emit_init(A, abort, part=1):
    A.comment('---- init: sentinels / flags ----')
    T0, T1 = V_T0, V_T1
    A(f's_lshl_b32 s{S_TMP}, s{S_WV}, 6')
    A(f'v_add_u32 v19, s{S_TMP}, v{V_L}')
    A(f'v_lshlrev_b32 v{V_T2}, 4, v19')
    A('v_mov_b32 v20, -1'); A('v_mov_b32 v21, -1'); A('v_mov_b32 v22, -1'); A('v_mov_b32 v23, -1')
    A('v_mov_b32 v24, 0'); A('v_mov_b32 v25, 0'); A('v_mov_b32 v26, 0'); A('v_mov_b32 v27, 0')
    def fill(base, units, reg):
        n = (units + 127) // 128
        for i in range(n):
            A(f's_add_u32 s{S_TMP}, s{S_P0}, {128 * i}')
            l = A.newlabel('L_fill')
            A(f's_cmp_ge_u32 s{S_TMP}, {units}')
            A(f's_cbranch_scc1 {l}')
            A(f's_lshl_b32 s{S_TMP}, s{S_TMP}, 12')
            A(f's_add_u32 s{S_TMP}, s{S_TMP}, {base:#x}')
            A(f'buffer_store_dwordx4 v[{reg}:{reg + 3}], v{V_T2}, {WS}, s{S_TMP} offen sc1')
            A.label(l)
    if part == 2:
        fill(WS_MEML, 160, 20)
        fill(WS_MEMR + 32768, 504, 20)
        fill(WS_PART, 80, 20)
        arrive(A, 28)
        return
    fill(WS_FLAG, 48, 24)

    lskip = A.newlabel('L_nomod')
    A(f's_cmp_ge_u32 s{S_P0}, 120')
    A(f's_cbranch_scc1 {lskip}')
    load_ptr_srd(A, KA_C, 1280)
    A(f'v_lshrrev_b32 v{T0}, 2, v19')
    A(f'v_lshlrev_b32 v{T1}, 1, v{T0}')
    ct = []
    for i in range(10):
        ct.append(A(f'buffer_load_ushort v{30 + i}, v{T1}, {WW}, 0 offen offset:{128 * i}'))
    load_ptr_srd(A, KA_WMOD, 640 * 7680)
    A(f'v_mul_u32_u24 v{T1}, 7680, v{T0}')
    A(f'v_and_b32 v{T0}, 3, v19')
    A(f'v_lshl_add_u32 v{T1}, v{T0}, 4, v{T1}')
    A(f's_lshl_b32 s{S_TMP}, s{S_P0}, 6')
    wt = []
    for i in range(10):
        wt.append(A(f'buffer_load_dwordx4 v[{40 + 4 * i}:{43 + 4 * i}], v{T1}, {WW}, s{S_TMP} offen'))
        A(f's_add_u32 s{S_TMP}, s{S_TMP}, {64 * 7680}')
    A(f's_mov_b32 s{S_TMP}, {f32bits(-math.log2(math.e)):#x}')
    for i in range(10):
        A.wait(ct[i])
        c = 30 + i
        A(f'v_lshlrev_b32 v{c}, 16, v{c}')
        A(f'v_mul_f32 v{T0}, s{S_TMP}, v{c}')
        A(f'v_exp_f32 v{T0}, v{T0}')
        A(f'v_add_f32 v{T0}, 1.0, v{T0}')
        A(f'v_rcp_f32 v{T0}, v{T0}')
        A(f'v_mul_f32 v{c}, v{c}, v{T0}')
        round_bf16(A, c, c)
    for j in range(8):
        A(f'v_mov_b32 v{20 + j}, 0')
    for i in range(10):
        A.wait(wt[i])
        for d in range(4):
            unpack2(A, T0, T1, 40 + 4 * i + d)
            A(f'v_fmac_f32 v{20 + 2 * d}, v{30 + i}, v{T0}')
            A(f'v_fmac_f32 v{21 + 2 * d}, v{30 + i}, v{T1}')
    A(f'v_lshlrev_b32 v{T0}, 5, v19')
    A(f'ds_write_b128 v{T0}, v[20:23]')
    A(f'ds_write_b128 v{T0}, v[24:27] offset:16')
    A.wait_lg0()
    A('s_barrier')
    A(f'v_and_b32 v{T0}, 31, v19')
    A(f'v_lshlrev_b32 v{T0}, 2, v{T0}')
    A(f'v_lshrrev_b32 v{T1}, 5, v19')
    A(f'v_lshl_add_u32 v{T0}, v{T1}, 10, v{T0}')
    tk = [A(f'ds_read_b32 v{20 + j}, v{T0} offset:{128 * j}') for j in range(8)]
    A.wait(tk[-1])
    for j in range(1, 8):
        A(f'v_add_f32 v20, v20, v{20 + j}')
    A(f'v_lshlrev_b32 v{T0}, 2, v19')
    A(f'ds_write_b32 v{T0}, v20 offset:8192')
    A.wait_lg0()
    A('s_barrier')
    A(f'v_and_b32 v{T0}, 31, v19')
    A(f'v_lshlrev_b32 v{T0}, 2, v{T0}')
    tk = [A(f'ds_read_b32 v{20 + j}, v{T0} offset:{8192 + 128 * j}') for j in range(8)]
    A.wait(tk[-1])
    for j in range(1, 8):
        A(f'v_add_f32 v20, v20, v{20 + j}')
    round_bf16(A, 20, 20)
    A(f's_lshl_b32 s{S_TMP}, s{S_P0}, 7')
    A(f's_add_u32 s{S_TMP}, s{S_TMP}, {WS_MOD:#x}')
    A(f'buffer_store_dword v20, v{T0}, {WS}, s{S_TMP} offen sc1')
    A.flush_hazards()
    A.label(lskip)
    arrive(A, 16)


def wait_init(A, abort):
    l = A.newlabel('L_wi')
    A(f's_cmp_lg_u32 s{S_WV}, 0')
    A(f's_cbranch_scc1 {l}')
    A(f's_mov_b32 s{S_TMP}, 16')
    wait_flags(A, abort, S_TMP, 1, srd=DBG, value=128, sleep=6, ge=True)
    A.label(l)
    A('s_barrier')


def emit_ln(A, which, s_tile, mid=None):
    T0, T1, T2, T3 = V_T0, V_T1, V_T2, V_T3
    X = 20
    XR = 60
    MB = 80
    PB = 120
    load_ptr_srd(A, KA_X, 2048 * 1280)
    A(f'v_mul_u32_u24 v{T2}, 1280, v{V_I}')
    A(f'v_lshl_add_u32 v{T2}, v{V_G}, 3, v{T2}')
    A(f's_mul_i32 s{S_TMP}, s{s_tile}, {16 * 1280}')
    A(f's_mul_i32 s{S_TMP + 1}, s{S_WV}, 320')
    A(f's_add_u32 s{S_TMP}, s{S_TMP}, s{S_TMP + 1}')
    xt = []
    for k in range(5):
        for hf in range(2):
            b = XR + 4 * k + 2 * hf
            xt.append(A(f'buffer_load_dwordx2 v[{b}:{b + 1}], v{T2}, {WW}, s{S_TMP} offen offset:{64 * k + 32 * hf}'))
    A(f'v_lshlrev_b32 v{T3}, 4, v{V_G}')
    A(f's_mul_i32 s{S_TMP + 1}, s{S_WV}, 640')

    def load_mod(idx, base):
        A(f's_add_u32 s{S_TMP + 2}, s{S_TMP + 1}, {WS_MOD + idx * 2560:#x}')
        t = None
        for t_ in range(10):
            t = A(f'buffer_load_dwordx4 v[{base + 4 * t_}:{base + 4 * t_ + 3}], v{T3}, {WS}, s{S_TMP + 2} offen offset:{64 * t_} sc1')
        return t

    if which == 2:
        gt = load_mod(2, MB)
        A(f's_lshr_b32 s{S_TMP}, s{s_tile}, 1')
        A(f's_mul_i32 s{S_TMP}, s{S_TMP}, {4 * 81920}')
        A(f's_and_b32 s{S_TMP + 2}, s{s_tile}, 1')
        A(f's_lshl_b32 s{S_TMP + 2}, s{S_TMP + 2}, 10')
        A(f's_add_u32 s{S_TMP}, s{S_TMP}, s{S_TMP + 2}')
        A(f's_mul_i32 s{S_TMP + 2}, s{S_WV}, {10 * 2048}')
        A(f's_add_u32 s{S_TMP}, s{S_TMP}, s{S_TMP + 2}')
        A(f's_add_u32 s{S_TMP}, s{S_TMP}, {WS_OPART:#x}')
        pt = {}
        for kg in range(4):
            for t_ in range(10):
                dst = X + 4 * t_ if kg == 0 else PB + 40 * (kg - 1) + 4 * t_
                A(f's_add_u32 s{S_TMP + 2}, s{S_TMP}, {kg * 81920 + t_ * 2048}')
                pt[kg, t_] = A(f'buffer_load_dwordx4 v[{dst}:{dst + 3}], v{V_L16}, {WS}, s{S_TMP + 2} offen sc1')
        for t_ in range(10):
            A.wait(pt[3, t_], gt, xt[-1])
            for r in range(0, 4, 2):
                x = X + 4 * t_ + r
                for kg in range(1, 4):
                    p = PB + 40 * (kg - 1) + 4 * t_ + r
                    A(f'v_pk_add_f32 v[{x}:{x + 1}], v[{x}:{x + 1}], v[{p}:{p + 1}]')
                round2(A, x, x + 1, T0)
                A(f'v_pk_mul_f32 v[{x}:{x + 1}], v[{x}:{x + 1}], v[{MB + 4 * t_ + r}:{MB + 4 * t_ + r + 1}]')
                round2(A, x, x + 1, T0)
                unpack2(A, T0, T1, XR + 2 * t_ + r // 2)
                A(f'v_pk_add_f32 v[{x}:{x + 1}], v[{x}:{x + 1}], v[{T0}:{T1}]')
                A(f'v_cvt_pk_bf16_f32 v{XR + 2 * t_ + r // 2}, v{x}, v{x + 1}')
                unpack2(A, x, x + 1, XR + 2 * t_ + r // 2)
        frag_base(A, s_tile, WS_X1, S_TMP)
        for k in range(5):
            A(f's_add_u32 s{S_TMP + 2}, s{S_TMP}, {k * 2048}')
            A(f'buffer_store_dwordx4 v[{XR + 4 * k}:{XR + 4 * k + 3}], v{V_L16}, {WS}, s{S_TMP + 2} offen sc1')
        A(f's_mul_i32 s{S_TMP + 1}, s{S_WV}, 640')
    else:
        A.wait(xt[-1])
        for j in range(20):
            unpack2(A, X + 2 * j, X + 2 * j + 1, XR + j)
    A(f'v_mov_b32 v{T0}, 0')
    A(f'v_mov_b32 v{T1}, 0')
    for j in range(0, 40, 2):
        A(f'v_pk_add_f32 v[{T0}:{T1}], v[{T0}:{T1}], v[{X + j}:{X + j + 1}]')
    A(f'v_add_f32 v{T0}, v{T0}, v{T1}')
    xlane_allreduce_g(A, 'v_add_f32', T0, T1)
    A(f's_lshl_b32 s{S_TMP}, s{S_WV}, 6')
    A(f'v_lshlrev_b32 v{T2}, 2, v{V_I}')
    A(f'v_add_u32 v{T3}, s{S_TMP}, v{T2}')
    A('s_barrier')
    A(f'ds_write_b32 v{T3}, v{T0}')
    A.wait_lg0()
    A('s_barrier')
    tk = [A(f'ds_read_b32 v{8 + j}, v{T2} offset:{64 * j}') for j in range(4)]
    A.wait(tk[-1])
    A('v_add_f32 v8, v8, v9'); A('v_add_f32 v10, v10, v11'); A('v_add_f32 v8, v8, v10')
    A(f'v_mul_f32 v8, {f32bits(1.0 / 640):#x}, v8')
    A(f'v_mov_b32 v{T0}, 0')
    for j in range(40):
        A(f'v_sub_f32 v{T1}, v{X + j}, v8')
        A(f'v_fmac_f32 v{T0}, v{T1}, v{T1}')
    xlane_allreduce_g(A, 'v_add_f32', T0, T1)
    A(f'ds_write_b32 v{T3}, v{T0} offset:256')
    A.wait_lg0()
    A('s_barrier')
    tk = [A(f'ds_read_b32 v{9 + j}, v{T2} offset:{256 + 64 * j}') for j in range(4)]
    A.wait(tk[-1])
    A('v_add_f32 v9, v9, v10'); A('v_add_f32 v11, v11, v12'); A('v_add_f32 v9, v9, v11')
    A(f'v_mul_f32 v9, {f32bits(1.0 / 640):#x}, v9')
    round2(A, 8, 9, T0)
    A(f'v_add_f32 v9, {f32bits(1e-5):#x}, v9')
    round_bf16(A, 9, 9)
    A('v_sqrt_f32 v9, v9')
    round_bf16(A, 9, 9)
    A('v_rcp_f32 v10, v9')
    for j in range(0, 40, 2):
        x = X + j
        A(f'v_sub_f32 v{x}, v{x}, v8')
        A(f'v_sub_f32 v{x + 1}, v{x + 1}, v8')
        round2(A, x, x + 1, T0)
        for y in (x, x + 1):
            A(f'v_mul_f32 v{T1}, v{y}, v10')
            A(f'v_fma_f32 v{y}, -v{T1}, v9, v{y}')
            A(f'v_fma_f32 v{y}, v{y}, v10, v{T1}')
        round2(A, x, x + 1, T0)
    if mid:
        mid()
    A(f'v_lshlrev_b32 v{T3}, 4, v{V_G}')
    A(f's_mul_i32 s{S_TMP + 1}, s{S_WV}, 640')
    ct = load_mod(1 if which == 1 else 4, MB)
    st = load_mod(0 if which == 1 else 3, PB)
    A.wait(ct, st)
    for j in range(0, 40, 2):
        x = X + j
        A(f'v_add_f32 v{MB + j}, 1.0, v{MB + j}')
        A(f'v_add_f32 v{MB + j + 1}, 1.0, v{MB + j + 1}')
        round2(A, MB + j, MB + j + 1, T0)
        A(f'v_pk_mul_f32 v[{x}:{x + 1}], v[{x}:{x + 1}], v[{MB + j}:{MB + j + 1}]')
        round2(A, x, x + 1, T0)
        A(f'v_pk_add_f32 v[{x}:{x + 1}], v[{x}:{x + 1}], v[{PB + j}:{PB + j + 1}]')
        A(f'v_cvt_pk_bf16_f32 v{160 + j // 2}, v{x}, v{x + 1}')
    frag_base(A, s_tile, WS_H if which == 1 else WS_H2, S_TMP)
    for k in range(5):
        A(f's_add_u32 s{S_TMP + 2}, s{S_TMP}, {k * 2048}')
        A(f'buffer_store_dwordx4 v[{160 + 4 * k}:{160 + 4 * k + 3}], v{V_L16}, {WS}, s{S_TMP + 2} offen sc1')


def frag_base(A, s_tile, region, dst):
    A(f's_lshr_b32 s{dst}, s{s_tile}, 1')
    A(f's_mul_i32 s{dst}, s{dst}, 40960')
    A(f's_and_b32 s{dst + 2}, s{s_tile}, 1')
    A(f's_lshl_b32 s{dst + 2}, s{dst + 2}, 10')
    A(f's_add_u32 s{dst}, s{dst}, s{dst + 2}')
    A(f's_mul_i32 s{dst + 2}, s{S_WV}, {5 * 2048}')
    A(f's_add_u32 s{dst}, s{dst}, s{dst + 2}')
    A(f's_add_u32 s{dst}, s{dst}, {region:#x}')


V_WSRC2, V_WSRC1, V_WRD2, V_WRD1 = 8, 9, 10, 11


def weight_addr_setup(A, pitch):
    T0, T1 = V_T0, V_T1
    A(f's_mov_b32 s{S_TMP}, {pitch}')
    A(f'v_lshrrev_b32 v{T0}, 2, v{V_L}')
    A(f'v_mul_lo_u32 v{T0}, v{T0}, s{S_TMP}')
    A(f'v_and_b32 v{T1}, 3, v{V_L}')
    A(f'v_lshl_add_u32 v{V_WSRC2}, v{T1}, 4, v{T0}')
    A(f'v_lshrrev_b32 v{T0}, 1, v{V_L}')
    A(f'v_mul_lo_u32 v{T0}, v{T0}, s{S_TMP}')
    A(f'v_and_b32 v{T1}, 1, v{V_L}')
    A(f'v_lshl_add_u32 v{V_WSRC1}, v{T1}, 4, v{T0}')
    A(f'v_lshrrev_b32 v{T0}, 2, v{V_L}')
    A(f'v_and_b32 v{T1}, 3, v{V_L}')
    A(f'v_lshlrev_b32 v{T1}, 3, v{T1}')
    A(f'v_lshl_add_u32 v{V_WRD2}, v{T0}, 6, v{T1}')
    A(f'v_add_u32 v{V_WRD2}, s{S_STG}, v{V_WRD2}')
    A(f'v_lshl_add_u32 v{V_WRD1}, v{T0}, 5, v{T1}')
    A(f'v_add_u32 v{V_WRD1}, s{S_STG}, v{V_WRD1}')


def load_weights(A, s_off, pitch, nk, width, dest):
    kb = 32 * 32 * width
    per = 40960 // kb
    src = V_WSRC2 if width == 2 else V_WSRC1
    rd = V_WRD2 if width == 2 else V_WRD1
    rows_per_instr = 16 if width == 2 else 32
    for k0 in range(0, nk, per):
        ks = list(range(k0, min(nk, k0 + per)))
        tok = {}
        A.wait_lg0()
        for k in ks:
            for n in range(32 // rows_per_instr):
                A(f's_add_u32 m0, s{S_STG}, {(k - k0) * kb + n * 1024}')
                tok[k] = A(f'buffer_load_dwordx4 v{src}, {WW}, s{s_off} offen lds')
                A(f's_add_u32 s{s_off}, s{s_off}, {rows_per_instr * pitch}')
        for k in ks:
            A.wait(tok[k])
            for t in range(width):
                for rho in range(2):
                    off = (k - k0) * kb + 16 * rho * 32 * width + t * 32
                    A(f'ds_read_b64_tr_b16 {wr(dest(k, t) + 2 * rho, 2)}, v{rd} offset:{off}')
    A.wait_lg0()


def load_weights_coop(A, s_off, pitch, nk, dest):
    T0, T1 = V_T0, V_T1
    VS, VR = 8, 10
    A(f's_mov_b32 s{S_TMP}, {pitch}')
    for p in range(2):
        A(f'v_or_b32 v{T0}, {4 * p}, v{V_G}')
        A(f'v_lshlrev_b32 v{T0}, 1, v{T0}')
        A(f'v_xor_b32 v{T0}, v{T0}, v{V_I}')
        A(f'v_mul_lo_u32 v{T1}, v{V_G}, s{S_TMP}')
        A(f'v_lshl_add_u32 v{VS + p}, v{T0}, 4, v{T1}')
    A(f'v_bfe_u32 v{T0}, v{V_L}, 2, 3')
    A(f'v_lshlrev_b32 v{T0}, 1, v{T0}')
    A(f'v_bfe_u32 v{T1}, v{V_L}, 1, 1')
    A(f's_lshl_b32 s{S_TMP}, s{S_WV}, 2')
    A(f'v_or_b32 v{T1}, s{S_TMP}, v{T1}')
    A(f'v_xor_b32 v{T0}, v{T0}, v{T1}')
    A(f'v_lshlrev_b32 v{T0}, 4, v{T0}')
    A(f'v_lshrrev_b32 v{T1}, 2, v{V_L}')
    A(f'v_lshl_add_u32 v{T0}, v{T1}, 8, v{T0}')
    A(f'v_and_b32 v{T1}, 1, v{V_L}')
    A(f'v_lshl_add_u32 v{V_T2}, v{T1}, 3, v{T0}')
    A(f's_mul_i32 s{S_TMP}, s{S_WV}, {16 * pitch}')
    A(f's_add_u32 s{s_off}, s{s_off}, s{S_TMP}')
    A(f's_lshl_b32 s{S_TMP + 1}, s{S_WV}, 12')
    nslot = nk // 2
    for s0 in range(0, nslot, 10):
        sl = list(range(s0, min(nslot, s0 + 10)))
        tok = {}
        A.wait_lg0()
        A('s_barrier')
        for s_ in sl:
            for n in range(4):
                A(f's_add_u32 m0, s{S_TMP + 1}, {(s_ - s0) * 16384 + n * 1024}')
                tok[s_] = A(f'buffer_load_dwordx4 v{VS + (n & 1)}, {WW}, s{s_off} offen lds')
                A(f's_add_u32 s{s_off}, s{s_off}, {(4 if n < 3 else 52) * pitch}')
        for s_ in sl:
            j = s_ - s0
            if j % 4 == 0:
                A(f'v_add_u32 v{VR}, {j * 16384}, v{V_T2}')
                A(f'v_xor_b32 v{VR + 1}, 32, v{VR}')
            A.wait(tok[s_])
            A('s_barrier')
            for kk in range(2):
                for t in range(2):
                    for rho in range(2):
                        off = (j % 4) * 16384 + (2 * kk + rho) * 4096
                        A(f'ds_read_b64_tr_b16 {wr(dest(2 * s_ + kk, t) + 2 * rho, 2)}, v{VR + t} offset:{off}')
    A.wait_lg0()
    A('s_barrier')


S_SRC, S_FIN, S_FOUT, S_DST, S_PRE, S_BUF, S_DST2 = 20, 21, 22, 23, 24, 25, 26
S_LAST = 27
S_LIM = 40


def gemm_loop(A, abort, nk, ntt, tiles, src_stride, fin_n, fin_stride, fout_stride, seg_step, epilogue,
              acc0=12, frag0=None, pre_compute=None, tt_stride=1024, k_stride=2048, adv=(), dual=0, wave_tt=False):
    T = len(tiles)
    nfr = nk * ntt
    bufsz = nfr * 1024
    assert 2 * bufsz <= 163840 - 4096
    DEC = 2 * bufsz
    ctt = 1 if wave_tt else ntt
    FR = frag0 if frag0 is not None else acc0 + 4 * T * ctt
    NR = 3
    V_RD, V_RD2, V_FA, V_FS = 8, 9, 10, 11
    S_PEND, S_DL, S_DG = 37, 38, 39
    n_it = (nfr + 3) // 4
    step = 4096 if ntt == 2 else 4 * k_stride

    def dma_setup():
        A(f's_lshl_b32 s{S_DL}, s{S_WV}, 10')
        A(f's_add_u32 s{S_DL}, s{S_DL}, s{S_BUF}')
        if ntt == 2:
            assert tt_stride == 1024 and k_stride == 2048
            A(f's_lshl_b32 s{S_DG}, s{S_WV}, 10')
        else:
            A(f's_mul_i32 s{S_DG}, s{S_WV}, {k_stride}')
        A(f's_add_u32 s{S_DG}, s{S_DG}, s{S_SRC}')
        A(f's_add_u32 s{S_SRC}, s{S_SRC}, {src_stride}')
        A(f's_add_u32 s{S_FIN}, s{S_FIN}, {fin_stride}')

    def dma_one(i):
        l = None
        if 4 * i + 3 >= nfr:
            l = A.newlabel('L_dm')
            A(f's_cmp_ge_u32 s{S_WV}, {nfr - 4 * i}')
            A(f's_cbranch_scc1 {l}')
        A(f's_add_u32 m0, s{S_DL}, {4096 * i}')
        A(f'buffer_load_dwordx4 v{V_L16}, {WS}, s{S_DG} offen sc1 lds')
        if l:
            A.label(l)
        A(f's_add_u32 s{S_DG}, s{S_DG}, {step}')

    def sample():
        A(f'buffer_load_dword v{V_FS}, v{V_FA}, {WS}, s{S_FIN} offen sc1')

    def send_flag():
        ls = A.newlabel('L_sig')
        A(f's_cmp_lg_u32 s{S_WV}, 0')
        A(f's_cbranch_scc1 {ls}')
        A(f'v_mov_b32 v{V_T1}, 1')
        A('s_mov_b64 exec, 1')
        A(f'buffer_store_dword v{V_T1}, off, {WS}, s{S_FOUT} sc1')
        if dual:
            A(f's_add_u32 s{S_TMP}, s{S_FOUT}, {dual}')
            A(f'buffer_store_dword v{V_T1}, off, {WS}, s{S_TMP} sc1')
        A('s_mov_b64 exec, -1')
        A.label(ls)
        A(f's_add_u32 s{S_FOUT}, s{S_FOUT}, {fout_stride}')

    A(f'v_min_u32 v{V_FA}, {fin_n - 1}, v{V_L}')
    A(f'v_lshlrev_b32 v{V_FA}, 2, v{V_FA}')
    A(f's_mov_b32 s{S_BUF}, 0')
    for reg, stride in [(S_SRC, src_stride), (S_FIN, fin_stride), (S_FOUT, fout_stride)] + list(adv):
        if stride:
            A(f's_mul_i32 s{S_TMP}, s{S_SEG}, {stride}')
            A(f's_add_u32 s{reg}, s{reg}, s{S_TMP}')
    top = A.newlabel('L_gtop'); end = A.newlabel('L_gend'); load = A.newlabel('L_gload'); go = A.newlabel('L_ggo')
    A.flush_hazards()
    A.label(load)
    A.forget()
    wait_flags(A, abort, S_FIN, fin_n, sleep=1)
    if DEBUG_STAMPS[0]:
        lx = A.newlabel('L_ts')
        A(f's_cmp_ge_u32 s{S_SEG}, 2')
        A(f's_cbranch_scc1 {lx}')
        tstamp(A, 2)
        A.label(lx)
    tstamp63(A, 8, S_SEG)
    dma_setup()
    for i in range(n_it):
        dma_one(i)
    sample()
    A(f's_mov_b32 s{S_PEND}, 0')
    A.wait_all()
    A.branch(f's_branch {go}')
    A.label(top)
    A.forget()
    marker = len(A.lines)
    A.raw('WAITMARK')
    A.label(go)
    A('s_barrier')
    tstamp63(A, 9, S_SEG)
    if wave_tt:
        A(f's_and_b32 s{S_TMP}, s{S_WV}, 1')
        A(f's_lshl_b32 s{S_TMP}, s{S_TMP}, 10')
        A(f's_add_u32 s{S_TMP}, s{S_TMP}, s{S_BUF}')
        A(f'v_add_u32 v{V_RD}, s{S_TMP}, v{V_L16}')
    else:
        A(f'v_add_u32 v{V_RD}, s{S_BUF}, v{V_L16}')
    if bufsz > 65536 - 1024:
        A(f'v_add_u32 v{V_RD2}, 0x10000, v{V_RD}')
    A(f's_add_u32 s{S_LAST}, s{S_SEG}, {seg_step}')
    A(f's_sub_u32 s{S_BUF}, {bufsz}, s{S_BUF}')
    ft = {}

    def rd(k):
        for tt in range(ctt):
            f = k * ntt + tt
            b = FR + 4 * ((k % NR) * ctt + tt)
            off = f * 1024
            base = V_RD
            if off >= 65536:
                off -= 65536; base = V_RD2
            ft[k] = A(f'ds_read_b128 v[{b}:{b + 3}], v{base} offset:{off}')

    kB = max(2, nk // 4)
    slots = list(range(kB + 1, nk))
    per = -(-n_it // len(slots))
    nd = 0
    for k in range(min(NR, nk)):
        rd(k)
    for k in range(nk):
        A.wait(ft[k])
        for t, (wreg, tr) in enumerate(tiles):
            for tt in range(ctt):
                acc = acc0 + 4 * (t * ctt + tt)
                fr = f'v[{FR + 4 * ((k % NR) * ctt + tt)}:{FR + 4 * ((k % NR) * ctt + tt) + 3}]'
                w = wr(wreg(k), 4)
                c = '0' if k == 0 else f'v[{acc}:{acc + 3}]'
                a_, b_ = (w, fr) if tr else (fr, w)
                A(f'v_mfma_f32_16x16x32_bf16 v[{acc}:{acc + 3}], {a_}, {b_}, {c}')
        if k + NR < nk:
            rd(k + NR)
        if k == kB:
            hs = [h_ for h_ in A.hist if h_.kind in ('mfma', 'valu')]
            A.wait_vm0()
            A(f'v_cmp_ne_u32 vcc, 1, v{V_FS}')
            A('s_cmp_eq_u64 vcc, 0')
            A(f's_cselect_b32 s{S_PRE}, 1, 0')
            A(f's_cmp_ge_u32 s{S_LAST}, s{S_LIM}')
            A(f's_cselect_b32 s{S_PRE}, 0, s{S_PRE}')
            A(f'v_mov_b32 v{V_T0}, {DEC}')
            lw = A.newlabel('L_dec')
            A(f's_cmp_lg_u32 s{S_WV}, 0')
            A(f's_cbranch_scc1 {lw}')
            A(f'v_mov_b32 v{V_T1}, s{S_PRE}')
            A(f'ds_write_b32 v{V_T0}, v{V_T1}')
            A.label(lw)
            A.wait_lg0()
            A('s_barrier')
            A(f'ds_read_b32 v{V_T1}, v{V_T0}')
            lp = A.newlabel('L_pend')
            A(f's_cmp_eq_u32 s{S_PEND}, 0')
            A(f's_cbranch_scc1 {lp}')
            A(f'v_mov_b32 v{V_T2}, 1')
            ls = A.newlabel('L_sig')
            A(f's_cmp_lg_u32 s{S_WV}, 0')
            A(f's_cbranch_scc1 {ls}')
            A('s_mov_b64 exec, 1')
            A(f'buffer_store_dword v{V_T2}, off, {WS}, s{S_FOUT} sc1')
            if dual:
                A(f's_add_u32 s{S_TMP}, s{S_FOUT}, {dual}')
                A(f'buffer_store_dword v{V_T2}, off, {WS}, s{S_TMP} sc1')
            A('s_mov_b64 exec, -1')
            A.label(ls)
            A(f's_add_u32 s{S_FOUT}, s{S_FOUT}, {fout_stride}')
            A.label(lp)
            A.wait_lg0()
            A(f'v_readfirstlane_b32 s{S_PRE}, v{V_T1}')
            ln = A.newlabel('L_nos')
            A(f's_cmp_eq_u32 s{S_PRE}, 0')
            A(f's_cbranch_scc1 {ln}')
            dma_setup()
            A.label(ln)
            if pre_compute:
                pre_compute(A)
            A.hist = hs
        if k > kB and nd < n_it:
            hs = [h_ for h_ in A.hist if h_.kind in ('mfma', 'valu')]
            ln = A.newlabel('L_nod')
            A(f's_cmp_eq_u32 s{S_PRE}, 0')
            A(f's_cbranch_scc1 {ln}')
            for _ in range(per):
                if nd < n_it:
                    dma_one(nd); nd += 1
            A.label(ln)
            A.hist = hs
    assert nd == n_it
    if DEBUG_STAMPS[0]:
        lx = A.newlabel('L_ts')
        A(f's_cmp_ge_u32 s{S_SEG}, 2')
        A(f's_cbranch_scc1 {lx}')
        tstamp(A, 3)
        A.label(lx)
        A('s_nop 7')
    tstamp63(A, 10, S_SEG)
    v0 = A.vm_issued
    epilogue(A)
    sample()
    nvm = A.vm_issued - v0
    A.lines[marker] = f'    s_waitcnt vmcnt({nvm})'
    A(f's_mov_b32 s{S_SEG}, s{S_LAST}')
    A(f's_mov_b32 s{S_PEND}, 1')
    A(f's_cmp_eq_u32 s{S_PRE}, 1')
    A.branch(f's_cbranch_scc1 {top}')
    A.wait_all()
    A('s_barrier')
    send_flag()
    tstamp63(A, 11, S_SEG, 64)
    A(f's_cmp_lt_u32 s{S_SEG}, s{S_LIM}')
    A.branch(f's_cbranch_scc1 {load}')
    A.label(end)


def wlin(i, vb=96):
    return 256 + 4 * i if i < 64 else vb + 4 * (i - 64)


def pack4(A, dst, src):
    A(f'v_cvt_pk_bf16_f32 v{dst}, v{src}, v{src + 1}')
    A(f'v_cvt_pk_bf16_f32 v{dst + 1}, v{src + 2}, v{src + 3}')


S_P2 = 29


def emit_op_weights(A):
    A.comment('==== role OP ====')
    load_ptr_srd(A, KA_WO, 4096 * 1280)
    A(f's_mul_i32 s{S_SRC}, s{S_P0}, {1024 * 1280}')
    A(f's_lshl_b32 s{S_TMP}, s{S_P1}, 8')
    A(f's_add_u32 s{S_SRC}, s{S_SRC}, s{S_TMP}')
    load_weights_coop(A, S_SRC, 1280, 32, lambda k, t: wlin(2 * k + t))


def emit_op(A, abort, split=False):
    A(f's_lshl_b32 s{S_SRC}, s{S_P0}, 16')
    A(f's_add_u32 s{S_SRC}, s{S_SRC}, {WS_O:#x}')
    A(f's_lshl_b32 s{S_FIN}, s{S_P0}, 6')
    A(f's_add_u32 s{S_FIN}, s{S_FIN}, {F_O:#x}')
    A(f's_mul_i32 s{S_FOUT}, s{S_P0}, 5')
    A(f's_add_u32 s{S_FOUT}, s{S_FOUT}, s{S_P1}')
    A(f's_lshl_b32 s{S_FOUT}, s{S_FOUT}, 2')
    A(f's_add_u32 s{S_FOUT}, s{S_FOUT}, {F_OP:#x}')
    A(f's_mul_i32 s{S_DST}, s{S_P0}, 81920')
    A(f's_lshl_b32 s{S_TMP}, s{S_P1}, 14')
    A(f's_add_u32 s{S_DST}, s{S_DST}, s{S_TMP}')
    A(f's_lshl_b32 s{S_TMP}, s{S_WV}, 12')
    A(f's_add_u32 s{S_DST}, s{S_DST}, s{S_TMP}')
    A(f's_add_u32 s{S_DST}, s{S_DST}, {WS_OPART:#x}')
    if split:
        A(f's_lshl_b32 s{S_TMP}, s{S_P2}, 10')
        A(f's_add_u32 s{S_SRC}, s{S_SRC}, s{S_TMP}')
        A(f's_add_u32 s{S_DST}, s{S_DST}, s{S_TMP}')
        A(f's_lshl_b32 s{S_TMP}, s{S_P2}, 13')
        A(f's_add_u32 s{S_FOUT}, s{S_FOUT}, s{S_TMP}')

    def epi(A):
        if split:
            for j in range(2):
                A(f'buffer_store_dwordx4 v[{12 + 4 * j}:{15 + 4 * j}], v{V_L16}, {WS}, s{S_DST} offen offset:{j * 2048} sc1')
        else:
            for j in range(4):
                A(f'buffer_store_dwordx4 v[{12 + 4 * j}:{15 + 4 * j}], v{V_L16}, {WS}, s{S_DST} offen offset:{j * 1024} sc1')
        A(f's_add_u32 s{S_DST}, s{S_DST}, {4 * 81920}')

    tiles = [(lambda k: wlin(2 * k), True), (lambda k: wlin(2 * k + 1), True)]
    gemm_loop(A, abort, 32, 1 if split else 2, tiles, 262144, 16, 256, 128, 1, epi, adv=[(S_DST, 4 * 81920)])


def emit_ff1_weights(A):
    A.comment('==== role FF1 ====')
    weight_addr_setup(A, 3456)
    for m, ka in enumerate((KA_WG, KA_WU)):
        load_ptr_srd(A, ka, 640 * 3456)
        A(f's_lshl_b32 s{S_SRC}, s{S_P0}, 7')
        A(f's_lshr_b32 s{S_TMP}, s{S_WV}, 1')
        A(f's_lshl_b32 s{S_TMP}, s{S_TMP}, 6')
        A(f's_add_u32 s{S_SRC}, s{S_SRC}, s{S_TMP}')
        load_weights(A, S_SRC, 3456, 20, 2, lambda k, t, m=m: wlin(m * 40 + 2 * k + t))


FF1_SPLIT = [False]


def emit_ff1(A, abort, split=False):
    A(f's_mov_b32 s{S_SRC}, {WS_H2:#x}')
    A(f's_mov_b32 s{S_FIN}, {F_H2:#x}')
    A(f's_lshl_b32 s{S_FOUT}, s{S_P0}, 2')
    A(f's_add_u32 s{S_FOUT}, s{S_FOUT}, {F_ACT:#x}')
    A(f's_lshl_b32 s{S_DST}, s{S_P0}, 12')
    A(f's_lshl_b32 s{S_TMP}, s{S_WV}, 10')
    A(f's_add_u32 s{S_DST}, s{S_DST}, s{S_TMP}')
    A(f's_add_u32 s{S_DST}, s{S_DST}, {WS_ACT:#x}')
    A(f's_mov_b32 s{S_DST2}, {f32bits(-math.log2(math.e)):#x}')
    T0, T1 = V_T0, V_T1
    O = 44

    def epi(A):
        for t in range(2):
            g = 12 + 4 * t; u = 20 + 4 * t
            for r in (0, 2):
                round2(A, g + r, g + r + 1, T0)
                round2(A, u + r, u + r + 1, T0)
                for y in (g + r, g + r + 1):
                    A(f'v_mul_f32 v{T1}, s{S_DST2}, v{y}')
                    A(f'v_exp_f32 v{T1}, v{T1}')
                    A(f'v_add_f32 v{T1}, 1.0, v{T1}')
                    A(f'v_rcp_f32 v{T1}, v{T1}')
                    A(f'v_mul_f32 v{y}, v{y}, v{T1}')
                round2(A, g + r, g + r + 1, T0)
                A(f'v_pk_mul_f32 v[{g + r}:{g + r + 1}], v[{g + r}:{g + r + 1}], v[{u + r}:{u + r + 1}]')
            pack4(A, O + 2 * t, g)
        A(f'buffer_store_dwordx4 v[{O}:{O + 3}], v{V_L16}, {WS}, s{S_DST} offen sc1')
        A(f's_add_u32 s{S_DST}, s{S_DST}, {54 * 2048}')

    tiles = [(lambda k: wlin(2 * k), True), (lambda k: wlin(2 * k + 1), True),
             (lambda k: wlin(40 + 2 * k), True), (lambda k: wlin(41 + 2 * k), True)]
    gemm_loop(A, abort, 20, 2, tiles, 40960, 4, 128, 128, 1, epi, adv=[(S_DST, 54 * 2048)], wave_tt=True)


def emit_ff2(A, abort):
    A.comment('==== role FF2 ====')
    weight_addr_setup(A, 1280)
    load_ptr_srd(A, KA_WD, 1728 * 1280)
    A(f's_lshl_b32 s{S_SRC}, s{S_P1}, 7')
    A(f's_lshl_b32 s{S_TMP}, s{S_WV}, 5')
    A(f's_add_u32 s{S_SRC}, s{S_SRC}, s{S_TMP}')
    load_weights(A, S_SRC, 1280, 54, 1, lambda k, t: wlin(k))
    A(f's_lshl_b32 s{S_SRC}, s{S_P0}, 10')
    A(f's_add_u32 s{S_SRC}, s{S_SRC}, {WS_ACT:#x}')
    A(f's_lshl_b32 s{S_FIN}, s{S_P0}, 13' if FF1_SPLIT[0] else f's_mov_b32 s{S_FIN}, 0')
    A(f's_add_u32 s{S_FIN}, s{S_FIN}, {F_ACT:#x}')
    A(f's_mov_b32 s{S_FOUT}, {F_END:#x}')
    S_TILE = 28
    A(f's_lshl_b32 s{S_TILE}, s{S_P1}, 2')
    A(f's_add_u32 s{S_TILE}, s{S_TILE}, s{S_WV}')
    GB, XX, VO = 40, 44, 46
    A(f'v_lshlrev_b32 v{V_T0}, 4, v{V_G}')
    A(f's_lshl_b32 s{S_TMP}, s{S_TILE}, 6')
    A(f's_add_u32 s{S_TMP}, s{S_TMP}, {WS_MOD + 5 * 2560:#x}')
    A(f'buffer_load_dwordx4 v[{GB}:{GB + 3}], v{V_T0}, {WS}, s{S_TMP} offen sc1')
    A(f's_lshr_b32 s{S_DST2}, s{S_TILE}, 1')
    A(f's_lshl_b32 s{S_DST2}, s{S_DST2}, 11')
    A(f's_lshl_b32 s{S_TMP}, s{S_P0}, 10')
    A(f's_add_u32 s{S_DST2}, s{S_DST2}, s{S_TMP}')
    A(f's_and_b32 s{S_TMP}, s{S_TILE}, 1')
    A(f's_lshl_b32 s{S_TMP}, s{S_TMP}, 3')
    A(f's_add_u32 s{S_DST2}, s{S_DST2}, s{S_TMP}')
    A(f's_add_u32 s{S_DST2}, s{S_DST2}, {WS_X1:#x}')
    A(f'v_mul_u32_u24 v{VO}, 1280, v{V_I}')
    A(f'v_lshl_add_u32 v{VO}, v{V_G}, 3, v{VO}')
    A(f's_mul_i32 s{S_DST}, s{S_P0}, {16 * 1280}')
    A(f's_lshl_b32 s{S_TMP}, s{S_TILE}, 5')
    A(f's_add_u32 s{S_DST}, s{S_DST}, s{S_TMP}')
    load_ptr_srd(A, KA_OUT, 2048 * 1280)
    T0, T1 = V_T0, V_T1

    def pre(A):
        A(f'buffer_load_dwordx2 v[{XX}:{XX + 1}], v{V_L16}, {WS}, s{S_DST2} offen sc1')
        A(f's_add_u32 s{S_DST2}, s{S_DST2}, 40960')

    def epi(A):
        A.wait_vm0()
        for r in (0, 2):
            f = 12 + r
            round2(A, f, f + 1, T0)
            A(f'v_pk_mul_f32 v[{f}:{f + 1}], v[{f}:{f + 1}], v[{GB + r}:{GB + r + 1}]')
            round2(A, f, f + 1, T0)
            unpack2(A, T0, T1, XX + r // 2)
            A(f'v_pk_add_f32 v[{f}:{f + 1}], v[{f}:{f + 1}], v[{T0}:{T1}]')
        pack4(A, XX, 12)
        A(f'buffer_store_dwordx2 v[{XX}:{XX + 1}], v{VO}, {WW}, s{S_DST} offen')
        A(f's_add_u32 s{S_DST}, s{S_DST}, {32 * 1280}')

    gemm_loop(A, abort, 54, 1, [(lambda k: wlin(k), True)], 54 * 2048, 27, 128, 0, 1, epi, pre_compute=pre, adv=[(S_DST, 32 * 1280), (S_DST2, 40960)])


def emit_ln2(A, abort, n, repl=False):
    A.comment('==== role LN2 ====')
    T0, T1, T2, T3 = V_T0, V_T1, V_T2, V_T3
    S_TASK, S_A, S_B, S_C = 28, 29, 30, 31
    GA, SC, SH = 20, 40, 60
    X, P1, XR, HO = 80, 100, 160, 170
    V_OP, V_X, V_O, V_LW, V_LR = 180, 181, 182, 187, 188
    MEAN, RD = 190, 192
    HB, TK = 8, 9
    A(f'v_bfe_u32 v{HB}, v{V_L}, 3, 1')
    A(f'v_and_b32 v{TK}, 7, v{V_L}')
    A(f'v_lshl_add_u32 v{T2}, v{V_G}, 4, v{TK}')
    A(f'v_lshlrev_b32 v{T2}, 4, v{T2}')
    A(f'v_mul_u32_u24 v{T0}, {5 * 2048}, v{HB}')
    A(f'v_add_u32 v{V_OP}, v{T0}, v{T2}')
    A(f'v_mul_u32_u24 v{T0}, 1280, v{TK}')
    A(f'v_mul_u32_u24 v{T1}, 160, v{HB}')
    A(f'v_add_u32 v{T0}, v{T0}, v{T1}')
    A(f'v_lshl_add_u32 v{V_X}, v{V_G}, 3, v{T0}')
    for j in range(5):
        A(f'v_mul_u32_u24 v{T0}, 5, v{HB}')
        A(f'v_add_u32 v{T0}, {j}, v{T0}')
        A(f'v_lshrrev_b32 v{T1}, 1, v{T0}')
        A(f'v_lshlrev_b32 v{T1}, 11, v{T1}')
        A(f'v_and_b32 v{T0}, 1, v{T0}')
        A(f'v_lshl_add_u32 v{T0}, v{T0}, 3, v{T1}')
        A(f'v_add_u32 v{V_O + j}, v{T0}, v{T2}')
    A(f's_lshl_b32 s{S_TMP}, s{S_WV}, 5')
    A(f'v_lshlrev_b32 v{V_LR}, 2, v{TK}')
    A(f'v_add_u32 v{V_LW}, s{S_TMP}, v{V_LR}')
    A(f'v_mul_u32_u24 v{T0}, 320, v{HB}')
    A(f'v_lshl_add_u32 v{T0}, v{V_G}, 4, v{T0}')
    A(f's_mul_i32 s{S_TMP}, s{S_WV}, 640')
    for idx, base in ((2, GA), (4, SC), (3, SH)):
        A(f's_add_u32 s{S_TMP + 1}, s{S_TMP}, {WS_MOD + idx * 2560:#x}')
        for j in range(5):
            A(f'buffer_load_dwordx4 v[{base + 4 * j}:{base + 4 * j + 3}], v{T0}, {WS}, s{S_TMP + 1} offen offset:{64 * j} sc1')
    A.wait_vm0()
    for j in range(0, 20, 2):
        A(f'v_add_f32 v{SC + j}, 1.0, v{SC + j}')
        A(f'v_add_f32 v{SC + j + 1}, 1.0, v{SC + j + 1}')
        round2(A, SC + j, SC + j + 1, T0)
    load_ptr_srd(A, KA_X, 2048 * 1280)
    top = A.newlabel('L_ln2')
    A.flush_hazards()
    A.label(top)
    A.forget()
    lq = A.newlabel('L_lq')
    A(f'v_mov_b32 v{T0}, 1024')
    A(f's_cmp_lg_u32 s{S_WV}, 0')
    A(f's_cbranch_scc1 {lq}')
    A(f'v_mov_b32 v{T1}, 1')
    A('s_mov_b64 exec, 1')
    A(f'buffer_atomic_add v{T1}, off, {DBG}, 0 offset:24 sc0 sc1')
    A.wait_vm0()
    A(f'ds_write_b32 v{T0}, v{T1}')
    A('s_mov_b64 exec, -1')
    A.wait_lg0()
    A.label(lq)
    A('s_barrier')
    A(f'ds_read_b32 v{T1}, v{T0}')
    A.wait_lg0()
    A(f'v_readfirstlane_b32 s{S_TASK}, v{T1}')
    A(f's_cmp_ge_u32 s{S_TASK}, 256')
    A(f's_cbranch_scc1 {abort}')
    A(f's_lshr_b32 s{S_A}, s{S_TASK}, 2')
    A(f's_lshl_b32 s{S_FIN}, s{S_A}, 7')
    A(f's_and_b32 s{S_FOUT}, s{S_TASK}, 3')
    A(f's_lshl_b32 s{S_FOUT}, s{S_FOUT}, 2')
    A(f's_add_u32 s{S_FOUT}, s{S_FOUT}, s{S_FIN}')
    A(f's_add_u32 s{S_FOUT}, s{S_FOUT}, {F_H2:#x}')
    A(f's_add_u32 s{S_FIN}, s{S_FIN}, {F_OP:#x}')
    if repl:
        A(f's_bfe_u32 s{S_TMP}, s{S_TASK}, 0x10001')
        A(f's_lshl_b32 s{S_TMP}, s{S_TMP}, 13')
        A(f's_cmp_ge_u32 s{S_TASK}, {4 * repl}')
        A(f's_cselect_b32 s{S_TMP}, s{S_TMP}, 0')
        A(f's_add_u32 s{S_FIN}, s{S_FIN}, s{S_TMP}')
    A(f's_mul_i32 s{S_B}, s{S_TASK}, {8 * 1280}')
    A(f's_mul_i32 s{S_TMP}, s{S_WV}, 320')
    A(f's_add_u32 s{S_B}, s{S_B}, s{S_TMP}')
    for j in range(5):
        A(f'buffer_load_dwordx2 v[{XR + 2 * j}:{XR + 2 * j + 1}], v{V_X}, {WW}, s{S_B} offen offset:{32 * j}')
    A(f's_bfe_u32 s{S_C}, s{S_TASK}, 0x10001')
    A(f's_lshl_b32 s{S_C}, s{S_C}, 10')
    A(f's_and_b32 s{S_TMP}, s{S_TASK}, 1')
    A(f's_lshl_b32 s{S_TMP}, s{S_TMP}, 7')
    A(f's_add_u32 s{S_C}, s{S_C}, s{S_TMP}')
    A(f's_mul_i32 s{S_B}, s{S_A}, {4 * 81920}')
    A(f's_add_u32 s{S_B}, s{S_B}, s{S_C}')
    A(f's_mul_i32 s{S_TMP}, s{S_WV}, {10 * 2048}')
    A(f's_add_u32 s{S_B}, s{S_B}, s{S_TMP}')
    A(f's_add_u32 s{S_B}, s{S_B}, {WS_OPART:#x}')
    wait_flags(A, abort, S_FIN, 20, sleep=2)
    tstamp63(A, 8, S_TASK, 252)
    pt = {}
    for j in range(5):
        for kg in range(4):
            dst = X + 4 * j if kg == 0 else P1 + 20 * (kg - 1) + 4 * j
            A(f's_add_u32 s{S_TMP}, s{S_B}, {kg * 81920 + j * 2048}')
            pt[j] = A(f'buffer_load_dwordx4 v[{dst}:{dst + 3}], v{V_OP}, {WS}, s{S_TMP} offen sc1')
    A(f's_mul_i32 s{S_B}, s{S_A}, 40960')
    A(f's_add_u32 s{S_B}, s{S_B}, s{S_C}')
    A(f's_mul_i32 s{S_TMP}, s{S_WV}, {5 * 2048}')
    A(f's_add_u32 s{S_B}, s{S_B}, s{S_TMP}')
    A(f's_add_u32 s{S_C}, s{S_B}, {WS_X1:#x}')
    A(f's_add_u32 s{S_B}, s{S_B}, {WS_H2:#x}')
    A(f'v_mov_b64 v[{T2}:{T3}], 0')
    for j in range(5):
        A.wait(pt[j])
        for r in (0, 2):
            x = X + 4 * j + r
            p = P1 + 4 * j + r
            A(f'v_pk_add_f32 v[{x}:{x + 1}], v[{x}:{x + 1}], v[{p}:{p + 1}]')
            A(f'v_pk_add_f32 v[{p + 20}:{p + 21}], v[{p + 20}:{p + 21}], v[{p + 40}:{p + 41}]')
            A(f'v_pk_add_f32 v[{x}:{x + 1}], v[{x}:{x + 1}], v[{p + 20}:{p + 21}]')
            round2(A, x, x + 1, T0)
            A(f'v_pk_mul_f32 v[{x}:{x + 1}], v[{x}:{x + 1}], v[{GA + 4 * j + r}:{GA + 4 * j + r + 1}]')
            round2(A, x, x + 1, T0)
            xr = XR + 2 * j + r // 2
            unpack2(A, T0, T1, xr)
            A(f'v_pk_add_f32 v[{x}:{x + 1}], v[{x}:{x + 1}], v[{T0}:{T1}]')
            A(f'v_cvt_pk_bf16_f32 v{xr}, v{x}, v{x + 1}')
            unpack2(A, x, x + 1, xr)
            A(f'v_pk_add_f32 v[{T2}:{T3}], v[{T2}:{T3}], v[{x}:{x + 1}]')
        A(f'buffer_store_dwordx2 v[{XR + 2 * j}:{XR + 2 * j + 1}], v{V_O + j}, {WS}, s{S_C} offen sc1')

    def allred(off, dst):
        A(f'v_add_f32 v{T0}, v{T2}, v{T3}')
        xlane_allreduce_g(A, 'v_add_f32', T0, T1)
        A(f'v_add_f32_dpp v{T1}, v{T0}, v{T0} row_ror:8 row_mask:0xf bank_mask:0xf')
        A(f'ds_write_b32 v{V_LW}, v{T1} offset:{off}')
        A.wait_lg0()
        A('s_barrier')
        tk = [A(f'ds_read_b32 v{12 + j}, v{V_LR} offset:{off + 32 * j}') for j in range(4)]
        A.wait(tk[-1])
        A('v_add_f32 v12, v12, v13'); A('v_add_f32 v14, v14, v15'); A('v_add_f32 v12, v12, v14')
        A(f'v_mul_f32 v{dst}, {f32bits(1.0 / 640):#x}, v12')

    tstamp63(A, 9, S_TASK, 252)
    allred(0, MEAN)
    A(f'v_sub_f32 v{MEAN}, 0, v{MEAN}')
    A(f'v_mov_b32 v{MEAN + 1}, v{MEAN}')
    A(f'v_mov_b64 v[{T2}:{T3}], 0')
    for j in range(0, 20, 2):
        A(f'v_pk_add_f32 v[{T0}:{T1}], v[{X + j}:{X + j + 1}], v[{MEAN}:{MEAN + 1}]')
        A(f'v_pk_fma_f32 v[{T2}:{T3}], v[{T0}:{T1}], v[{T0}:{T1}], v[{T2}:{T3}]')
    allred(256, RD)
    round2(A, MEAN, RD, T0)
    A(f'v_mov_b32 v{MEAN + 1}, v{MEAN}')
    A(f'v_add_f32 v{RD}, {f32bits(1e-5):#x}, v{RD}')
    round_bf16(A, RD, RD)
    A(f'v_sqrt_f32 v{RD}, v{RD}')
    round_bf16(A, RD, RD)
    A(f'v_rcp_f32 v{RD}, v{RD}')
    A(f'v_mov_b32 v{RD + 1}, v{RD}')
    for j in range(5):
        for r in (0, 2):
            x = X + 4 * j + r
            A(f'v_pk_add_f32 v[{x}:{x + 1}], v[{x}:{x + 1}], v[{MEAN}:{MEAN + 1}]')
            round2(A, x, x + 1, T0)
            A(f'v_pk_mul_f32 v[{x}:{x + 1}], v[{x}:{x + 1}], v[{RD}:{RD + 1}]')
            round2(A, x, x + 1, T0)
            A(f'v_pk_mul_f32 v[{x}:{x + 1}], v[{x}:{x + 1}], v[{SC + 4 * j + r}:{SC + 4 * j + r + 1}]')
            round2(A, x, x + 1, T0)
            A(f'v_pk_add_f32 v[{x}:{x + 1}], v[{x}:{x + 1}], v[{SH + 4 * j + r}:{SH + 4 * j + r + 1}]')
            A(f'v_cvt_pk_bf16_f32 v{HO + 2 * j + r // 2}, v{x}, v{x + 1}')
        A(f'buffer_store_dwordx2 v[{HO + 2 * j}:{HO + 2 * j + 1}], v{V_O + j}, {WS}, s{S_B} offen sc1')
    tstamp63(A, 10, S_TASK, 252)
    signal(A, S_FOUT)
    tstamp63(A, 11, S_TASK, 252)
    A.branch(f's_branch {top}')


def emit_proj(A, abort, m, need_init):
    A.comment(f'==== role projection {m} ====')
    weight_addr_setup(A, 8192)
    load_ptr_srd(A, {'q': KA_WQ, 'k': KA_WK, 'v': KA_WV}[m], 640 * 8192)
    A(f's_lshl_b32 s{S_SRC}, s{S_P0}, 8')
    load_weights_coop(A, S_SRC, 8192, 20, lambda k, t: wlin(2 * k + t))
    tstamp(A, 0)
    if need_init:
        A(f's_add_u32 s{S_DST}, s{S_P0}, {0 if m == "k" else 32}')
        emit_calib(A, S_DST)
        wait_init(A, abort)
    tstamp(A, 1)
    A(f's_mov_b32 s{S_SEG}, 0')
    A(f's_mov_b32 s{S_LIM}, 64')
    A(f's_mov_b32 s{S_SRC}, {WS_H:#x}')
    A(f's_mov_b32 s{S_FIN}, {F_H:#x}')
    A(f's_lshl_b32 s{S_FOUT}, s{S_P0}, 4')
    A(f's_add_u32 s{S_FOUT}, s{S_FOUT}, {F_P + 4 * "kvq".index(m):#x}')
    if m != 'q':
        A(f's_lshl_b32 s{S_DST2}, s{S_P0}, 12')
        A(f's_lshl_b32 s{S_TMP}, s{S_WV}, 10')
        A(f's_add_u32 s{S_DST2}, s{S_DST2}, s{S_TMP}')
        A(f's_add_u32 s{S_DST2}, s{S_DST2}, {dict(k=WS_KM, v=WS_VM)[m]:#x}')
    A(f's_lshl_b32 s{S_DST}, s{S_P0}, 13')
    A(f's_lshl_b32 s{S_TMP}, s{S_WV}, {11 if m == "v" else 10}')
    A(f's_add_u32 s{S_DST}, s{S_DST}, s{S_TMP}')
    A(f's_add_u32 s{S_DST}, s{S_DST}, {dict(q=WS_Q, k=WS_KX, v=WS_VX)[m]:#x}')
    acc = lambda t, tt: 12 + 4 * (t * 2 + tt)
    O = 68

    def epi(A):
        for j in range(2):
            o = O + 4 * j
            if m == 'v':
                pack4(A, o, acc(j, 0)); pack4(A, o + 2, acc(j, 1))
                A(f'buffer_store_dwordx4 v[{o}:{o + 3}], v{V_L16}, {WS}, s{S_DST} offen offset:{j * 1024} sc1')
            else:
                pack4(A, o, acc(0, j)); pack4(A, o + 2, acc(1, j))
                A(f's_add_u32 s{S_TMP}, s{S_DST}, {j * 4096}')
                A(f'buffer_store_dwordx4 v[{o}:{o + 3}], v{V_L16}, {WS}, s{S_TMP} offen sc1')
        A(f's_add_u32 s{S_DST}, s{S_DST}, {32 * 8192}')
        if m != 'q':
            A(f'buffer_store_dwordx4 v[{O}:{O + 3}], v{V_L16}, {WS}, s{S_DST2} offen sc1')
            A(f's_add_u32 s{S_DST2}, s{S_DST2}, {32 * 4096}')

    tr = m != 'v'
    tiles = [(lambda k: wlin(2 * k), tr), (lambda k: wlin(2 * k + 1), tr)]
    gemm_loop(A, abort, 20, 2, tiles, 40960, 2, 8, 512, 1, epi)


def emit_att(A, abort, ncu, done_label, attsleep=3):
    A.comment('==== role ATT ====')
    S_TASK, S_SH, S_TT, S_SC, S_L2E, S_A, S_B = range(28, 35)
    KX, VX, KM, VM, QF, SS, OO = 12, 44, 76, 92, 108, 124, 136
    V_KMA, V_VMA, V_DIFF, V_D0 = 168, 169, 170, 171
    PP = 172
    T0, T1, T2 = V_T0, V_T1, V_T2
    A(f's_lshl_b32 s{S_TASK}, s{S_P0}, 2')
    A(f's_add_u32 s{S_TASK}, s{S_TASK}, s{S_WV}')
    A(f's_mov_b32 s{S_SC}, {f32bits(128 ** -0.5):#x}')
    A(f's_mov_b32 s{S_L2E}, {f32bits(math.log2(math.e)):#x}')
    A(f'v_and_b32 v{T0}, 7, v{V_I}')
    A(f'v_lshl_add_u32 v{T0}, v{V_G}, 3, v{T0}')
    A(f'v_lshlrev_b32 v{V_KMA}, 4, v{T0}')
    A(f'v_and_b32 v{T0}, 31, v{V_L}')
    A(f'v_lshlrev_b32 v{V_VMA}, 4, v{T0}')
    A(f'v_lshlrev_b32 v{T0}, 2, v{V_G}')
    A(f'v_sub_u32 v{V_D0}, v{V_I}, v{T0}')
    top = A.newlabel('L_att')
    A.flush_hazards()
    A.label(top)
    A.forget()
    A(f'v_mov_b32 v{T1}, 1')
    A('s_mov_b64 exec, 1')
    A(f'buffer_atomic_add v{T1}, off, {DBG}, 0 offset:20 sc0 sc1')
    A('s_mov_b64 exec, -1')
    A.wait_vm0()
    A(f'v_readfirstlane_b32 s{S_TASK}, v{T1}')
    A(f's_cmp_ge_u32 s{S_TASK}, 4096')
    A(f's_cbranch_scc1 {done_label}')
    A(f's_lshr_b32 s{S_SH}, s{S_TASK}, 1')
    A(f's_and_b32 s{S_TT}, s{S_TASK}, 1')
    A(f's_lshl_b32 s{S_TMP}, s{S_TT}, 4')
    A(f'v_add_u32 v{V_DIFF}, s{S_TMP}, v{V_D0}')
    A(f's_lshl_b32 s{S_A}, s{S_SH}, 4')
    A(f's_add_u32 s{S_B}, s{S_A}, {F_P:#x}')
    wait_flags(A, abort, S_B, 3)
    A(f's_lshl_b32 s{S_A}, s{S_SH}, 13')
    A(f's_lshl_b32 s{S_TMP}, s{S_TT}, 12')
    A(f's_add_u32 s{S_B}, s{S_A}, s{S_TMP}')
    A(f's_add_u32 s{S_B}, s{S_B}, {WS_Q:#x}')
    qt = [A(f'buffer_load_dwordx4 v[{QF + 4 * k}:{QF + 4 * k + 3}], v{V_L16}, {WS}, s{S_B} offen offset:{k * 1024} sc1') for k in range(4)]
    kt = {}
    for f in range(8):
        A(f's_add_u32 s{S_B}, s{S_A}, {WS_KX + (f >> 2) * 4096:#x}')
        kt[f] = A(f'buffer_load_dwordx4 v[{KX + 4 * f}:{KX + 4 * f + 3}], v{V_L16}, {WS}, s{S_B} offen offset:{(f & 3) * 1024} sc1')
    for f in range(8):
        A(f's_add_u32 s{S_B}, s{S_A}, {WS_VX + (f >> 2) * 4096:#x}')
        A(f'buffer_load_dwordx4 v[{VX + 4 * f}:{VX + 4 * f + 3}], v{V_L16}, {WS}, s{S_B} offen offset:{(f & 3) * 1024} sc1')
    Sm, S0, S1 = SS, SS + 4, SS + 8
    for kt_i, s_ in ((0, S0), (1, S1)):
        for k in range(4):
            A.wait(qt[k], kt[kt_i * 4 + k])
            c = '0' if k == 0 else f'v[{s_}:{s_ + 3}]'
            b = KX + 4 * (kt_i * 4 + k)
            A(f'v_mfma_f32_16x16x32_bf16 v[{s_}:{s_ + 3}], v[{b}:{b + 3}], v[{QF + 4 * k}:{QF + 4 * k + 3}], {c}')

    def fix(base):
        for r in (0, 2):
            round2(A, base + r, base + r + 1, T0)
            A(f'v_mul_f32 v{base + r}, s{S_SC}, v{base + r}')
            A(f'v_mul_f32 v{base + r + 1}, s{S_SC}, v{base + r + 1}')
            round2(A, base + r, base + r + 1, T0)
    A(f'v_mov_b32 v{T2}, 0xce6e6b28')
    for kt_i, s_ in ((0, S0), (1, S1)):
        fix(s_)
        for r in range(4):
            A(f'v_cmp_le_i32 vcc, {16 * kt_i + r}, v{V_DIFF}')
            A(f'v_cndmask_b32 v{s_ + r}, v{T2}, v{s_ + r}, vcc')
    MX = V_T3
    A(f'v_max3_f32 v{MX}, v{S0}, v{S0 + 1}, v{S0 + 2}')
    A(f'v_max3_f32 v{MX}, v{MX}, v{S0 + 3}, v{S1}')
    A(f'v_max3_f32 v{MX}, v{MX}, v{S1 + 1}, v{S1 + 2}')
    A(f'v_max_f32 v{MX}, v{MX}, v{S1 + 3}')
    A(f's_lshl_b32 s{S_B}, s{S_SH}, 5')
    A(f's_add_u32 s{S_B}, s{S_B}, {F_M:#x}')
    wait_flags(A, abort, S_B, 2, sleep=attsleep)
    A(f's_lshl_b32 s{S_A}, s{S_SH}, 11')
    A(f's_lshl_b32 s{S_B}, s{S_SH}, 12')
    A(f's_add_u32 s{S_B}, s{S_B}, {WS_KM:#x}')
    km = [A(f'buffer_load_dwordx4 v[{KM + 4 * k}:{KM + 4 * k + 3}], v{V_L16}, {WS}, s{S_B} offen offset:{k * 1024} sc1') for k in range(4)]
    A(f's_sub_u32 s{S_B}, s{S_B}, {WS_KM - WS_VM:#x}')
    vm = [A(f'buffer_load_dwordx2 v[{VM + 2 * j}:{VM + 2 * j + 1}], v{V_VMA}, {WS}, s{S_B} offen offset:{j * 512} sc1') for j in range(8)]
    for k in range(4):
        A.wait(km[k])
        c = '0' if k == 0 else f'v[{Sm}:{Sm + 3}]'
        A(f'v_mfma_f32_16x16x32_bf16 v[{Sm}:{Sm + 3}], v[{KM + 4 * k}:{KM + 4 * k + 3}], v[{QF + 4 * k}:{QF + 4 * k + 3}], {c}')
    A(f'v_cmp_gt_u32 vcc, 2, v{V_G}')
    fix(Sm)
    for r in range(4):
        A(f'v_cndmask_b32 v{Sm + r}, v{T2}, v{Sm + r}, vcc')
    A(f'v_max3_f32 v{T0}, v{MX}, v{Sm}, v{Sm + 1}')
    A(f'v_max3_f32 v{T0}, v{T0}, v{Sm + 2}, v{Sm + 3}')
    xlane_allreduce_g(A, 'v_max_f32', T0, T1)
    for j in range(12):
        A(f'v_sub_f32 v{SS + j}, v{SS + j}, v{T0}')
    for j in range(12):
        A(f'v_mul_f32 v{SS + j}, s{S_L2E}, v{SS + j}')
    for j in range(12):
        A(f'v_exp_f32 v{SS + j}, v{SS + j}')
    A(f'v_add_f32 v{T0}, v{SS}, v{SS + 1}')
    A(f'v_add_f32 v{T1}, v{SS + 2}, v{SS + 3}')
    for j in range(4, 12, 2):
        A(f'v_add_f32 v{T0}, v{T0}, v{SS + j}')
        A(f'v_add_f32 v{T1}, v{T1}, v{SS + j + 1}')
    A(f'v_add_f32 v{T0}, v{T0}, v{T1}')
    xlane_allreduce_g(A, 'v_add_f32', T0, T1)
    A(f'v_rcp_f32 v{T0}, v{T0}')
    for j in range(12):
        A(f'v_mul_f32 v{SS + j}, v{SS + j}, v{T0}')
    pack4(A, PP, S0); pack4(A, PP + 2, S1); pack4(A, PP + 4, Sm)
    A.wait(vm[-1])
    for j in range(8):
        o = OO + 4 * j
        A(f'v_mfma_f32_16x16x32_bf16 v[{o}:{o + 3}], v[{VX + 4 * j}:{VX + 4 * j + 3}], v[{PP}:{PP + 3}], 0')
    for j in range(8):
        o = OO + 4 * j
        A(f'v_mfma_f32_16x16x16_bf16 v[{o}:{o + 3}], v[{VM + 2 * j}:{VM + 2 * j + 1}], v[{PP + 4}:{PP + 5}], v[{o}:{o + 3}]')
    A(f's_lshl_b32 s{S_A}, s{S_SH}, 13')
    A(f's_lshl_b32 s{S_TMP}, s{S_TT}, 10')
    A(f's_add_u32 s{S_A}, s{S_A}, s{S_TMP}')
    A(f's_add_u32 s{S_A}, s{S_A}, {WS_O:#x}')
    for j in range(4):
        d = QF + 4 * j
        pack4(A, d, OO + 8 * j); pack4(A, d + 2, OO + 8 * j + 4)
        A(f's_add_u32 s{S_B}, s{S_A}, {j * 2048}')
        A(f'buffer_store_dwordx4 v[{d}:{d + 3}], v{V_L16}, {WS}, s{S_B} offen sc1')
    A.wait_vm0()
    A(f's_lshl_b32 s{S_B}, s{S_TASK}, 2')
    A(f's_add_u32 s{S_B}, s{S_B}, {F_O:#x}')
    A(f'v_mov_b32 v{T1}, 1')
    A('s_mov_b64 exec, 1')
    A(f'buffer_store_dword v{T1}, off, {WS}, s{S_B} sc1')
    A('s_mov_b64 exec, -1')
    A.branch(f's_branch {top}')


def emit_warm(A, s_j, first_seg):
    A.comment('==== late warm-up ====')
    T0 = V_T0
    A(f's_lshl_b32 s{S_TMP}, s{S_WV}, 6')
    A(f'v_add_u32 v{T0}, s{S_TMP}, v{V_L}')
    A(f'v_lshlrev_b32 v{T0}, 7, v{T0}')
    load_ptr_srd(A, KA_OUT, 2048 * 1280)
    regions = [(WS_O, 262144, WS), (WS_OPART, 327680, WS), (WS_X1, 40960, WS), (WS_H2, 40960, WS), (WS_ACT, 110592, WS), (0, 40960, WW)]
    n = 0
    for base, per, srd in regions:
        lo = base + first_seg * per
        units = ((64 - first_seg) * per + 32767) // 32768
        for i in range((units + 63) // 64):
            A(f's_add_u32 s{S_TMP}, s{s_j}, {64 * i}')
            A(f's_min_u32 s{S_TMP}, s{S_TMP}, {units - 1}')
            A(f's_lshl_b32 s{S_TMP}, s{S_TMP}, 15')
            A(f's_add_u32 s{S_TMP}, s{S_TMP}, {lo:#x}')
            A(f'buffer_load_dword v{12 + n % 8}, v{T0}, {srd}, s{S_TMP} offen sc1')
            n += 1
            if n % 4 == 0:
                A('s_waitcnt vmcnt(4)')
    A.wait_vm0()


def emit_calib(A, s_j):
    A.comment('==== page calibration ====')
    le = A.newlabel('L_cal')
    A(f's_cmp_lg_u32 s{S_WV}, 0')
    A(f's_cbranch_scc1 {le}')
    A(f'v_mov_b32 v{V_T0}, -1')
    A('s_mov_b64 exec, 1')
    A.wait_vm0()
    for d in range(2):
        A('s_mov_b32 s60, -1')
        A('s_mov_b32 s61, -1')
        for rep in range(3):
            for c in range(2):
                A(f's_lshl_b32 s{S_TMP}, s{s_j}, 15')
                A(f's_add_u32 s{S_TMP}, s{S_TMP}, {WS_MEMR + d * 16384 + c * 8192 + 6144:#x}')
                A('s_memtime s[56:57]')
                A('s_waitcnt lgkmcnt(0)')
                A(f'buffer_store_dword v{V_T0}, off, {WS}, s{S_TMP} sc1')
                A.wait_vm0()
                A('s_memtime s[58:59]')
                A('s_waitcnt lgkmcnt(0)')
                A('s_sub_u32 s58, s58, s56')
                A(f's_min_u32 s{60 + c}, s{60 + c}, s58')
        A('s_cmp_lt_u32 s61, s60' if not CAL_INV[0] else 's_cmp_gt_u32 s61, s60')
        A(f's_cselect_b32 s{62 + d}, 1, 0')
    for d in range(2):
        A(f's_and_b32 s{S_TMP}, s{s_j}, 31')
        A(f's_lshl_b32 s{62 + d}, s{62 + d}, s{S_TMP}')
        A(f'v_mov_b32 v{V_T1}, s{62 + d}')
        A(f's_lshr_b32 s{S_TMP}, s{s_j}, 5')
        A(f's_lshl_b32 s{S_TMP}, s{S_TMP}, 2')
        A(f'buffer_atomic_or v{V_T1}, off, {DBG}, s{S_TMP} offset:{144 + 8 * d} sc1')
    A.wait_vm0()
    A(f'v_mov_b32 v{V_T1}, 1')
    A(f'buffer_atomic_add v{V_T1}, off, {DBG}, 0 offset:160 sc1')
    A('s_mov_b64 exec, -1')
    A.label(le)
```

```python
import sys
from asmlib import *
from layout import *
import rec, roles
from roles import *

KNAME = "adaLN_cond__memory_aug_recurrent_mem_tr__swiglu_ffn__prompt_kernel"
HEADER = open('adaLN_cond__memory_aug_recurrent_mem_tr__swiglu_ffn__prompt.s.ref').read().split('; Override launch')[0]

def gen(path, coarse=False, stamps=False, dbg='', gate=0, join='q', attsleep=3, warm=0, dbgt=False, repl=42, repl1=0, scramble=False, lnjoin=24, **kw):
    A = Asm()
    roles.DEBUG_STAMPS[0] = stamps
    roles.FF1_SPLIT[0] = bool(repl1)
    A.raw(HEADER.rstrip('\n'))
    A.raw('; @launch grid=(256,1,1) block=(256,1,1) lds=163840')
    A.raw('.amdgcn_target "amdgcn-amd-amdhsa--gfx950"')
    A.raw(kernel_header(KNAME))
    END = 'L_end'
    A('s_cmp_ge_u32 s2, 256')
    A('s_cbranch_scc1 L_end0')
    S_X, S_IDX = 98, 99
    if coarse or dbgt:
        A('s_memrealtime s[100:101]')
    A(f's_load_dwordx2 s[4:5], s[0:1], {KA_DBG}')
    A(f's_getreg_b32 s{S_X}, hwreg(HW_REG_XCC_ID)')
    if scramble:
        A('s_lshr_b32 s6, s2, 3')
        A(f's_add_u32 s{S_X}, s{S_X}, s6')
    A(f's_and_b32 s{S_X}, s{S_X}, 7')
    A('v_lshrrev_b32 v1, 6, v0')
    A('v_readfirstlane_b32 s3, v1')
    A('s_waitcnt lgkmcnt(0)')
    A.srd(8, 4, 5, 256)
    A('s_cmp_lg_u32 s3, 0')
    A('s_cbranch_scc1 L_claimed')
    A('s_mov_b32 s6, 0')
    A('s_mov_b64 exec, 1')
    A.label('L_claim')
    A(f's_lshl_b32 s7, s{S_X}, 2')
    A(f's_cmp_lt_u32 s{S_X}, 2')
    A('s_cselect_b32 s12, 0xc0, 32')
    A('s_add_u32 s7, s7, s12')
    A('v_mov_b32 v1, 1')
    A('buffer_atomic_add v1, off, s[8:11], s7 sc0 sc1')
    A('s_waitcnt vmcnt(0)')
    A(f'v_readfirstlane_b32 s{S_IDX}, v1')
    A(f's_cmp_lt_u32 s{S_IDX}, 32')
    A('s_cbranch_scc1 L_claim_ok')
    A(f's_add_u32 s{S_X}, s{S_X}, 1')
    A(f's_and_b32 s{S_X}, s{S_X}, 7')
    A('s_add_u32 s6, s6, 1')
    A('s_cmp_lt_u32 s6, 8')
    A('s_cbranch_scc1 L_claim')
    A(f's_mov_b32 s{S_IDX}, 255')
    A.label('L_claim_ok')
    A(f's_lshl_b32 s7, s{S_IDX}, 3')
    A(f's_or_b32 s7, s7, s{S_X}')
    A('v_mov_b32 v1, s7')
    A('v_mov_b32 v2, 0')
    A('ds_write_b32 v2, v1')
    A('s_waitcnt lgkmcnt(0)')
    A('s_mov_b64 exec, -1')
    A.label('L_claimed')
    A('s_barrier')
    A('v_mov_b32 v2, 0')
    A('ds_read_b32 v1, v2')
    A('s_waitcnt lgkmcnt(0)')
    A('v_readfirstlane_b32 s7, v1')
    A('s_barrier')
    A(f's_and_b32 s{S_X}, s7, 7')
    A(f's_lshr_b32 s{S_IDX}, s7, 3')
    A('s_mov_b32 s3, s7')
    A(f's_cmp_ge_u32 s{S_IDX}, 32')
    A('s_cbranch_scc1 L_end0')
    A(f's_cmp_lt_u32 s{S_X}, 2')
    A('s_cbranch_scc1 L_rec')
    common_setup(A)
    A(f's_cmp_lt_u32 s{S_X}, 4')
    A('s_cbranch_scc1 L_kv')
    A(f's_sub_u32 s{S_P0}, s{S_X}, 4')
    A(f's_lshl_b32 s{S_P0}, s{S_P0}, 5')
    A(f's_add_u32 s{S_P0}, s{S_P0}, s{S_IDX}')
    emit_init(A, END)
    tstamp(A, 4)
    emit_ln(A, 1, S_P0, mid=lambda: (wait_init(A, END), tstamp(A, 5)))
    tstamp(A, 6)
    A(f's_lshl_b32 s{S_FOUT}, s{S_P0}, 2')
    A(f's_add_u32 s{S_FOUT}, s{S_FOUT}, {F_H:#x}')
    signal(A, S_FOUT)
    emit_init(A, END, part=2)
    if gate:
        A(f's_cmp_lg_u32 s{S_WV}, 0')
        A('s_cbranch_scc1 L_gate')
        A(f's_mov_b32 s{S_TMP}, {WS_FLAG + 0x3800:#x}')
        wait_flags(A, 'L_gate', S_TMP, 1, value=gate, sleep=32, ge=True)
        A.label('L_gate')
    A('s_barrier')
    A(f's_mov_b32 s{S_SEG}, 0')
    A(f's_mov_b32 s{S_LIM}, 64')
    A(f's_cmp_eq_u32 s{S_X}, 4')
    A.branch('s_cbranch_scc1 L_q')
    A(f's_cmp_eq_u32 s{S_X}, 5')
    A.branch('s_cbranch_scc1 L_x5')
    A(f's_cmp_eq_u32 s{S_X}, 6')
    A.branch('s_cbranch_scc1 L_x6')
    A(f's_sub_u32 s{S_P0}, s{S_IDX}, 11')
    A(f's_cmp_ge_u32 s{S_IDX}, 20')
    A('s_cbranch_scc1 L_att')
    A.label('L_ff2'); A.forget()
    A(f's_and_b32 s{S_P0}, s{S_IDX}, 1')
    A(f's_lshr_b32 s{S_P1}, s{S_IDX}, 1')
    emit_ff2(A, END)
    A.branch(f's_branch {END}')
    A.label('L_x6'); A.forget()
    A(f's_sub_u32 s{S_P0}, s{S_IDX}, 23')
    A(f's_cmp_ge_u32 s{S_IDX}, 27')
    A('s_cbranch_scc1 L_att')
    A.label('L_ff1'); A.forget()
    A(f's_mov_b32 s{S_P0}, s{S_IDX}')
    emit_ff1_weights(A)
    if repl1:
        A(f's_mov_b32 s{S_LIM}, {repl1}')
    emit_ff1(A, END)
    if repl1:
        A(f's_mov_b32 s{S_P2}, 0')
        A.label('L_ff1s'); A.forget()
        A('s_barrier')
        A(f's_mov_b32 s{S_SEG}, {repl1}')
        A(f's_mov_b32 s{S_LIM}, 64')
        emit_ff1(A, END, split=True)
    A.branch(f's_branch {END}')
    A.label('L_x5'); A.forget()
    A(f's_sub_u32 s{S_P0}, s{S_IDX}, 28')
    A(f's_cmp_ge_u32 s{S_IDX}, 28')
    A('s_cbranch_scc1 L_att')
    A(f's_cmp_ge_u32 s{S_IDX}, 20')
    A('s_cbranch_scc1 L_ln2r')
    A(f's_mul_i32 s{S_P0}, s{S_IDX}, 52')
    A(f's_lshr_b32 s{S_P0}, s{S_P0}, 8')
    A(f's_mul_i32 s{S_P1}, s{S_P0}, 5')
    A(f's_sub_u32 s{S_P1}, s{S_IDX}, s{S_P1}')
    emit_op_weights(A)
    if repl:
        A(f's_mov_b32 s{S_LIM}, {repl}')
    emit_op(A, END)
    if repl:
        A(f's_mov_b32 s{S_P2}, 0')
        A.label('L_ops'); A.forget()
        A('s_barrier')
        A(f's_mov_b32 s{S_SEG}, {repl}')
        A(f's_mov_b32 s{S_LIM}, 64')
        emit_op(A, END, split=True)
    A.branch(f's_branch {END}')
    A.label('L_ln2r'); A.forget()
    A(f's_sub_u32 s{S_P0}, s{S_IDX}, 20')
    emit_ln2(A, END, 8, repl)
    A.branch(f's_branch {END}')
    A.label('L_q'); A.forget()
    A(f's_mov_b32 s{S_P0}, s{S_IDX}')
    emit_proj(A, END, 'q', False)
    if repl1:
        A(f's_cmp_ge_u32 s{S_IDX}, 27')
        A.branch('s_cbranch_scc1 L_att')
        A('s_barrier')
        emit_ff1_weights(A)
        A(f's_mov_b32 s{S_P2}, 1')
        A.branch('s_branch L_ff1s')
    A.branch('s_branch L_att' if 'q' in join else f's_branch {END}')
    A.label('L_att'); A.forget()
    emit_att(A, END, 21, END, attsleep)
    A.branch(f's_branch {END}')
    A.label('L_kv'); A.forget()
    A(f's_mov_b32 s{S_P0}, s{S_IDX}')
    A(f's_sub_u32 s{S_P1}, s{S_X}, 2')
    A(f's_cmp_eq_u32 s{S_X}, 3')
    A('s_cbranch_scc1 L_vp')
    emit_proj(A, END, 'k', True)
    A.branch('s_branch L_kvd')
    A.label('L_vp'); A.forget()
    emit_proj(A, END, 'v', True)
    A.label('L_kvd'); A.forget()
    A(f's_lshl_b32 s{S_P1}, s{S_P1}, 5')
    A(f's_add_u32 s{S_P1}, s{S_P1}, s{S_P0}')
    if warm:
        emit_warm(A, S_P1, warm)
    A('s_barrier')
    A(f's_cmp_lt_u32 s{S_P1}, {lnjoin}')
    A.branch('s_cbranch_scc1 L_ln2r')
    if repl:
        A(f's_sub_u32 s{S_TMP}, s{S_P1}, 32')
        A(f's_cmp_ge_u32 s{S_TMP}, 20')
        A.branch('s_cbranch_scc1 L_att' if repl1 else f's_cbranch_scc1 {END}')
        A(f's_mul_i32 s{S_P0}, s{S_TMP}, 52')
        A(f's_lshr_b32 s{S_P0}, s{S_P0}, 8')
        A(f's_mul_i32 s{S_P1}, s{S_P0}, 5')
        A(f's_sub_u32 s{S_P1}, s{S_TMP}, s{S_P1}')
        emit_op_weights(A)
        A(f's_mov_b32 s{S_P2}, 1')
        A.branch('s_branch L_ops')
    else:
        A.branch(f's_branch {END}')
    A.label('L_rec'); A.forget()
    A(f's_mov_b32 s{rec.S_T}, s{S_X}')
    A(f's_mov_b32 s{rec.S_H}, s{S_IDX}')
    rec.emit_rec(A, END, mega=True, coarse=coarse, stamps=stamps, dbg=dbg, **kw)
    A.label(END)
    if dbgt:
        A('s_memrealtime s[92:93]')
        A('s_waitcnt lgkmcnt(0)')
        A('s_mov_b64 exec, 1')
        A('s_not_b32 s100, s100')
        A('v_mov_b32 v2, s100')
        A('v_mov_b32 v3, s92')
        A('buffer_atomic_umax v2, off, s[12:15], 0 sc1')
        A('s_and_b32 s41, s3, 7')
        A('s_cmp_lt_u32 s41, 2')
        A('s_cselect_b32 s41, 4, 8')
        A('buffer_atomic_umax v3, off, s[12:15], s41 sc1')
    if coarse:
        A('s_memrealtime s[92:93]')
        A('s_waitcnt lgkmcnt(0)')
        A('s_lshl_b32 s41, s3, 4')
        A(f's_add_u32 s41, s41, {WS_STAMP + 0x300000:#x}')
        A('s_mov_b64 exec, 1')
        A('v_mov_b32 v2, s100')
        A('v_mov_b32 v3, s92')
        A('buffer_store_dwordx2 v[2:3], off, s[4:7], s41')
    A.label('L_end0')
    A('s_endpgm')
    A.raw(kernel_desc(KNAME))
    open(path, 'w').write(A.text())
    print('instructions:', A.ninstr, 'bytes of text:', len(A.text()))

if __name__ == '__main__':
    out = 'mega.s'
    gen(out, coarse='--coarse' in sys.argv, stamps='--stamps' in sys.argv)
    for d in ('nokmt', 'nokmt,pubnt'):
        if '--dbg' in sys.argv:
            gen(f'mega_{d.replace(",", "_")}.s', coarse=True, stamps=True, dbg=d)
    if '--install' in sys.argv:
        import shutil
        shutil.copy(out, 'adaLN_cond__memory_aug_recurrent_mem_tr__swiglu_ffn__prompt.s')
```

```python
import sys
from asmlib import *
from layout import *
import rec, roles
from roles import *

KNAME = "adaLN_cond__memory_aug_recurrent_mem_tr__swiglu_ffn__prompt_kernel"
HEADER = open('adaLN_cond__memory_aug_recurrent_mem_tr__swiglu_ffn__prompt.s.ref').read().split('; Override launch')[0]

def gen(path, coarse=False, stamps=False, dbg='', gate=0, join='q', attsleep=3, warm=0, dbgt=False, repl=42, repl1=0, scramble=False, perm=None, calinv=False, lnjoin=24, **kw):
    A = Asm()
    roles.DEBUG_STAMPS[0] = stamps
    roles.CAL_INV[0] = calinv
    roles.FF1_SPLIT[0] = bool(repl1)
    A.raw(HEADER.rstrip('\n'))
    A.raw('; @launch grid=(256,1,1) block=(256,1,1) lds=163840')
    A.raw('.amdgcn_target "amdgcn-amd-amdhsa--gfx950"')
    A.raw(kernel_header(KNAME))
    END = 'L_end'
    A('s_cmp_ge_u32 s2, 256')
    A('s_cbranch_scc1 L_end0')
    S_X, S_IDX = 98, 99
    if coarse or dbgt:
        A('s_memrealtime s[100:101]')
    A(f's_load_dwordx2 s[4:5], s[0:1], {KA_DBG}')
    A(f's_getreg_b32 s{S_X}, hwreg(HW_REG_XCC_ID)')
    if scramble:
        A('s_lshr_b32 s6, s2, 3')
        A(f's_add_u32 s{S_X}, s{S_X}, s6')
    A(f's_and_b32 s{S_X}, s{S_X}, 7')
    if perm:
        A(f's_lshl_b32 s{S_X}, s{S_X}, 2')
        A(f's_lshr_b32 s{S_X}, {sum(p << (4 * i) for i, p in enumerate(perm)):#x}, s{S_X}')
        A(f's_and_b32 s{S_X}, s{S_X}, 7')
    A('v_lshrrev_b32 v1, 6, v0')
    A('v_readfirstlane_b32 s3, v1')
    A('s_waitcnt lgkmcnt(0)')
    A.srd(8, 4, 5, 256)
    A('s_cmp_lg_u32 s3, 0')
    A('s_cbranch_scc1 L_claimed')
    A('s_mov_b32 s6, 0')
    A('s_mov_b64 exec, 1')
    A.label('L_claim')
    A(f's_lshl_b32 s7, s{S_X}, 2')
    A(f's_cmp_lt_u32 s{S_X}, 2')
    A('s_cselect_b32 s12, 0xc0, 32')
    A('s_add_u32 s7, s7, s12')
    A('v_mov_b32 v1, 1')
    A('buffer_atomic_add v1, off, s[8:11], s7 sc0 sc1')
    A('s_waitcnt vmcnt(0)')
    A(f'v_readfirstlane_b32 s{S_IDX}, v1')
    A(f's_cmp_lt_u32 s{S_IDX}, 32')
    A('s_cbranch_scc1 L_claim_ok')
    A(f's_add_u32 s{S_X}, s{S_X}, 1')
    A(f's_and_b32 s{S_X}, s{S_X}, 7')
    A('s_add_u32 s6, s6, 1')
    A('s_cmp_lt_u32 s6, 8')
    A('s_cbranch_scc1 L_claim')
    A(f's_mov_b32 s{S_IDX}, 255')
    A.label('L_claim_ok')
    A(f's_lshl_b32 s7, s{S_IDX}, 3')
    A(f's_or_b32 s7, s7, s{S_X}')
    A('v_mov_b32 v1, s7')
    A('v_mov_b32 v2, 0')
    A('ds_write_b32 v2, v1')
    A('s_waitcnt lgkmcnt(0)')
    A('s_mov_b64 exec, -1')
    A.label('L_claimed')
    A('s_barrier')
    A('v_mov_b32 v2, 0')
    A('ds_read_b32 v1, v2')
    A('s_waitcnt lgkmcnt(0)')
    A('v_readfirstlane_b32 s7, v1')
    A('s_barrier')
    A(f's_and_b32 s{S_X}, s7, 7')
    A(f's_lshr_b32 s{S_IDX}, s7, 3')
    A('s_mov_b32 s3, s7')
    A(f's_cmp_ge_u32 s{S_IDX}, 32')
    A('s_cbranch_scc1 L_end0')
    A(f's_cmp_lt_u32 s{S_X}, 2')
    A('s_cbranch_scc1 L_rec')
    common_setup(A)
    A(f's_cmp_lt_u32 s{S_X}, 4')
    A('s_cbranch_scc1 L_kv')
    A(f's_sub_u32 s{S_P0}, s{S_X}, 4')
    A(f's_lshl_b32 s{S_P0}, s{S_P0}, 5')
    A(f's_add_u32 s{S_P0}, s{S_P0}, s{S_IDX}')
    emit_init(A, END)
    tstamp(A, 4)
    emit_ln(A, 1, S_P0, mid=lambda: (wait_init(A, END), tstamp(A, 5)))
    tstamp(A, 6)
    A(f's_lshl_b32 s{S_FOUT}, s{S_P0}, 2')
    A(f's_add_u32 s{S_FOUT}, s{S_FOUT}, {F_H:#x}')
    signal(A, S_FOUT)
    emit_init(A, END, part=2)
    if gate:
        A(f's_cmp_lg_u32 s{S_WV}, 0')
        A('s_cbranch_scc1 L_gate')
        A(f's_mov_b32 s{S_TMP}, {WS_FLAG + 0x3800:#x}')
        wait_flags(A, 'L_gate', S_TMP, 1, value=gate, sleep=32, ge=True)
        A.label('L_gate')
    A('s_barrier')
    A(f's_mov_b32 s{S_SEG}, 0')
    A(f's_mov_b32 s{S_LIM}, 64')
    A(f's_cmp_eq_u32 s{S_X}, 4')
    A.branch('s_cbranch_scc1 L_q')
    A(f's_cmp_eq_u32 s{S_X}, 5')
    A.branch('s_cbranch_scc1 L_x5')
    A(f's_cmp_eq_u32 s{S_X}, 6')
    A.branch('s_cbranch_scc1 L_x6')
    A(f's_sub_u32 s{S_P0}, s{S_IDX}, 11')
    A(f's_cmp_ge_u32 s{S_IDX}, 20')
    A('s_cbranch_scc1 L_att')
    A.label('L_ff2'); A.forget()
    A(f's_and_b32 s{S_P0}, s{S_IDX}, 1')
    A(f's_lshr_b32 s{S_P1}, s{S_IDX}, 1')
    emit_ff2(A, END)
    A.branch(f's_branch {END}')
    A.label('L_x6'); A.forget()
    A(f's_sub_u32 s{S_P0}, s{S_IDX}, 23')
    A(f's_cmp_ge_u32 s{S_IDX}, 27')
    A('s_cbranch_scc1 L_att')
    A.label('L_ff1'); A.forget()
    A(f's_mov_b32 s{S_P0}, s{S_IDX}')
    emit_ff1_weights(A)
    if repl1:
        A(f's_mov_b32 s{S_LIM}, {repl1}')
    emit_ff1(A, END)
    if repl1:
        A(f's_mov_b32 s{S_P2}, 0')
        A.label('L_ff1s'); A.forget()
        A('s_barrier')
        A(f's_mov_b32 s{S_SEG}, {repl1}')
        A(f's_mov_b32 s{S_LIM}, 64')
        emit_ff1(A, END, split=True)
    A.branch(f's_branch {END}')
    A.label('L_x5'); A.forget()
    A(f's_sub_u32 s{S_P0}, s{S_IDX}, 28')
    A(f's_cmp_ge_u32 s{S_IDX}, 28')
    A('s_cbranch_scc1 L_att')
    A(f's_cmp_ge_u32 s{S_IDX}, 20')
    A('s_cbranch_scc1 L_ln2r')
    A(f's_mul_i32 s{S_P0}, s{S_IDX}, 52')
    A(f's_lshr_b32 s{S_P0}, s{S_P0}, 8')
    A(f's_mul_i32 s{S_P1}, s{S_P0}, 5')
    A(f's_sub_u32 s{S_P1}, s{S_IDX}, s{S_P1}')
    emit_op_weights(A)
    if repl:
        A(f's_mov_b32 s{S_LIM}, {repl}')
    emit_op(A, END)
    if repl:
        A(f's_mov_b32 s{S_P2}, 0')
        A.label('L_ops'); A.forget()
        A('s_barrier')
        A(f's_mov_b32 s{S_SEG}, {repl}')
        A(f's_mov_b32 s{S_LIM}, 64')
        emit_op(A, END, split=True)
    A.branch(f's_branch {END}')
    A.label('L_ln2r'); A.forget()
    A(f's_sub_u32 s{S_P0}, s{S_IDX}, 20')
    emit_ln2(A, END, 8, repl)
    A.branch(f's_branch {END}')
    A.label('L_q'); A.forget()
    A(f's_mov_b32 s{S_P0}, s{S_IDX}')
    emit_proj(A, END, 'q', False)
    if repl1:
        A(f's_cmp_ge_u32 s{S_IDX}, 27')
        A.branch('s_cbranch_scc1 L_att')
        A('s_barrier')
        emit_ff1_weights(A)
        A(f's_mov_b32 s{S_P2}, 1')
        A.branch('s_branch L_ff1s')
    A.branch('s_branch L_att' if 'q' in join else f's_branch {END}')
    A.label('L_att'); A.forget()
    emit_att(A, END, 21, END, attsleep)
    A.branch(f's_branch {END}')
    A.label('L_kv'); A.forget()
    A(f's_mov_b32 s{S_P0}, s{S_IDX}')
    A(f's_sub_u32 s{S_P1}, s{S_X}, 2')
    A(f's_cmp_eq_u32 s{S_X}, 3')
    A('s_cbranch_scc1 L_vp')
    emit_proj(A, END, 'k', True)
    A.branch('s_branch L_kvd')
    A.label('L_vp'); A.forget()
    emit_proj(A, END, 'v', True)
    A.label('L_kvd'); A.forget()
    A(f's_lshl_b32 s{S_P1}, s{S_P1}, 5')
    A(f's_add_u32 s{S_P1}, s{S_P1}, s{S_P0}')
    if warm:
        emit_warm(A, S_P1, warm)
    A('s_barrier')
    A(f's_cmp_lt_u32 s{S_P1}, {lnjoin}')
    A.branch('s_cbranch_scc1 L_ln2r')
    if repl:
        A(f's_sub_u32 s{S_TMP}, s{S_P1}, 32')
        A(f's_cmp_ge_u32 s{S_TMP}, 20')
        A.branch('s_cbranch_scc1 L_att' if repl1 else f's_cbranch_scc1 {END}')
        A(f's_mul_i32 s{S_P0}, s{S_TMP}, 52')
        A(f's_lshr_b32 s{S_P0}, s{S_P0}, 8')
        A(f's_mul_i32 s{S_P1}, s{S_P0}, 5')
        A(f's_sub_u32 s{S_P1}, s{S_TMP}, s{S_P1}')
        emit_op_weights(A)
        A(f's_mov_b32 s{S_P2}, 1')
        A.branch('s_branch L_ops')
    else:
        A.branch(f's_branch {END}')
    A.label('L_rec'); A.forget()
    A(f's_mov_b32 s{rec.S_T}, s{S_X}')
    A(f's_mov_b32 s{rec.S_H}, s{S_IDX}')
    rec.emit_rec(A, END, mega=True, coarse=coarse, stamps=stamps, dbg=dbg, **kw)
    A.label(END)
    if dbgt:
        A('s_memrealtime s[92:93]')
        A('s_waitcnt lgkmcnt(0)')
        A('s_mov_b64 exec, 1')
        A('s_not_b32 s100, s100')
        A('v_mov_b32 v2, s100')
        A('v_mov_b32 v3, s92')
        A('buffer_atomic_umax v2, off, s[12:15], 0 sc1')
        A('s_and_b32 s41, s3, 7')
        A('s_cmp_lt_u32 s41, 2')
        A('s_cselect_b32 s41, 4, 8')
        A('buffer_atomic_umax v3, off, s[12:15], s41 sc1')
    if coarse:
        A('s_memrealtime s[92:93]')
        A('s_waitcnt lgkmcnt(0)')
        A('s_lshl_b32 s41, s3, 4')
        A(f's_add_u32 s41, s41, {WS_STAMP + 0x300000:#x}')
        A('s_mov_b64 exec, 1')
        A('v_mov_b32 v2, s100')
        A('v_mov_b32 v3, s92')
        A('buffer_store_dwordx2 v[2:3], off, s[4:7], s41')
    A.label('L_end0')
    A('s_endpgm')
    A.raw(kernel_desc(KNAME))
    open(path, 'w').write(A.text())
    print('instructions:', A.ninstr, 'bytes of text:', len(A.text()))

if __name__ == '__main__':
    out = 'mega.s'
    gen(out, coarse='--coarse' in sys.argv, stamps='--stamps' in sys.argv)
    for d in ('nokmt', 'nokmt,pubnt'):
        if '--dbg' in sys.argv:
            gen(f'mega_{d.replace(",", "_")}.s', coarse=True, stamps=True, dbg=d)
    if '--install' in sys.argv:
        import shutil
        shutil.copy(out, 'adaLN_cond__memory_aug_recurrent_mem_tr__swiglu_ffn__prompt.s')
```

```python
import math
import struct
from asmlib import *
from layout import *
from roles import F_P, F_M

VREG = 34816
MEMB = 4 * VREG
QKB = MEMB + 10240
OB = QKB + 4096
KXB = OB + 2048
assert KXB + 8192 == 163840

SPIN_LIMIT = 1 << 17


def f32bits(x):
    return struct.unpack('<I', struct.pack('<f', x))[0]


LDS_BLOCKS = [('v', s_, t_) for s_ in range(5) for t_ in range(2)] + [('k', s_, 1) for s_ in range(3)] + \
             [('k', 5, 0), ('k', 6, 0), ('k', 7, 1), ('k', 9, 0)]
assert len(LDS_BLOCKS) == 17
_all = [(m, s_, t_) for m in 'qkv' for s_ in range(10) for t_ in range(2)] + [('o', k_, t_) for k_ in range(2) for t_ in range(5)]
_regb = [b for b in _all if b not in LDS_BLOCKS]
assert len(_regb) == 53
REG_OF = {b: (256 + 8 * i if i < 32 else 88 + 8 * (i - 32)) for i, b in enumerate(_regb)}
BLK_OF = {b: i for i, b in enumerate(LDS_BLOCKS)}


V_LANE, V_IDX, V_L16, V_KX, V_QKW, V_QKR, V_OW0, V_OR, V_PST, V_T2, V_T1, V_T0 = range(12)
VX0, VX1 = 12, 16
V_P4, V_P1, V_PUB = 12, 13, 14
Q0, Q1, K0, K1, VV0, VV1 = 20, 24, 28, 32, 36, 40
AR = 44
PL = 56
VW = 64
SS = 64
VXR = 80

S_WS, S_W, S_DBG = 4, 8, 12
S_T, S_H, S_WV, S_STEP, S_FAST = 16, 17, 18, 19, 20
S_PLOC, S_PREM, S_PS0, S_PS1, S_PS2, S_PA, S_PUBR, S_PUBL, S_KX, S_VX, S_RED, S_NOT1, S_C = range(21, 34)
S_MLO = 34
S_MPUB = 36
S_KM, S_VM, S_FL = 38, 39, 40
S_TMP = 41
S_PTR = 44
S_SPIN = 46
S_TMP2 = 47
S_ST = 48
S_STO = 80
S_KSEL = 96
S_FKV = 97
S_MPB = 44
S_EARLY = 81
S_TA = 32
S_TABW, S_TABR = 36, 82
S_PREM0, S_PUBR0 = 39, 96
S_TMASK = 94
S_PAR, S_W1280, S_P1B, S_W512 = 72, 73, 74, 75
S_ONE = 76
S_HALF = 78
S_RDY = 25


def emit_rec(A, abort_label, nsteps=64, stamps=False, force_safe=False, coarse=False, backoff=13, ka=2, adelay=(1, 2), mega=False, rp=(0, 2), cut=None, dbg='', kb=2, bgap=15, spec=True, kmahead=2, align=None, kxlate=True, tlate=False, early=False, s4=0, s4b=0):
    def stamp(i):
        if stamps:
            A(f'{"s_memrealtime" if stamps == "rt" else "s_memtime"} s[{S_ST + 2 * i}:{S_ST + 2 * i + 1}]')
        if cut == i:
            A.branch('s_branch L_cut')

    if coarse:
        A('s_memrealtime s[84:85]')
        A('s_memtime s[86:87]')
    A(f's_load_dwordx2 s[{S_PTR}:{S_PTR + 1}], s[0:1], {KA_WS}')
    A(f's_load_dwordx2 s[{S_TMP + 1}:{S_TMP + 2}], s[0:1], {KA_DBG}')
    A(f'v_lshrrev_b32 v1, 6, v0')
    A(f'v_readfirstlane_b32 s{S_WV}, v1')
    A(f'v_and_b32 v{V_LANE}, 63, v0')
    A('s_waitcnt lgkmcnt(0)')
    A.srd(S_WS, S_PTR, S_PTR + 1, WS_BYTES)
    A.srd(S_DBG, S_TMP + 1, S_TMP + 2, 256)
    A(f's_mov_b32 s{S_SPIN}, 0')
    L = V_LANE
    T0, T1 = V_T0, V_T1
    G, R_, C_ = 20, 21, 22
    A(f'v_lshrrev_b32 v{G}, 4, v{L}')
    A(f'v_bfe_u32 v{R_}, v{L}, 2, 2')
    A(f'v_and_b32 v{C_}, 3, v{L}')
    A(f'v_and_b32 v{T0}, 8, v{L}')
    A(f'v_cmp_eq_u32 vcc, 0, v{T0}')
    A(f'v_mov_b32 v{T0}, 0xeeee')
    A(f'v_mov_b32 v{T1}, 0x4444')
    A(f'v_cndmask_b32 v{V_IDX}, v{T0}, v{T1}, vcc')
    A(f's_mul_i32 s{S_TMP}, s{S_WV}, {VREG}')
    A(f'v_lshlrev_b32 v{T0}, 4, v{L}')
    A(f'v_add_u32 v{V_L16}, s{S_TMP}, v{T0}')
    A(f'v_add_u32 v{V_KX}, {MEMB}, v{T0}')
    A(f'v_lshrrev_b32 v{T0}, 5, v{L}')
    A(f'v_lshlrev_b32 v{T0}, 8, v{T0}')
    A(f'v_and_b32 v{T1}, 15, v{L}')
    A(f'v_lshl_add_u32 v{T0}, v{T1}, 4, v{T0}')
    A(f'v_and_b32 v{T1}, 1, v{G}')
    A(f'v_lshl_add_u32 v{T0}, v{T1}, 3, v{T0}')
    A(f's_lshl_b32 s{S_TMP}, s{S_WV}, 9')
    A(f's_add_u32 s{S_TMP}, s{S_TMP}, {QKB}')
    A(f'v_add_u32 v{V_QKW}, s{S_TMP}, v{T0}')
    A(f'v_lshlrev_b32 v{T0}, 6, v{G}')
    A(f'v_lshl_add_u32 v{T0}, v{R_}, 4, v{T0}')
    A(f'v_and_b32 v{T1}, 1, v{C_}')
    A(f'v_lshl_add_u32 v{T0}, v{T1}, 3, v{T0}')
    A(f'v_add_u32 v{V_QKR}, {QKB}, v{T0}')
    I_ = 23
    A(f'v_and_b32 v{I_}, 7, v{L}')
    A(f'v_lshrrev_b32 v{T0}, 1, v{G}')
    A(f's_lshl_b32 s{S_TMP}, s{S_WV}, 2')
    A(f'v_add_u32 v{T0}, s{S_TMP}, v{T0}')
    A(f'v_xor_b32 v{T0}, v{T0}, v{I_}')
    A(f'v_lshlrev_b32 v{T0}, 4, v{T0}')
    A(f'v_lshl_add_u32 v{T0}, v{I_}, 8, v{T0}')
    A(f'v_and_b32 v{T1}, 1, v{G}')
    A(f'v_lshl_add_u32 v{T0}, v{T1}, 3, v{T0}')
    A(f'v_add_u32 v{V_OW0}, {OB}, v{T0}')
    A(f'v_bfe_u32 v{T0}, v{L}, 3, 1')
    A(f'v_lshl_add_u32 v{T0}, v{G}, 1, v{T0}')
    A(f'v_xor_b32 v{T0}, v{T0}, v{I_}')
    A(f'v_lshlrev_b32 v{T0}, 4, v{T0}')
    A(f'v_lshl_add_u32 v{T0}, v{I_}, 8, v{T0}')
    A(f'v_add_u32 v{V_OR}, {OB}, v{T0}')
    A(f'v_and_b32 v{T0}, 1, v{G}')
    A(f'v_lshlrev_b32 v{T0}, 1, v{T0}')
    A(f'v_lshrrev_b32 v{T1}, 1, v{G}')
    A(f'v_add_u32 v{T0}, v{T0}, v{T1}')
    A(f'v_lshlrev_b32 v{T0}, 1, v{T0}')
    A(f'v_bfe_u32 v{T1}, v{L}, 3, 1')
    A(f'v_add_u32 v{T0}, v{T0}, v{T1}')
    A(f'v_lshlrev_b32 v{T0}, 12, v{T0}')
    A(f'v_lshl_add_u32 v{V_PST}, v{I_}, 4, v{T0}')
    A(f's_lshl_b32 s{S_KSEL}, s{S_T}, 2')
    A(f's_add_u32 s{S_KSEL}, s{S_KSEL}, s{S_WV}')
    A(f's_mov_b32 s{S_ONE}, 0x3f803f80')
    A(f's_mov_b32 s{S_ONE + 1}, 0x3f803f80')
    A(f's_mov_b32 s{S_HALF}, 0x3f003f00')
    A(f's_mov_b32 s{S_HALF + 1}, 0x3f003f00')
    A(f's_mov_b32 s{S_PAR}, 0')
    A(f's_mul_i32 s{S_W1280}, s{S_WV}, 1280')
    A(f's_add_u32 s{S_P1B}, s{S_W1280}, {MEMB + 1024}')
    A(f's_lshl_b32 s{S_W512}, s{S_WV}, 9')

    def rebuild():
        A(f'v_add_u32 v{V_P4}, s{S_W1280}, v{V_KX}')
        A(f'v_lshl_add_u32 v{V_P1}, v{L}, 2, s{S_P1B}')

    def rebuild_pub():
        A(f'v_and_b32 v{T0}, 7, v{L}')
        A(f'v_bfe_u32 v{T1}, v{L}, 4, 1')
        A(f'v_lshlrev_b32 v{T1}, 3, v{T1}')
        A(f'v_lshl_add_u32 v{T0}, v{T0}, 4, v{T1}')
        A(f'v_lshrrev_b32 v{T1}, 5, v{L}')
        A(f'v_lshl_add_u32 v{V_PUB}, v{T1}, 2, v{T0}')

    A(f's_mov_b32 s{S_MPB}, 0x00ff00ff')
    A(f's_mov_b32 s{S_MPB + 1}, 0x00ff00ff')
    A(f's_mov_b32 s{S_MLO}, -1')
    A(f's_mov_b32 s{S_MLO + 1}, 0')
    A(f's_mov_b32 s{S_MPUB}, 0x00ff00ff')
    A(f's_mov_b32 s{S_MPUB + 1}, 0x00ff00ff')
    A(f's_mov_b32 s{S_NOT1}, 0xfffffffe')
    A(f's_mov_b32 s{S_C}, {f32bits((128 ** -0.5) * math.log2(math.e)):#x}')
    A(f's_mul_i32 s{S_TMP2}, s{S_WV}, {VREG}')
    A(f's_mul_i32 s{S_TMP}, s{S_T}, 5120')
    A(f's_add_u32 s{S_PLOC}, s{S_TMP}, {WS_MEML - MEMB:#x}')
    A(f's_xor_b32 s{S_TMP}, s{S_T}, 1')
    A(f's_lshl_b32 s{S_TMP}, s{S_TMP}, 14')
    A(f's_add_u32 s{S_PREM}, s{S_TMP}, {WS_MEMR - MEMB:#x}')
    A(f's_mul_i32 s{S_TMP}, s{S_T}, 163840')
    A(f's_add_u32 s{S_TMP}, s{S_TMP}, {WS_PART:#x}')
    A(f's_mul_i32 s{S_TMP + 1}, s{S_WV}, {10 * 4096}')
    A(f's_add_u32 s{S_PS0}, s{S_TMP}, s{S_TMP + 1}')
    A(f's_lshl_b32 s{S_TMP + 1}, s{S_H}, 7')
    A(f's_add_u32 s{S_PS0}, s{S_PS0}, s{S_TMP + 1}')
    A(f's_add_u32 s{S_PS1}, s{S_PS0}, 32768')
    A(f's_lshl_b32 s{S_RED}, s{S_WV}, 5')
    A(f's_add_u32 s{S_RED}, s{S_RED}, s{S_H}')
    A(f's_min_u32 s{S_TMP + 2}, s{S_RED}, 39')
    A(f's_lshl_b32 s{S_TMP + 1}, s{S_TMP + 2}, 12')
    A(f's_add_u32 s{S_PA}, s{S_TMP}, s{S_TMP + 1}')
    A(f's_sub_u32 s{S_PA}, s{S_PA}, s{S_TMP2}')
    A(f's_lshl_b32 s{S_TMP + 1}, s{S_TMP + 2}, 7')
    A(f's_lshl_b32 s{S_TMP}, s{S_T}, 14')
    A(f's_add_u32 s{S_PUBR}, s{S_TMP}, s{S_TMP + 1}')
    A(f's_add_u32 s{S_PUBR}, s{S_PUBR}, {WS_MEMR + 32768:#x}')
    A(f's_mul_i32 s{S_TMP}, s{S_T}, 5120')
    A(f's_add_u32 s{S_PUBL}, s{S_TMP}, s{S_TMP + 1}')
    A(f's_add_u32 s{S_PUBL}, s{S_PUBL}, {WS_MEML + 10240:#x}')
    A(f's_lshl_b32 s{S_TMP}, s{S_H}, 13')
    A(f's_lshl_b32 s{S_TMP + 1}, s{S_WV}, 11')
    A(f's_add_u32 s{S_TMP}, s{S_TMP}, s{S_TMP + 1}')
    A(f's_sub_u32 s{S_TMP}, s{S_TMP}, s{S_TMP2}')
    A(f's_add_u32 s{S_KX}, s{S_TMP}, {WS_KX:#x}')
    A(f's_add_u32 s{S_VX}, s{S_TMP}, {WS_VX:#x}')
    A(f's_lshl_b32 s{S_TMP}, s{S_H}, 12')
    A(f's_lshl_b32 s{S_TMP + 1}, s{S_WV}, 10')
    A(f's_add_u32 s{S_TMP}, s{S_TMP}, s{S_TMP + 1}')
    A(f's_sub_u32 s{S_TMP}, s{S_TMP}, s{S_TMP2}')
    A(f's_add_u32 s{S_KM}, s{S_TMP}, {WS_KM:#x}')
    A(f's_mul_i32 s{S_TMP}, s{S_T}, {WS_KM - WS_VM:#x}')
    A(f's_sub_u32 s{S_KM}, s{S_KM}, s{S_TMP}')
    A(f's_sub_u32 s{S_TMASK}, 0, s{S_T}')
    A(f's_mov_b32 s{S_TMASK + 1}, s{S_TMASK}')

    lskip = A.newlabel('L_ann'); lnc = A.newlabel('L_nocal')
    A(f's_cmp_lg_u32 s{S_WV}, 0')
    A.branch(f's_cbranch_scc1 {lskip}')
    A(f's_mov_b32 s{S_ST + 6}, 0')
    if not mega:
        A(f's_or_b32 s{S_TMP}, s{S_T}, s{S_H}')
        A(f's_cmp_lg_u32 s{S_TMP}, 0')
        A.branch(f's_cbranch_scc1 {lnc}')
        A(f'v_mov_b32 v{T0}, {WS_MEMR:#x}')
        A(f'v_mov_b32 v{T1}, {WS_MEMR + 8192:#x}')
        A('s_mov_b64 exec, 1')
        A(f's_mov_b32 s{S_ST + 8}, -1')
        A(f's_mov_b32 s{S_ST + 9}, -1')
        for rep in range(3):
            for c in range(2):
                A(f's_memtime s[{S_ST}:{S_ST + 1}]')
                A('s_waitcnt lgkmcnt(0)')
                A(f'buffer_store_dword v{T0}, v{(T0, T1)[c]}, s[{S_WS}:{S_WS + 3}], 0 offen sc1')
                A.wait_vm0()
                A(f's_memtime s[{S_ST + 2}:{S_ST + 3}]')
                A('s_waitcnt lgkmcnt(0)')
                A(f's_sub_u32 s{S_ST + 4}, s{S_ST + 2}, s{S_ST}')
                A(f's_min_u32 s{S_ST + 8 + c}, s{S_ST + 8 + c}, s{S_ST + 4}')
        A('s_mov_b64 exec, -1')
        A(f's_cmp_lt_u32 s{S_ST + 9}, s{S_ST + 8}')
        A(f's_cselect_b32 s{S_ST + 6}, 0x40000000, 0')
    A.label(lnc)
    A(f's_getreg_b32 s{S_TMP}, hwreg(HW_REG_XCC_ID)')
    A(f's_and_b32 s{S_TMP}, s{S_TMP}, 15')
    A(f's_mul_i32 s{S_TMP + 1}, s{S_TMP}, s{S_TMP}')
    A(f's_lshl_b32 s{S_TMP + 1}, s{S_TMP + 1}, 16')
    A(f's_lshl_b32 s{S_TMP}, s{S_TMP}, 6')
    A(f's_add_u32 s{S_TMP}, s{S_TMP}, s{S_TMP + 1}')
    A(f's_add_u32 s{S_TMP}, s{S_TMP}, 1')
    A(f's_add_u32 s{S_TMP}, s{S_TMP}, s{S_ST + 6}')
    A(f'v_mov_b32 v{T0}, s{S_TMP}')
    A(f's_lshl_b32 s{S_TMP + 1}, s{S_T}, 2')
    A('s_mov_b64 exec, 1')
    A(f'buffer_atomic_add v{T0}, off, s[{S_DBG}:{S_DBG + 3}], s{S_TMP + 1} offset:128 sc1')
    A('s_mov_b64 exec, -1')
    A.flush_hazards()
    A.label(lskip)

    VSRC, VB, VBO = 24, 25, 26
    VOS = 27
    TB = 32
    VS4, VB4 = 12, 16
    for n in range(4):
        A(f'v_and_b32 v{T0}, 1, v{G}')
        A(f'v_or_b32 v{T0}, {2 * n}, v{T0}')
        A(f'v_lshlrev_b32 v{T0}, 1, v{T0}')
        A(f'v_and_b32 v{T1}, 15, v{L}')
        A(f'v_xor_b32 v{T0}, v{T0}, v{T1}')
        A(f'v_lshlrev_b32 v{T0}, 4, v{T0}')
        A(f'v_lshl_add_u32 v{VS4 + n}, v{G}, 13, v{T0}')
    A(f'v_and_b32 v{T0}, 1, v{R_}')
    A(f'v_and_b32 v{T1}, 1, v{G}')
    A(f'v_lshl_add_u32 v{VSRC}, v{T1}, 1, v{T0}')
    A(f'v_lshl_add_u32 v{T0}, v{T1}, 2, v{T0}')
    A(f'v_lshrrev_b32 v{T1}, 1, v{R_}')
    A(f'v_lshl_add_u32 v{VSRC}, v{T1}, 2, v{VSRC}')
    A(f'v_lshl_add_u32 v{T0}, v{T1}, 3, v{T0}')
    A(f'v_lshlrev_b32 v{T0}, 8, v{T0}')
    A(f'v_lshrrev_b32 v{T1}, 1, v{G}')
    A(f'v_mul_u32_u24 v{T1}, {VREG}, v{T1}')
    A(f'v_add_u32 v{T0}, v{T0}, v{T1}')
    A(f'v_and_b32 v{T1}, 1, v{C_}')
    A(f'v_lshl_add_u32 v{T0}, v{T1}, 3, v{T0}')
    A(f'v_lshlrev_b32 v{VSRC}, 1, v{VSRC}')
    A(f'v_lshrrev_b32 v{T1}, 1, v{C_}')
    A(f's_lshl_b32 s{S_TMP}, s{S_WV}, 2')
    A(f'v_or_b32 v{T1}, s{S_TMP}, v{T1}')
    A(f'v_xor_b32 v{T1}, v{T1}, v{VSRC}')
    A(f'v_lshl_add_u32 v{VB4}, v{T1}, 4, v{T0}')
    A(f'v_xor_b32 v{VB4 + 1}, 32, v{VB4}')
    A(f'v_add_u32 v{VB4 + 2}, {2 * VREG}, v{VB4}')
    A(f'v_add_u32 v{VB4 + 3}, {2 * VREG}, v{VB4 + 1}')
    A(f'v_lshrrev_b32 v{T0}, 1, v{G}')
    A(f'v_lshlrev_b32 v{T0}, 4, v{T0}')
    A(f'v_and_b32 v{T1}, 1, v{G}')
    A(f'v_lshl_add_u32 v{T0}, v{T1}, 2, v{T0}')
    A(f'v_lshrrev_b32 v{T1}, 1, v{R_}')
    A(f'v_lshl_add_u32 v{T0}, v{T1}, 3, v{T0}')
    A(f'v_and_b32 v{T1}, 1, v{R_}')
    A(f'v_add_u32 v{T0}, v{T1}, v{T0}')
    A(f'v_lshlrev_b32 v{T1}, 6, v{T0}')
    A(f'v_lshl_add_u32 v{T1}, v{C_}, 3, v{T1}')
    A(f'v_add_u32 v{VB}, s{S_TMP2}, v{T1}')
    A(f'v_mul_u32_u24 v{T0}, 160, v{T0}')
    A(f'v_lshl_add_u32 v{T0}, v{C_}, 3, v{T0}')
    A(f'v_add_u32 v{VBO}, s{S_TMP2}, v{T0}')
    for n in range(5):
        A(f'v_add_u32 v{T0}, {64 * n}, v{L}')
        A(f'v_mul_u32_u24 v{T1}, 6554, v{T0}')
        A(f'v_lshrrev_b32 v{T1}, 16, v{T1}')
        A(f'v_mul_u32_u24 v{VOS + n}, 10, v{T1}')
        A(f'v_sub_u32 v{T0}, v{T0}, v{VOS + n}')
        A(f'v_mul_u32_u24 v{T1}, 1280, v{T1}')
        A(f'v_lshl_add_u32 v{VOS + n}, v{T0}, 4, v{T1}')

    S_CB, S_R0 = S_ST + 10, S_ST + 11
    S_SO = S_ST + 12
    S_PQ, S_PK, S_PV, S_PO = S_ST + 14, S_ST + 16, S_ST + 18, S_ST + 20
    A(f's_load_dwordx2 s[{S_PQ}:{S_PQ + 1}], s[0:1], {KA_WQ}')
    A(f's_load_dwordx2 s[{S_PK}:{S_PK + 1}], s[0:1], {KA_WK}')
    A(f's_load_dwordx2 s[{S_PV}:{S_PV + 1}], s[0:1], {KA_WV}')
    A(f's_load_dwordx2 s[{S_PO}:{S_PO + 1}], s[0:1], {KA_WO}')
    A(f's_lshl_b32 s{S_CB}, s{S_H}, 8')
    A(f's_lshl_b32 s{S_TMP}, s{S_WV}, 17')
    A(f's_add_u32 s{S_CB}, s{S_CB}, s{S_TMP}')
    A('s_waitcnt lgkmcnt(0)')
    WBYTES = 640 * 8192
    cur = [None]

    def use(ptr):
        if cur[0] != ptr:
            A.srd(S_W, ptr, ptr + 1, WBYTES)
            cur[0] = ptr

    def dma_slot(ptr, sig, pos):
        use(ptr)
        A(f's_cmp_eq_u32 s{S_T}, 0')
        A(f's_cselect_b32 s{S_SO}, {sig}, {(sig + 5) % 10}')
        A(f's_lshl_b32 s{S_SO}, s{S_SO}, 19')
        A(f's_add_u32 s{S_SO}, s{S_SO}, s{S_CB}')
        tok = None
        for n in range(4):
            A(f's_add_u32 m0, s{S_TMP2}, {pos * 4096 + n * 1024}')
            tok = A(f'buffer_load_dwordx4 v{VS4 + n}, s[{S_W}:{S_W + 3}], s{S_SO} offen lds')
            if n < 3:
                A(f's_add_u32 s{S_SO}, s{S_SO}, {4 * 8192}')
        return tok

    def read_slot(tok, pos, dests):
        A.wait(tok)
        A('s_barrier')
        for tau in range(2):
            for u in range(4):
                off = pos * 4096 + 2 * (u & 1) * 256
                A(f'ds_read_b64_tr_b16 {wr(dests[tau] + 2 * u, 2)}, v{VB4 + 2 * (u >> 1) + tau} offset:{off}')
        A.wait_lg0()
        A('s_barrier')

    WOS = 0

    def dma_wo():
        use(S_PO)
        A(f's_mul_i32 s{S_SO}, s{S_H}, 163840')
        A(f's_mul_i32 s{S_TMP}, s{S_T}, 640')
        A(f's_add_u32 s{S_SO}, s{S_SO}, s{S_TMP}')
        A(f's_mul_i32 s{S_TMP}, s{S_WV}, 160')
        A(f's_add_u32 s{S_SO}, s{S_SO}, s{S_TMP}')
        tok = []
        for blk in range(4):
            for n in range(5):
                A(f's_add_u32 m0, s{S_TMP2}, {WOS + (blk * 5 + n) * 1024}')
                t = A(f'buffer_load_dwordx4 v{VOS + n}, s[{S_W}:{S_W + 3}], s{S_SO} offen lds')
            tok.append(t)
            if blk < 3:
                A(f's_add_u32 s{S_SO}, s{S_SO}, {32 * 1280}')
        return tok

    def put_block(reg, blk):
        for hf in range(2):
            A(f'ds_write_b128 v{V_L16}, v[{reg + 4 * hf}:{reg + 4 * hf + 3}] offset:{blk * 2048 + hf * 1024}')

    park = {b: TB + 8 * (BLK_OF[b] - 10) for b in LDS_BLOCKS[10:]}

    def dest_of(b):
        return REG_OF[b] if b in REG_OF else park[b]

    A(f's_load_dwordx2 s[{S_SO}:{S_SO + 1}], s[0:1], {KA_MEM0}')
    A('s_waitcnt lgkmcnt(0)')
    A.srd(S_W, S_SO, S_SO + 1, 8 * 1280)
    m0t = []
    for j in range(3):
        A(f'v_add_u32 v{T0}, {64 * j}, v{L}')
        A(f'v_min_u32 v{T0}, 159, v{T0}')
        A(f's_mul_i32 s{S_TMP}, s{S_WV}, 160')
        A(f'v_add_u32 v{T0}, s{S_TMP}, v{T0}')
        A(f'v_lshrrev_b32 v{T1}, 3, v{T0}')
        A(f's_mul_i32 s{S_TMP + 1}, s{S_T}, 40')
        A(f'v_add_u32 v{T1}, s{S_TMP + 1}, v{T1}')
        A(f'v_subrev_u32 v25, 80, v{T1}')
        A(f'v_min_u32 v{T1}, v{T1}, v25')
        A(f'v_lshlrev_b32 v{T1}, 4, v{T1}')
        A(f'v_and_b32 v25, 7, v{T0}')
        A(f'v_mul_u32_u24 v25, 1280, v25')
        A(f'v_add_u32 v{T1}, v{T1}, v25')
        A(f'v_lshlrev_b32 v{T0}, 4, v{T0}')
        A(f'v_add_u32 v{72 + j}, {MEMB}, v{T0}')
        m0t.append(A(f'buffer_load_dwordx4 v[{76 + 4 * j}:{79 + 4 * j}], v{T1}, s[{S_W}:{S_W + 3}], 0 offen'))

    ptrs = {'q': S_PQ, 'k': S_PK, 'v': S_PV}
    stream = [('q', x) for x in range(10)] + [('k', x) for x in range(10)] + [('v', x) for x in range(5, 10)]
    tk = {}
    for i in range(8):
        tk[i] = dma_slot(ptrs[stream[i][0]], stream[i][1], i % 8)
    A.wait(m0t[-1])
    for j in range(3):
        A(f'ds_write_b128 v{72 + j}, v[{76 + 4 * j}:{79 + 4 * j}]')
    pos_of = {i: i % 8 for i in range(24)}
    pos_of[24] = 5
    tko = None
    for i in range(25):
        m, sig = stream[i]
        read_slot(tk[i], pos_of[i], [dest_of((m, sig, 0)), dest_of((m, sig, 1))])
        A.wait_lg0()
        if i + 8 < 24:
            tk[i + 8] = dma_slot(ptrs[stream[i + 8][0]], stream[i + 8][1], i % 8)
        if i == 20:
            tko = dma_wo()
        if i == 21:
            tk[24] = dma_slot(S_PV, stream[24][1], 5)
    for k2 in range(2):
        A.wait(tko[2 * k2 + 1])
        for tau in range(5):
            d = dest_of(('o', k2, tau))
            for u in range(4):
                off = WOS + (64 * k2 + 32 * (u >> 1) + 2 * (u & 1)) * 160 + tau * 32
                A(f'ds_read_b64_tr_b16 {wr(d + 2 * u, 2)}, v{VBO} offset:{off}')
    A.wait_lg0()
    tv = {sig: dma_slot(S_PV, sig, sig) for sig in range(5)}
    for b in LDS_BLOCKS[10:]:
        put_block(park[b], BLK_OF[b])
    A.wait_lg0()
    for sig in range(5):
        read_slot(tv[sig], sig, [TB, TB + 8])
        A.wait_lg0()
        put_block(TB, 2 * sig); put_block(TB + 8, 2 * sig + 1)
        A.wait_lg0()

    if coarse:
        A('s_memrealtime s[82:83]')
        A('s_waitcnt lgkmcnt(0)')
        A('s_mov_b32 s85, s82')
    rebuild()
    lp = A.newlabel('L_mode')
    ld = A.newlabel('L_mode_done')
    A(f'v_lshlrev_b32 v{T0}, 2, v{L}')
    A.flush_hazards()
    A.label(lp)
    A(f'buffer_load_dword v24, v{T0}, s[{S_DBG}:{S_DBG + 3}], 0 offen sc1')
    A.wait_vm0()
    A(f'v_readlane_b32 s{S_ST}, v24, 32')
    A(f'v_readlane_b32 s{S_ST + 1}, v24, 33')
    A(f's_and_b32 s{S_TMP}, s{S_ST}, s{S_ST + 1}')
    A(f's_bfe_u32 s{S_TMP}, s{S_TMP}, 0x10005')
    if mega:
        A(f'v_readlane_b32 s{S_TMP + 1}, v24, 7')
        A(f's_lshr_b32 s{S_TMP + 1}, s{S_TMP + 1}, 7')
        A(f's_and_b32 s{S_TMP}, s{S_TMP}, s{S_TMP + 1}')
        A(f'v_readlane_b32 s{S_TMP + 1}, v24, 40')
        A(f's_lshr_b32 s{S_TMP + 1}, s{S_TMP + 1}, 6')
        A(f's_and_b32 s{S_TMP}, s{S_TMP}, s{S_TMP + 1}')
    A(f's_cmp_eq_u32 s{S_TMP}, 1')
    A.branch(f's_cbranch_scc1 {ld}')
    A('s_sleep 4')
    A(f's_add_u32 s{S_SPIN}, s{S_SPIN}, 1')
    A(f's_cmp_lt_u32 s{S_SPIN}, {SPIN_LIMIT}')
    A.branch(f's_cbranch_scc1 {lp}')
    A.branch(f's_branch {abort_label}')
    A.label(ld)
    A(f's_mov_b32 s{S_FAST}, {0 if force_safe else 1}')
    for t_ in range(2):
        A(f's_bfe_u32 s{S_TMP}, s{S_ST + t_}, 0xa0006')
        A(f's_mul_i32 s{S_TMP}, s{S_TMP}, s{S_TMP}')
        A(f's_bfe_u32 s{S_TMP + 1}, s{S_ST + t_}, 0xe0010')
        A(f's_lshl_b32 s{S_TMP + 1}, s{S_TMP + 1}, 5')
        A(f's_cmp_eq_u32 s{S_TMP}, s{S_TMP + 1}')
        A(f's_cselect_b32 s{S_FAST}, s{S_FAST}, 0')
    A(f's_bfe_u32 s{S_TMP}, s{S_ST}, 0x1001e')
    A(f's_lshl_b32 s{S_TMP}, s{S_TMP}, 13')
    A(f's_add_u32 s{S_PREM}, s{S_PREM}, s{S_TMP}')
    A(f's_add_u32 s{S_PUBR}, s{S_PUBR}, s{S_TMP}')
    if mega:
        for i_ in range(4):
            A(f'v_readlane_b32 s{S_ST + i_}, v24, {36 + i_}')
        A(f's_cmp_eq_u32 s{S_T}, 0')
        A(f's_cselect_b64 s[{S_TABW}:{S_TABW + 1}], s[{S_ST}:{S_ST + 1}], s[{S_ST + 2}:{S_ST + 3}]')
        A(f's_cselect_b64 s[{S_TABR}:{S_TABR + 1}], s[{S_ST + 2}:{S_ST + 3}], s[{S_ST}:{S_ST + 1}]')
    else:
        A(f's_mov_b64 s[{S_TABW}:{S_TABW + 1}], 0')
        A(f's_mov_b64 s[{S_TABR}:{S_TABR + 1}], 0')
    A(f's_mov_b32 s{S_PREM0}, s{S_PREM}')
    A(f's_mov_b32 s{S_PUBR0}, s{S_PUBR}')

    def next_pages():
        A(f's_lshr_b64 s[{S_TABW}:{S_TABW + 1}], s[{S_TABW}:{S_TABW + 1}], 1')
        A(f's_lshr_b64 s[{S_TABR}:{S_TABR + 1}], s[{S_TABR}:{S_TABR + 1}], 1')
        A(f's_add_u32 s{S_PREM0}, s{S_PREM0}, 32768')
        A(f's_and_b32 s{S_TMP}, s{S_TABR}, 1')
        A(f's_lshl_b32 s{S_TMP}, s{S_TMP}, 13')
        A(f's_add_u32 s{S_PREM}, s{S_PREM0}, s{S_TMP}')
        A(f's_and_b32 s{S_TMP}, s{S_TABW}, 1')
        A(f's_lshl_b32 s{S_TMP}, s{S_TMP}, 13')
        A(f's_add_u32 s{S_PUBR}, s{S_PUBR0}, s{S_TMP}')
        A(f's_add_u32 s{S_PUBR0}, s{S_PUBR0}, 32768')

    WS = f's[{S_WS}:{S_WS + 3}]'

    def issue_kx_vx():
        A(f's_lshl_b32 s{S_TMP}, s{S_WV}, 11')
        A(f's_add_u32 m0, s{S_TMP}, {KXB}')
        for n in range(2):
            A(f'buffer_load_dwordx4 v{V_L16}, {WS}, s{S_KX} offen offset:{n * 1024} sc1 lds')
        if 'nokvt' not in dbg:
            A(f's_add_u32 s{S_KX}, s{S_KX}, {32 * 8192}')

    deferred = []

    def kv_wait(need_plus):
        if not mega:
            return
        lp = A.newlabel('L_kv'); ls = A.newlabel('L_kvs')
        A.label(lp)
        A(f's_add_u32 s{S_TMP}, s{S_STEP}, {need_plus}')
        A(f's_cmp_ge_u32 s{S_TMP}, s{S_RDY}')
        A(f's_cbranch_scc1 {ls}')

        def slow():
            A.label(ls)
            A(f'v_lshlrev_b32 v{T0}, 9, v{L}')
            A(f'buffer_load_dwordx2 v[{T1}:{T0}], v{T0}, {WS}, s{S_FKV} offen sc1')
            A('s_waitcnt vmcnt(0)')
            A(f'v_and_b32 v{T1}, v{T1}, v{T0}')
            A(f'v_cmp_eq_u32 vcc, 1, v{T1}')
            A(f's_ff0_i32_b64 s{S_RDY}, vcc')
            A(f's_min_u32 s{S_RDY}, s{S_RDY}, 65')
            A(f's_add_u32 s{S_SPIN}, s{S_SPIN}, 1')
            A(f's_cmp_lt_u32 s{S_SPIN}, {SPIN_LIMIT}')
            A(f's_cbranch_scc1 {lp}')
            A(f's_branch {abort_label}')
        deferred.append(slow)

    def m_flag(tmp=None):
        if not mega or 'noflag' in dbg:
            return
        le = A.newlabel('L_mf')
        A(f's_cmp_lg_u32 s{S_WV}, 3')
        A(f's_cbranch_scc1 {le}')
        A(f'v_mov_b32 v{tmp or T0}, 1')
        A('s_mov_b64 exec, 1')
        A(f'buffer_store_dword v{tmp or T0}, off, {WS}, s{S_FL} sc1')
        A('s_mov_b64 exec, -1')
        A.label(le)
        A(f's_add_u32 s{S_FL}, s{S_FL}, 1024')

    if mega:
        A(f's_lshl_b32 s{S_TMP}, s{S_H}, 4')
        A(f's_add_u32 s{S_FKV}, s{S_TMP}, {F_P:#x}')
        A(f's_mov_b32 s{S_RDY}, 0')
        A(f's_lshl_b32 s{S_TMP}, s{S_H}, 5')
        A(f's_lshl_b32 s{S_TMP + 1}, s{S_T}, 2')
        A(f's_add_u32 s{S_FL}, s{S_TMP}, s{S_TMP + 1}')
        A(f's_add_u32 s{S_FL}, s{S_FL}, {F_M - 1024:#x}')
    A(f's_mov_b32 s{S_STEP}, 0')

    def touch_prep():
        A(f's_add_u32 s{S_TA}, s{S_PLOC}, {MEMB + 10240}')
        A(f's_bfe_u32 s{S_TMP}, s{S_TABR}, 0x10001')
        A(f's_lshl_b32 s{S_TMP}, s{S_TMP}, 13')
        A(f's_add_u32 s{S_TMP}, s{S_TMP}, s{S_PREM0}')
        A(f's_add_u32 s{S_TMP}, s{S_TMP}, {MEMB + 32768}')
        A(f's_cmp_eq_u32 s{S_WV}, 1')
        A(f's_cselect_b32 s{S_TA}, s{S_TMP}, s{S_TA}')
        A(f's_add_u32 s{S_TMP}, s{S_KX}, {2 * VREG - 2 * 2048}')
        A(f's_cmp_eq_u32 s{S_WV}, 2')
        A(f's_cselect_b32 s{S_TA}, s{S_TMP}, s{S_TA}')
        A(f's_add_u32 s{S_TMP}, s{S_KX}, {3 * VREG - 3 * 2048 + WS_VX - WS_KX:#x}')
        A(f's_cmp_eq_u32 s{S_WV}, 3')
        A(f's_cselect_b32 s{S_TA}, s{S_TMP}, s{S_TA}')
        A(f's_cmp_lt_u32 s{S_WV}, 2')
        A(f's_cselect_b32 s{S_TMP}, 39, 63')
        A(f'v_min_u32 v{V_T2}, s{S_TMP}, v{L}')
        A(f'v_lshlrev_b32 v{V_T2}, 7, v{V_T2}')

    def touch():
        A(f'buffer_load_dword v{V_T2}, v{V_T2}, {WS}, s{S_TA} offen sc1')

    def kv_refresh(after):
        if not mega:
            return
        le = A.newlabel('L_kr')
        A(f's_add_u32 s{S_TMP}, s{S_STEP}, 6')
        A(f's_min_u32 s{S_TMP}, s{S_TMP}, 65')
        A(f's_cmp_ge_u32 s{S_RDY}, s{S_TMP}')
        A(f's_cbranch_scc1 {le}')
        A(f'v_lshlrev_b32 v{T0}, 9, v{L}')
        A(f'buffer_load_dwordx2 v[{T1}:{T0}], v{T0}, {WS}, s{S_FKV} offen sc1')
        A('s_waitcnt vmcnt(0)')
        A(f'v_and_b32 v{T1}, v{T1}, v{T0}')
        A(f'v_cmp_eq_u32 vcc, 1, v{T1}')
        A(f's_ff0_i32_b64 s{S_RDY}, vcc')
        A(f's_min_u32 s{S_RDY}, s{S_RDY}, 65')
        A(f's_branch {after}')
        A.label(le)

    kv_wait(0)
    if mega:
        assert kxlate
        A(f's_cmp_eq_u32 s{S_WV}, 2')
        A(f's_cselect_b32 s{S_RDY}, s{S_RDY}, 65')
    issue_kx_vx()
    touch_prep()
    A(f's_mov_b32 s{S_STEP}, 0')
    A.wait_all()
    if stamps:
        A(f's_lshl_b32 s{S_TMP}, s{S_H}, 3')
        A(f's_lshl_b32 s{S_TMP + 1}, s{S_T}, 2')
        A(f's_add_u32 s{S_TMP}, s{S_TMP}, s{S_TMP + 1}')
        A(f's_add_u32 s{S_TMP}, s{S_TMP}, s{S_WV}')
        A(f's_mul_i32 s{S_STO}, s{S_TMP}, {64 * 64}')
        A(f's_add_u32 s{S_STO}, s{S_STO}, {WS_STAMP:#x}')
    if coarse:
        A('s_memrealtime s[88:89]')
        A('s_memtime s[90:91]')
        A('s_waitcnt lgkmcnt(0)')
    top = A.newlabel('L_step')
    done = A.newlabel('L_rec_done')
    A.flush_hazards()
    if align is not None:
        A.raw('.p2align 6')
        for _ in range(align):
            A('s_nop 0')
    A.label(top)
    A.forget()

    def fifth(base):
        return 15 if base == 16 else base + 4

    def poll_issue(soff, base):
        A(f'buffer_load_dwordx4 v[{base}:{base + 3}], v{V_P4}, {WS}, s{soff} offen sc1')
        A(f'buffer_load_dword v{fifth(base)}, v{V_P1}, {WS}, s{soff} offen sc1')

    def poll_loop(soff, bases, half, preissued, gap=0):
        k = len(bases)
        lp = A.newlabel('L_poll'); ld = A.newlabel('L_polld')
        if not preissued:
            for j, b in enumerate(bases):
                poll_issue(soff, b)
                if gap and j < k - 1:
                    A(f's_nop {gap}')
        A.label(lp)
        wins = []
        for j, base in enumerate(bases):
            A(f's_waitcnt vmcnt({2 * (k - 1)})')
            A(f'v_max3_u32 v{T0}, v{base}, v{base + 1}, v{base + 2}')
            A(f'v_max3_u32 v{T0}, v{T0}, v{base + 3}, v{fifth(base)}')
            A(f'v_cmp_eq_u32 vcc, -1, v{T0}')
            lw = A.newlabel('L_pollw'); wins.append(lw)
            A(f's_cbranch_vccz {lw}')
            poll_issue(soff, base)
        A(f's_add_u32 s{S_SPIN}, s{S_SPIN}, 1')
        A(f's_cmp_lt_u32 s{S_SPIN}, {SPIN_LIMIT}')
        A(f's_cbranch_scc1 {lp}')
        A(f's_branch {abort_label}')
        for j, base in enumerate(bases):
            A.label(wins[j])
            A(f'ds_write_b128 v{V_P4}, v[{base}:{base + 3}] offset:{half * 5120}')
            A(f'ds_write_b32 v{V_P1}, v{fifth(base)} offset:{half * 5120}')
            if j < k - 1:
                A(f's_branch {ld}')
        A.label(ld)

    def a_read(sig, slot):
        return A(f'ds_read_b128 v[{AR + 4 * slot}:{AR + 4 * slot + 3}], v{V_KX} offset:{sig * 1024}')

    def smf(d, a, b):
        A(f'v_smfmac_f32_16x16x64_bf16 v[{d}:{d + 3}], v[{a}:{a + 3}], {wr(b, 8)}, v{V_IDX}')

    def SL(i):
        return 20 + 4 * i

    def blk_load(blk, b):
        A(f'ds_read_b128 v[{b}:{b + 3}], v{V_L16} offset:{blk * 2048}')
        return A(f'ds_read_b128 v[{b + 4}:{b + 7}], v{V_L16} offset:{blk * 2048 + 1024}')

    def zero(base, n):
        for r in range(base, base + n, 2):
            A(f'v_mov_b64 v[{r}:{r + 1}], 0')

    def poll_check(base, lwin):
        A(f'v_max3_u32 v{T0}, v{base}, v{base + 1}, v{base + 2}')
        A(f'v_max3_u32 v{T0}, v{T0}, v{base + 3}, v{fifth(base)}')
        A(f'v_cmp_eq_u32 vcc, -1, v{T0}')
        A(f's_cbranch_vccz {lwin}')

    def poll_put(base, half):
        A(f'ds_write_b128 v{V_P4}, v[{base}:{base + 3}] offset:{half * 5120}')
        A(f'ds_write_b32 v{V_P1}, v{fifth(base)} offset:{half * 5120}')

    stamp(0)
    zero(Q0, 24)
    lseq = [(m, sig, tau) for sig in range(5) for (m, tau) in (('v', 0), ('q', 0), ('k', 1), ('q', 1), ('v', 1), ('k', 0))]
    lfed = [b for b in lseq if b in BLK_OF]
    LR = [64, 72, 56]
    wt = {}; wreg_ = {}
    nl = [0]
    pend = []

    def half(blk, reg, hf):
        return A(f'ds_read_b128 v[{reg + 4 * hf}:{reg + 4 * hf + 3}], v{V_L16} offset:{blk * 2048 + hf * 1024}')

    def flush_pend():
        while pend:
            tab, b, reg = pend.pop(0)
            tab[b] = half(BLK_OF[b], reg, 1)

    def lnext(reg, now=False):
        if nl[0] < len(lfed):
            if reg == LR[2] and nl[0] >= len(lfed) - 3:
                return
            b = lfed[nl[0]]; nl[0] += 1
            half(BLK_OF[b], reg, 0); wreg_[b] = reg
            pend.append((wt, b, reg))
            if now:
                flush_pend()

    for r_ in LR:
        lnext(r_, True)
    l_s0a = A.newlabel('L_s0a')
    A(f's_cmp_eq_u32 s{S_STEP}, 0' if cut is None else 's_cmp_eq_u32 0, 0')
    A(f's_cbranch_scc1 {l_s0a}')
    poll_loop(S_PLOC, [16, VXR], 0, False, gap=bgap)
    A.label(l_s0a)
    if rp[0] < 0:
        poll_issue(S_PREM, 80)
    A.wait_lg0()
    A('s_barrier')
    stamp(1)
    if mega:
        lf = A.newlabel('L_lastf'); lb = A.newlabel('L_lastb')
        A(f's_cmp_eq_u32 s{S_STEP}, {nsteps - 1}')
        A(f's_cbranch_scc1 {lf}')
        A.label(lb)

        def lastflag():
            A.label(lf)
            m_flag()
            A(f's_branch {lb}')
        deferred.append(lastflag)
    at = {}

    ACC = {'q': Q0, 'k': K0, 'v': VV0}

    def local_slot(sig, extra=(), lo=0, hi=6):
        a = AR + 4 * (sig % 3)
        extra = list(extra)
        first = lseq[6 * sig + lo]
        A.wait(at[sig], wt.get(first))
        for b in lseq[6 * sig + lo:6 * sig + hi]:
            m, _, tau = b
            if extra and b != first:
                extra.pop(0)()
            if b in BLK_OF:
                A.wait(wt[b])
                smf(ACC[m] + 4 * tau, a, wreg_[b])
                flush_pend()
                lnext(wreg_[b])
            else:
                smf(ACC[m] + 4 * tau, a, REG_OF[b])
                flush_pend()
        for f_ in extra:
            f_()
        if sig + 3 < 5:
            at[sig + 3] = a_read(sig + 3, sig % 3)

    RS = [80, 16]
    for j in range(3):
        at[j] = a_read(j, j)
    for sig in range(4):
        if sig == rp[0]:
            poll_issue(S_PREM, RS[0])
        if sig == rp[1]:
            poll_issue(S_PREM, RS[1])
        local_slot(sig)
        if sig == 2 and early:
            hs_ = [h_ for h_ in A.hist if h_.kind in ('mfma', 'valu')]
            lne = A.newlabel('L_ne')
            A(f's_mov_b32 s{S_EARLY}, s{S_STEP}')
            A('s_waitcnt vmcnt(2)')
            base = RS[0]
            A(f'v_max3_u32 v{T0}, v{base}, v{base + 1}, v{base + 2}')
            A(f'v_max3_u32 v{T0}, v{T0}, v{base + 3}, v{fifth(base)}')
            A(f'v_cmp_eq_u32 vcc, -1, v{T0}')
            lre = A.newlabel('L_re')
            A(f's_cbranch_vccnz {lre}')
            A(f's_cmp_eq_u32 s{S_STEP}, 0')
            A(f's_cbranch_scc1 {lne}')
            li, ld_ = A.lg_issued, A.lg_done
            poll_put(base, 1)
            A.lg_issued, A.lg_done = li, ld_
            A(f's_mov_b32 s{S_EARLY}, 0')
            A.label(lne)

            def reissue(lre=lre, lne=lne, base=base):
                A.label(lre)
                poll_issue(S_PREM, base)
                A(f's_branch {lne}')
            deferred.append(reissue)
            A.hist = hs_
    if s4:
        local_slot(4, hi=s4)
    stamp(2)
    rslot = [0, 2, 3, 4, 1]
    l_s0 = A.newlabel('L_rs0')
    if s4b:
        A.wait_lg0()
    A(f's_cmp_eq_u32 s{S_EARLY if early else S_STEP}, 0' if cut is None else 's_cmp_eq_u32 0, 0')
    A(f's_cbranch_scc1 {l_s0}')
    hs_ = [h_ for h_ in A.hist if h_.kind in ('mfma', 'valu')]
    for b_ in RS[2:]:
        poll_issue(S_PREM, b_)
    poll_loop(S_PREM, RS[::-1] if early else RS, 1, True)
    A.label(l_s0)
    A.hist = hs_
    if s4b:
        for k_ in list(wt):
            wt[k_] = None
        at[4] = None
        local_slot(4, hi=s4b)
    A.wait_lg0()
    A('s_barrier')
    def ar_(j):
        def f():
            at[5 + j] = a_read(5 + j, rslot[j])
        return f
    ar_(0)()
    local_slot(4, [ar_(1), ar_(2), ar_(3),
                   lambda: A(f'buffer_load_dwordx4 v[{VX0}:{VX0 + 3}], v{V_L16}, {WS}, s{S_VX} offen sc1'),
                   lambda: A(f'buffer_load_dwordx4 v[{VX1}:{VX1 + 3}], v{V_L16}, {WS}, s{S_VX} offen offset:1024 sc1')], lo=s4 + s4b)
    assert nl[0] == len(lfed) and not pend
    at[9] = a_read(9, rslot[4])
    stamp(3)
    RA = [AR + 4 * rslot[j] for j in range(5)]

    def halfsum_ops(x, y, off):
        ops = []
        for r in range(4):
            ops.append(f'v_permlane32_swap_b32 v{x + r}, v{y + r}')
        for r in range(0, 4, 2):
            ops.append(f'v_pk_add_f32 v[{x + r}:{x + r + 1}], v[{x + r}:{x + r + 1}], v[{y + r}:{y + r + 1}]')
        ops.append(f'v_cvt_pk_bf16_f32 v{y}, v{x}, v{x + 1}')
        ops.append(f'v_cvt_pk_bf16_f32 v{y + 1}, v{x + 2}, v{x + 3}')
        if off is not None:
            ops.append(f'ds_write_b64 v{V_QKW}, v[{y}:{y + 1}] offset:{off}')
        return ops

    VM, VMA, VMB = VV1, VV0, VV0 + 2
    def pub_read(tmp):
        t = None
        A(f'v_add_u32 v{tmp + 3}, s{S_W512}, v{V_QKR}')
        for rho in range(2):
            t = A(f'ds_read_b64_tr_b16 v[{tmp + 2 * rho}:{tmp + 2 * rho + 1}], v{tmp + 3} offset:{2048 + rho * 256}')
        return t

    def pub_sel(tmp):
        return [f'v_cndmask_b32 v{tmp + r}, v{tmp + r}, v{VM + r}, s[{S_TMASK}:{S_TMASK + 1}]' for r in range(2)]

    def pub_store(tmp):
        if 'nopub' not in dbg:
            A(f'buffer_store_dwordx4 v[{tmp}:{tmp + 3}], v{V_L16}, {WS}, s{S_KM} offen sc1' + (' nt' if 'pubnt' in dbg else ''))

    QFR = [SL(0), SL(1), SL(11), SL(12)]
    S0, S1 = SL(15), SL(16)
    qt = {}; xt = {}; xreg = {}; last = [None]

    def xread(i, b):
        kap, kt_ = i >> 1, i & 1
        xt[i] = A(f'ds_read_b128 v[{b}:{b + 3}], v{V_KX} offset:{KXB - MEMB + (kt_ * 4 + kap) * 1024}')
        xreg[i] = b

    def trread(b, off):
        t = None
        for rho in range(2):
            t = A(f'ds_read_b64_tr_b16 v[{b + 2 * rho}:{b + 2 * rho + 1}], v{V_QKR} offset:{off + rho * 256}')
        return t

    def take(fl, n):
        for _ in range(n):
            if fl:
                t = A(fl.pop(0))
                if t:
                    last[0] = t

    kfed = [b for b in LDS_BLOCKS if b[0] == 'k' and b[1] >= 5]
    kft = {}; kfr = {}

    def kf_load(reg):
        if kfed:
            b = kfed.pop(0)
            half(BLK_OF[b], reg, 0); kfr[b] = reg
            pend.append((kft, b, reg))

    def ksm(i):
        b = ('k', 5 + (i >> 1), i & 1)
        if b in BLK_OF:
            A.wait(kft[b])
            smf(K0 + 4 * (i & 1), RA[i >> 1], kfr[b])
            flush_pend()
            kf_load(kfr[b])
        else:
            smf(K0 + 4 * (i & 1), RA[i >> 1], REG_OF[b])
            flush_pend()

    def vsm(n):
        smf(VV0 + 4 * (n & 1), RA[(n - 10) // 2], REG_OF['v', n >> 1, n & 1])

    def xsm(i):
        kap, kt_ = i >> 1, i & 1
        acc = (S0, S1)[kt_]
        A.wait(qt[kap], xt[i])
        c = '0' if kap == 0 else f'v[{acc}:{acc + 3}]'
        A(f'v_mfma_f32_16x16x32_bf16 v[{acc}:{acc + 3}], v[{xreg[i]}:{xreg[i] + 3}], v[{QFR[kap]}:{QFR[kap] + 3}], {c}')

    for n_, j in enumerate((0, 1, 2, 3, 4)):
        A.wait(at[8] if j == 0 else at[5 + j])
        smf(Q0, RA[j], REG_OF['q', 5 + j, 0])
        if n_ == 0:
            xread(0, SL(13))
        if n_ == 1:
            touch()
        if n_ == 2:
            kf_load(SL(11))
        if n_ == 3:
            A('s_waitcnt vmcnt(3)')
            kf_load(SL(15))
        smf(Q1, RA[j], REG_OF['q', 5 + j, 1])
        flush_pend()
        if n_ == 0:
            xread(1, SL(14))
    fill = halfsum_ops(Q0, Q1, 0)
    ksm(0); ksm(1); ksm(2); ksm(3)
    for i in range(4, 8):
        take(fill, 1); ksm(i)
    take(fill, 3); ksm(8); take(fill, 2); assert not fill
    qw = last[0]
    ksm(9)
    stamp(4)
    vsm(10); vsm(11)
    xread(2, RA[0])
    vsm(12)
    A.wait(qw)
    A('s_barrier')
    qt[0] = trread(QFR[0], 0)
    fill = halfsum_ops(K0, K1, 2048)
    vsm(13); take(fill, 2)
    xread(3, RA[1])
    vsm(14); take(fill, 2)
    vsm(15); take(fill, 3)
    xsm(0); take(fill, 2); assert not fill
    kw = last[0]
    qt[1] = trread(QFR[1], 512)
    xsm(1); xread(4, xreg[0])
    vsm(16); xread(5, xreg[1])
    qt[2] = trread(QFR[2], 1024)
    vsm(17)
    qt[3] = trread(QFR[3], 1536)
    xsm(2); xread(6, xreg[2])
    xsm(3); xread(7, xreg[3])
    xsm(4)
    if kxlate:
        A.wait(kw)
    else:
        A.wait_lg0()
    A('s_barrier')
    stamp(5)
    KF = [SL(2), SL(3), RA[2], RA[3]]
    kt = {}
    kt[0] = trread(KF[0], 2048)
    kt[1] = trread(KF[1], 2048 + 512)
    xsm(5)
    kt[2] = trread(KF[2], 2048 + 1024)
    xsm(6)
    kt[3] = trread(KF[3], 2048 + 1536)
    xsm(7)
    PUBT = xreg[4]
    pbt = pub_read(PUBT)
    vsm(18)
    hs_ = [h_ for h_ in A.hist if h_.kind in ('mfma', 'valu')]
    kv_wait(1)
    A.hist = hs_
    if not kxlate:
        issue_kx_vx()
    vsm(19)
    Sm = xreg[6]
    stamp(6)
    VM, VMA, VMB = VV1, VV0, VV0 + 2
    M_, M2 = T1, T0

    def msm(kap):
        b = KF[kap]
        A.wait(qt[kap], kt[kap])
        c = '0' if kap == 0 else f'v[{Sm}:{Sm + 3}]'
        A(f'v_mfma_f32_16x16x32_bf16 v[{Sm}:{Sm + 3}], v[{b}:{b + 3}], v[{QFR[kap]}:{QFR[kap] + 3}], {c}')

    fx = [f'v_max3_f32 v{M_}, v{S0}, v{S0 + 1}, v{S0 + 2}',
          f'v_max3_f32 v{M2}, v{S0 + 3}, v{S1}, v{S1 + 1}',
          f'v_max3_f32 v{M_}, v{M_}, v{S1 + 2}, v{S1 + 3}',
          f'v_max_f32 v{M_}, v{M_}, v{M2}',
          f'v_mov_b32 v{M2}, v{M_}']
    fv = halfsum_ops(VV0, VV1, None)
    for r in range(2):
        fv.append(f'v_cndmask_b32 v{VMA + r}, 0, v{VM + r}, s[{S_MLO}:{S_MLO + 1}]')
        fv.append(f'v_cndmask_b32 v{VMB + r}, v{VM + r}, 0, s[{S_MLO}:{S_MLO + 1}]')
    msm(0); take(fx, 2)
    A('s_waitcnt vmcnt(1)')
    msm(1)
    take(fx, 3); msm(2); take(fv, 1)
    msm(3)
    A(f'v_permlane32_swap_b32 v{M_}, v{M2}')
    A(f'v_max_f32 v{M_}, v{M_}, v{M2}')
    A.wait(pbt)
    take(fv, 7)
    take(pub_sel(PUBT), 2)
    if cut is None:
        A(f's_cmp_eq_u32 s{S_STEP}, {nsteps - 1}')
        A(f's_cbranch_scc1 {done}')
    stamp(7)

    used = {Sm, S0, S1, VV0, VV1}
    free = [SL(i) for i in range(17) if SL(i) not in used]
    P01, PM, O0, O1 = SL(2), SL(3), SL(0), SL(1)
    for x in (P01, PM, O0, O1):
        free.remove(x)
    free.remove(PUBT)
    ONES, LS = free[0], free[1]
    OAS = free[2:7]
    zf = [f'v_mov_b64 v[{r}:{r + 1}], 0' for x in OAS for r in (x, x + 2)]
    A(f'v_max3_f32 v{M_}, v{M_}, v{Sm}, v{Sm + 1}')
    A(f'v_max3_f32 v{M_}, v{M_}, v{Sm + 2}, v{Sm + 3}')
    A(f'v_mov_b32 v{M2}, v{M_}')
    take(fv, 2)
    A(f'v_permlane16_swap_b32 v{M_}, v{M2}')
    A(f'v_max_f32 v{M_}, v{M_}, v{M2}')
    A(f'v_mul_f32 v{M_}, s{S_C}, v{M_}')

    def pkf(x):
        A(f'v_pk_fma_f32 v[{x}:{x + 1}], v[{x}:{x + 1}], s[{S_C - 1}:{S_C}], v[{M_}:{M_ + 1}] op_sel:[0,1,0] op_sel_hi:[1,1,0] neg_lo:[0,0,1] neg_hi:[0,0,1]')
    assert S_C % 2 == 1 and M_ % 2 == 0
    xs = [S0 + r for r in range(4)] + [S1 + r for r in range(4)]
    for j in range(4):
        pkf(xs[2 * j])
    for x in xs:
        A(f'v_exp_f32 v{x}, v{x}')
    pkf(Sm); pkf(Sm + 2)
    for j in range(4):
        A(f'v_cvt_pk_bf16_f32 v{P01 + j}, v{xs[2 * j]}, v{xs[2 * j + 1]}')
    A(f'v_exp_f32 v{Sm}, v{Sm}')
    A(f'v_exp_f32 v{Sm + 1}, v{Sm + 1}')
    A(f'v_mfma_f32_16x16x32_bf16 v[{O0}:{O0 + 3}], v[{VX0}:{VX0 + 3}], v[{P01}:{P01 + 3}], 0')
    pub_store(PUBT)
    A(f'v_exp_f32 v{Sm + 2}, v{Sm + 2}')
    A(f'v_mov_b64 v[{ONES}:{ONES + 1}], s[{S_ONE}:{S_ONE + 1}]')
    A(f'v_mfma_f32_16x16x32_bf16 v[{O1}:{O1 + 3}], v[{VX1}:{VX1 + 3}], v[{P01}:{P01 + 3}], 0')
    A(f'v_exp_f32 v{Sm + 3}, v{Sm + 3}')
    A(f'v_mov_b64 v[{ONES + 2}:{ONES + 3}], s[{S_ONE}:{S_ONE + 1}]')
    A(f'v_cvt_pk_bf16_f32 v{PM}, v{Sm}, v{Sm + 1}')
    A(f'v_cvt_pk_bf16_f32 v{PM + 1}, v{Sm + 2}, v{Sm + 3}')
    A(f'v_mfma_f32_16x16x32_bf16 v[{LS}:{LS + 3}], v[{ONES}:{ONES + 3}], v[{P01}:{P01 + 3}], 0')
    take(fv, 9)
    A(f'v_mov_b64 v[{PM + 2}:{PM + 3}], s[{S_HALF}:{S_HALF + 1}]')
    A(f'v_xor_b32 v{M2}, 32, v{V_OW0}')
    A(f'v_mfma_f32_16x16x16_bf16 v[{LS}:{LS + 3}], v[{PM + 2}:{PM + 3}], v[{PM}:{PM + 1}], v[{LS}:{LS + 3}]')
    take(zf, 2)
    A(f'v_mfma_f32_16x16x16_bf16 v[{O0}:{O0 + 3}], v[{VMA}:{VMA + 1}], v[{PM}:{PM + 1}], v[{O0}:{O0 + 3}]')
    take(zf, 2)
    A(f'v_mfma_f32_16x16x16_bf16 v[{O1}:{O1 + 3}], v[{VMB}:{VMB + 1}], v[{PM}:{PM + 1}], v[{O1}:{O1 + 3}]')
    take(zf, 2)
    A(f'v_rcp_f32 v{M_}, v{LS}')
    take(zf, 9)
    for tau in range(2):
        o = O0 + 4 * tau
        for r in (0, 2):
            A(f'v_pk_mul_f32 v[{o + r}:{o + r + 1}], v[{o + r}:{o + r + 1}], v[{M_}:{M_ + 1}] op_sel_hi:[1,0]')
        A(f'v_cvt_pk_bf16_f32 v{o}, v{o}, v{o + 1}')
        A(f'v_cvt_pk_bf16_f32 v{o + 1}, v{o + 2}, v{o + 3}')
        owt = A(f'ds_write_b64 v{V_OW0 if tau == 0 else M2}, v[{o}:{o + 1}]')
    hs_ = [h_ for h_ in A.hist if h_.kind in ('mfma', 'valu')]
    m_flag(LS)
    A.hist = hs_
    A.wait(owt)
    A('s_barrier')
    stamp(8)
    OF = [O0, O1]
    G0, G1, X4 = P01, PM, ONES

    def post(n):
        x, y = OAS[2 * n], OAS[2 * n + 1]
        ops = [f'v_permlane32_swap_b32 v{x + r}, v{y + r}' for r in range(4)]
        ops += [f'v_pk_add_f32 v[{x + r}:{x + r + 1}], v[{x + r}:{x + r + 1}], v[{y + r}:{y + r + 1}]' for r in (0, 2)]
        ops += [f'v_cvt_pk_bf16_f32 v{G0 + 2 * n}, v{x}, v{x + 1}', f'v_cvt_pk_bf16_f32 v{G0 + 2 * n + 1}, v{x + 2}, v{x + 3}']
        return ops

    lsafe = A.newlabel('L_psafe'); lpe = A.newlabel('L_pend')

    def outproj(sc):
        x, y = OAS[4], X4
        p4 = [f'v_mov_b64 v[{y}:{y + 1}], v[{x}:{x + 1}]', f'v_mov_b64 v[{y + 2}:{y + 3}], v[{x + 2}:{x + 3}]']
        p4 += [f'v_permlane32_swap_b32 v{x + r}, v{y + r}' for r in range(4)]
        p4 += [f'v_pk_add_f32 v[{x + r}:{x + r + 1}], v[{x + r}:{x + r + 1}], v[{y + r}:{y + r + 1}]' for r in (0, 2)]
        p4 += [f'v_cvt_pk_bf16_f32 v{G1}, v{x}, v{x + 1}', f'v_cvt_pk_bf16_f32 v{G1 + 1}, v{x + 2}, v{x + 3}',
               f'v_mov_b64 v[{G1 + 2}:{G1 + 3}], v[{G1}:{G1 + 1}]']
        worder = [(0, 4), (1, 4), (0, 0), (0, 1), (1, 0), (1, 1), (0, 2), (0, 3), (1, 2), (1, 3)]
        nfill = [0, 0, 0, 0, 0, 0, 2, 1, 1, 2]
        pre = [f'v_and_b32 v{T0}, 0x1fff, v{V_PST}',
               f'v_add_u32 v{V_P4}, s{S_W1280}, v{V_KX}', f'v_lshl_add_u32 v{V_P1}, v{L}, 2, s{S_P1B}']
        for i, (k2, tau) in enumerate(worder):
            if i < 2:
                A(f's_waitcnt lgkmcnt({1 - i})')
            smf(OAS[tau], OF[k2], REG_OF['o', k2, tau])
            if i in (1, 5):
                A(f'buffer_load_dwordx4 v{V_L16}, {WS}, s{S_KX} offen offset:{(i // 5) * 1024} sc1 lds')
            elif i >= 2:
                take(pre, 1)
            take(p4, nfill[i])
        take(p4, 20)
        take(post(0), 9)
        A(f'v_permlane16_swap_b32 v{G1}, v{G1 + 2}')
        A(f'v_permlane16_swap_b32 v{G1 + 1}, v{G1 + 3}')
        A(f'v_and_or_b32 v{G1}, v{G1}, -2, s{S_PAR}')
        pp = post(1)
        take(pp, 1)
        A(f'buffer_store_dwordx4 v[{G1}:{G1 + 3}], v{T0}, {WS}, s{S_PS1} offen{sc}')
        take(pp, 9)
        A(f'v_permlane16_swap_b32 v{G0}, v{G0 + 2}')
        A(f'v_permlane16_swap_b32 v{G0 + 1}, v{G0 + 3}')
        A(f'v_and_or_b32 v{G0}, v{G0}, -2, s{S_PAR}')
        A(f'buffer_store_dwordx4 v[{G0}:{G0 + 3}], v{V_PST}, {WS}, s{S_PS0} offen{sc}')

    for k2 in range(2):
        A(f'ds_read_b128 v[{OF[k2]}:{OF[k2] + 3}], v{V_OR} offset:{128 * k2}')
    A(f's_cmp_eq_u32 s{S_FAST}, 0')
    A(f's_cbranch_scc1 {lsafe}')
    saved = list(A.hist)

    def safe_variant():
        A.label(lsafe)
        A.hist = list(saved)
        outproj(' sc1')
        A.branch(f's_branch {lpe}')
    deferred.append(safe_variant)
    outproj('')
    A.lg_done = A.lg_issued
    A.flush_hazards()
    A.label(lpe)
    stamp(9)
    A('s_waitcnt vmcnt(5)')
    A(f's_add_u32 s{S_PLOC}, s{S_PLOC}, 10240')
    A(f's_add_u32 s{S_VX}, s{S_VX}, {32 * 8192}')
    A(f's_add_u32 s{S_KX}, s{S_KX}, {32 * 8192}')
    A(f's_add_u32 s{S_KM}, s{S_KM}, {32 * 4096}')
    next_pages()
    touch_prep()
    lnr = A.newlabel('L_nored'); lnr2 = A.newlabel('L_nored2')
    A(f's_cmp_ge_u32 s{S_RED}, 40')
    A(f's_cbranch_scc1 {lnr2}')
    RBS = [20, 44, 60][:ka]
    SEL = 36
    DD = 80
    lp = A.newlabel('L_pa'); lw = A.newlabel('L_paw')

    def pa_issue(RB):
        for j in range(4):
            A(f'buffer_load_dwordx4 v[{RB + 4 * j}:{RB + 4 * j + 3}], v{V_L16}, {WS}, s{S_PA} offen offset:{1024 * j} sc1')
    rebuild_pub()
    A(f'v_and_b32 v{T0}, 1, v{L}')
    A(f'v_lshlrev_b32 v{T0}, 4, v{T0}')
    A(f'v_mov_b32 v{T1}, 0x3f80')
    A(f'v_lshlrev_b32 v{T0}, v{T0}, v{T1}')
    A(f'v_bfe_u32 v{T1}, v{L}, 1, 2')
    for d in range(4):
        A(f'v_cmp_eq_u32 vcc, {d}, v{T1}')
        A(f'v_cndmask_b32 v{SEL + d}, 0, v{T0}, vcc')
    for j, RB in enumerate(RBS):
        if adelay[j]:
            for _ in range(adelay[j]):
                A('s_nop 15')
        pa_issue(RB)

    def tt(f):
        t = 0
        for a_ in range(2):
            for b_ in range(2):
                for c_ in range(2):
                    if f(a_, b_, c_):
                        t |= 1 << ((a_ << 2) | (b_ << 1) | c_)
        return t
    t1 = tt(lambda a, b, c: (a ^ c) | (b ^ c))
    t2 = tt(lambda a, b, c: (a | b) & c)
    A.flush_hazards()
    A.label(lp)
    for RB in RBS:
        A(f's_waitcnt vmcnt({4 * (ka - 1)})')
        chk = [f'v_bitop3_b32 v{T0}, v{RB}, v{RB + 4}, s{S_PAR} bitop3:{t1:#x}',
               f'v_bitop3_b32 v{T1}, v{RB + 8}, v{RB + 12}, s{S_PAR} bitop3:{t1:#x}',
               f'v_bitop3_b32 v{T0}, v{T0}, v{T1}, 1 bitop3:{t2:#x}',
               f'v_cmp_ne_u32 vcc, 0, v{T0}']
        if spec:
            for j in range(4):
                c = '0' if j == 0 else f'v[{DD}:{DD + 3}]'
                A(f'v_mfma_f32_16x16x32_bf16 v[{DD}:{DD + 3}], v[{RB + 4 * j}:{RB + 4 * j + 3}], v[{SEL}:{SEL + 3}], {c}')
                A(chk[j])
            A(f's_cbranch_vccz {lw}')
        else:
            for j in range(4):
                A(chk[j])
            A(f's_cbranch_vccz {lw}_{RB}')
        pa_issue(RB)
    A(f's_add_u32 s{S_SPIN}, s{S_SPIN}, 1')
    A(f's_cmp_lt_u32 s{S_SPIN}, {SPIN_LIMIT}')
    A(f's_cbranch_scc1 {lp}')
    A(f's_branch {abort_label}')
    if not spec:
        for RB in RBS:
            A.label(f'{lw}_{RB}')
            for j in range(4):
                c = '0' if j == 0 else f'v[{DD}:{DD + 3}]'
                A(f'v_mfma_f32_16x16x32_bf16 v[{DD}:{DD + 3}], v[{RB + 4 * j}:{RB + 4 * j + 3}], v[{SEL}:{SEL + 3}], {c}')
            A(f's_branch {lw}')
    A.label(lw)
    A(f's_cmp_eq_u32 s{S_FAST}, 0')
    A('s_nop 4')
    stamp(10)
    A(f'v_permlane32_swap_b32 v{DD}, v{DD + 2}')
    A(f'v_permlane32_swap_b32 v{DD + 1}, v{DD + 3}')
    A(f's_mov_b64 exec, s[{S_MPB}:{S_MPB + 1}]')
    A(f'v_pk_add_f32 v[{DD}:{DD + 1}], v[{DD}:{DD + 1}], v[{DD + 2}:{DD + 3}]')
    a0 = DD
    A(f'v_cvt_pk_bf16_f32 v{a0}, v{DD}, v{DD + 1}')
    A(f'v_min_u32 v{a0}, -2, v{a0}')
    A(f'buffer_store_dword v{a0}, v{V_PUB}, {WS}, s{S_PUBR} offen sc1')
    lps = A.newlabel('L_pubs'); lpd = A.newlabel('L_pubd')
    A(f's_cbranch_scc1 {lps}')
    A(f'buffer_store_dword v{a0}, v{V_PUB}, {WS}, s{S_PUBL} offen')
    A.label(lpd)

    def pub_safe():
        A.label(lps)
        A(f'buffer_store_dword v{a0}, v{V_PUB}, {WS}, s{S_PUBL} offen sc1')
        A(f's_branch {lpd}')
    deferred.append(pub_safe)
    A('s_mov_b64 exec, -1')
    A('s_waitcnt vmcnt(2)')
    A.branch(f's_branch {lnr}')
    A.label(lnr2)
    kv_refresh(lnr)
    if backoff:
        A(f's_sleep {backoff}')
    A.label(lnr)
    stamp(11)
    if stamps:
        A('s_waitcnt lgkmcnt(0)')
        for i in range(12):
            A(f'v_writelane_b32 v{T0}, s{S_ST + 2 * i}, {i}')
        A(f'v_lshlrev_b32 v{T1}, 2, v{L}')
        A('s_mov_b64 exec, 0xfff')
        A(f'buffer_store_dword v{T0}, v{T1}, {WS}, s{S_STO} offen')
        A('s_mov_b64 exec, -1')
        A(f's_add_u32 s{S_STO}, s{S_STO}, 64')
    if cut is not None:
        A.label('L_cut')
        A.wait_all()
        rebuild()
        A.wait_all()
        A('s_sleep 8')
        A(f's_cmp_eq_u32 s{S_STEP}, {nsteps - 1}')
        A(f's_cbranch_scc1 {done}')
    A(f's_add_u32 s{S_PUBL}, s{S_PUBL}, 10240')
    A(f's_xor_b32 s{S_PAR}, s{S_PAR}, 1')
    A(f's_add_u32 s{S_STEP}, s{S_STEP}, 1')
    A.branch(f's_branch {top}')
    for f_ in deferred:
        f_()
    A.label(done)
    pub_store(PUBT)
    A.wait_all()
    A('s_barrier')
    m_flag()
    if coarse:
        A('s_memrealtime s[92:93]')
        A('s_memtime s[94:95]')
        A('s_waitcnt lgkmcnt(0)')
        A(f's_lshl_b32 s{S_TMP}, s{S_H}, 3')
        A(f's_lshl_b32 s{S_TMP + 1}, s{S_T}, 2')
        A(f's_add_u32 s{S_TMP}, s{S_TMP}, s{S_TMP + 1}')
        A(f's_add_u32 s{S_TMP}, s{S_TMP}, s{S_WV}')
        A(f's_lshl_b32 s{S_TMP}, s{S_TMP}, 6')
        A(f's_add_u32 s{S_TMP}, s{S_TMP}, {WS_STAMP + 0x200000:#x}')
        A('s_mov_b64 exec, 1')
        A(f'v_mov_b32 v{T1}, s{S_TMP}')
        for i in range(6):
            A(f'v_mov_b32 v{T0}, s{84 + 2 * i}')
            A(f'buffer_store_dword v{T0}, v{T1}, {WS}, 0 offen offset:{4 * i}')
        A(f'v_mov_b32 v{T0}, s{S_SPIN}')
        A(f'buffer_store_dword v{T0}, v{T1}, {WS}, 0 offen offset:24')
        A(f'v_mov_b32 v{T0}, s85')
        A(f'buffer_store_dword v{T0}, v{T1}, {WS}, 0 offen offset:28')
        A.wait_all()
```

```python
import math
import struct
from asmlib import *
from layout import *
from roles import F_P, F_M

VREG = 34816
MEMB = 4 * VREG
QKB = MEMB + 10240
OB = QKB + 4096
KXB = OB + 2048
assert KXB + 8192 == 163840

SPIN_LIMIT = 1 << 17


def f32bits(x):
    return struct.unpack('<I', struct.pack('<f', x))[0]


LDS_BLOCKS = [('v', s_, t_) for s_ in range(5) for t_ in range(2)] + [('k', s_, 1) for s_ in range(3)] + \
             [('k', 5, 0), ('k', 6, 0), ('k', 7, 1), ('k', 9, 0)]
assert len(LDS_BLOCKS) == 17
_all = [(m, s_, t_) for m in 'qkv' for s_ in range(10) for t_ in range(2)] + [('o', k_, t_) for k_ in range(2) for t_ in range(5)]
_regb = [b for b in _all if b not in LDS_BLOCKS]
assert len(_regb) == 53
REG_OF = {b: (256 + 8 * i if i < 32 else 88 + 8 * (i - 32)) for i, b in enumerate(_regb)}
BLK_OF = {b: i for i, b in enumerate(LDS_BLOCKS)}


V_LANE, V_IDX, V_L16, V_KX, V_QKW, V_QKR, V_OW0, V_OR, V_PST, V_T2, V_T1, V_T0 = range(12)
VX0, VX1 = 12, 16
V_P4, V_P1, V_PUB = 12, 13, 14
Q0, Q1, K0, K1, VV0, VV1 = 20, 24, 28, 32, 36, 40
AR = 44
PL = 56
VW = 64
SS = 64
VXR = 80

S_WS, S_W, S_DBG = 4, 8, 12
S_T, S_H, S_WV, S_STEP, S_FAST = 16, 17, 18, 19, 20
S_PLOC, S_PREM, S_PS0, S_PS1, S_PS2, S_PA, S_PUBR, S_PUBL, S_KX, S_VX, S_RED, S_NOT1, S_C = range(21, 34)
S_MLO = 34
S_MPUB = 36
S_KM, S_VM, S_FL = 38, 39, 40
S_TMP = 41
S_PTR = 44
S_SPIN = 46
S_TMP2 = 47
S_ST = 48
S_STO = 80
S_KSEL = 96
S_FKV = 97
S_MPB = 44
S_EARLY = 81
S_TA = 32
S_TABW, S_TABR = 36, 82
S_PREM0, S_PUBR0 = 39, 96
S_TMASK = 94
S_PAR, S_W1280, S_P1B, S_W512 = 72, 73, 74, 75
S_ONE = 76
S_HALF = 78
S_RDY = 25


def emit_rec(A, abort_label, nsteps=64, stamps=False, force_safe=False, coarse=False, backoff=13, ka=2, adelay=(1, 2), mega=False, rp=(0, 2), cut=None, dbg='', kb=2, bgap=15, spec=True, kmahead=2, align=None, kxlate=True, tlate=False, early=False, s4=0, s4b=0):
    def stamp(i):
        if stamps:
            A(f'{"s_memrealtime" if stamps == "rt" else "s_memtime"} s[{S_ST + 2 * i}:{S_ST + 2 * i + 1}]')
        if cut == i:
            A.branch('s_branch L_cut')

    if coarse:
        A('s_memrealtime s[84:85]')
        A('s_memtime s[86:87]')
    A(f's_load_dwordx2 s[{S_PTR}:{S_PTR + 1}], s[0:1], {KA_WS}')
    A(f's_load_dwordx2 s[{S_TMP + 1}:{S_TMP + 2}], s[0:1], {KA_DBG}')
    A(f'v_lshrrev_b32 v1, 6, v0')
    A(f'v_readfirstlane_b32 s{S_WV}, v1')
    A(f'v_and_b32 v{V_LANE}, 63, v0')
    A('s_waitcnt lgkmcnt(0)')
    A.srd(S_WS, S_PTR, S_PTR + 1, WS_BYTES)
    A.srd(S_DBG, S_TMP + 1, S_TMP + 2, 256)
    A(f's_mov_b32 s{S_SPIN}, 0')
    L = V_LANE
    T0, T1 = V_T0, V_T1
    G, R_, C_ = 20, 21, 22
    A(f'v_lshrrev_b32 v{G}, 4, v{L}')
    A(f'v_bfe_u32 v{R_}, v{L}, 2, 2')
    A(f'v_and_b32 v{C_}, 3, v{L}')
    A(f'v_and_b32 v{T0}, 8, v{L}')
    A(f'v_cmp_eq_u32 vcc, 0, v{T0}')
    A(f'v_mov_b32 v{T0}, 0xeeee')
    A(f'v_mov_b32 v{T1}, 0x4444')
    A(f'v_cndmask_b32 v{V_IDX}, v{T0}, v{T1}, vcc')
    A(f's_mul_i32 s{S_TMP}, s{S_WV}, {VREG}')
    A(f'v_lshlrev_b32 v{T0}, 4, v{L}')
    A(f'v_add_u32 v{V_L16}, s{S_TMP}, v{T0}')
    A(f'v_add_u32 v{V_KX}, {MEMB}, v{T0}')
    A(f'v_lshrrev_b32 v{T0}, 5, v{L}')
    A(f'v_lshlrev_b32 v{T0}, 8, v{T0}')
    A(f'v_and_b32 v{T1}, 15, v{L}')
    A(f'v_lshl_add_u32 v{T0}, v{T1}, 4, v{T0}')
    A(f'v_and_b32 v{T1}, 1, v{G}')
    A(f'v_lshl_add_u32 v{T0}, v{T1}, 3, v{T0}')
    A(f's_lshl_b32 s{S_TMP}, s{S_WV}, 9')
    A(f's_add_u32 s{S_TMP}, s{S_TMP}, {QKB}')
    A(f'v_add_u32 v{V_QKW}, s{S_TMP}, v{T0}')
    A(f'v_lshlrev_b32 v{T0}, 6, v{G}')
    A(f'v_lshl_add_u32 v{T0}, v{R_}, 4, v{T0}')
    A(f'v_and_b32 v{T1}, 1, v{C_}')
    A(f'v_lshl_add_u32 v{T0}, v{T1}, 3, v{T0}')
    A(f'v_add_u32 v{V_QKR}, {QKB}, v{T0}')
    I_ = 23
    A(f'v_and_b32 v{I_}, 7, v{L}')
    A(f'v_lshrrev_b32 v{T0}, 1, v{G}')
    A(f's_lshl_b32 s{S_TMP}, s{S_WV}, 2')
    A(f'v_add_u32 v{T0}, s{S_TMP}, v{T0}')
    A(f'v_xor_b32 v{T0}, v{T0}, v{I_}')
    A(f'v_lshlrev_b32 v{T0}, 4, v{T0}')
    A(f'v_lshl_add_u32 v{T0}, v{I_}, 8, v{T0}')
    A(f'v_and_b32 v{T1}, 1, v{G}')
    A(f'v_lshl_add_u32 v{T0}, v{T1}, 3, v{T0}')
    A(f'v_add_u32 v{V_OW0}, {OB}, v{T0}')
    A(f'v_bfe_u32 v{T0}, v{L}, 3, 1')
    A(f'v_lshl_add_u32 v{T0}, v{G}, 1, v{T0}')
    A(f'v_xor_b32 v{T0}, v{T0}, v{I_}')
    A(f'v_lshlrev_b32 v{T0}, 4, v{T0}')
    A(f'v_lshl_add_u32 v{T0}, v{I_}, 8, v{T0}')
    A(f'v_add_u32 v{V_OR}, {OB}, v{T0}')
    A(f'v_and_b32 v{T0}, 1, v{G}')
    A(f'v_lshlrev_b32 v{T0}, 1, v{T0}')
    A(f'v_lshrrev_b32 v{T1}, 1, v{G}')
    A(f'v_add_u32 v{T0}, v{T0}, v{T1}')
    A(f'v_lshlrev_b32 v{T0}, 1, v{T0}')
    A(f'v_bfe_u32 v{T1}, v{L}, 3, 1')
    A(f'v_add_u32 v{T0}, v{T0}, v{T1}')
    A(f'v_lshlrev_b32 v{T0}, 12, v{T0}')
    A(f'v_lshl_add_u32 v{V_PST}, v{I_}, 4, v{T0}')
    A(f's_lshl_b32 s{S_KSEL}, s{S_T}, 2')
    A(f's_add_u32 s{S_KSEL}, s{S_KSEL}, s{S_WV}')
    A(f's_mov_b32 s{S_ONE}, 0x3f803f80')
    A(f's_mov_b32 s{S_ONE + 1}, 0x3f803f80')
    A(f's_mov_b32 s{S_HALF}, 0x3f003f00')
    A(f's_mov_b32 s{S_HALF + 1}, 0x3f003f00')
    A(f's_mov_b32 s{S_PAR}, 0')
    A(f's_mul_i32 s{S_W1280}, s{S_WV}, 1280')
    A(f's_add_u32 s{S_P1B}, s{S_W1280}, {MEMB + 1024}')
    A(f's_lshl_b32 s{S_W512}, s{S_WV}, 9')

    def rebuild():
        A(f'v_add_u32 v{V_P4}, s{S_W1280}, v{V_KX}')
        A(f'v_lshl_add_u32 v{V_P1}, v{L}, 2, s{S_P1B}')

    def rebuild_pub():
        A(f'v_and_b32 v{T0}, 7, v{L}')
        A(f'v_bfe_u32 v{T1}, v{L}, 4, 1')
        A(f'v_lshlrev_b32 v{T1}, 3, v{T1}')
        A(f'v_lshl_add_u32 v{T0}, v{T0}, 4, v{T1}')
        A(f'v_lshrrev_b32 v{T1}, 5, v{L}')
        A(f'v_lshl_add_u32 v{V_PUB}, v{T1}, 2, v{T0}')

    A(f's_mov_b32 s{S_MPB}, 0x00ff00ff')
    A(f's_mov_b32 s{S_MPB + 1}, 0x00ff00ff')
    A(f's_mov_b32 s{S_MLO}, -1')
    A(f's_mov_b32 s{S_MLO + 1}, 0')
    A(f's_mov_b32 s{S_MPUB}, 0x00ff00ff')
    A(f's_mov_b32 s{S_MPUB + 1}, 0x00ff00ff')
    A(f's_mov_b32 s{S_NOT1}, 0xfffffffe')
    A(f's_mov_b32 s{S_C}, {f32bits((128 ** -0.5) * math.log2(math.e)):#x}')
    A(f's_mul_i32 s{S_TMP2}, s{S_WV}, {VREG}')
    A(f's_mul_i32 s{S_TMP}, s{S_T}, 5120')
    A(f's_add_u32 s{S_PLOC}, s{S_TMP}, {WS_MEML - MEMB:#x}')
    A(f's_xor_b32 s{S_TMP}, s{S_T}, 1')
    A(f's_lshl_b32 s{S_TMP}, s{S_TMP}, 14')
    A(f's_add_u32 s{S_PREM}, s{S_TMP}, {WS_MEMR - MEMB:#x}')
    A(f's_mul_i32 s{S_TMP}, s{S_T}, 163840')
    A(f's_add_u32 s{S_TMP}, s{S_TMP}, {WS_PART:#x}')
    A(f's_mul_i32 s{S_TMP + 1}, s{S_WV}, {10 * 4096}')
    A(f's_add_u32 s{S_PS0}, s{S_TMP}, s{S_TMP + 1}')
    A(f's_lshl_b32 s{S_TMP + 1}, s{S_H}, 7')
    A(f's_add_u32 s{S_PS0}, s{S_PS0}, s{S_TMP + 1}')
    A(f's_add_u32 s{S_PS1}, s{S_PS0}, 32768')
    A(f's_lshl_b32 s{S_RED}, s{S_WV}, 5')
    A(f's_add_u32 s{S_RED}, s{S_RED}, s{S_H}')
    A(f's_min_u32 s{S_TMP + 2}, s{S_RED}, 39')
    A(f's_lshl_b32 s{S_TMP + 1}, s{S_TMP + 2}, 12')
    A(f's_add_u32 s{S_PA}, s{S_TMP}, s{S_TMP + 1}')
    A(f's_sub_u32 s{S_PA}, s{S_PA}, s{S_TMP2}')
    A(f's_lshl_b32 s{S_TMP + 1}, s{S_TMP + 2}, 7')
    A(f's_lshl_b32 s{S_TMP}, s{S_T}, 14')
    A(f's_add_u32 s{S_PUBR}, s{S_TMP}, s{S_TMP + 1}')
    A(f's_add_u32 s{S_PUBR}, s{S_PUBR}, {WS_MEMR + 32768:#x}')
    A(f's_mul_i32 s{S_TMP}, s{S_T}, 5120')
    A(f's_add_u32 s{S_PUBL}, s{S_TMP}, s{S_TMP + 1}')
    A(f's_add_u32 s{S_PUBL}, s{S_PUBL}, {WS_MEML + 10240:#x}')
    A(f's_lshl_b32 s{S_TMP}, s{S_H}, 13')
    A(f's_lshl_b32 s{S_TMP + 1}, s{S_WV}, 11')
    A(f's_add_u32 s{S_TMP}, s{S_TMP}, s{S_TMP + 1}')
    A(f's_sub_u32 s{S_TMP}, s{S_TMP}, s{S_TMP2}')
    A(f's_add_u32 s{S_KX}, s{S_TMP}, {WS_KX:#x}')
    A(f's_add_u32 s{S_VX}, s{S_TMP}, {WS_VX:#x}')
    A(f's_lshl_b32 s{S_TMP}, s{S_H}, 12')
    A(f's_lshl_b32 s{S_TMP + 1}, s{S_WV}, 10')
    A(f's_add_u32 s{S_TMP}, s{S_TMP}, s{S_TMP + 1}')
    A(f's_sub_u32 s{S_TMP}, s{S_TMP}, s{S_TMP2}')
    A(f's_add_u32 s{S_KM}, s{S_TMP}, {WS_KM:#x}')
    A(f's_mul_i32 s{S_TMP}, s{S_T}, {WS_KM - WS_VM:#x}')
    A(f's_sub_u32 s{S_KM}, s{S_KM}, s{S_TMP}')
    A(f's_sub_u32 s{S_TMASK}, 0, s{S_T}')
    A(f's_mov_b32 s{S_TMASK + 1}, s{S_TMASK}')

    lskip = A.newlabel('L_ann'); lnc = A.newlabel('L_nocal')
    A(f's_cmp_lg_u32 s{S_WV}, 0')
    A.branch(f's_cbranch_scc1 {lskip}')
    A(f's_mov_b32 s{S_ST + 6}, 0')
    if not mega:
        A(f's_or_b32 s{S_TMP}, s{S_T}, s{S_H}')
        A(f's_cmp_lg_u32 s{S_TMP}, 0')
        A.branch(f's_cbranch_scc1 {lnc}')
        A(f'v_mov_b32 v{T0}, {WS_MEMR:#x}')
        A(f'v_mov_b32 v{T1}, {WS_MEMR + 8192:#x}')
        A('s_mov_b64 exec, 1')
        A(f's_mov_b32 s{S_ST + 8}, -1')
        A(f's_mov_b32 s{S_ST + 9}, -1')
        for rep in range(3):
            for c in range(2):
                A(f's_memtime s[{S_ST}:{S_ST + 1}]')
                A('s_waitcnt lgkmcnt(0)')
                A(f'buffer_store_dword v{T0}, v{(T0, T1)[c]}, s[{S_WS}:{S_WS + 3}], 0 offen sc1')
                A.wait_vm0()
                A(f's_memtime s[{S_ST + 2}:{S_ST + 3}]')
                A('s_waitcnt lgkmcnt(0)')
                A(f's_sub_u32 s{S_ST + 4}, s{S_ST + 2}, s{S_ST}')
                A(f's_min_u32 s{S_ST + 8 + c}, s{S_ST + 8 + c}, s{S_ST + 4}')
        A('s_mov_b64 exec, -1')
        A(f's_cmp_lt_u32 s{S_ST + 9}, s{S_ST + 8}')
        A(f's_cselect_b32 s{S_ST + 6}, 0x40000000, 0')
    A.label(lnc)
    A(f's_getreg_b32 s{S_TMP}, hwreg(HW_REG_XCC_ID)')
    A(f's_and_b32 s{S_TMP}, s{S_TMP}, 15')
    A(f's_mul_i32 s{S_TMP + 1}, s{S_TMP}, s{S_TMP}')
    A(f's_lshl_b32 s{S_TMP + 1}, s{S_TMP + 1}, 16')
    A(f's_lshl_b32 s{S_TMP}, s{S_TMP}, 6')
    A(f's_add_u32 s{S_TMP}, s{S_TMP}, s{S_TMP + 1}')
    A(f's_add_u32 s{S_TMP}, s{S_TMP}, 1')
    A(f's_add_u32 s{S_TMP}, s{S_TMP}, s{S_ST + 6}')
    A(f'v_mov_b32 v{T0}, s{S_TMP}')
    A(f's_lshl_b32 s{S_TMP + 1}, s{S_T}, 2')
    A('s_mov_b64 exec, 1')
    A(f'buffer_atomic_add v{T0}, off, s[{S_DBG}:{S_DBG + 3}], s{S_TMP + 1} offset:128 sc1')
    A('s_mov_b64 exec, -1')
    A.flush_hazards()
    A.label(lskip)

    VSRC, VB, VBO = 24, 25, 26
    VOS = 27
    TB = 32
    VS4, VB4 = 12, 16
    for n in range(4):
        A(f'v_and_b32 v{T0}, 1, v{G}')
        A(f'v_or_b32 v{T0}, {2 * n}, v{T0}')
        A(f'v_lshlrev_b32 v{T0}, 1, v{T0}')
        A(f'v_and_b32 v{T1}, 15, v{L}')
        A(f'v_xor_b32 v{T0}, v{T0}, v{T1}')
        A(f'v_lshlrev_b32 v{T0}, 4, v{T0}')
        A(f'v_lshl_add_u32 v{VS4 + n}, v{G}, 13, v{T0}')
    A(f'v_and_b32 v{T0}, 1, v{R_}')
    A(f'v_and_b32 v{T1}, 1, v{G}')
    A(f'v_lshl_add_u32 v{VSRC}, v{T1}, 1, v{T0}')
    A(f'v_lshl_add_u32 v{T0}, v{T1}, 2, v{T0}')
    A(f'v_lshrrev_b32 v{T1}, 1, v{R_}')
    A(f'v_lshl_add_u32 v{VSRC}, v{T1}, 2, v{VSRC}')
    A(f'v_lshl_add_u32 v{T0}, v{T1}, 3, v{T0}')
    A(f'v_lshlrev_b32 v{T0}, 8, v{T0}')
    A(f'v_lshrrev_b32 v{T1}, 1, v{G}')
    A(f'v_mul_u32_u24 v{T1}, {VREG}, v{T1}')
    A(f'v_add_u32 v{T0}, v{T0}, v{T1}')
    A(f'v_and_b32 v{T1}, 1, v{C_}')
    A(f'v_lshl_add_u32 v{T0}, v{T1}, 3, v{T0}')
    A(f'v_lshlrev_b32 v{VSRC}, 1, v{VSRC}')
    A(f'v_lshrrev_b32 v{T1}, 1, v{C_}')
    A(f's_lshl_b32 s{S_TMP}, s{S_WV}, 2')
    A(f'v_or_b32 v{T1}, s{S_TMP}, v{T1}')
    A(f'v_xor_b32 v{T1}, v{T1}, v{VSRC}')
    A(f'v_lshl_add_u32 v{VB4}, v{T1}, 4, v{T0}')
    A(f'v_xor_b32 v{VB4 + 1}, 32, v{VB4}')
    A(f'v_add_u32 v{VB4 + 2}, {2 * VREG}, v{VB4}')
    A(f'v_add_u32 v{VB4 + 3}, {2 * VREG}, v{VB4 + 1}')
    A(f'v_lshrrev_b32 v{T0}, 1, v{G}')
    A(f'v_lshlrev_b32 v{T0}, 4, v{T0}')
    A(f'v_and_b32 v{T1}, 1, v{G}')
    A(f'v_lshl_add_u32 v{T0}, v{T1}, 2, v{T0}')
    A(f'v_lshrrev_b32 v{T1}, 1, v{R_}')
    A(f'v_lshl_add_u32 v{T0}, v{T1}, 3, v{T0}')
    A(f'v_and_b32 v{T1}, 1, v{R_}')
    A(f'v_add_u32 v{T0}, v{T1}, v{T0}')
    A(f'v_lshlrev_b32 v{T1}, 6, v{T0}')
    A(f'v_lshl_add_u32 v{T1}, v{C_}, 3, v{T1}')
    A(f'v_add_u32 v{VB}, s{S_TMP2}, v{T1}')
    A(f'v_mul_u32_u24 v{T0}, 160, v{T0}')
    A(f'v_lshl_add_u32 v{T0}, v{C_}, 3, v{T0}')
    A(f'v_add_u32 v{VBO}, s{S_TMP2}, v{T0}')
    for n in range(5):
        A(f'v_add_u32 v{T0}, {64 * n}, v{L}')
        A(f'v_mul_u32_u24 v{T1}, 6554, v{T0}')
        A(f'v_lshrrev_b32 v{T1}, 16, v{T1}')
        A(f'v_mul_u32_u24 v{VOS + n}, 10, v{T1}')
        A(f'v_sub_u32 v{T0}, v{T0}, v{VOS + n}')
        A(f'v_mul_u32_u24 v{T1}, 1280, v{T1}')
        A(f'v_lshl_add_u32 v{VOS + n}, v{T0}, 4, v{T1}')

    S_CB, S_R0 = S_ST + 10, S_ST + 11
    S_SO = S_ST + 12
    S_PQ, S_PK, S_PV, S_PO = S_ST + 14, S_ST + 16, S_ST + 18, S_ST + 20
    A(f's_load_dwordx2 s[{S_PQ}:{S_PQ + 1}], s[0:1], {KA_WQ}')
    A(f's_load_dwordx2 s[{S_PK}:{S_PK + 1}], s[0:1], {KA_WK}')
    A(f's_load_dwordx2 s[{S_PV}:{S_PV + 1}], s[0:1], {KA_WV}')
    A(f's_load_dwordx2 s[{S_PO}:{S_PO + 1}], s[0:1], {KA_WO}')
    A(f's_lshl_b32 s{S_CB}, s{S_H}, 8')
    A(f's_lshl_b32 s{S_TMP}, s{S_WV}, 17')
    A(f's_add_u32 s{S_CB}, s{S_CB}, s{S_TMP}')
    A('s_waitcnt lgkmcnt(0)')
    WBYTES = 640 * 8192
    cur = [None]

    def use(ptr):
        if cur[0] != ptr:
            A.srd(S_W, ptr, ptr + 1, WBYTES)
            cur[0] = ptr

    def dma_slot(ptr, sig, pos):
        use(ptr)
        A(f's_cmp_eq_u32 s{S_T}, 0')
        A(f's_cselect_b32 s{S_SO}, {sig}, {(sig + 5) % 10}')
        A(f's_lshl_b32 s{S_SO}, s{S_SO}, 19')
        A(f's_add_u32 s{S_SO}, s{S_SO}, s{S_CB}')
        tok = None
        for n in range(4):
            A(f's_add_u32 m0, s{S_TMP2}, {pos * 4096 + n * 1024}')
            tok = A(f'buffer_load_dwordx4 v{VS4 + n}, s[{S_W}:{S_W + 3}], s{S_SO} offen lds')
            if n < 3:
                A(f's_add_u32 s{S_SO}, s{S_SO}, {4 * 8192}')
        return tok

    def read_slot(tok, pos, dests):
        A.wait(tok)
        A('s_barrier')
        for tau in range(2):
            for u in range(4):
                off = pos * 4096 + 2 * (u & 1) * 256
                A(f'ds_read_b64_tr_b16 {wr(dests[tau] + 2 * u, 2)}, v{VB4 + 2 * (u >> 1) + tau} offset:{off}')
        A.wait_lg0()
        A('s_barrier')

    WOS = 0

    def dma_wo():
        use(S_PO)
        A(f's_mul_i32 s{S_SO}, s{S_H}, 163840')
        A(f's_mul_i32 s{S_TMP}, s{S_T}, 640')
        A(f's_add_u32 s{S_SO}, s{S_SO}, s{S_TMP}')
        A(f's_mul_i32 s{S_TMP}, s{S_WV}, 160')
        A(f's_add_u32 s{S_SO}, s{S_SO}, s{S_TMP}')
        tok = []
        for blk in range(4):
            for n in range(5):
                A(f's_add_u32 m0, s{S_TMP2}, {WOS + (blk * 5 + n) * 1024}')
                t = A(f'buffer_load_dwordx4 v{VOS + n}, s[{S_W}:{S_W + 3}], s{S_SO} offen lds')
            tok.append(t)
            if blk < 3:
                A(f's_add_u32 s{S_SO}, s{S_SO}, {32 * 1280}')
        return tok

    def put_block(reg, blk):
        for hf in range(2):
            A(f'ds_write_b128 v{V_L16}, v[{reg + 4 * hf}:{reg + 4 * hf + 3}] offset:{blk * 2048 + hf * 1024}')

    park = {b: TB + 8 * (BLK_OF[b] - 10) for b in LDS_BLOCKS[10:]}

    def dest_of(b):
        return REG_OF[b] if b in REG_OF else park[b]

    A(f's_load_dwordx2 s[{S_SO}:{S_SO + 1}], s[0:1], {KA_MEM0}')
    A('s_waitcnt lgkmcnt(0)')
    A.srd(S_W, S_SO, S_SO + 1, 8 * 1280)
    m0t = []
    for j in range(3):
        A(f'v_add_u32 v{T0}, {64 * j}, v{L}')
        A(f'v_min_u32 v{T0}, 159, v{T0}')
        A(f's_mul_i32 s{S_TMP}, s{S_WV}, 160')
        A(f'v_add_u32 v{T0}, s{S_TMP}, v{T0}')
        A(f'v_lshrrev_b32 v{T1}, 3, v{T0}')
        A(f's_mul_i32 s{S_TMP + 1}, s{S_T}, 40')
        A(f'v_add_u32 v{T1}, s{S_TMP + 1}, v{T1}')
        A(f'v_subrev_u32 v25, 80, v{T1}')
        A(f'v_min_u32 v{T1}, v{T1}, v25')
        A(f'v_lshlrev_b32 v{T1}, 4, v{T1}')
        A(f'v_and_b32 v25, 7, v{T0}')
        A(f'v_mul_u32_u24 v25, 1280, v25')
        A(f'v_add_u32 v{T1}, v{T1}, v25')
        A(f'v_lshlrev_b32 v{T0}, 4, v{T0}')
        A(f'v_add_u32 v{72 + j}, {MEMB}, v{T0}')
        m0t.append(A(f'buffer_load_dwordx4 v[{76 + 4 * j}:{79 + 4 * j}], v{T1}, s[{S_W}:{S_W + 3}], 0 offen'))

    ptrs = {'q': S_PQ, 'k': S_PK, 'v': S_PV}
    stream = [('q', x) for x in range(10)] + [('k', x) for x in range(10)] + [('v', x) for x in range(5, 10)]
    tk = {}
    for i in range(8):
        tk[i] = dma_slot(ptrs[stream[i][0]], stream[i][1], i % 8)
    A.wait(m0t[-1])
    for j in range(3):
        A(f'ds_write_b128 v{72 + j}, v[{76 + 4 * j}:{79 + 4 * j}]')
    pos_of = {i: i % 8 for i in range(24)}
    pos_of[24] = 5
    tko = None
    for i in range(25):
        m, sig = stream[i]
        read_slot(tk[i], pos_of[i], [dest_of((m, sig, 0)), dest_of((m, sig, 1))])
        A.wait_lg0()
        if i + 8 < 24:
            tk[i + 8] = dma_slot(ptrs[stream[i + 8][0]], stream[i + 8][1], i % 8)
        if i == 20:
            tko = dma_wo()
        if i == 21:
            tk[24] = dma_slot(S_PV, stream[24][1], 5)
    for k2 in range(2):
        A.wait(tko[2 * k2 + 1])
        for tau in range(5):
            d = dest_of(('o', k2, tau))
            for u in range(4):
                off = WOS + (64 * k2 + 32 * (u >> 1) + 2 * (u & 1)) * 160 + tau * 32
                A(f'ds_read_b64_tr_b16 {wr(d + 2 * u, 2)}, v{VBO} offset:{off}')
    A.wait_lg0()
    tv = {sig: dma_slot(S_PV, sig, sig) for sig in range(5)}
    for b in LDS_BLOCKS[10:]:
        put_block(park[b], BLK_OF[b])
    A.wait_lg0()
    for sig in range(5):
        read_slot(tv[sig], sig, [TB, TB + 8])
        A.wait_lg0()
        put_block(TB, 2 * sig); put_block(TB + 8, 2 * sig + 1)
        A.wait_lg0()

    if coarse:
        A('s_memrealtime s[82:83]')
        A('s_waitcnt lgkmcnt(0)')
        A('s_mov_b32 s85, s82')
    rebuild()
    lp = A.newlabel('L_mode')
    ld = A.newlabel('L_mode_done')
    A(f'v_lshlrev_b32 v{T0}, 2, v{L}')
    A.flush_hazards()
    A.label(lp)
    A(f'buffer_load_dword v24, v{T0}, s[{S_DBG}:{S_DBG + 3}], 0 offen sc1')
    A.wait_vm0()
    A(f'v_readlane_b32 s{S_ST}, v24, 32')
    A(f'v_readlane_b32 s{S_ST + 1}, v24, 33')
    A(f's_and_b32 s{S_TMP}, s{S_ST}, s{S_ST + 1}')
    A(f's_bfe_u32 s{S_TMP}, s{S_TMP}, 0x10005')
    if mega:
        A(f'v_readlane_b32 s{S_TMP + 1}, v24, 7')
        A(f's_lshr_b32 s{S_TMP + 1}, s{S_TMP + 1}, 7')
        A(f's_and_b32 s{S_TMP}, s{S_TMP}, s{S_TMP + 1}')
        A(f'v_readlane_b32 s{S_TMP + 1}, v24, 40')
        A(f's_lshr_b32 s{S_TMP + 1}, s{S_TMP + 1}, 6')
        A(f's_and_b32 s{S_TMP}, s{S_TMP}, s{S_TMP + 1}')
    A(f's_cmp_eq_u32 s{S_TMP}, 1')
    A.branch(f's_cbranch_scc1 {ld}')
    A('s_sleep 4')
    A(f's_add_u32 s{S_SPIN}, s{S_SPIN}, 1')
    A(f's_cmp_lt_u32 s{S_SPIN}, {SPIN_LIMIT}')
    A.branch(f's_cbranch_scc1 {lp}')
    A.branch(f's_branch {abort_label}')
    A.label(ld)
    A(f's_mov_b32 s{S_FAST}, {0 if force_safe else 1}')
    for t_ in range(2):
        A(f's_bfe_u32 s{S_TMP}, s{S_ST + t_}, 0xa0006')
        A(f's_mul_i32 s{S_TMP}, s{S_TMP}, s{S_TMP}')
        A(f's_bfe_u32 s{S_TMP + 1}, s{S_ST + t_}, 0xe0010')
        A(f's_lshl_b32 s{S_TMP + 1}, s{S_TMP + 1}, 5')
        A(f's_cmp_eq_u32 s{S_TMP}, s{S_TMP + 1}')
        A(f's_cselect_b32 s{S_FAST}, s{S_FAST}, 0')
    A(f's_bfe_u32 s{S_TMP}, s{S_ST}, 0x1001e')
    A(f's_lshl_b32 s{S_TMP}, s{S_TMP}, 13')
    A(f's_add_u32 s{S_PREM}, s{S_PREM}, s{S_TMP}')
    A(f's_add_u32 s{S_PUBR}, s{S_PUBR}, s{S_TMP}')
    if mega:
        for i_ in range(4):
            A(f'v_readlane_b32 s{S_ST + i_}, v24, {36 + i_}')
        A(f's_cmp_eq_u32 s{S_T}, 0')
        A(f's_cselect_b64 s[{S_TABW}:{S_TABW + 1}], s[{S_ST}:{S_ST + 1}], s[{S_ST + 2}:{S_ST + 3}]')
        A(f's_cselect_b64 s[{S_TABR}:{S_TABR + 1}], s[{S_ST + 2}:{S_ST + 3}], s[{S_ST}:{S_ST + 1}]')
    else:
        A(f's_mov_b64 s[{S_TABW}:{S_TABW + 1}], 0')
        A(f's_mov_b64 s[{S_TABR}:{S_TABR + 1}], 0')
    A(f's_mov_b32 s{S_PREM0}, s{S_PREM}')
    A(f's_mov_b32 s{S_PUBR0}, s{S_PUBR}')

    def next_pages():
        A(f's_lshr_b64 s[{S_TABW}:{S_TABW + 1}], s[{S_TABW}:{S_TABW + 1}], 1')
        A(f's_lshr_b64 s[{S_TABR}:{S_TABR + 1}], s[{S_TABR}:{S_TABR + 1}], 1')
        A(f's_add_u32 s{S_PREM0}, s{S_PREM0}, 32768')
        A(f's_and_b32 s{S_TMP}, s{S_TABR}, 1')
        A(f's_lshl_b32 s{S_TMP}, s{S_TMP}, 13')
        A(f's_add_u32 s{S_PREM}, s{S_PREM0}, s{S_TMP}')
        A(f's_and_b32 s{S_TMP}, s{S_TABW}, 1')
        A(f's_lshl_b32 s{S_TMP}, s{S_TMP}, 13')
        A(f's_add_u32 s{S_PUBR}, s{S_PUBR0}, s{S_TMP}')
        A(f's_add_u32 s{S_PUBR0}, s{S_PUBR0}, 32768')

    WS = f's[{S_WS}:{S_WS + 3}]'

    def issue_kx_vx():
        A(f's_lshl_b32 s{S_TMP}, s{S_WV}, 11')
        A(f's_add_u32 m0, s{S_TMP}, {KXB}')
        for n in range(2):
            A(f'buffer_load_dwordx4 v{V_L16}, {WS}, s{S_KX} offen offset:{n * 1024} sc1 lds')
        if 'nokvt' not in dbg:
            A(f's_add_u32 s{S_KX}, s{S_KX}, {32 * 8192}')

    deferred = []

    def kv_wait(need_plus):
        if not mega:
            return
        lp = A.newlabel('L_kv'); ls = A.newlabel('L_kvs')
        A.label(lp)
        A(f's_add_u32 s{S_TMP}, s{S_STEP}, {need_plus}')
        A(f's_cmp_ge_u32 s{S_TMP}, s{S_RDY}')
        A(f's_cbranch_scc1 {ls}')

        def slow():
            A.label(ls)
            A(f'v_lshlrev_b32 v{T0}, 9, v{L}')
            A(f'buffer_load_dwordx2 v[{T1}:{T0}], v{T0}, {WS}, s{S_FKV} offen sc1')
            A('s_waitcnt vmcnt(0)')
            A(f'v_and_b32 v{T1}, v{T1}, v{T0}')
            A(f'v_cmp_eq_u32 vcc, 1, v{T1}')
            A(f's_ff0_i32_b64 s{S_RDY}, vcc')
            A(f's_min_u32 s{S_RDY}, s{S_RDY}, 65')
            A(f's_add_u32 s{S_SPIN}, s{S_SPIN}, 1')
            A(f's_cmp_lt_u32 s{S_SPIN}, {SPIN_LIMIT}')
            A(f's_cbranch_scc1 {lp}')
            A(f's_branch {abort_label}')
        deferred.append(slow)

    def m_flag(tmp=None):
        if not mega or 'noflag' in dbg:
            return
        le = A.newlabel('L_mf')
        A(f's_cmp_lg_u32 s{S_WV}, 3')
        A(f's_cbranch_scc1 {le}')
        A(f'v_mov_b32 v{tmp or T0}, 1')
        A('s_mov_b64 exec, 1')
        A(f'buffer_store_dword v{tmp or T0}, off, {WS}, s{S_FL} sc1')
        A('s_mov_b64 exec, -1')
        A.label(le)
        A(f's_add_u32 s{S_FL}, s{S_FL}, 1024')

    if mega:
        A(f's_lshl_b32 s{S_TMP}, s{S_H}, 4')
        A(f's_add_u32 s{S_FKV}, s{S_TMP}, {F_P:#x}')
        A(f's_mov_b32 s{S_RDY}, 0')
        A(f's_lshl_b32 s{S_TMP}, s{S_H}, 5')
        A(f's_lshl_b32 s{S_TMP + 1}, s{S_T}, 2')
        A(f's_add_u32 s{S_FL}, s{S_TMP}, s{S_TMP + 1}')
        A(f's_add_u32 s{S_FL}, s{S_FL}, {F_M - 1024:#x}')
    A(f's_mov_b32 s{S_STEP}, 0')

    def touch_prep():
        A(f's_add_u32 s{S_TA}, s{S_PLOC}, {MEMB + 10240}')
        A(f's_bfe_u32 s{S_TMP}, s{S_TABR}, 0x10001')
        A(f's_lshl_b32 s{S_TMP}, s{S_TMP}, 13')
        A(f's_add_u32 s{S_TMP}, s{S_TMP}, s{S_PREM0}')
        A(f's_add_u32 s{S_TMP}, s{S_TMP}, {MEMB + 32768}')
        A(f's_cmp_eq_u32 s{S_WV}, 1')
        A(f's_cselect_b32 s{S_TA}, s{S_TMP}, s{S_TA}')
        A(f's_add_u32 s{S_TMP}, s{S_KX}, {2 * VREG - 2 * 2048}')
        A(f's_cmp_eq_u32 s{S_WV}, 2')
        A(f's_cselect_b32 s{S_TA}, s{S_TMP}, s{S_TA}')
        A(f's_add_u32 s{S_TMP}, s{S_KX}, {3 * VREG - 3 * 2048 + WS_VX - WS_KX:#x}')
        A(f's_cmp_eq_u32 s{S_WV}, 3')
        A(f's_cselect_b32 s{S_TA}, s{S_TMP}, s{S_TA}')
        A(f's_cmp_lt_u32 s{S_WV}, 2')
        A(f's_cselect_b32 s{S_TMP}, 39, 63')
        A(f'v_min_u32 v{V_T2}, s{S_TMP}, v{L}')
        A(f'v_lshlrev_b32 v{V_T2}, 7, v{V_T2}')

    def touch():
        A(f'buffer_load_dword v{V_T2}, v{V_T2}, {WS}, s{S_TA} offen sc1')

    def kv_refresh(after):
        if not mega:
            return
        le = A.newlabel('L_kr')
        A(f's_add_u32 s{S_TMP}, s{S_STEP}, 6')
        A(f's_min_u32 s{S_TMP}, s{S_TMP}, 65')
        A(f's_cmp_ge_u32 s{S_RDY}, s{S_TMP}')
        A(f's_cbranch_scc1 {le}')
        A(f'v_lshlrev_b32 v{T0}, 9, v{L}')
        A(f'buffer_load_dwordx2 v[{T1}:{T0}], v{T0}, {WS}, s{S_FKV} offen sc1')
        A('s_waitcnt vmcnt(0)')
        A(f'v_and_b32 v{T1}, v{T1}, v{T0}')
        A(f'v_cmp_eq_u32 vcc, 1, v{T1}')
        A(f's_ff0_i32_b64 s{S_RDY}, vcc')
        A(f's_min_u32 s{S_RDY}, s{S_RDY}, 65')
        A(f's_branch {after}')
        A.label(le)

    kv_wait(0)
    if mega:
        assert kxlate
        A(f's_cmp_eq_u32 s{S_WV}, 2')
        A(f's_cselect_b32 s{S_RDY}, s{S_RDY}, 65')
    issue_kx_vx()
    touch_prep()
    A(f's_mov_b32 s{S_STEP}, 0')
    A.wait_all()
    if stamps:
        A(f's_lshl_b32 s{S_TMP}, s{S_H}, 3')
        A(f's_lshl_b32 s{S_TMP + 1}, s{S_T}, 2')
        A(f's_add_u32 s{S_TMP}, s{S_TMP}, s{S_TMP + 1}')
        A(f's_add_u32 s{S_TMP}, s{S_TMP}, s{S_WV}')
        A(f's_mul_i32 s{S_STO}, s{S_TMP}, {64 * 64}')
        A(f's_add_u32 s{S_STO}, s{S_STO}, {WS_STAMP:#x}')
    if coarse:
        A('s_memrealtime s[88:89]')
        A('s_memtime s[90:91]')
        A('s_waitcnt lgkmcnt(0)')
    top = A.newlabel('L_step')
    done = A.newlabel('L_rec_done')
    A.flush_hazards()
    if align is not None:
        A.raw('.p2align 6')
        for _ in range(align):
            A('s_nop 0')
    A.label(top)
    A.forget()

    def fifth(base):
        return 15 if base == 16 else base + 4

    def poll_issue(soff, base):
        A(f'buffer_load_dwordx4 v[{base}:{base + 3}], v{V_P4}, {WS}, s{soff} offen sc1')
        A(f'buffer_load_dword v{fifth(base)}, v{V_P1}, {WS}, s{soff} offen sc1')

    def poll_loop(soff, bases, half, preissued, gap=0):
        k = len(bases)
        lp = A.newlabel('L_poll'); ld = A.newlabel('L_polld')
        if not preissued:
            for j, b in enumerate(bases):
                poll_issue(soff, b)
                if gap and j < k - 1:
                    A(f's_nop {gap}')
        A.label(lp)
        for j, base in enumerate(bases):
            A(f's_waitcnt vmcnt({2 * (k - 1)})')
            A(f'ds_write_b128 v{V_P4}, v[{base}:{base + 3}] offset:{half * 5120}')
            A(f'ds_write_b32 v{V_P1}, v{fifth(base)} offset:{half * 5120}')
            A(f'v_max3_u32 v{T0}, v{base}, v{base + 1}, v{base + 2}')
            A(f'v_max3_u32 v{T0}, v{T0}, v{base + 3}, v{fifth(base)}')
            A(f'v_cmp_eq_u32 vcc, -1, v{T0}')
            A(f's_cbranch_vccz {ld}')
            poll_issue(soff, base)
        A(f's_add_u32 s{S_SPIN}, s{S_SPIN}, 1')
        A(f's_cmp_lt_u32 s{S_SPIN}, {SPIN_LIMIT}')
        A(f's_cbranch_scc1 {lp}')
        A(f's_branch {abort_label}')
        A.label(ld)

    def a_read(sig, slot):
        return A(f'ds_read_b128 v[{AR + 4 * slot}:{AR + 4 * slot + 3}], v{V_KX} offset:{sig * 1024}')

    def smf(d, a, b):
        A(f'v_smfmac_f32_16x16x64_bf16 v[{d}:{d + 3}], v[{a}:{a + 3}], {wr(b, 8)}, v{V_IDX}')

    def SL(i):
        return 20 + 4 * i

    def blk_load(blk, b):
        A(f'ds_read_b128 v[{b}:{b + 3}], v{V_L16} offset:{blk * 2048}')
        return A(f'ds_read_b128 v[{b + 4}:{b + 7}], v{V_L16} offset:{blk * 2048 + 1024}')

    def zero(base, n):
        for r in range(base, base + n, 2):
            A(f'v_mov_b64 v[{r}:{r + 1}], 0')

    def poll_check(base, lwin):
        A(f'v_max3_u32 v{T0}, v{base}, v{base + 1}, v{base + 2}')
        A(f'v_max3_u32 v{T0}, v{T0}, v{base + 3}, v{fifth(base)}')
        A(f'v_cmp_eq_u32 vcc, -1, v{T0}')
        A(f's_cbranch_vccz {lwin}')

    def poll_put(base, half):
        A(f'ds_write_b128 v{V_P4}, v[{base}:{base + 3}] offset:{half * 5120}')
        A(f'ds_write_b32 v{V_P1}, v{fifth(base)} offset:{half * 5120}')

    stamp(0)
    zero(Q0, 24)
    lseq = [(m, sig, tau) for sig in range(5) for (m, tau) in (('v', 0), ('q', 0), ('k', 1), ('q', 1), ('v', 1), ('k', 0))]
    lfed = [b for b in lseq if b in BLK_OF]
    LR = [64, 72, 56]
    wt = {}; wreg_ = {}
    nl = [0]
    pend = []

    def half(blk, reg, hf):
        return A(f'ds_read_b128 v[{reg + 4 * hf}:{reg + 4 * hf + 3}], v{V_L16} offset:{blk * 2048 + hf * 1024}')

    def flush_pend():
        while pend:
            tab, b, reg = pend.pop(0)
            tab[b] = half(BLK_OF[b], reg, 1)

    def lnext(reg, now=False):
        if nl[0] < len(lfed):
            if reg == LR[2] and nl[0] >= len(lfed) - 3:
                return
            b = lfed[nl[0]]; nl[0] += 1
            half(BLK_OF[b], reg, 0); wreg_[b] = reg
            pend.append((wt, b, reg))
            if now:
                flush_pend()

    for r_ in LR:
        lnext(r_, True)
    l_s0a = A.newlabel('L_s0a')
    A(f's_cmp_eq_u32 s{S_STEP}, 0' if cut is None else 's_cmp_eq_u32 0, 0')
    A(f's_cbranch_scc1 {l_s0a}')
    poll_loop(S_PLOC, [16, VXR], 0, False, gap=bgap)
    A.label(l_s0a)
    if rp[0] < 0:
        poll_issue(S_PREM, 80)
    A.wait_lg0()
    A('s_barrier')
    stamp(1)
    at = {}

    ACC = {'q': Q0, 'k': K0, 'v': VV0}

    def local_slot(sig, extra=(), lo=0, hi=6):
        a = AR + 4 * (sig % 3)
        extra = list(extra)
        first = lseq[6 * sig + lo]
        A.wait(at[sig], wt.get(first))
        for b in lseq[6 * sig + lo:6 * sig + hi]:
            m, _, tau = b
            if extra and b != first:
                extra.pop(0)()
            if b in BLK_OF:
                A.wait(wt[b])
                smf(ACC[m] + 4 * tau, a, wreg_[b])
                flush_pend()
                lnext(wreg_[b])
            else:
                smf(ACC[m] + 4 * tau, a, REG_OF[b])
                flush_pend()
        for f_ in extra:
            f_()
        if sig + 3 < 5:
            at[sig + 3] = a_read(sig + 3, sig % 3)

    RS = [80, 16]
    for j in range(3):
        at[j] = a_read(j, j)
    if mega:
        lf = A.newlabel('L_lastf'); lb = A.newlabel('L_lastb')
        A(f's_cmp_eq_u32 s{S_STEP}, {nsteps - 1}')
        A(f's_cbranch_scc1 {lf}')
        A.label(lb)

        def lastflag():
            A.label(lf)
            m_flag()
            A(f's_branch {lb}')
        deferred.append(lastflag)
    for sig in range(4):
        if sig == rp[0]:
            poll_issue(S_PREM, RS[0])
        if sig == rp[1]:
            poll_issue(S_PREM, RS[1])
        local_slot(sig)
        if sig == 2 and early:
            hs_ = [h_ for h_ in A.hist if h_.kind in ('mfma', 'valu')]
            lne = A.newlabel('L_ne')
            A(f's_mov_b32 s{S_EARLY}, s{S_STEP}')
            A('s_waitcnt vmcnt(2)')
            base = RS[0]
            A(f'v_max3_u32 v{T0}, v{base}, v{base + 1}, v{base + 2}')
            A(f'v_max3_u32 v{T0}, v{T0}, v{base + 3}, v{fifth(base)}')
            A(f'v_cmp_eq_u32 vcc, -1, v{T0}')
            lre = A.newlabel('L_re')
            A(f's_cbranch_vccnz {lre}')
            A(f's_cmp_eq_u32 s{S_STEP}, 0')
            A(f's_cbranch_scc1 {lne}')
            li, ld_ = A.lg_issued, A.lg_done
            poll_put(base, 1)
            A.lg_issued, A.lg_done = li, ld_
            A(f's_mov_b32 s{S_EARLY}, 0')
            A.label(lne)

            def reissue(lre=lre, lne=lne, base=base):
                A.label(lre)
                poll_issue(S_PREM, base)
                A(f's_branch {lne}')
            deferred.append(reissue)
            A.hist = hs_
    if s4:
        local_slot(4, hi=s4)
    stamp(2)
    rslot = [0, 2, 3, 4, 1]
    l_s0 = A.newlabel('L_rs0')
    if s4b:
        A.wait_lg0()
    A(f's_cmp_eq_u32 s{S_EARLY if early else S_STEP}, 0' if cut is None else 's_cmp_eq_u32 0, 0')
    A(f's_cbranch_scc1 {l_s0}')
    hs_ = [h_ for h_ in A.hist if h_.kind in ('mfma', 'valu')]
    for b_ in RS[2:]:
        poll_issue(S_PREM, b_)
    poll_loop(S_PREM, RS[::-1] if early else RS, 1, True)
    A.label(l_s0)
    A.hist = hs_
    if s4b:
        for k_ in list(wt):
            wt[k_] = None
        at[4] = None
        local_slot(4, hi=s4b)
    A.wait_lg0()
    A('s_barrier')
    def ar_(j):
        def f():
            at[5 + j] = a_read(5 + j, rslot[j])
        return f
    ar_(0)()
    local_slot(4, [ar_(1), ar_(2), ar_(3),
                   lambda: A(f'buffer_load_dwordx4 v[{VX0}:{VX0 + 3}], v{V_L16}, {WS}, s{S_VX} offen sc1'),
                   lambda: A(f'buffer_load_dwordx4 v[{VX1}:{VX1 + 3}], v{V_L16}, {WS}, s{S_VX} offen offset:1024 sc1')], lo=s4 + s4b)
    assert nl[0] == len(lfed) and not pend
    at[9] = a_read(9, rslot[4])
    stamp(3)
    RA = [AR + 4 * rslot[j] for j in range(5)]

    def halfsum_ops(x, y, off):
        ops = []
        for r in range(4):
            ops.append(f'v_permlane32_swap_b32 v{x + r}, v{y + r}')
        for r in range(0, 4, 2):
            ops.append(f'v_pk_add_f32 v[{x + r}:{x + r + 1}], v[{x + r}:{x + r + 1}], v[{y + r}:{y + r + 1}]')
        ops.append(f'v_cvt_pk_bf16_f32 v{y}, v{x}, v{x + 1}')
        ops.append(f'v_cvt_pk_bf16_f32 v{y + 1}, v{x + 2}, v{x + 3}')
        if off is not None:
            ops.append(f'ds_write_b64 v{V_QKW}, v[{y}:{y + 1}] offset:{off}')
        return ops

    VM, VMA, VMB = VV1, VV0, VV0 + 2
    def pub_read(tmp):
        t = None
        A(f'v_add_u32 v{tmp + 3}, s{S_W512}, v{V_QKR}')
        for rho in range(2):
            t = A(f'ds_read_b64_tr_b16 v[{tmp + 2 * rho}:{tmp + 2 * rho + 1}], v{tmp + 3} offset:{2048 + rho * 256}')
        return t

    def pub_sel(tmp):
        return [f'v_cndmask_b32 v{tmp + r}, v{tmp + r}, v{VM + r}, s[{S_TMASK}:{S_TMASK + 1}]' for r in range(2)]

    def pub_store(tmp):
        if 'nopub' not in dbg:
            A(f'buffer_store_dwordx4 v[{tmp}:{tmp + 3}], v{V_L16}, {WS}, s{S_KM} offen sc1' + (' nt' if 'pubnt' in dbg else ''))

    QFR = [SL(0), SL(1), SL(11), SL(12)]
    S0, S1 = SL(15), SL(16)
    qt = {}; xt = {}; xreg = {}; last = [None]

    def xread(i, b):
        kap, kt_ = i >> 1, i & 1
        xt[i] = A(f'ds_read_b128 v[{b}:{b + 3}], v{V_KX} offset:{KXB - MEMB + (kt_ * 4 + kap) * 1024}')
        xreg[i] = b

    def trread(b, off):
        t = None
        for rho in range(2):
            t = A(f'ds_read_b64_tr_b16 v[{b + 2 * rho}:{b + 2 * rho + 1}], v{V_QKR} offset:{off + rho * 256}')
        return t

    def take(fl, n):
        for _ in range(n):
            if fl:
                t = A(fl.pop(0))
                if t:
                    last[0] = t

    kfed = [b for b in LDS_BLOCKS if b[0] == 'k' and b[1] >= 5]
    kft = {}; kfr = {}

    def kf_load(reg):
        if kfed:
            b = kfed.pop(0)
            half(BLK_OF[b], reg, 0); kfr[b] = reg
            pend.append((kft, b, reg))

    def ksm(i):
        b = ('k', 5 + (i >> 1), i & 1)
        if b in BLK_OF:
            A.wait(kft[b])
            smf(K0 + 4 * (i & 1), RA[i >> 1], kfr[b])
            flush_pend()
            kf_load(kfr[b])
        else:
            smf(K0 + 4 * (i & 1), RA[i >> 1], REG_OF[b])
            flush_pend()

    def vsm(n):
        smf(VV0 + 4 * (n & 1), RA[(n - 10) // 2], REG_OF['v', n >> 1, n & 1])

    def xsm(i):
        kap, kt_ = i >> 1, i & 1
        acc = (S0, S1)[kt_]
        A.wait(qt[kap], xt[i])
        c = '0' if kap == 0 else f'v[{acc}:{acc + 3}]'
        A(f'v_mfma_f32_16x16x32_bf16 v[{acc}:{acc + 3}], v[{xreg[i]}:{xreg[i] + 3}], v[{QFR[kap]}:{QFR[kap] + 3}], {c}')

    for n_, j in enumerate((0, 1, 2, 3, 4)):
        A.wait(at[8] if j == 0 else at[5 + j])
        smf(Q0, RA[j], REG_OF['q', 5 + j, 0])
        if n_ == 0:
            xread(0, SL(13))
        if n_ == 1:
            touch()
        if n_ == 2:
            kf_load(SL(11))
        if n_ == 3:
            A('s_waitcnt vmcnt(3)')
            kf_load(SL(15))
        smf(Q1, RA[j], REG_OF['q', 5 + j, 1])
        flush_pend()
        if n_ == 0:
            xread(1, SL(14))
    fill = halfsum_ops(Q0, Q1, 0)
    ksm(0); ksm(1); ksm(2); ksm(3)
    for i in range(4, 8):
        take(fill, 1); ksm(i)
    take(fill, 3); ksm(8); take(fill, 2); assert not fill
    qw = last[0]
    ksm(9)
    stamp(4)
    vsm(10); vsm(11)
    xread(2, RA[0])
    vsm(12)
    A.wait(qw)
    A('s_barrier')
    qt[0] = trread(QFR[0], 0)
    fill = halfsum_ops(K0, K1, 2048)
    vsm(13); take(fill, 2)
    xread(3, RA[1])
    vsm(14); take(fill, 2)
    vsm(15); take(fill, 3)
    xsm(0); take(fill, 2); assert not fill
    kw = last[0]
    qt[1] = trread(QFR[1], 512)
    xsm(1); xread(4, xreg[0])
    vsm(16); xread(5, xreg[1])
    qt[2] = trread(QFR[2], 1024)
    vsm(17)
    qt[3] = trread(QFR[3], 1536)
    xsm(2); xread(6, xreg[2])
    xsm(3); xread(7, xreg[3])
    xsm(4)
    if kxlate:
        A.wait(kw)
    else:
        A.wait_lg0()
    A('s_barrier')
    stamp(5)
    KF = [SL(2), SL(3), RA[2], RA[3]]
    kt = {}
    kt[0] = trread(KF[0], 2048)
    kt[1] = trread(KF[1], 2048 + 512)
    xsm(5)
    kt[2] = trread(KF[2], 2048 + 1024)
    xsm(6)
    kt[3] = trread(KF[3], 2048 + 1536)
    xsm(7)
    PUBT = xreg[4]
    pbt = pub_read(PUBT)
    vsm(18)
    hs_ = [h_ for h_ in A.hist if h_.kind in ('mfma', 'valu')]
    kv_wait(1)
    A.hist = hs_
    if not kxlate:
        issue_kx_vx()
    vsm(19)
    Sm = xreg[6]
    stamp(6)
    VM, VMA, VMB = VV1, VV0, VV0 + 2
    M_, M2 = T1, T0

    def msm(kap):
        b = KF[kap]
        A.wait(qt[kap], kt[kap])
        c = '0' if kap == 0 else f'v[{Sm}:{Sm + 3}]'
        A(f'v_mfma_f32_16x16x32_bf16 v[{Sm}:{Sm + 3}], v[{b}:{b + 3}], v[{QFR[kap]}:{QFR[kap] + 3}], {c}')

    fx = [f'v_max3_f32 v{M_}, v{S0}, v{S0 + 1}, v{S0 + 2}',
          f'v_max3_f32 v{M2}, v{S0 + 3}, v{S1}, v{S1 + 1}',
          f'v_max3_f32 v{M_}, v{M_}, v{S1 + 2}, v{S1 + 3}',
          f'v_max_f32 v{M_}, v{M_}, v{M2}',
          f'v_mov_b32 v{M2}, v{M_}']
    fv = halfsum_ops(VV0, VV1, None)
    for r in range(2):
        fv.append(f'v_cndmask_b32 v{VMA + r}, 0, v{VM + r}, s[{S_MLO}:{S_MLO + 1}]')
        fv.append(f'v_cndmask_b32 v{VMB + r}, v{VM + r}, 0, s[{S_MLO}:{S_MLO + 1}]')
    msm(0); take(fx, 2)
    A('s_waitcnt vmcnt(1)')
    msm(1)
    take(fx, 3); msm(2); take(fv, 1)
    msm(3)
    A(f'v_permlane32_swap_b32 v{M_}, v{M2}')
    A(f'v_max_f32 v{M_}, v{M_}, v{M2}')
    A.wait(pbt)
    take(fv, 7)
    take(pub_sel(PUBT), 2)
    if cut is None:
        A(f's_cmp_eq_u32 s{S_STEP}, {nsteps - 1}')
        A(f's_cbranch_scc1 {done}')
    stamp(7)

    used = {Sm, S0, S1, VV0, VV1}
    free = [SL(i) for i in range(17) if SL(i) not in used]
    P01, PM, O0, O1 = SL(2), SL(3), SL(0), SL(1)
    for x in (P01, PM, O0, O1):
        free.remove(x)
    free.remove(PUBT)
    ONES, LS = free[0], free[1]
    OAS = free[2:7]
    zf = [f'v_mov_b64 v[{r}:{r + 1}], 0' for x in OAS for r in (x, x + 2)]
    A(f'v_max3_f32 v{M_}, v{M_}, v{Sm}, v{Sm + 1}')
    A(f'v_max3_f32 v{M_}, v{M_}, v{Sm + 2}, v{Sm + 3}')
    A(f'v_mov_b32 v{M2}, v{M_}')
    take(fv, 2)
    A(f'v_permlane16_swap_b32 v{M_}, v{M2}')
    A(f'v_max_f32 v{M_}, v{M_}, v{M2}')
    A(f'v_mul_f32 v{M_}, s{S_C}, v{M_}')

    def pkf(x):
        A(f'v_pk_fma_f32 v[{x}:{x + 1}], v[{x}:{x + 1}], s[{S_C - 1}:{S_C}], v[{M_}:{M_ + 1}] op_sel:[0,1,0] op_sel_hi:[1,1,0] neg_lo:[0,0,1] neg_hi:[0,0,1]')
    assert S_C % 2 == 1 and M_ % 2 == 0
    xs = [S0 + r for r in range(4)] + [S1 + r for r in range(4)]
    for j in range(4):
        pkf(xs[2 * j])
    for x in xs:
        A(f'v_exp_f32 v{x}, v{x}')
    pkf(Sm); pkf(Sm + 2)
    for j in range(4):
        A(f'v_cvt_pk_bf16_f32 v{P01 + j}, v{xs[2 * j]}, v{xs[2 * j + 1]}')
    A(f'v_exp_f32 v{Sm}, v{Sm}')
    A(f'v_exp_f32 v{Sm + 1}, v{Sm + 1}')
    A(f'v_mfma_f32_16x16x32_bf16 v[{O0}:{O0 + 3}], v[{VX0}:{VX0 + 3}], v[{P01}:{P01 + 3}], 0')
    pub_store(PUBT)
    A(f'v_exp_f32 v{Sm + 2}, v{Sm + 2}')
    A(f'v_mov_b64 v[{ONES}:{ONES + 1}], s[{S_ONE}:{S_ONE + 1}]')
    A(f'v_mfma_f32_16x16x32_bf16 v[{O1}:{O1 + 3}], v[{VX1}:{VX1 + 3}], v[{P01}:{P01 + 3}], 0')
    A(f'v_exp_f32 v{Sm + 3}, v{Sm + 3}')
    A(f'v_mov_b64 v[{ONES + 2}:{ONES + 3}], s[{S_ONE}:{S_ONE + 1}]')
    A(f'v_cvt_pk_bf16_f32 v{PM}, v{Sm}, v{Sm + 1}')
    A(f'v_cvt_pk_bf16_f32 v{PM + 1}, v{Sm + 2}, v{Sm + 3}')
    A(f'v_mfma_f32_16x16x32_bf16 v[{LS}:{LS + 3}], v[{ONES}:{ONES + 3}], v[{P01}:{P01 + 3}], 0')
    take(fv, 9)
    A(f'v_mov_b64 v[{PM + 2}:{PM + 3}], s[{S_HALF}:{S_HALF + 1}]')
    A(f'v_xor_b32 v{M2}, 32, v{V_OW0}')
    A(f'v_mfma_f32_16x16x16_bf16 v[{LS}:{LS + 3}], v[{PM + 2}:{PM + 3}], v[{PM}:{PM + 1}], v[{LS}:{LS + 3}]')
    take(zf, 2)
    A(f'v_mfma_f32_16x16x16_bf16 v[{O0}:{O0 + 3}], v[{VMA}:{VMA + 1}], v[{PM}:{PM + 1}], v[{O0}:{O0 + 3}]')
    take(zf, 2)
    A(f'v_mfma_f32_16x16x16_bf16 v[{O1}:{O1 + 3}], v[{VMB}:{VMB + 1}], v[{PM}:{PM + 1}], v[{O1}:{O1 + 3}]')
    take(zf, 2)
    A(f'v_rcp_f32 v{M_}, v{LS}')
    take(zf, 9)
    for tau in range(2):
        o = O0 + 4 * tau
        for r in (0, 2):
            A(f'v_pk_mul_f32 v[{o + r}:{o + r + 1}], v[{o + r}:{o + r + 1}], v[{M_}:{M_ + 1}] op_sel_hi:[1,0]')
        A(f'v_cvt_pk_bf16_f32 v{o}, v{o}, v{o + 1}')
        A(f'v_cvt_pk_bf16_f32 v{o + 1}, v{o + 2}, v{o + 3}')
        owt = A(f'ds_write_b64 v{V_OW0 if tau == 0 else M2}, v[{o}:{o + 1}]')
    hs_ = [h_ for h_ in A.hist if h_.kind in ('mfma', 'valu')]
    m_flag(LS)
    A.hist = hs_
    A.wait(owt)
    A('s_barrier')
    stamp(8)
    OF = [O0, O1]
    G0, G1, X4 = P01, PM, ONES

    def post(n):
        x, y = OAS[2 * n], OAS[2 * n + 1]
        ops = [f'v_permlane32_swap_b32 v{x + r}, v{y + r}' for r in range(4)]
        ops += [f'v_pk_add_f32 v[{x + r}:{x + r + 1}], v[{x + r}:{x + r + 1}], v[{y + r}:{y + r + 1}]' for r in (0, 2)]
        ops += [f'v_cvt_pk_bf16_f32 v{G0 + 2 * n}, v{x}, v{x + 1}', f'v_cvt_pk_bf16_f32 v{G0 + 2 * n + 1}, v{x + 2}, v{x + 3}']
        return ops

    lsafe = A.newlabel('L_psafe'); lpe = A.newlabel('L_pend')

    def outproj(sc):
        x, y = OAS[4], X4
        p4 = [f'v_mov_b64 v[{y}:{y + 1}], v[{x}:{x + 1}]', f'v_mov_b64 v[{y + 2}:{y + 3}], v[{x + 2}:{x + 3}]']
        p4 += [f'v_permlane32_swap_b32 v{x + r}, v{y + r}' for r in range(4)]
        p4 += [f'v_pk_add_f32 v[{x + r}:{x + r + 1}], v[{x + r}:{x + r + 1}], v[{y + r}:{y + r + 1}]' for r in (0, 2)]
        p4 += [f'v_cvt_pk_bf16_f32 v{G1}, v{x}, v{x + 1}', f'v_cvt_pk_bf16_f32 v{G1 + 1}, v{x + 2}, v{x + 3}',
               f'v_mov_b64 v[{G1 + 2}:{G1 + 3}], v[{G1}:{G1 + 1}]']
        worder = [(0, 4), (1, 4), (0, 0), (0, 1), (1, 0), (1, 1), (0, 2), (0, 3), (1, 2), (1, 3)]
        nfill = [0, 0, 0, 0, 0, 0, 2, 1, 1, 2]
        pre = [f'v_and_b32 v{T0}, 0x1fff, v{V_PST}',
               f'v_add_u32 v{V_P4}, s{S_W1280}, v{V_KX}', f'v_lshl_add_u32 v{V_P1}, v{L}, 2, s{S_P1B}']
        for i, (k2, tau) in enumerate(worder):
            if i < 2:
                A(f's_waitcnt lgkmcnt({1 - i})')
            smf(OAS[tau], OF[k2], REG_OF['o', k2, tau])
            if i in (1, 5):
                A(f'buffer_load_dwordx4 v{V_L16}, {WS}, s{S_KX} offen offset:{(i // 5) * 1024} sc1 lds')
            elif i >= 2:
                take(pre, 1)
            take(p4, nfill[i])
        take(p4, 20)
        take(post(0), 9)
        A(f'v_permlane16_swap_b32 v{G1}, v{G1 + 2}')
        A(f'v_permlane16_swap_b32 v{G1 + 1}, v{G1 + 3}')
        A(f'v_and_or_b32 v{G1}, v{G1}, -2, s{S_PAR}')
        pp = post(1)
        take(pp, 1)
        A(f'buffer_store_dwordx4 v[{G1}:{G1 + 3}], v{T0}, {WS}, s{S_PS1} offen{sc}')
        take(pp, 9)
        A(f'v_permlane16_swap_b32 v{G0}, v{G0 + 2}')
        A(f'v_permlane16_swap_b32 v{G0 + 1}, v{G0 + 3}')
        A(f'v_and_or_b32 v{G0}, v{G0}, -2, s{S_PAR}')
        A(f'buffer_store_dwordx4 v[{G0}:{G0 + 3}], v{V_PST}, {WS}, s{S_PS0} offen{sc}')

    for k2 in range(2):
        A(f'ds_read_b128 v[{OF[k2]}:{OF[k2] + 3}], v{V_OR} offset:{128 * k2}')
    A(f's_cmp_eq_u32 s{S_FAST}, 0')
    A(f's_cbranch_scc1 {lsafe}')
    saved = list(A.hist)

    def safe_variant():
        A.label(lsafe)
        A.hist = list(saved)
        outproj(' sc1')
        A.branch(f's_branch {lpe}')
    deferred.append(safe_variant)
    outproj('')
    A.lg_done = A.lg_issued
    A.flush_hazards()
    A.label(lpe)
    stamp(9)
    A('s_waitcnt vmcnt(5)')
    A(f's_add_u32 s{S_PLOC}, s{S_PLOC}, 10240')
    A(f's_add_u32 s{S_VX}, s{S_VX}, {32 * 8192}')
    A(f's_add_u32 s{S_KX}, s{S_KX}, {32 * 8192}')
    A(f's_add_u32 s{S_KM}, s{S_KM}, {32 * 4096}')
    next_pages()
    touch_prep()
    lnr = A.newlabel('L_nored'); lnr2 = A.newlabel('L_nored2')
    A(f's_cmp_ge_u32 s{S_RED}, 40')
    A(f's_cbranch_scc1 {lnr2}')
    RBS = [20, 44, 60][:ka]
    SEL = 36
    DD = 80
    lp = A.newlabel('L_pa'); lw = A.newlabel('L_paw')

    def pa_issue(RB):
        for j in range(4):
            A(f'buffer_load_dwordx4 v[{RB + 4 * j}:{RB + 4 * j + 3}], v{V_L16}, {WS}, s{S_PA} offen offset:{1024 * j} sc1')
    rebuild_pub()
    A(f'v_and_b32 v{T0}, 1, v{L}')
    A(f'v_lshlrev_b32 v{T0}, 4, v{T0}')
    A(f'v_mov_b32 v{T1}, 0x3f80')
    A(f'v_lshlrev_b32 v{T0}, v{T0}, v{T1}')
    A(f'v_bfe_u32 v{T1}, v{L}, 1, 2')
    for d in range(4):
        A(f'v_cmp_eq_u32 vcc, {d}, v{T1}')
        A(f'v_cndmask_b32 v{SEL + d}, 0, v{T0}, vcc')
    for j, RB in enumerate(RBS):
        if adelay[j]:
            for _ in range(adelay[j]):
                A('s_nop 15')
        pa_issue(RB)

    def tt(f):
        t = 0
        for a_ in range(2):
            for b_ in range(2):
                for c_ in range(2):
                    if f(a_, b_, c_):
                        t |= 1 << ((a_ << 2) | (b_ << 1) | c_)
        return t
    t1 = tt(lambda a, b, c: (a ^ c) | (b ^ c))
    t2 = tt(lambda a, b, c: (a | b) & c)
    A.flush_hazards()
    A.label(lp)
    for RB in RBS:
        A(f's_waitcnt vmcnt({4 * (ka - 1)})')
        chk = [f'v_bitop3_b32 v{T0}, v{RB}, v{RB + 4}, s{S_PAR} bitop3:{t1:#x}',
               f'v_bitop3_b32 v{T1}, v{RB + 8}, v{RB + 12}, s{S_PAR} bitop3:{t1:#x}',
               f'v_bitop3_b32 v{T0}, v{T0}, v{T1}, 1 bitop3:{t2:#x}',
               f'v_cmp_ne_u32 vcc, 0, v{T0}']
        if spec:
            for j in range(4):
                c = '0' if j == 0 else f'v[{DD}:{DD + 3}]'
                A(f'v_mfma_f32_16x16x32_bf16 v[{DD}:{DD + 3}], v[{RB + 4 * j}:{RB + 4 * j + 3}], v[{SEL}:{SEL + 3}], {c}')
                A(chk[j])
            A(f's_cbranch_vccz {lw}')
        else:
            for j in range(4):
                A(chk[j])
            A(f's_cbranch_vccz {lw}_{RB}')
        pa_issue(RB)
    A(f's_add_u32 s{S_SPIN}, s{S_SPIN}, 1')
    A(f's_cmp_lt_u32 s{S_SPIN}, {SPIN_LIMIT}')
    A(f's_cbranch_scc1 {lp}')
    A(f's_branch {abort_label}')
    if not spec:
        for RB in RBS:
            A.label(f'{lw}_{RB}')
            for j in range(4):
                c = '0' if j == 0 else f'v[{DD}:{DD + 3}]'
                A(f'v_mfma_f32_16x16x32_bf16 v[{DD}:{DD + 3}], v[{RB + 4 * j}:{RB + 4 * j + 3}], v[{SEL}:{SEL + 3}], {c}')
            A(f's_branch {lw}')
    A.label(lw)
    A(f's_cmp_eq_u32 s{S_FAST}, 0')
    A('s_nop 4')
    stamp(10)
    A(f'v_permlane32_swap_b32 v{DD}, v{DD + 2}')
    A(f'v_permlane32_swap_b32 v{DD + 1}, v{DD + 3}')
    A(f's_mov_b64 exec, s[{S_MPB}:{S_MPB + 1}]')
    A(f'v_pk_add_f32 v[{DD}:{DD + 1}], v[{DD}:{DD + 1}], v[{DD + 2}:{DD + 3}]')
    a0 = DD
    A(f'v_cvt_pk_bf16_f32 v{a0}, v{DD}, v{DD + 1}')
    A(f'v_min_u32 v{a0}, -2, v{a0}')
    A(f'buffer_store_dword v{a0}, v{V_PUB}, {WS}, s{S_PUBR} offen sc1')
    lps = A.newlabel('L_pubs'); lpd = A.newlabel('L_pubd')
    A(f's_cbranch_scc1 {lps}')
    A(f'buffer_store_dword v{a0}, v{V_PUB}, {WS}, s{S_PUBL} offen')
    A.label(lpd)

    def pub_safe():
        A.label(lps)
        A(f'buffer_store_dword v{a0}, v{V_PUB}, {WS}, s{S_PUBL} offen sc1')
        A(f's_branch {lpd}')
    deferred.append(pub_safe)
    A('s_mov_b64 exec, -1')
    A('s_waitcnt vmcnt(2)')
    A.branch(f's_branch {lnr}')
    A.label(lnr2)
    kv_refresh(lnr)
    if backoff:
        A(f's_sleep {backoff}')
    A.label(lnr)
    stamp(11)
    if stamps:
        A('s_waitcnt lgkmcnt(0)')
        for i in range(12):
            A(f'v_writelane_b32 v{T0}, s{S_ST + 2 * i}, {i}')
        A(f'v_lshlrev_b32 v{T1}, 2, v{L}')
        A('s_mov_b64 exec, 0xfff')
        A(f'buffer_store_dword v{T0}, v{T1}, {WS}, s{S_STO} offen')
        A('s_mov_b64 exec, -1')
        A(f's_add_u32 s{S_STO}, s{S_STO}, 64')
    if cut is not None:
        A.label('L_cut')
        A.wait_all()
        rebuild()
        A.wait_all()
        A('s_sleep 8')
        A(f's_cmp_eq_u32 s{S_STEP}, {nsteps - 1}')
        A(f's_cbranch_scc1 {done}')
    A(f's_add_u32 s{S_PUBL}, s{S_PUBL}, 10240')
    A(f's_xor_b32 s{S_PAR}, s{S_PAR}, 1')
    A(f's_add_u32 s{S_STEP}, s{S_STEP}, 1')
    A.branch(f's_branch {top}')
    for f_ in deferred:
        f_()
    A.label(done)
    pub_store(PUBT)
    A.wait_all()
    A('s_barrier')
    m_flag()
    if coarse:
        A('s_memrealtime s[92:93]')
        A('s_memtime s[94:95]')
        A('s_waitcnt lgkmcnt(0)')
        A(f's_lshl_b32 s{S_TMP}, s{S_H}, 3')
        A(f's_lshl_b32 s{S_TMP + 1}, s{S_T}, 2')
        A(f's_add_u32 s{S_TMP}, s{S_TMP}, s{S_TMP + 1}')
        A(f's_add_u32 s{S_TMP}, s{S_TMP}, s{S_WV}')
        A(f's_lshl_b32 s{S_TMP}, s{S_TMP}, 6')
        A(f's_add_u32 s{S_TMP}, s{S_TMP}, {WS_STAMP + 0x200000:#x}')
        A('s_mov_b64 exec, 1')
        A(f'v_mov_b32 v{T1}, s{S_TMP}')
        for i in range(6):
            A(f'v_mov_b32 v{T0}, s{84 + 2 * i}')
            A(f'buffer_store_dword v{T0}, v{T1}, {WS}, 0 offen offset:{4 * i}')
        A(f'v_mov_b32 v{T0}, s{S_SPIN}')
        A(f'buffer_store_dword v{T0}, v{T1}, {WS}, 0 offen offset:24')
        A(f'v_mov_b32 v{T0}, s85')
        A(f'buffer_store_dword v{T0}, v{T1}, {WS}, 0 offen offset:28')
        A.wait_all()
```
